```python
import torch

def _softmax(x, axis=-1):
    return torch.softmax(x, dim=axis)
def _gelu(x):
    return torch.nn.functional.gelu(x, approximate="tanh")
def _silu(x):
    return torch.nn.functional.silu(x)
def _sigmoid(x):
    return torch.sigmoid(x)
def _layernorm(x, axis=-1, eps=1e-5):
    m = x.mean(dim=axis, keepdim=True)
    v = x.var(dim=axis, keepdim=True, unbiased=False)
    return (x - m) / torch.sqrt(v + eps)
def _scatter_add(tgt, idx, src, axis=0):
    return tgt.clone().index_add_(axis, idx, src)
def _segment_sum(src, seg, n):
    out = torch.zeros((n,) + src.shape[1:], dtype=src.dtype)
    return out.index_add_(0, seg, src)
def _pad(x, pw):
    flat = tuple(v for pair in reversed(pw) for v in pair)
    return torch.nn.functional.pad(x, flat)

kernel_name = 'interleave_layers__linear_kernel_hedgehog__mixer_s_mlp__prompt'

def setup_inputs():

    _w = (lambda a: (lambda t: t.to(torch.bfloat16) if t.is_floating_point() else t)(torch.as_tensor(a)))
    def _A_setup():
        B, S, D, H = 1, 2048, 640, 32
        Dh = D // H
        return {
            "x": _w((lambda *s: torch.randn(*s, dtype=torch.bfloat16) * 0.05)(B, S, D)),
            "wqkv": _w((lambda *s: torch.randn(*s, dtype=torch.bfloat16) * 0.4)(D, 3 * D)),
            "w_phi": _w((lambda *s: torch.randn(*s, dtype=torch.bfloat16) * 0.4)(H, Dh, Dh) * (Dh ** -0.5)),
            "wo": _w((lambda *s: torch.randn(*s, dtype=torch.bfloat16) * 0.05)(D, D)),
        }
    _A_in = _A_setup()

    def _B_setup():
        B, S, D, F = 1, 2048, 640, 1536
        return {
            "x":  _w((lambda *s: torch.randn(*s, dtype=torch.bfloat16) * 0.05)(B, S, D)),
            "w1": _w((lambda *s: torch.randn(*s, dtype=torch.bfloat16) * 3.2)(D, D) * (D ** -0.5)),
            "w2": _w((lambda *s: torch.randn(*s, dtype=torch.bfloat16) * 3.2)(D, D) * (D ** -0.5)),
            "w3": _w((lambda *s: torch.randn(*s, dtype=torch.bfloat16) * 3.2)(D, F) * (D ** -0.5)),
            "w4": _w((lambda *s: torch.randn(*s, dtype=torch.bfloat16) * 3.2)(F, D) * (F ** -0.5)),
        }
    _B_in = _B_setup()

    return {
        "A_x": _A_in["x"],
        "A_wqkv": _A_in["wqkv"],
        "A_w_phi": _A_in["w_phi"],
        "A_wo": _A_in["wo"],
        "B_x": _B_in["x"],
        "B_w1": _B_in["w1"],
        "B_w2": _B_in["w2"],
        "B_w3": _B_in["w3"],
        "B_w4": _B_in["w4"],
    }

def reference(A_x, A_wqkv, A_w_phi, A_wo, B_x, B_w1, B_w2, B_w3, B_w4):
    def _A_ref(x, wqkv, w_phi, wo):
        B, S, D = x.shape
        H = 32; Dh = D // H
        qkv = (lambda x, *d: x.permute(*d))((x @ wqkv).reshape(B, S, 3, H, Dh), 2, 0, 3, 1, 4)
        q, k, v = qkv[0], qkv[1], qkv[2]
        pq = torch.einsum("bhsd,hdf->bhsf", q, w_phi)
        pk = torch.einsum("bhsd,hdf->bhsf", k, w_phi)
        phi_q = torch.concatenate([_softmax(pq, axis=-1), _softmax(-pq, axis=-1)], axis=-1)
        phi_k = torch.concatenate([_softmax(pk, axis=-1), _softmax(-pk, axis=-1)], axis=-1)
        kv = torch.einsum("bhsf,bhsd->bhfd", phi_k, v)
        z  = torch.einsum("bhsf->bhf", phi_k)
        num = torch.einsum("bhqf,bhfd->bhqd", phi_q, kv)
        den = torch.einsum("bhqf,bhf->bhq", phi_q, z)[..., None] + 1e-6
        o = num / den
        return (lambda x, *d: x.permute(*d))(o, 0, 2, 1, 3).reshape(B, S, D) @ wo

    def _B_ref(x, w1, w2, w3, w4):
        B, S, D = x.shape
        h = _gelu(_layernorm(x, axis=-1) @ w1)
        c = D // 4
        g0 = _pad(h[:, :, 0*c:1*c], ((0, 0), (1, 0), (0, 0)))[:, :S, :]
        g1 = _pad(h[:, :, 1*c:2*c], ((0, 0), (0, 1), (0, 0)))[:, 1:, :]
        g2 = _pad(h[:, :, 2*c:3*c], ((0, 0), (2, 0), (0, 0)))[:, :S, :]
        g3 = _pad(h[:, :, 3*c:   ], ((0, 0), (0, 2), (0, 0)))[:, 2:, :]
        hs = torch.concatenate([g0, g1, g2, g3], axis=-1) @ w2
        x1 = x + hs
        h2 = _gelu(_layernorm(x1, axis=-1) @ w3) @ w4
        return x1 + h2

    x = A_x
    x = x + _A_ref(_layernorm(x, axis=-1), A_wqkv, A_w_phi, A_wo)
    x = x + _B_ref(_layernorm(x, axis=-1), B_w1, B_w2, B_w3, B_w4)
    x = x + _A_ref(_layernorm(x, axis=-1), A_wqkv, A_w_phi, A_wo)
    x = x + _B_ref(_layernorm(x, axis=-1), B_w1, B_w2, B_w3, B_w4)
    return x
```

```python
import re

REG_RE = re.compile(r'(?<![\w.])([vas])\[(\d+):(\d+)\]|(?<![\w.])([vas])(\d+)(?![\w])|(?<![\w])(vcc|exec|m0)(?![\w])')
TRANS = ('v_exp_f32', 'v_rcp_f32', 'v_rsq_f32', 'v_log_f32', 'v_sqrt_f32', 'v_sin_f32', 'v_cos_f32')

def regs_of(tok):
    out = []
    for m in REG_RE.finditer(tok):
        if m.group(1):
            out += [(m.group(1), i) for i in range(int(m.group(2)), int(m.group(3)) + 1)]
        elif m.group(4):
            out.append((m.group(4), int(m.group(5))))
        else:
            out.append((m.group(6), 0))
    return out

def split_ops(rest):
    ops, depth, cur = [], 0, ''
    for ch in rest:
        if ch in '[(': depth += 1
        if ch in '])': depth -= 1
        if ch == ',' and depth == 0:
            ops.append(cur.strip()); cur = ''
        else:
            cur += ch
    if cur.strip(): ops.append(cur.strip())
    if ops:
        last = ops[-1].split()
        ops[-1] = last[0]
        mods = last[1:]
    else:
        mods = []
    return ops, mods

class Ins:
    __slots__ = ('text', 'op', 'kind', 'dst', 'src', 'srcA', 'srcC', 'tag', 'wide', 'sdata', 'slowmark')
    def __init__(self, text, tag=None):
        self.text = text.strip(); self.tag = tag; self.slowmark = None
        parts = self.text.split(None, 1)
        op = parts[0]; self.op = op
        ops, mods = split_ops(parts[1]) if len(parts) > 1 else ([], [])
        R = [regs_of(o) for o in ops]
        flat = lambda L: [r for x in L for r in x]
        self.dst, self.src, self.srcA, self.srcC, self.wide, self.sdata = [], [], [], [], False, []
        if op.startswith('v_mfma'):
            self.kind = 'mfma'; self.dst = R[0]; self.srcA = R[1] + R[2]; self.srcC = R[3]; self.src = self.srcA + self.srcC
        elif op.startswith('v_'):
            self.kind = 'trans' if op in TRANS else 'valu'
            if op.startswith('v_permlane') and 'swap' in op:
                self.kind = 'permlane'; self.dst = R[0] + R[1]; self.src = R[0] + R[1]
            elif op.startswith(('v_add_co', 'v_sub_co', 'v_addc_co', 'v_subb_co')):
                self.dst = R[0] + R[1]; self.src = flat(R[2:])
            else:
                self.dst = R[0]; self.src = flat(R[1:])
                if op.startswith(('v_fmac', 'v_mac', 'v_dot2c', 'v_writelane')): self.src += R[0]
            if op.startswith(('v_readfirstlane', 'v_readlane')): self.kind = 'readlane'
            if op.endswith('_dpp'): self.kind = 'permlane'
        elif op.startswith(('buffer_load', 'global_load')):
            self.kind = 'vmem'
            if 'lds' in mods or '_lds_' in op:
                self.src = flat(R) + [('m0', 0)]; self.kind = 'dma'
            else:
                self.dst = R[0]; self.src = flat(R[1:])
                if 'd16' in op: self.src += R[0]
        elif op.startswith(('buffer_store', 'global_store', 'buffer_atomic', 'global_atomic')):
            self.kind = 'vmem'; self.src = flat(R)
            if op.startswith('buffer'): self.sdata = R[0]
            else: self.sdata = R[1]
            self.wide = op.endswith(('x3', 'x4'))
            if 'atomic' in op and 'sc0' in mods: self.dst = R[0]
        elif op.startswith('ds_'):
            self.kind = 'ds'
            if op.startswith(('ds_read', 'ds_bpermute', 'ds_permute', 'ds_swizzle')):
                self.dst = R[0]; self.src = flat(R[1:])
            else:
                self.src = flat(R)
        elif op == 's_nop':
            self.kind = 'nop'
        elif op.startswith(('s_load', 's_memtime', 's_memrealtime')):
            self.kind = 'smem'; self.dst = R[0]; self.src = flat(R[1:])
        elif op.startswith('s_'):
            self.kind = 'salu'
            if op.startswith(('s_cmp', 's_cbranch', 's_branch', 's_waitcnt', 's_barrier', 's_sleep', 's_endpgm', 's_setprio', 's_bitcmp')):
                self.src = flat(R)
            else:
                self.dst = R[0] if R else []; self.src = flat(R[1:])
                if 'saveexec' in op: self.dst = self.dst + [('exec', 0)]
        else:
            raise ValueError('unknown op ' + text)
    def states(self):
        if self.kind == 'nop': return int(self.text.split()[1], 0) + 1
        return 1

class Wait:
    def __init__(self, vm=False, lg=False):
        self.vm = vm; self.lg = lg
class Label:
    def __init__(self, name): self.name = name
class Raw:
    def __init__(self, text): self.text = text
class Mark:
    def __init__(self, kind, idx): self.kind = kind; self.idx = idx

VALU_KINDS = ('valu', 'trans', 'permlane', 'readlane')

def need_states(p, c):
    n = 0
    pd, cs, cd = set(p.dst), set(c.src), set(c.dst)
    if p.kind in VALU_KINDS:
        vd = {r for r in pd if r[0] in 'va'}
        sd = {r for r in pd if r[0] in ('s', 'vcc', 'exec')}
        if vd:
            if c.kind == 'mfma' and vd & cs: n = max(n, 2)
            if c.kind == 'permlane' and vd & cs: n = max(n, 2)
            if c.kind == 'readlane' and vd & cs: n = max(n, 1)
            if p.kind == 'trans' and c.kind in ('valu', 'permlane', 'readlane', 'mfma') and vd & cs: n = max(n, 1)
        if sd:
            if c.kind in VALU_KINDS and sd & cs: n = max(n, 4 if c.kind == 'readlane' else 2)
            if c.kind in ('vmem', 'dma') and sd & cs: n = max(n, 5)
            if c.kind in ('salu', 'smem') and sd & cs: n = max(n, 1)
    if p.kind == 'mfma':
        if c.kind == 'mfma':
            if pd & set(c.srcA): n = max(n, 8)
            if pd & set(c.srcC) and p.dst != c.srcC: n = max(n, 6)
            if pd & cd and p.dst != c.srcC: n = max(n, 8)
        elif c.kind in VALU_KINDS or c.kind in ('vmem', 'dma', 'ds'):
            if pd & (cs | cd): n = max(n, 8)
        if c.kind in VALU_KINDS and set(p.srcC) & cd: n = max(n, 3)
    if p.kind == 'salu' and ('m0', 0) in pd and c.kind == 'dma': n = max(n, 1)
    if p.kind == 'vmem' and p.wide and set(p.sdata) & cd:
        n = max(n, 2 if c.kind in VALU_KINDS or c.kind == 'mfma' else 1)
    return n

class Asm:
    def __init__(self):
        self.items = []
        self.nslow = 0
        self.nlab = 0
    def I(self, text, tag=None):
        for t in text.split('\n'):
            t = t.split(';')[0].strip()
            if t: self.items.append(Ins(t, tag))
    def wait(self, vm=False, lg=False): self.items.append(Wait(vm, lg))
    def label(self, name): self.items.append(Label(name))
    def raw(self, text): self.items.append(Raw(text))
    def comment(self, text): self.items.append(Raw('    ; ' + text))
    def newlabel(self, base='L'):
        self.nlab += 1; return f'{base}_{self.nlab}'
    def extend(self, items): self.items.extend(items)
    def capture(self):
        asm = self
        class C:
            def __enter__(s):
                s.saved = asm.items; asm.items = []; s.items = asm.items; return s
            def __exit__(s, *a):
                asm.items = s.saved
        return C()
    def slow_begin(self, smode):
        self.nslow += 1
        self.I(f's_cmp_eq_u32 {smode}, 0')
        self.I(f's_cbranch_scc1 SLOW_{self.nslow}')
        self.items.append(Mark('sb', self.nslow))
    def slow_end(self):
        self.items.append(Mark('se', self.nslow))
        self.items.append(Label(f'BACK_{self.nslow}'))
    def finalize(self):
        out = []; vmq = []; lgq = []
        def resolve(q, t, mx):
            if t is False: return None
            if t is None:
                q.clear(); return 0
            tags = t if isinstance(t, (list, set)) else (t,)
            idx = -1
            for i, x in enumerate(q):
                if x in tags: idx = i
            if idx < 0: return None
            n = len(q) - 1 - idx
            if n > mx: n = mx
            del q[:len(q) - n]
            return n
        for it in self.items:
            if isinstance(it, Wait):
                v = resolve(vmq, it.vm, 63); l = resolve(lgq, it.lg, 15)
                parts = []
                if v is not None: parts.append(f'vmcnt({v})')
                if l is not None: parts.append(f'lgkmcnt({l})')
                if parts:
                    prev = out[-1] if out else None
                    if isinstance(prev, Ins) and prev.op == 's_waitcnt' and not any(p.split('(')[0] in prev.text for p in parts):
                        out[-1] = Ins(prev.text + ' ' + ' '.join(parts))
                    else:
                        out.append(Ins('s_waitcnt ' + ' '.join(parts)))
                continue
            if isinstance(it, Ins):
                if it.kind in ('vmem', 'dma'): vmq.append(it.tag)
                elif it.kind == 'ds': lgq.append(it.tag)
                elif it.kind == 'smem': lgq.append('SMEM'); lgq.append('SMEM')
            out.append(it)
        res = []; hist = []
        for it in out:
            if isinstance(it, Ins):
                need = 0; dist = 0
                for p in reversed(hist):
                    if dist >= 12: break
                    n = need_states(p, it)
                    if n > dist: need = max(need, n - dist)
                    dist += p.states()
                if need > 0:
                    nop = Ins(f's_nop {need - 1}')
                    res.append(nop); hist.append(nop)
                hist.append(it)
                if len(hist) > 16: del hist[:-16]
            res.append(it)
        stubs = []; cur = None
        main = []
        for it in res:
            if isinstance(it, Mark):
                if it.kind == 'sb': cur = [Label(f'SLOW_{it.idx}')]
                else:
                    cur.append(Ins(f's_branch BACK_{it.idx}')); stubs += cur; cur = None
                continue
            main.append(it)
            if cur is not None and isinstance(it, Ins):
                if it.kind == 'vmem' and 'store' in it.op and ' sc1' not in it.text:
                    cur.append(Ins(it.text + ' sc1'))
                else:
                    cur.append(it)
        def fmt(it):
            if isinstance(it, Ins): return '    ' + it.text
            if isinstance(it, Label): return it.name + ':'
            return it.text
        n = sum(isinstance(x, Ins) for x in main + stubs)
        return '\n'.join(fmt(x) for x in main), '\n'.join(fmt(x) for x in stubs), n

def interleave(main, fill, ratio=2, after=lambda it: isinstance(it, Ins) and it.kind == 'mfma', start=0):
    out = []; fi = 0; cnt = 0; credit = 0.0
    def cost(x):
        if isinstance(x, Ins): return 2 if x.kind == 'trans' else 1
        return 0
    for it in main:
        out.append(it)
        if after(it):
            cnt += 1
            if cnt > start:
                credit += ratio
                while fi < len(fill) and credit >= cost(fill[fi]):
                    credit -= cost(fill[fi]); out.append(fill[fi]); fi += 1
    out += fill[fi:]
    return out
```

```python
import sys, struct, math
from asmlib import *

NAME = "interleave_layers__linear_kernel_hedgehog__mixer_s_mlp__prompt_kernel"
MB = 1 << 20
WT_QKV, WT_O, WT_1, WT_2, WT_3, WT_4 = 0, 3*MB, 4*MB, 5*MB, 6*MB, 8*MB
APHI = 10*MB
SYNC = 13*MB
CNT, FL, FLO, FLH = SYNC, SYNC+0x1000, SYNC+0x2000, SYNC+0x4000
KVP = 14*MB
def LB(l): return 18*MB + l*24*MB
def XA(l): return LB(l)
def OB(l): return LB(l)+3*MB
def XB(l): return LB(l)+6*MB
def HB(l): return LB(l)+9*MB
def HD(l): return LB(l)+12*MB
def X1(l): return LB(l)+15*MB
def H2(l): return LB(l)+18*MB
STAMP = 80*MB
BANK = 20480
OOB = 0x80000000
def f2u(x): return struct.unpack('<I', struct.pack('<f', x))[0]
LOG2E = 1.4426950408889634
GC0 = -2.0*math.sqrt(2.0/math.pi)*LOG2E
GC1 = GC0*0.044715

WS = 's[8:11]'; TS = 's[12:15]'; OUT = 's[16:19]'
P_X, P_QKV, P_PHI, P_O, P_1, P_2, P_3, P_4, P_OUT, P_DBG, P_WS = 20, 22, 24, 26, 30, 32, 34, 36, 38, 40, 42
_sn = [44]
def S(n=1, align=1):
    while _sn[0] % align: _sn[0] += 1
    r = _sn[0]; _sn[0] += n; return r
sXG, sH, sCL, sJ, sC, sW, sMODE, sTT = [f's{S()}' for _ in range(8)]
sA21, sH21, sS21, sT21, sA20, sH20, sT20, sT48 = [f's{S()}' for _ in range(8)]
sW5, sW4, sWQ, sLW, sOutA, sOutH, sEdge, sDead = [f's{S()}' for _ in range(8)]
sQT21, sO4, sO1, sKVo, sKVi, sA48, sH48, sC21, sFLo, sFLOo, sFLHo, sWB, sAPH, sW3 = [f's{S()}' for _ in range(14)]
sT = [f's{S()}' for _ in range(10)]
sSpin = f's{S()}'
_p = S(2, 2); sStamp = f's[{_p}:{_p+1}]'; sStampLo = f's{_p}'
sStampOff = f's{S()}'
assert _sn[0] <= 100, _sn

vL16, vL16b, vL16c, vS8, vST, vFl = 'v1', 'v2', 'v3', 'v4', 'v5', 'v6'
vT0, vT1 = 'v7', 'v18'
RES = 8
def v(i): return f'v{i}'
def vr(i, n): return f'v[{i}:{i+n-1}]'
def ar(i, n): return f'a[{i}:{i+n-1}]'

class Gen:
    def __init__(self, stop=None, stamps=False):
        self.a = Asm(); self.stop = stop; self.stamps = stamps; self.nstamp = 0; self.stampnames = []
    def I(self, t, tag=None): self.a.I(t, tag)
    def lds(self, off):
        base = [vL16, vL16b, vL16c][off >> 16]; return base, off & 0xffff
    def stamp(self, name):
        if not self.stamps: return
        I = self.I
        I(f's_memrealtime {sStamp}')
        self.a.wait(lg=None)
        I(f'v_mov_b32 v19, {sStampLo}')
        I(f's_add_u32 {sT[9]}, {sStampOff}, {self.nstamp*4}')
        I(f'buffer_store_dword v19, off, {WS}, {sT[9]}', tag='stamp')
        self.nstamp += 1; self.stampnames.append(name)

    def dma_bank(self, sbase, const, bank, tag, nper=5, sc=''):
        I = self.I
        I(f's_add_u32 {sT[0]}, {sbase}, {const}')
        I(f's_add_u32 m0, {sLW}, {bank*BANK}')
        for i in range(min(nper, 4)):
            I(f'buffer_load_dwordx4 {vL16}, {WS}, {sT[0]} offen offset:{i*1024} {sc} lds', tag)
        if nper == 5:
            I(f's_add_u32 {sT[0]}, {sT[0]}, 4096')
            I(f's_add_u32 m0, m0, 4096')
            I(f'buffer_load_dwordx4 {vL16}, {WS}, {sT[0]} offen {sc} lds', tag)

    def poll(self, voff, soff, val):
        a = self.a; I = self.I
        L = a.newlabel('POLL'); D = a.newlabel('PDONE')
        I(f's_mov_b32 {sSpin}, {sDead}')
        a.label(L)
        I(f'buffer_load_dword {vT0}, {voff}, {WS}, {soff} offen sc1')
        a.wait(vm=None)
        I(f'v_cmp_le_u32 vcc, {val}, {vT0}')
        I(f's_cmp_eq_u64 vcc, -1')
        I(f's_cbranch_scc1 {D}')
        I(f's_sub_u32 {sSpin}, {sSpin}, 1')
        I(f's_cbranch_scc0 {L}')
        I(f's_mov_b32 {sDead}, 0')
        a.label(D)

    def setflag(self, soff, val, sc1=False, vmask=None):
        I = self.I
        I(f'v_mov_b32 {vT0}, {val}')
        I(f'v_mov_b32 {vT1}, {vmask if vmask else 0}')
        I(f's_mov_b64 exec, 1')
        if sc1:
            I(f'buffer_store_dword {vT0}, {vT1}, {WS}, {soff} offen sc1', 'flag')
        else:
            self.a.slow_begin(sMODE)
            I(f'buffer_store_dword {vT0}, {vT1}, {WS}, {soff} offen', 'flag')
            self.a.slow_end()
        I(f's_mov_b64 exec, -1')

    def pack(self, dst, src, n):
        for i in range(n): self.I(f'v_cvt_pk_bf16_f32 v{dst+i}, v{src+2*i}, v{src+2*i+1}')
    def unpack(self, dst, src, n):
        for i in range(n):
            self.I(f'v_lshlrev_b32 v{dst+2*i}, 16, v{src+i}')
            self.I(f'v_and_b32 v{dst+2*i+1}, 0xffff0000, v{src+i}')

    def prod_stats(self, acc, t):
        I = self.I
        I(f'v_pk_add_f32 {vr(t,2)}, {vr(acc,2)}, {vr(acc+2,2)}')
        I(f'v_pk_mul_f32 {vr(t+2,2)}, {vr(acc,2)}, {vr(acc,2)}')
        I(f'v_pk_fma_f32 {vr(t+2,2)}, {vr(acc+2,2)}, {vr(acc+2,2)}, {vr(t+2,2)}')
        for i in range(2, 10):
            I(f'v_pk_add_f32 {vr(t,2)}, {vr(t,2)}, {vr(acc+2*i,2)}')
            I(f'v_pk_fma_f32 {vr(t+2,2)}, {vr(acc+2*i,2)}, {vr(acc+2*i,2)}, {vr(t+2,2)}')
        I(f'v_add_f32 v{t}, v{t}, v{t+1}')
        I(f'v_add_f32 v{t+2}, v{t+2}, v{t+3}')
        I(f'v_permlane32_swap_b32 v{t}, v{t+2}')
        I(f'v_add_f32 v{t}, v{t}, v{t+2}')
        I(f'v_mov_b32 v{t+1}, v{t}')
        I(f'v_permlane16_swap_b32 v{t}, v{t+1}')
        I(f'v_add_f32 v{t}, v{t}, v{t+1}')

    def cons_stats(self, F, nm, r, double=False, r1=None):
        I = self.I
        I(f'v_pk_add_f32 {vr(F,2)}, {vr(F,2)}, {vr(F+2,2)}')
        I(f'v_permlane32_swap_b32 v{F}, v{F+1}')
        I(f'v_add_f32 v{F}, v{F}, v{F+1}')
        I(f'v_mov_b32 v{F+1}, v{F}')
        I(f'v_permlane16_swap_b32 v{F}, v{F+1}')
        I(f'v_add_f32 v{F}, v{F}, v{F+1}')
        I(f'v_mov_b32 v{F+1}, v{F}')
        I(f'v_permlane32_swap_b32 v{F}, v{F+1}')
        I(f'v_mul_f32 v{nm}, {hex(f2u(-1.0/640))}, v{F}')
        I(f'v_mul_f32 v{F+1}, {hex(f2u(1.0/640))}, v{F+1}')
        I(f'v_fma_f32 v{F+1}, -v{nm}, v{nm}, v{F+1}')
        I(f'v_max_f32 v{F+1}, 0, v{F+1}')
        I(f'v_add_f32 v{F+2}, {hex(f2u(1e-5))}, v{F+1}')
        if not double:
            I(f'v_rsq_f32 v{r}, v{F+2}')
        else:
            I(f'v_rsq_f32 v{r1}, v{F+2}')
            I(f'v_mul_f32 v{F+1}, v{F+1}, v{r1}')
            I(f'v_mul_f32 v{F+1}, v{F+1}, v{r1}')
            I(f'v_add_f32 v{F+1}, {hex(f2u(1e-5))}, v{F+1}')
            I(f'v_rsq_f32 v{F+1}, v{F+1}')
            I(f'v_mul_f32 v{r}, v{r1}, v{F+1}')

    def lnfix(self, acc, cw, n2, nm, r):
        for i in range(n2):
            self.I(f'v_pk_fma_f32 {vr(acc+2*i,2)}, {vr(cw+2*i,2)}, {vr(nm,2)}, {vr(acc+2*i,2)} op_sel_hi:[1,0,1]')
        for i in range(n2):
            self.I(f'v_pk_mul_f32 {vr(acc+2*i,2)}, {vr(acc+2*i,2)}, {vr(r,2)} op_sel_hi:[1,0]')

    def gelu(self, x, n2, t, K):
        I = self.I
        for i in range(n2): I(f'v_pk_mul_f32 {vr(t+2*i,2)}, {vr(x+2*i,2)}, {vr(x+2*i,2)}')
        for i in range(n2): I(f'v_pk_fma_f32 {vr(t+2*i,2)}, {vr(t+2*i,2)}, {vr(K,2)}, {vr(K,2)} op_sel:[0,0,1] op_sel_hi:[1,0,1]')
        for i in range(n2): I(f'v_pk_mul_f32 {vr(t+2*i,2)}, {vr(t+2*i,2)}, {vr(x+2*i,2)}')
        for i in range(2*n2): I(f'v_exp_f32 v{t+i}, v{t+i}')
        for i in range(n2): I(f'v_pk_add_f32 {vr(t+2*i,2)}, {vr(t+2*i,2)}, {vr(K+2,2)} op_sel_hi:[1,0]')
        for i in range(2*n2): I(f'v_rcp_f32 v{t+i}, v{t+i}')
        for i in range(n2): I(f'v_pk_mul_f32 {vr(x+2*i,2)}, {vr(x+2*i,2)}, {vr(t+2*i,2)}')
    def gelu_consts(self, K):
        self.I(f'v_mov_b32 v{K}, {hex(f2u(GC1))}')
        self.I(f'v_mov_b32 v{K+1}, {hex(f2u(GC0))}')
        self.I(f'v_mov_b32 v{K+2}, 1.0')

    def store_tile(self, P, buf, sA, sHh, sc1=False, vA=vL16, vH=vS8, tag='st'):
        I = self.I
        sc = ' sc1' if sc1 else ''
        I(f's_add_u32 {sT[0]}, {sA}, {buf}')
        I(f's_add_u32 {sT[1]}, {sHh}, {buf}')
        if not sc1: self.a.slow_begin(sMODE)
        I(f'buffer_store_dwordx4 {vr(P,4)}, {vA}, {WS}, {sT[0]} offen{sc}', tag)
        I(f'buffer_store_dwordx4 {vr(P+4,4)}, {vA}, {WS}, {sT[0]} offen offset:1024{sc}', tag)
        I(f'buffer_store_dwordx2 {vr(P+8,2)}, {vH}, {WS}, {sT[1]} offen{sc}', tag)
        if not sc1: self.a.slow_end()
    def store_stats(self, t, buf, sc1=False, tag='st'):
        I = self.I
        I(f's_add_u32 {sT[0]}, {sS21}, {buf}')
        if not sc1: self.a.slow_begin(sMODE)
        I(f'buffer_store_dword v{t}, {vST}, {WS}, {sT[0]} offen' + (' sc1' if sc1 else ''), tag)
        if not sc1: self.a.slow_end()

    def load_frag(self, dst, voff, sbase, const, idx, tag, areg=False, sc=' sc1', state={}):
        key = (sbase, const, idx >> 2)
        if self._lf != key:
            self.I(f's_add_u32 {sT[2]}, {sbase}, {const + (idx >> 2)*4096}')
            self._lf = key
        d = ar(dst, 4) if areg else vr(dst, 4)
        self.I(f'buffer_load_dwordx4 {d}, {voff}, {WS}, {sT[2]} offen offset:{(idx & 3)*1024}{sc}', tag)
    _lf = None

    def prologue(self):
        a = self.a; I = self.I
        I('s_cmp_ge_u32 s2, 256')
        I('s_cbranch_scc1 KEND')
        I('s_load_dwordx16 s[20:35], s[0:1], 0')
        I('s_load_dwordx8 s[36:43], s[0:1], 64')
        I('v_lshrrev_b32 v7, 6, v0')
        I(f'v_readfirstlane_b32 {sW}, v7')
        I('v_and_b32 v0, 63, v0')
        I(f's_and_b32 {sXG}, s2, 7')
        I(f's_lshr_b32 {sH}, s2, 3')
        I(f's_lshr_b32 {sCL}, {sH}, 3')
        I(f's_and_b32 {sJ}, {sH}, 7')
        I(f's_lshl_b32 {sC}, {sXG}, 2')
        I(f's_add_u32 {sC}, {sC}, {sCL}')
        I(f's_lshl_b32 {sTT}, {sC}, 2')
        I(f's_add_u32 {sTT}, {sTT}, {sW}')
        I(f's_mov_b32 {sDead}, 400000')
        I(f's_mov_b32 {sMODE}, 0')
        I(f's_mul_i32 {sT[0]}, {sJ}, 5')
        I(f's_add_u32 {sT[0]}, {sT[0]}, 1')
        I(f's_lshr_b32 {sT[0]}, {sT[0]}, 1')
        I(f's_lshl_b32 {sT[1]}, {sT[0]}, 10')
        I(f's_mul_i32 {sT[2]}, {sJ}, 2560')
        I(f's_bitcmp0_b32 {sJ}, 0')
        I(f's_cselect_b32 {sT[3]}, 2048, 0')
        I(f's_add_u32 {sT[2]}, {sT[2]}, {sT[3]}')
        I(f's_mul_i32 {sT21}, {sTT}, 21504')
        I(f's_mul_i32 {sT20}, {sTT}, 20480')
        I(f's_mul_i32 {sT48}, {sTT}, 49152')
        I(f's_add_u32 {sA21}, {sT21}, {sT[1]}')
        I(f's_add_u32 {sH21}, {sT21}, {sT[2]}')
        I(f's_add_u32 {sA20}, {sT20}, {sT[1]}')
        I(f's_add_u32 {sH20}, {sT20}, {sT[2]}')
        I(f's_lshr_b32 {sT[3]}, {sJ}, 1')
        I(f's_lshl_b32 {sT[3]}, {sT[3]}, 8')
        I(f's_and_b32 {sT[4]}, {sJ}, 1')
        I(f's_lshl_b32 {sT[4]}, {sT[4]}, 3')
        I(f's_add_u32 {sS21}, {sT21}, {sT[3]}')
        I(f's_add_u32 {sS21}, {sS21}, {sT[4]}')
        I(f's_add_u32 {sS21}, {sS21}, 20480')
        I(f's_lshr_b32 {sT[1]}, {sT[1]}, 4')
        I(f's_lshr_b32 {sT[2]}, {sT[2]}, 4')
        I(f's_add_u32 {sOutA}, {sT20}, {sT[1]}')
        I(f's_add_u32 {sOutH}, {sT20}, {sT[2]}')
        I(f's_mul_i32 {sLW}, {sW}, 5120')
        I(f's_mul_i32 {sW5}, {sJ}, 102400'); I(f's_add_u32 {sW5}, {sW5}, {sLW}')
        I(f's_mul_i32 {sW4}, {sJ}, 245760'); I(f's_add_u32 {sW4}, {sW4}, {sLW}')
        I(f's_mul_i32 {sWQ}, {sH}, 81920');  I(f's_add_u32 {sWQ}, {sWQ}, {sLW}')
        I(f's_lshl_b32 {sT[0]}, {sXG}, 2'); I(f's_add_u32 {sT[0]}, {sT[0]}, {sW}')
        I(f's_mul_i32 {sQT21}, {sT[0]}, {4*21504}')
        I(f's_mul_i32 {sT[1]}, {sT[0]}, {4*20480}')
        I(f's_lshl_b32 {sT[2]}, {sH}, 9'); I(f's_add_u32 {sO4}, {sT[1]}, {sT[2]}')
        I(f's_lshr_b32 {sT[2]}, {sH}, 1'); I(f's_lshl_b32 {sT[2]}, {sT[2]}, 8')
        I(f's_and_b32 {sT[3]}, {sH}, 1'); I(f's_lshl_b32 {sT[3]}, {sT[3]}, 3')
        I(f's_add_u32 {sO1}, {sT[1]}, {sT[2]}'); I(f's_add_u32 {sO1}, {sO1}, {sT[3]}'); I(f's_add_u32 {sO1}, {sO1}, 16384')
        I(f's_lshl_b32 {sT[2]}, {sT[0]}, 7'); I(f's_lshl_b32 {sT[3]}, {sH}, 2')
        I(f's_add_u32 {sFLOo}, {sT[2]}, {sT[3]}'); I(f's_add_u32 {sFLOo}, {sFLOo}, {FLO}')
        I(f's_lshl_b32 {sKVi}, {sH}, 16'); I(f's_lshl_b32 {sT[2]}, {sW}, 10'); I(f's_add_u32 {sKVi}, {sKVi}, {sT[2]}')
        I(f's_add_u32 {sKVi}, {sKVi}, {KVP}')
        I(f's_lshl_b32 {sT[2]}, {sXG}, 13'); I(f's_add_u32 {sKVo}, {sKVi}, {sT[2]}')
        I(f's_lshl_b32 {sT[0]}, {sJ}, 2'); I(f's_add_u32 {sT[0]}, {sT[0]}, {sW}')
        I(f's_mul_i32 {sW3}, {sT[0]}, 61440')
        I(f's_mul_i32 {sT[1]}, {sT[0]}, 3'); I(f's_add_u32 {sT[1]}, {sT[1]}, 1'); I(f's_lshr_b32 {sT[1]}, {sT[1]}, 1'); I(f's_lshl_b32 {sT[1]}, {sT[1]}, 10')
        I(f's_mul_i32 {sT[2]}, {sT[0]}, 1536')
        I(f's_bitcmp0_b32 {sT[0]}, 0'); I(f's_cselect_b32 {sT[3]}, 1024, 0'); I(f's_add_u32 {sT[2]}, {sT[2]}, {sT[3]}')
        I(f's_mul_i32 {sT[3]}, {sC}, {4*49152}')
        I(f's_add_u32 {sA48}, {sT[3]}, {sT[1]}'); I(f's_add_u32 {sH48}, {sT[3]}, {sT[2]}')
        I(f's_mul_i32 {sC21}, {sC}, {4*21504}')
        I(f's_lshl_b32 {sFLo}, {sTT}, 5'); I(f's_lshl_b32 {sT[2]}, {sJ}, 2'); I(f's_add_u32 {sFLo}, {sFLo}, {sT[2]}'); I(f's_add_u32 {sFLo}, {sFLo}, {FL}')
        I(f's_and_b32 {sT[0]}, {sTT}, 15')
        I(f's_mov_b32 {sEdge}, {OOB}')
        I(f's_cmp_eq_u32 {sT[0]}, 0');  I(f's_cselect_b32 {sEdge}, 0, {sEdge}')
        I(f's_cmp_eq_u32 {sT[0]}, 15'); I(f's_cselect_b32 {sEdge}, 0, {sEdge}'); I(f's_cselect_b32 {sT[1]}, 1, 0')
        I(f's_cmp_eq_u32 {sTT}, 0');   I(f's_cselect_b32 {sEdge}, {OOB}, {sEdge}')
        I(f's_cmp_eq_u32 {sTT}, 127'); I(f's_cselect_b32 {sEdge}, {OOB}, {sEdge}')
        I(f's_lshl_b32 {sT[2]}, {sXG}, 1'); I(f's_add_u32 {sT[2]}, {sT[2]}, {sT[1]}'); I(f's_lshl_b32 {sT[2]}, {sT[2]}, 3')
        I(f's_add_u32 {sT[2]}, {sT[2]}, {sJ}'); I(f's_lshl_b32 {sT[2]}, {sT[2]}, 7'); I(f's_add_u32 {sFLHo}, {sT[2]}, {FLH}')
        I(f's_mul_i32 {sAPH}, s2, 12288'); I(f's_add_u32 {sAPH}, {sAPH}, {APHI}')
        I(f'v_lshlrev_b32 {vL16}, 4, v0')
        I(f'v_add_u32 {vL16b}, 0x10000, {vL16}')
        I(f'v_add_u32 {vL16c}, 0x20000, {vL16}')
        I('v_and_b32 v20, 15, v0')
        I('v_lshrrev_b32 v21, 4, v0')
        I('v_lshrrev_b32 v22, 5, v0')
        I('v_and_b32 v23, 1, v21')
        I('v_lshlrev_b32 v24, 4, v20')
        I(f'v_lshl_add_u32 {vS8}, v22, 8, v24')
        I(f'v_lshl_add_u32 {vS8}, v23, 3, {vS8}')
        I(f'v_lshl_add_u32 {vST}, v22, 2, v24')
        I(f'v_and_b32 {vFl}, 31, v0')
        I(f'v_lshlrev_b32 {vFl}, 2, {vFl}')
        a.wait(lg=None)
        I(f's_mov_b32 s8, s{P_WS}'); I(f's_and_b32 s9, s{P_WS+1}, 0xffff'); I('s_mov_b32 s10, 0x10000000'); I('s_mov_b32 s11, 0x20000')
        I(f's_mov_b32 s16, s{P_OUT}'); I(f's_and_b32 s17, s{P_OUT+1}, 0xffff'); I('s_mov_b32 s18, 2621440'); I('s_mov_b32 s19, 0x20000')
        I('s_mov_b32 s15, 0x20000')
        if self.stamps:
            I(f's_lshl_b32 {sStampOff}, s2, 2'); I(f's_add_u32 {sStampOff}, {sStampOff}, {sW}'); I(f's_lshl_b32 {sStampOff}, {sStampOff}, 8')
            I(f's_add_u32 {sStampOff}, {sStampOff}, {STAMP}')
        self.stamp('start')

    def tsrd(self, p, nbytes):
        self.I(f's_mov_b32 s12, s{p}'); self.I(f's_and_b32 s13, s{p+1}, 0xffff'); self.I(f's_mov_b32 s14, {nbytes}')

    def prep(self):
        a = self.a; I = self.I
        sRS, sEx, sSrc, sDst, sTile, sU, sLB = sT[3], sT[4], sT[5], sT[6], sT[7], sT[8], sWB
        I(f's_lshl_b32 {sT[0]}, s2, 2'); I(f's_add_u32 {sT[0]}, {sT[0]}, {sW}')
        I(f's_cmp_lg_u32 {sT[0]}, 3'); I('s_cbranch_scc1 NOZERO')
        I('v_lshlrev_b32 v26, 7, v0'); I('v_mov_b32 v27, 0'); I('s_mov_b64 exec, 0xff')
        I(f's_mov_b32 {sT[0]}, {CNT}')
        I(f'buffer_store_dword v27, v26, {WS}, {sT[0]} offen sc1')
        a.wait(vm=None)
        I('s_mov_b64 exec, 1'); I('v_mov_b32 v26, 1')
        I(f'global_store_dword v27, v26, s[{P_DBG}:{P_DBG+1}] sc1')
        I('s_mov_b64 exec, -1')
        a.label('NOZERO')
        self.tsrd(P_X, 2621440)
        I('v_mul_u32_u24 v26, 1280, v20')
        I('v_lshl_add_u32 v27, v21, 4, v26')
        I('v_lshl_add_u32 v28, v21, 3, v26')
        I(f'buffer_load_dwordx4 {vr(RES,4)}, v27, {TS}, {sOutA} offen')
        I(f'buffer_load_dwordx4 {vr(RES+4,4)}, v27, {TS}, {sOutA} offen offset:64')
        I(f'buffer_load_dwordx2 {vr(RES+8,2)}, v28, {TS}, {sOutH} offen')
        I(f's_lshl_b32 {sLB}, {sW}, 14')
        I(f's_cmp_lt_u32 s2, 160'); I(f's_cselect_b32 {sT[0]}, 1, 0')
        I(f's_cmp_eq_u32 {sW}, 0'); I(f's_cselect_b32 {sT[1]}, 1, 0')
        I(f's_and_b32 {sT[0]}, {sT[0]}, {sT[1]}')
        I(f's_cmp_eq_u32 {sT[0]}, 1'); I('s_cbranch_scc1 PREP_QKV')
        I(f's_mul_i32 {sU}, s2, 3'); I(f's_add_u32 {sU}, {sU}, {sW}'); I(f's_sub_u32 {sU}, {sU}, 1')
        I(f's_lshl_b32 {sT[0]}, s2, 2'); I(f's_add_u32 {sT[0]}, {sT[0]}, {sW}'); I(f's_sub_u32 {sT[0]}, {sT[0]}, 160')
        I(f's_cmp_lt_u32 s2, 160'); I(f's_cselect_b32 {sU}, {sU}, {sT[0]}')
        I(f's_mov_b32 s12, s{P_O}'); I(f's_mov_b32 s13, s{P_O+1}'); I(f's_mov_b32 s14, 819200')
        I(f's_mov_b32 {sDst}, {WT_O}'); I(f's_mov_b32 {sTile}, 102400'); I(f's_mov_b32 {sT[0]}, {sU}')
        for thr, p, wt in ((160, P_1, WT_1), (320, P_2, WT_2), (480, P_4, WT_4)):
            I(f's_sub_u32 {sT[1]}, {sU}, {thr}')
            I(f's_cmp_ge_u32 {sU}, {thr}')
            I(f's_cselect_b32 s12, s{p}, s12'); I(f's_cselect_b32 s13, s{p+1}, s13')
            I(f's_cselect_b32 {sDst}, {wt}, {sDst}'); I(f's_cselect_b32 {sT[0]}, {sT[1]}, {sT[0]}')
        I(f's_cselect_b32 {sTile}, 245760, {sTile}'); I(f's_cselect_b32 s14, 1966080, s14')
        I(f's_and_b32 s13, s13, 0xffff')
        I(f's_lshr_b32 {sT[1]}, {sT[0]}, 1')
        I(f's_and_b32 {sT[0]}, {sT[0]}, 1')
        I(f's_lshl_b32 {sSrc}, {sT[1]}, 3'); I(f's_mov_b32 {sEx}, 0')
        I(f's_cmp_ge_u32 {sU}, 160'); I('s_cbranch_scc1 PREP_RB')
        I(f's_lshr_b32 {sT[2]}, {sT[1]}, 1'); I(f's_mul_i32 {sT[2]}, {sT[2]}, 20')
        I(f's_and_b32 {sSrc}, {sT[1]}, 1'); I(f's_lshl_b32 {sSrc}, {sSrc}, 3'); I(f's_add_u32 {sSrc}, {sSrc}, {sT[2]}')
        I(f's_cmp_lt_u32 {sT[1]}, 64'); I('s_cbranch_scc1 PREP_RB')
        I(f's_sub_u32 {sT[2]}, {sT[1]}, 64'); I(f's_mul_i32 {sSrc}, {sT[2]}, 40'); I(f's_add_u32 {sSrc}, {sSrc}, 16')
        I(f's_mov_b32 {sEx}, {16*1280}')
        a.label('PREP_RB')
        I(f's_mul_i32 {sSrc}, {sSrc}, 1280'); I(f's_mul_i32 {sT[2]}, {sT[0]}, 640'); I(f's_add_u32 {sSrc}, {sSrc}, {sT[2]}')
        I(f's_mul_i32 {sT[2]}, {sT[0]}, {sTile}'); I(f's_lshl_b32 {sT[2]}, {sT[2]}, 2'); I(f's_add_u32 {sDst}, {sDst}, {sT[2]}')
        I(f's_lshr_b32 {sT[2]}, {sT[1]}, 2'); I(f's_mul_i32 {sT[2]}, {sT[2]}, 5120'); I(f's_add_u32 {sDst}, {sDst}, {sT[2]}')
        I(f's_and_b32 {sT[2]}, {sT[1]}, 3'); I(f's_lshl_b32 {sT[2]}, {sT[2]}, 8'); I(f's_add_u32 {sDst}, {sDst}, {sT[2]}')
        for q in range(5):
            I(f'v_add_u32 v26, {64*q}, v0')
            I('v_mul_u32_u24 v27, 1639, v26'); I('v_lshrrev_b32 v27, 16, v27')
            I('v_mul_u32_u24 v28, 40, v27'); I('v_sub_u32 v28, v26, v28')
            I('v_mul_u32_u24 v29, 1280, v27'); I('v_lshl_add_u32 v29, v28, 4, v29')
            I('v_lshrrev_b32 v27, 2, v27'); I(f'v_mad_u32_u24 v29, v27, {sEx}, v29')
            I(f's_add_u32 m0, {sLB}, {q*1024}')
            I(f'buffer_load_dwordx4 v29, {TS}, {sSrc} offen lds')
        I(f's_cmp_lt_u32 {sU}, 224'); I('s_cbranch_scc1 PREP_NO3A')
        self.tsrd(P_3, 1966080)
        I(f's_sub_u32 {sT[0]}, {sU}, 224'); I(f's_lshr_b32 {sT[1]}, {sT[0]}, 3'); I(f's_and_b32 {sT[0]}, {sT[0]}, 7')
        I(f's_mul_i32 {sSrc}, {sT[1]}, {8*3072}'); I(f's_mul_i32 {sT[2]}, {sT[0]}, 384'); I(f's_add_u32 {sSrc}, {sSrc}, {sT[2]}')
        for q in range(3):
            I(f'v_add_u32 v26, {64*q}, v0')
            I('v_mul_u32_u24 v27, 2731, v26'); I('v_lshrrev_b32 v27, 16, v27')
            I('v_mul_u32_u24 v28, 24, v27'); I('v_sub_u32 v28, v26, v28')
            I('v_mul_u32_u24 v29, 3072, v27'); I('v_lshl_add_u32 v29, v28, 4, v29')
            I(f's_add_u32 m0, {sLB}, {5120+q*1024}')
            I(f'buffer_load_dwordx4 v29, {TS}, {sSrc} offen lds')
        I(f's_mul_i32 {sRS}, {sT[0]}, 245760'); I(f's_lshl_b32 {sT[2]}, {sT[1]}, 8'); I(f's_add_u32 {sRS}, {sRS}, {sT[2]}'); I(f's_add_u32 {sRS}, {sRS}, {WT_3}')
        a.label('PREP_NO3A')
        self.side_init()
        I('v_lshrrev_b32 v26, 2, v20'); I('v_and_b32 v27, 3, v20')
        I('v_mul_u32_u24 v28, 5, v21'); I('v_add_u32 v28, 1, v28'); I('v_lshrrev_b32 v28, 1, v28')
        I('v_mul_u32_u24 v29, 640, v26'); I(f'v_add_u32 v29, {sLB}, v29')
        I('v_lshl_add_u32 v30, v28, 6, v29'); I('v_lshl_add_u32 v30, v27, 4, v30')
        I('v_mul_u32_u24 v31, 160, v21'); I('v_xor_b32 v28, 1, v23'); I('v_lshl_add_u32 v31, v28, 7, v31')
        I('v_add_u32 v31, v31, v29'); I('v_lshl_add_u32 v31, v27, 3, v31')
        I(f'v_mul_lo_u32 v32, v21, {sTile}'); I('v_add_u32 v32, v32, v24')
        a.wait(vm=None)
        for i in range(5):
            b, o = ('v30', 64*(i >> 1) + 8*(i & 1)) if i < 4 else ('v31', 0)
            I(f'ds_read_b64_tr_b16 {vr(48+4*i,2)}, {b} offset:{o}')
            I(f'ds_read_b64_tr_b16 {vr(50+4*i,2)}, {b} offset:{o+2560}')
        a.wait(lg=None)
        for i in range(4): I(f'buffer_store_dwordx4 {vr(48+4*i,4)}, v32, {WS}, {sDst} offen offset:{i*1024} sc1')
        I(f's_add_u32 {sDst}, {sDst}, 4096')
        I(f'buffer_store_dwordx4 {vr(64,4)}, v32, {WS}, {sDst} offen sc1')
        I(f's_cmp_lt_u32 {sU}, 224'); I('s_cbranch_scc1 PREP_DONE')
        I('v_mul_u32_u24 v29, 384, v26'); I(f'v_add_u32 v29, {sLB}, v29'); I('v_mul_u32_u24 v28, 96, v21'); I('v_add_u32 v29, v29, v28')
        I('v_lshl_add_u32 v30, v23, 5, v29'); I('v_lshl_add_u32 v30, v27, 4, v30')
        I('v_xor_b32 v28, 1, v23'); I('v_lshl_add_u32 v31, v28, 6, v29'); I('v_lshl_add_u32 v31, v27, 3, v31')
        I('v_mul_u32_u24 v32, 61440, v21'); I('v_add_u32 v32, v32, v24')
        for i in range(3):
            b, o = ('v30', 8*i) if i < 2 else ('v31', 0)
            I(f'ds_read_b64_tr_b16 {vr(68+4*i,2)}, {b} offset:{5120+o}')
            I(f'ds_read_b64_tr_b16 {vr(70+4*i,2)}, {b} offset:{5120+o+1536}')
        a.wait(lg=None)
        for i in range(3):
            I(f'buffer_store_dwordx4 {vr(68+4*i,4)}, v32, {WS}, {sRS} offen sc1')
            if i < 2: I(f's_add_u32 {sRS}, {sRS}, 20480')
        I('s_branch PREP_DONE')
        a.label('PREP_QKV')
        self.tsrd(P_QKV, 2457600)
        I(f's_lshr_b32 {sT[1]}, s2, 1'); I(f's_and_b32 {sT[0]}, s2, 1')
        I(f's_mul_i32 {sSrc}, {sT[1]}, {8*3840}'); I(f's_mul_i32 {sT[2]}, {sT[0]}, 640'); I(f's_add_u32 {sSrc}, {sSrc}, {sT[2]}')
        for q in range(5):
            I(f'v_add_u32 v26, {64*q}, v0')
            I('v_mul_u32_u24 v27, 1639, v26'); I('v_lshrrev_b32 v27, 16, v27')
            I('v_mul_u32_u24 v28, 40, v27'); I('v_sub_u32 v28, v26, v28')
            I('v_mul_u32_u24 v29, 3840, v27'); I('v_lshl_add_u32 v29, v28, 4, v29')
            for part in range(3):
                I(f's_add_u32 m0, {sLB}, {part*5120+q*1024}')
                I(f's_add_u32 {sT[2]}, {sSrc}, {part*1280}')
                I(f'buffer_load_dwordx4 v29, {TS}, {sT[2]} offen lds')
        I(f's_mul_i32 {sDst}, {sT[0]}, {16*81920}')
        I(f's_lshr_b32 {sT[2]}, {sT[1]}, 2'); I(f's_lshl_b32 {sT[2]}, {sT[2]}, 12'); I(f's_add_u32 {sDst}, {sDst}, {sT[2]}')
        I(f's_and_b32 {sT[2]}, {sT[1]}, 3'); I(f's_lshl_b32 {sT[2]}, {sT[2]}, 8'); I(f's_add_u32 {sDst}, {sDst}, {sT[2]}')
        self.side_init()
        I('v_lshrrev_b32 v26, 2, v20'); I('v_and_b32 v27, 3, v20')
        I('v_mul_u32_u24 v29, 640, v26'); I(f'v_add_u32 v29, {sLB}, v29'); I('v_mul_u32_u24 v28, 40, v21'); I('v_add_u32 v29, v29, v28')
        I('v_lshl_add_u32 v30, v27, 3, v29')
        I('v_lshlrev_b32 v28, 3, v27'); I(f'v_add_u32 v31, {10240-8}, v28'); I(f'v_mov_b32 v33, {5120+32}')
        I('v_cmp_eq_u32 vcc, 0, v27'); I('v_cndmask_b32 v31, v31, v33, vcc'); I('v_add_u32 v31, v31, v29')
        I('v_min_u32 v28, 2, v27'); I('v_lshlrev_b32 v28, 3, v28'); I(f'v_add_u32 v33, {10240+16}, v28'); I('v_mov_b32 v34, 32')
        I('v_cndmask_b32 v33, v33, v34, vcc'); I('v_add_u32 v33, v33, v29')
        I(f's_mov_b32 {sT[2]}, 81920'); I(f'v_mul_lo_u32 v32, v21, {sT[2]}'); I('v_add_u32 v32, v32, v24')
        a.wait(vm=None)
        for hq in range(4):
            for i, (b, o) in enumerate((('v30', 5120), ('v31', 0), ('v30', 0), ('v33', 0))):
                r = 48 + 16*hq + 4*i
                I(f'ds_read_b64_tr_b16 {vr(r,2)}, {b} offset:{o+160*hq}')
                I(f'ds_read_b64_tr_b16 {vr(r+2,2)}, {b} offset:{o+160*hq+2560}')
            a.wait(lg=None)
            for i in range(4):
                I(f'buffer_store_dwordx4 {vr(48+16*hq+4*i,4)}, v32, {WS}, {sDst} offen offset:{i*1024} sc1')
            I(f's_add_u32 {sDst}, {sDst}, {4*81920}')
        a.label('PREP_DONE')
        self.side_fin()
        a.wait(vm=None)
        self.stamp('prep_done')
        I('s_barrier')
        I(f's_cmp_lg_u32 {sW}, 0'); I('s_cbranch_scc1 GB_WAIT')
        I('v_mov_b32 v26, 0')
        I(f's_mov_b32 {sSpin}, {sDead}')
        a.label('GB_P0')
        I(f'global_load_dword v27, v26, s[{P_DBG}:{P_DBG+1}] sc1')
        a.wait(vm=None)
        I('v_cmp_ne_u32 vcc, 0, v27'); I('s_cmp_eq_u64 vcc, -1'); I('s_cbranch_scc1 GB_P0D')
        I(f's_sub_u32 {sSpin}, {sSpin}, 1'); I('s_cbranch_scc0 GB_P0')
        a.label('GB_P0D')
        I(f's_getreg_b32 {sT[0]}, hwreg(HW_REG_XCC_ID)'); I(f's_and_b32 {sT[0]}, {sT[0]}, 15')
        I(f's_mul_i32 {sT[1]}, {sT[0]}, {sT[0]}'); I(f's_lshl_b32 {sT[1]}, {sT[1]}, 16'); I(f's_lshl_b32 {sT[0]}, {sT[0]}, 6')
        I(f's_add_u32 {sT[0]}, {sT[0]}, {sT[1]}'); I(f's_add_u32 {sT[0]}, {sT[0]}, 1')
        I(f'v_mov_b32 v27, {sT[0]}')
        I(f's_lshl_b32 {sT[1]}, {sXG}, 7'); I(f's_add_u32 {sT[1]}, {sT[1]}, {CNT}')
        I('s_mov_b64 exec, 1')
        I(f'buffer_atomic_add v27, v26, {WS}, {sT[1]} offen sc1')
        I('s_mov_b64 exec, -1')
        I('v_and_b32 v28, 7, v0'); I('v_lshlrev_b32 v28, 7, v28')
        I(f's_mov_b32 {sT[1]}, {CNT}')
        I(f's_mov_b32 {sSpin}, {sDead}')
        a.label('GB_P1')
        I(f'buffer_load_dword v27, v28, {WS}, {sT[1]} offen sc1')
        a.wait(vm=None)
        I('v_and_b32 v29, 63, v27'); I('v_cmp_eq_u32 vcc, 32, v29'); I('s_cmp_eq_u64 vcc, -1'); I('s_cbranch_scc1 GB_P1D')
        I(f's_sub_u32 {sSpin}, {sSpin}, 1'); I('s_cbranch_scc0 GB_P1')
        a.label('GB_P1D')
        I(f'v_readlane_b32 {sT[1]}, v27, {sXG}')
        I(f's_lshl_b32 {sT[0]}, {sT[0]}, 5')
        I(f's_cmp_eq_u32 {sT[0]}, {sT[1]}'); I(f's_cselect_b32 {sT[0]}, 1, 0')
        I(f'v_mov_b32 v27, {sT[0]}')
        I(f'ds_write_b32 v26, v27 offset:{7*BANK & 0xffff}' if False else f'ds_write_b32 v26, v27 offset:65532')
        a.wait(lg=None)
        a.label('GB_WAIT')
        I('s_barrier')
        I('v_mov_b32 v26, 0')
        I('ds_read_b32 v27, v26 offset:65532')
        a.wait(lg=None)
        I(f'v_readfirstlane_b32 {sMODE}, v27')
        I('s_barrier')
        self.stamp('gbar_done')

    def side_init(self):
        I = self.I
        self.tsrd(P_PHI, 25600)
        I('v_and_b32 v26, 3, v0'); I('v_lshlrev_b32 v26, 1, v26')
        I(f's_mul_i32 {sT[0]}, {sH}, 800')
        I('v_mul_u32_u24 v27, 160, v21'); I(f'v_add3_u32 v27, v27, v26, {sT[0]}')
        I(f'v_add_u32 v28, {sT[0]}, v26'); I('v_add_u32 v28, 640, v28'); I(f'v_mov_b32 v29, {OOB}')
        I('v_cmp_eq_u32 vcc, 0, v21'); I('v_cndmask_b32 v28, v29, v28, vcc')
        I(f's_lshl_b32 {sT[0]}, {sW}, 3')
        for fr, so in ((0, sT[0]), (1, '32')):
            for e in range(8):
                vo = 'v27' if e < 4 else 'v28'
                I(f'buffer_load_ushort v{(180 if e & 1 else 120)+4*fr+(e>>1)}, {vo}, {TS}, {so} offen offset:{(e&3)*40}')
        I('v_mov_b32 v128, 0')
        I(f's_lshl_b32 {sT[0]}, s2, 7'); I(f's_add_u32 {sT[0]}, {sT[0]}, {FL}')
        I(f's_cmp_eq_u32 {sW}, 1'); I(f's_cselect_b32 {sT[1]}, 0, {OOB}')
        I(f'v_or_b32 v26, {sT[1]}, {vFl}')
        I(f'buffer_store_dword v128, v26, {WS}, {sT[0]} offen sc1')
        for r in range(132, 136): I(f'v_mov_b32 v{r}, -1')
        for l in range(2):
            I(f's_add_u32 {sT[0]}, {sKVo}, {l*2*MB}')
            I(f'buffer_store_dwordx4 {vr(132,4)}, {vL16}, {WS}, {sT[0]} offen sc1')
        pl = self.a.newlabel('PCL')
        I(f's_getpc_b64 s[4:5]')
        self.a.label(pl)
        I(f's_sub_u32 s4, s4, {pl}-KSTART')
        I(f's_subb_u32 s5, s5, 0')
        I(f's_lshl_b32 {sT[0]}, {sH}, 12'); I(f's_lshl_b32 {sT[1]}, {sW}, 10'); I(f's_add_u32 {sT[0]}, {sT[0]}, {sT[1]}')
        I(f'v_add_u32 v26, {sT[0]}, {vL16}')
        I(f'v_min_u32 v26, CODE_END-KSTART-16, v26')
        I(f'global_load_dwordx4 {vr(136,4)}, v26, s[4:5]')

    def side_fin(self):
        I = self.I
        self.store_tile(RES, XA(0), sA21, sH21, sc1=True)
        self.unpack(140, RES, 10)
        self.prod_stats(140, 160)
        self.store_stats(160, XA(0), sc1=True)
        I('v_bfe_u32 v26, v0, 2, 1'); I(f's_mov_b32 {sT[0]}, 0x80008000'); I(f'v_mul_lo_u32 v26, v26, {sT[0]}')
        I('v_bfe_u32 v27, v0, 3, 1'); I('v_add_u32 v27, -1, v27')
        for r in range(120, 128): I(f'v_lshl_or_b32 v{r}, v{r+60}, 16, v{r}')
        for r in range(120, 128): I(f'v_xor_b32 v{r}, v{r}, v26')
        for r in range(8): I(f'v_and_b32 v{164+r}, v{120+r}, v27')
        I('v_not_b32 v27, v27')
        for r in range(8): I(f'v_and_b32 v{172+r}, v{120+r}, v27')
        I(f's_lshl_b32 {sT[0]}, {sW}, 10'); I(f's_add_u32 {sT[0]}, {sT[0]}, {sAPH}')
        I(f'buffer_store_dwordx4 {vr(164,4)}, {vL16}, {WS}, {sT[0]} offen')
        I(f's_add_u32 {sT[0]}, {sT[0]}, 5120')
        I(f'buffer_store_dwordx4 {vr(172,4)}, {vL16}, {WS}, {sT[0]} offen')
        I(f's_add_u32 {sT[0]}, {sAPH}, 4096')
        I(f'buffer_store_dwordx4 {vr(168,4)}, {vL16}, {WS}, {sT[0]} offen')
        I(f's_add_u32 {sT[0]}, {sAPH}, 9216')
        I(f'buffer_store_dwordx4 {vr(176,4)}, {vL16}, {WS}, {sT[0]} offen')

    def dma_qkv(self, banks, bphi):
        for ch in range(4): self.dma_bank(sWQ, WT_QKV + ch*BANK, banks[ch], 'wq')
        I = self.I
        I(f's_mul_i32 {sT[1]}, {sW}, 3072')
        I(f's_add_u32 {sT[0]}, {sAPH}, {sT[1]}')
        I(f's_add_u32 m0, {sT[1]}, {bphi*BANK}')
        for i in range(3): I(f'buffer_load_dwordx4 {vL16}, {WS}, {sT[0]} offen offset:{i*1024} lds', 'wq')

    def softmax(self, P, t, KL):
        I = self.I
        I(f'v_max3_f32 v{t}, v{P}, v{P+1}, v{P+2}')
        I(f'v_max3_f32 v{t+1}, v{P+3}, v{P+4}, v{P+5}')
        for i in range(6, 18, 4):
            I(f'v_max3_f32 v{t}, v{t}, v{P+i}, v{P+i+1}')
            I(f'v_max3_f32 v{t+1}, v{t+1}, v{P+i+2}, v{P+i+3}')
        I(f'v_max3_f32 v{t}, v{t}, v{P+18}, v{P+19}')
        I(f'v_max_f32 v{t}, v{t}, v{t+1}')
        I(f'v_mul_f32 v{t}, {hex(f2u(-LOG2E))}, v{t}')
        for i in range(10): I(f'v_pk_fma_f32 {vr(P+2*i,2)}, {vr(P+2*i,2)}, {vr(KL,2)}, {vr(t,2)} op_sel_hi:[1,0,0]')
        for i in range(20): I(f'v_exp_f32 v{P+i}, v{P+i}')
        I(f'v_pk_add_f32 {vr(t,2)}, {vr(P,2)}, {vr(P+2,2)}')
        for i in range(2, 10): I(f'v_pk_add_f32 {vr(t,2)}, {vr(t,2)}, {vr(P+2*i,2)}')
        I(f'v_add_f32 v{t}, v{t}, v{t+1}')
        I(f'v_rcp_f32 v{t}, v{t}')
        for i in range(10): I(f'v_pk_mul_f32 {vr(P+2*i,2)}, {vr(P+2*i,2)}, {vr(t,2)} op_sel_hi:[1,0]')
        self.pack(P, P, 10)

    def phi(self, P, B0, B1, AF, bphi):
        for t in range(5):
            self.I(f'v_mfma_f32_16x16x32_bf16 {vr(P+4*t,4)}, {vr(AF+4*t,4)}, {vr(B0,4)}, 0')
        for t in range(5):
            self.I(f'v_mfma_f32_16x16x32_bf16 {vr(P+4*t,4)}, {vr(AF+20+4*t,4)}, {vr(B1,4)}, {vr(P+4*t,4)}')

    def qkv(self, l, wb, bphi, bscr, after_gemm, after_pub, after_kv):
        a = self.a; I = self.I
        WF, XR, NR, ACC = 48, 80, 28, (192, 224)
        ONES, CWF, CWA, STR = 20, 24, 28, 32
        NM = [32, 34, 36, 38]; RR = [40, 42, 44, 46]
        if l > 0:
            I(f's_lshl_b32 {sT[3]}, {sXG}, 2'); I(f's_add_u32 {sT[3]}, {sT[3]}, {sW}'); I(f's_lshl_b32 {sT[3]}, {sT[3]}, 7'); I(f's_add_u32 {sT[3]}, {sT[3]}, {FL}')
            self.poll(vFl, sT[3], 8*(l-1)+5)
        self.stamp(f'qkv{l}_go')
        def xload(n):
            p, s, t2 = n // 40, (n % 40) >> 1, n & 1
            self.load_frag(XR + 4*(n % NR), vL16, sQT21, XA(l) + (2*p+t2)*21504, s, ('x', n))
        def xorder(lo, hi):
            ns = list(range(lo, hi)); ns.sort(key=lambda n: (n // 8, n & 1, n)); return ns
        for t in range(4): self.load_frag(ACC[1]+4*t, vL16, sQT21, XA(l) + t*21504, 20, 'stat')
        for n in xorder(0, 24): xload(n)
        nxt = 24
        for r in range(4): I(f'v_mov_b32 v{ONES+r}, 0x3f803f80')
        I(f's_lshl_b32 {sT[3]}, {sW}, 10')
        for k, base in enumerate((vL16, vL16b, vL16c)): I(f'v_add_u32 v{33+2*k}, {sT[3]}, {base}')
        a.wait(vm='wq'); I('s_barrier')
        def wread(s, buf, cw):
            for i in range(4):
                b, o = self.lds(wb[s // 5]*BANK + ((s % 5)*4 + i)*1024)
                I(f'ds_read_b128 {vr(WF+16*buf+4*i,4)}, {b} offset:{o}', ('w', s))
        def cwread(s):
            off = wb[s // 5]*BANK + (s % 5)*4096
            I(f'ds_read_b128 {vr(CWF,4)}, v{33+2*(off>>16)} offset:{off & 0xffff}', ('cw', s))
        for p in range(2):
            wread(0, 0, False)
            for s in range(20):
                if p == 0: cwread(s)
                if s + 1 < 20: wread(s+1, (s+1) & 1, False)
                n = p*40 + 2*s
                a.wait(vm=[('x', n), ('x', n+1)], lg=('w', s))
                for t2 in range(2):
                    for i in range(4):
                        d = vr(ACC[p] + 16*t2 + 4*i, 4)
                        I(f'v_mfma_f32_16x16x32_bf16 {d}, {vr(WF+16*(s&1)+4*i,4)}, {vr(XR+4*((n+t2)%NR),4)}, {d if s else 0}')
                if p == 0:
                    a.wait(lg=('cw', s))
                    I(f'v_mfma_f32_16x16x32_bf16 {vr(CWA,4)}, {vr(CWF,4)}, {vr(ONES,4)}, {vr(CWA,4) if s else 0}')
                if (n + 2) % 4 == 0:
                    hi = min(80, n + 2 + 24)
                    if hi > nxt:
                        for m in sorted(range(nxt, hi), key=lambda q: (q & 1, q)): xload(m)
                        nxt = hi
            if p == 0:
                cwo = bphi*BANK + 12288
                I(f's_lshl_b32 {sT[3]}, {sW}, 6'); I(f's_add_u32 {sT[3]}, {sT[3]}, {cwo}')
                I('v_lshrrev_b32 v33, 4, v0'); I('v_lshlrev_b32 v33, 4, v33')
                I(f'v_add_u32 v35, {sT[3]}, v33'); I(f'v_add_u32 v33, {cwo}, v33')
                I(f'ds_write_b128 v35, {vr(CWA,4)}')
                a.wait(vm='stat')
                for t in range(4): self.cons_stats(ACC[1]+4*t, NM[t], RR[t])
                a.wait(lg=None); I('s_barrier')
                for i in range(4): I(f'ds_read_b128 {vr(WF+16+4*i,4)}, v33 offset:{i*64}', 'cwr')
                a.wait(lg='cwr')
                for t2 in range(2): self.lnfix(ACC[0]+16*t2, WF+16, 8, NM[t2], RR[t2])
                for t2 in range(2): self.pack(ACC[0]+8*t2, ACC[0]+16*t2, 8)
        self.stamp(f'qkv{l}_gemm')
        I('s_barrier')
        after_gemm()
        for i in range(4): I(f'ds_read_b128 {vr(WF+16+4*i,4)}, v33 offset:{i*64}', 'cwr')
        AF = 80
        for k in range(10):
            b, o = self.lds(bphi*BANK + k*1024)
            I(f'ds_read_b128 {vr(AF+4*k,4)}, {b} offset:{o}', 'af')
        a.wait(lg='cwr')
        for t2 in range(2): self.lnfix(ACC[1]+16*t2, WF+16, 8, NM[2+t2], RR[2+t2])
        for t2 in range(2): self.pack(ACC[1]+8*t2, ACC[1]+16*t2, 8)
        I(f's_mov_b32 {sWB}, {bscr[1]*BANK}'); I(f's_cmp_lt_u32 {sW}, 2'); I(f's_cselect_b32 {sWB}, {bscr[0]*BANK}, {sWB}')
        I(f's_and_b32 {sT[3]}, {sW}, 1'); I(f's_mul_i32 {sT[3]}, {sT[3]}, 10240'); I(f's_add_u32 {sWB}, {sWB}, {sT[3]}')
        vTok, vG, vPK, vV1, vV3, vTA, vTB, KL, tmp = 20, 21, 22, 23, 24, 25, 26, 28, 30
        I(f'v_and_b32 v{vTok}, 15, v0'); I(f'v_lshrrev_b32 v{vG}, 4, v0')
        I(f'v_lshrrev_b32 v27, 5, v0'); I(f'v_lshl_add_u32 v27, v27, 4, v{vTok}'); I(f'v_mul_u32_u24 v{vPK}, 80, v27')
        I(f'v_and_b32 v27, 1, v{vG}'); I(f'v_mul_u32_u24 v27, 40, v27'); I(f'v_add3_u32 v{vPK}, v{vPK}, v27, {sWB}')
        I(f'v_mul_u32_u24 v27, 72, v{vTok}'); I(f'v_add_u32 v27, {sWB}, v27'); I(f'v_add_u32 v27, 5120, v27')
        I(f'v_lshlrev_b32 v29, 3, v{vG}'); I(f'v_add_u32 v{vV1}, -8, v29'); I(f'v_add_u32 v{vV3}, 16, v29')
        I(f'v_cmp_eq_u32 vcc, 0, v{vG}'); I(f'v_mov_b32 v29, 48'); I(f'v_cndmask_b32 v{vV1}, v{vV1}, v29, vcc')
        I(f'v_mov_b32 v29, 56'); I(f'v_cndmask_b32 v{vV3}, v{vV3}, v29, vcc')
        I(f'v_add_u32 v{vV1}, v{vV1}, v27'); I(f'v_add_u32 v{vV3}, v{vV3}, v27')
        I(f'v_lshrrev_b32 v27, 2, v{vTok}'); I(f'v_lshl_add_u32 v27, v{vG}, 3, v27')
        I(f'v_and_b32 v29, 3, v0'); I(f'v_lshlrev_b32 v29, 3, v29'); I(f'v_add_u32 v29, {sWB}, v29')
        I(f'v_mad_u32_u24 v{vTA}, v27, 20, v29'); I(f'v_mad_u32_u24 v{vTA}, v27, 60, v{vTA}')
        I(f'v_mad_u32_u24 v{vTB}, v27, 12, v29'); I(f'v_mad_u32_u24 v{vTB}, v27, 60, v{vTB}'); I(f'v_add_u32 v{vTB}, 5120, v{vTB}')
        I(f'v_mov_b32 v{KL}, {hex(f2u(LOG2E))}')
        I(f'v_cmp_eq_u32 vcc, 3, v{vG}'); I('v_mov_b32 v27, 0x3f80'); I('v_mov_b32 v29, 0')
        for p in range(2):
            for t2 in range(2):
                q = ACC[p] + 8*t2 + 6
                I(f'v_cndmask_b32 v{q}, v{q}, v27, vcc'); I(f'v_cndmask_b32 v{q+1}, v{q+1}, v29, vcc')
        for p in range(2):
            for t2 in range(2):
                I(f'ds_write_b64 v{vV1}, {vr(ACC[p]+8*t2+2,2)} offset:{(32*p+16*t2)*72}')
                I(f'ds_write_b64 v{vV3}, {vr(ACC[p]+8*t2+6,2)} offset:{(32*p+16*t2)*72}')
        a.wait(lg='af')
        PP = (120, 140); KVA = 160; TA = 48; TB = 60
        for p in range(2): self.phi(PP[p], ACC[p], ACC[p]+8, AF, bphi)
        for p in range(2):
            self.softmax(PP[p], tmp, KL)
            for i in range(5): I(f'ds_write_b64 v{vPK}, {vr(PP[p]+2*i,2)} offset:{32*p*80+8*i}')
        a.wait(lg=None)
        for p in range(2):
            for ft in range(3):
                I(f'ds_read_b64_tr_b16 {vr(TA+4*ft,2)}, v{vTA} offset:{32*p*80+32*ft}')
                I(f'ds_read_b64_tr_b16 {vr(TA+4*ft+2,2)}, v{vTA} offset:{32*p*80+32*ft+320}')
            for dt in range(2):
                I(f'ds_read_b64_tr_b16 {vr(TB+4*dt,2)}, v{vTB} offset:{32*p*72+32*dt}')
                I(f'ds_read_b64_tr_b16 {vr(TB+4*dt+2,2)}, v{vTB} offset:{32*p*72+32*dt+288}')
            a.wait(lg=None)
            for dt in range(2):
                for ft in range(3):
                    d = vr(KVA + 4*(dt*3+ft), 4)
                    I(f'v_mfma_f32_16x16x32_bf16 {d}, {vr(TA+4*ft,4)}, {vr(TB+4*dt,4)}, {d if p else 0}')
        I(f'v_add_u32 v27, {sWB}, {vL16}')
        for k in range(6): I(f'ds_write_b128 v27, {vr(KVA+4*k,4)} offset:{k*1024}')
        vRS, vKD, vKL = 22, 23, 24
        I('v_min_u32 v27, 59, v0')
        I('v_mul_u32_u24 v29, 3277, v27'); I('v_lshrrev_b32 v29, 16, v29')
        I('v_mul_u32_u24 v25, 20, v29'); I('v_sub_u32 v27, v27, v25')
        I('v_mul_u32_u24 v25, 13108, v27'); I('v_lshrrev_b32 v25, 16, v25')
        I('v_mul_u32_u24 v26, 5, v25'); I('v_sub_u32 v27, v27, v26')
        I(f's_cmp_eq_u32 {sW}, 3'); I('s_cselect_b64 vcc, -1, 0')
        I(f'v_mov_b32 v26, {sW}')
        I('v_cndmask_b32 v29, v26, v29, vcc')
        I(f'v_cndmask_b32 v25, v{vG}, v25, vcc')
        I(f'v_cndmask_b32 v27, v{vTok}, v27, vcc')
        I('v_cndmask_b32 v26, 0, 1, vcc')
        I(f'v_lshlrev_b32 v{vRS}, 10, v29'); I(f'v_mad_u32_u24 v{vRS}, v26, {self.sconst(3072)}, v{vRS}')
        I(f'v_lshl_add_u32 v{vRS}, v25, 8, v{vRS}'); I(f'v_lshl_add_u32 v{vRS}, v27, 4, v{vRS}')
        I('v_lshl_add_u32 v29, v29, 2, v25')
        I('v_lshl_add_u32 v27, v26, 4, v27')
        I(f'v_mul_u32_u24 v{vKD}, 96, v27'); I(f'v_lshl_add_u32 v{vKD}, v29, 3, v{vKD}')
        I('v_cmp_le_u32 vcc, 5, v29'); I('v_cndmask_b32 v27, 0, 8, vcc'); I(f'v_add_u32 v{vKD}, v{vKD}, v27')
        kvl = bphi*BANK + 13312
        I(f'v_add_u32 v{vKD}, {kvl}, v{vKD}')
        I('v_cmp_gt_u32 vcc, 10, v29')
        I(f'v_mov_b32 v27, {kvl + 96*30}'); I(f'v_cndmask_b32 v{vKD}, v27, v{vKD}, vcc')
        I(f'v_mov_b32 v27, {OOB}'); I(f'v_cndmask_b32 v{vKL}, v27, {vL16}, vcc')
        for r in range(TA, TA+4): I(f'v_mov_b32 v{r}, 0')
        I(f'v_min_u32 v27, {35*16}, {vL16}'); I(f'v_add_u32 v27, {kvl+96*21}, v27')
        I(f'ds_write_b128 v27, {vr(TA,4)}')
        a.wait(lg=None); I('s_barrier')
        for k in range(4):
            off = bscr[k >> 1]*BANK + (k & 1)*10240
            I(f'v_add_u32 v27, {off}, v{vRS}')
            I(f'ds_read_b128 {vr(TA+4*k,4)}, v27')
        a.wait(lg=None)
        for h in range(2):
            I(f'v_pk_add_f32 {vr(TA+2*h,2)}, {vr(TA+2*h,2)}, {vr(TA+4+2*h,2)}')
            I(f'v_pk_add_f32 {vr(TA+8+2*h,2)}, {vr(TA+8+2*h,2)}, {vr(TA+12+2*h,2)}')
            I(f'v_pk_add_f32 {vr(TA+2*h,2)}, {vr(TA+2*h,2)}, {vr(TA+8+2*h,2)}')
        I(f's_add_u32 {sT[3]}, {sKVo}, {l*2*MB}')
        I(f'buffer_store_dwordx4 {vr(TA,4)}, v{vKL}, {WS}, {sT[3]} offen sc1', 'kvst')
        self.stamp(f'qkv{l}_kvpub')
        after_pub()
        for p in range(2): self.phi(PP[p], ACC[p]+4, ACC[p]+12, AF, bphi)
        for p in range(2): self.softmax(PP[p], tmp, KL)
        vA0, vA2, vO4, vO1 = 25, 26, 32, 33
        I('v_bfe_u32 v27, v0, 2, 1')
        I('v_and_b32 v29, 3, v0')
        I('v_lshl_add_u32 v34, v27, 3, v29')
        I('v_lshl_add_u32 v35, v27, 1, v29'); I('v_add_u32 v35, 16, v35')
        I('v_cmp_le_u32 vcc, 2, v29'); I('v_cndmask_b32 v35, v35, 20, vcc')
        I('v_bfe_u32 v27, v0, 3, 1'); I('v_lshrrev_b32 v29, 5, v0')
        I('v_cmp_eq_u32 vcc, v27, v29')
        I('v_cndmask_b32 v34, 21, v34, vcc'); I('v_cndmask_b32 v35, 21, v35, vcc')
        I(f'v_and_b32 v27, 1, v{vG}'); I('v_mul_u32_u24 v27, 48, v27'); I(f'v_add_u32 v27, {kvl}, v27')
        I(f's_movk_i32 {sT[3]}, 96')
        I(f'v_mad_u32_u24 v{vA0}, v34, {sT[3]}, v27'); I(f'v_mad_u32_u24 v{vA2}, v35, {sT[3]}, v27')
        I(f'v_mul_u32_u24 v{vO4}, 20480, v29'); I(f'v_lshl_add_u32 v{vO4}, v{vTok}, 4, v{vO4}')
        I(f'v_and_b32 v27, 1, v{vG}')
        I(f'v_lshl_add_u32 v{vO1}, v27, 2, v{vO4}'); I(f'v_lshl_add_u32 v{vO4}, v27, 8, v{vO4}')
        self.stamp(f'qkv{l}_qsm')
        G0 = 160
        L = a.newlabel('KVPOLL'); D = a.newlabel('KVDONE')
        I(f's_mov_b32 {sSpin}, {sDead}')
        a.label(L)
        for x in range(8):
            I(f's_add_u32 {sT[3]}, {sKVi}, {l*2*MB + x*8192}')
            I(f'buffer_load_dwordx4 {vr(G0+4*x,4)}, v{vKL}, {WS}, {sT[3]} offen sc1')
        a.wait(vm=None)
        I(f'v_max3_u32 v27, v{G0}, v{G0+1}, v{G0+2}')
        for i in range(3, 31, 2): I(f'v_max3_u32 v27, v27, v{G0+i}, v{G0+i+1}')
        I(f'v_max_u32 v27, v27, v{G0+31}')
        I('v_cmp_eq_u32 vcc, -1, v27')
        I('s_cmp_eq_u64 vcc, 0'); I(f's_cbranch_scc1 {D}')
        I(f's_sub_u32 {sSpin}, {sSpin}, 1'); I(f's_cbranch_scc0 {L}')
        I(f's_mov_b32 {sDead}, 0')
        a.label(D)
        self.stamp(f'qkv{l}_kvgot')
        after_kv()
        for st in (16, 8, 4):
            for b in range(0, st, 2):
                I(f'v_pk_add_f32 {vr(G0+b,2)}, {vr(G0+b,2)}, {vr(G0+st+b,2)}')
        self.pack(G0, G0, 2)
        I(f'ds_write_b64 v{vKD}, {vr(G0,2)}')
        a.wait(lg=None); I('s_barrier')
        AO = 80
        for t in range(3):
            b, o = (vA0, 384*t) if t < 2 else (vA2, 0)
            I(f'ds_read_b128 {vr(AO+12*t,4)}, v{b} offset:{o}')
            I(f'ds_read_b128 {vr(AO+12*t+4,4)}, v{b} offset:{o+16}')
            I(f'ds_read_b64 {vr(AO+12*t+8,2)}, v{b} offset:{o+32}')
        a.wait(lg=None)
        DO = (160, 176)
        for p in range(2):
            for t in range(3):
                I(f'v_mfma_f32_16x16x32_bf16 {vr(DO[p]+4*t,4)}, {vr(AO+12*t,4)}, {vr(PP[p],4)}, 0')
            for t in range(3):
                I(f'v_mfma_f32_16x16x32_bf16 {vr(DO[p]+4*t,4)}, {vr(AO+12*t+4,4)}, {vr(PP[p]+4,4)}, {vr(DO[p]+4*t,4)}')
            for t in range(3):
                I(f'v_mfma_f32_16x16x16_bf16 {vr(DO[p]+4*t,4)}, {vr(AO+12*t+8,2)}, {vr(PP[p]+8,2)}, {vr(DO[p]+4*t,4)}')
        for p in range(2):
            I(f'v_add_f32 v{DO[p]+10}, {hex(f2u(1e-6))}, v{DO[p]+10}')
            I(f'v_rcp_f32 v{DO[p]+10}, v{DO[p]+10}')
            for i in range(5): I(f'v_pk_mul_f32 {vr(DO[p]+2*i,2)}, {vr(DO[p]+2*i,2)}, {vr(DO[p]+10,2)} op_sel_hi:[1,0]')
            self.pack(DO[p], DO[p], 5)
        for p in range(2):
            I(f's_add_u32 {sT[2*p]}, {sO4}, {OB(l)+2*p*20480}')
            I(f's_add_u32 {sT[2*p+1]}, {sO1}, {OB(l)+2*p*20480}')
        self._lf = None
        a.slow_begin(sMODE)
        for p in range(2):
            I(f'buffer_store_dwordx4 {vr(DO[p],4)}, v{vO4}, {WS}, {sT[2*p]} offen', 'st')
            I(f'buffer_store_dword v{DO[p]+4}, v{vO1}, {WS}, {sT[2*p+1]} offen', 'st')
        a.slow_end()
        a.wait(vm='st')
        self.setflag(sFLOo, l+1)
        self.stamp(f'qkv{l}_end')

    def sconst(self, val):
        self.I(f's_movk_i32 {sT[4]}, {val}'); return sT[4]

    def gemmS(self, KS, banks, xload, ACC, init, hooks={}, XR=80, NR=32, WF=208, wtags=()):
        a = self.a; I = self.I
        def wread(s):
            for i in range(5):
                b, o = self.lds(banks[s // 4]*BANK + ((s % 4)*5 + i)*1024)
                I(f'ds_read_b128 {vr(WF+20*(s&1)+4*i,4)}, {b} offset:{o}', ('w', s))
        pre = hooks.get(('pre', 0))
        if pre: pre()
        wread(0)
        for s in range(KS):
            pre = hooks.get(('pre', s+1))
            if pre: pre()
            if s + 1 < KS: wread(s+1)
            a.wait(vm=('x', s), lg=('w', s))
            for i in range(5):
                d = vr(ACC+4*i, 4)
                I(f'v_mfma_f32_16x16x32_bf16 {d}, {vr(WF+20*(s&1)+4*i,4)}, {vr(XR+4*(s%NR),4)}, {d if (s or init) else 0}')
            if s + NR < KS: xload(s+NR)
            h = hooks.get(s)
            if h: h()

    def layer(self, l, B):
        a = self.a; I = self.I
        last = (l == 1)
        ACC, XP, PK, TMP = 20, 40, 60, 72
        NMr, R1r, RRr = 76, 78, 74
        def w3loads(lo, hi):
            if l == 0:
                for k in range(lo, hi): self.load_frag(4*k, vL16, sW3, WT_3, k, 'w3', areg=True, sc='')
        def ag():
            for ch in range(1, 5): self.dma_bank(sW5, WT_O + ch*BANK, B[ch-1], 'wo')
            w3loads(0, 20)
        def ap(): w3loads(20, 40)
        def ak(): w3loads(40, 60)
        self.dma_bank(sW5, WT_O, B[7], 'wo')
        self.qkv(l, B[0:4], B[4], B[5:7], ag, ap, ak)
        if self.stop == f'qkv{l}': return True
        I('s_barrier')
        for ch in range(3): self.dma_bank(sW5, WT_1 + ch*BANK, B[4+ch], 'w1')
        self.unpack(ACC, RES, 10)
        if l == 0:
            a.wait(vm='w3')
            for r in range(4): I(f'v_mov_b32 v{TMP+r}, 0x3f803f80')
            for s in range(20):
                for i in range(3):
                    d = ar(240+4*i, 4)
                    I(f'v_mfma_f32_16x16x32_bf16 {d}, {ar(4*(i*20+s),4)}, {vr(TMP,4)}, {d if s else 0}')
        I(f's_lshl_b32 {sT[3]}, {sC}, 7'); I(f's_add_u32 {sT[3]}, {sT[3]}, {FLO}')
        self.poll(vFl, sT[3], l+1)
        self.stamp(f'wo{l}_go')
        self._lf = None
        for s in range(20): self.load_frag(80+4*s, vL16, sT20, OB(l), s, ('x', s))
        I('s_barrier')
        self.gemmS(20, [B[7], B[0], B[1], B[2], B[3]], None, ACC, True)
        self.stamp(f'wo{l}_gemm')
        self.pack(PK, ACC, 10)
        self.store_tile(PK, XB(l), sA21, sH21)
        self.prod_stats(ACC, TMP)
        self.store_stats(TMP, XB(l))
        I('s_barrier')
        self.dma_bank(sW5, WT_1 + 3*BANK, B[7], 'w1'); self.dma_bank(sW5, WT_1 + 4*BANK, B[0], 'w1')
        a.wait(vm='st')
        self.setflag(sFLo, 8*l+1)
        self.dma_bank(sW5, WT_2 + 0*BANK, B[1], 'w2'); self.dma_bank(sW5, WT_2 + 1*BANK, B[2], 'w2')
        for i in range(20): I(f'v_mov_b32 v{XP+i}, v{ACC+i}')
        if self.stop == f'wo{l}': return True
        w1b = [B[4], B[5], B[6], B[7], B[0]]
        a.wait(vm='w1'); I('s_barrier')
        CW = 176
        I(f'v_add_u32 v160, {sLW}, {vL16}'); I(f'v_add_u32 v161, {sLW}, {vL16b}'); I(f'v_add_u32 v162, {sLW}, {vL16c}')
        for r in range(4): I(f'v_mov_b32 v{TMP+r}, 0x3f803f80')
        for ch in range(5):
            for i in range(5):
                off = w1b[ch]*BANK + i*1024
                I(f'ds_read_b128 {vr(208+20*(ch&1)+4*i,4)}, v{160+(off>>16)} offset:{off&0xffff}', ('cw', ch))
            if ch:
                a.wait(lg=('cw', ch-1))
                for i in range(5):
                    d = vr(CW+4*i, 4); I(f'v_mfma_f32_16x16x32_bf16 {d}, {vr(208+20*((ch-1)&1)+4*i,4)}, {vr(TMP,4)}, {d if ch > 1 else 0}')
        a.wait(lg=('cw', 4))
        for i in range(5):
            d = vr(CW+4*i, 4); I(f'v_mfma_f32_16x16x32_bf16 {d}, {vr(208+4*i,4)}, {vr(TMP,4)}, {d}')
        cwo = B[3]*BANK
        I('v_lshrrev_b32 v163, 4, v0'); I('v_lshlrev_b32 v163, 4, v163'); I(f'v_add_u32 v163, {cwo}, v163')
        I(f's_mul_i32 {sT[3]}, {sW}, 320'); I(f'v_add_u32 v164, {sT[3]}, v163')
        for i in range(5): I(f'ds_write_b128 v164, {vr(CW+4*i,4)} offset:{i*64}')
        I('v_and_b32 v165, 7, v0'); I('v_lshlrev_b32 v165, 2, v165')
        I(f's_lshl_b32 {sT[3]}, {sTT}, 5'); I(f's_add_u32 {sT[3]}, {sT[3]}, {FL}')
        self.poll('v165', sT[3], 8*l+1)
        self.stamp(f'w1{l}_go')
        self._lf = None
        self.load_frag(168, vL16, sT21, XB(l), 20, 'stat')
        for s in range(20): self.load_frag(80+4*s, vL16, sT21, XB(l), s, ('x', s))
        a.wait(lg=None); I('s_barrier')
        for k in range(4):
            for i in range(5):
                d = CW+4*i if k == 0 else 208+4*i
                I(f'ds_read_b128 {vr(d,4)}, v163 offset:{k*320+i*64}')
            a.wait(lg=None)
            if k:
                for i in range(10): I(f'v_pk_add_f32 {vr(CW+2*i,2)}, {vr(CW+2*i,2)}, {vr(208+2*i,2)}')
        a.wait(vm='stat')
        self.cons_stats(168, NMr, RRr, double=True, r1=R1r)
        self.gelu_consts(196)
        self.gemmS(20, w1b, None, ACC, False)
        self.stamp(f'w1{l}_gemm')
        self.lnfix(ACC, CW, 10, NMr, RRr)
        self.gelu(ACC, 10, 208, 196)
        self.pack(PK, ACC, 10)
        self.store_tile(PK, HB(l), sA20, sH20)
        I(f'v_or_b32 v160, {sEdge}, {vL16}'); I(f'v_or_b32 v161, {sEdge}, {vS8}')
        self.store_tile(PK, HD(l), sA20, sH20, sc1=True, vA='v160', vH='v161', tag='sth')
        I('s_barrier')
        for ch, bk in ((2, B[3]), (3, B[4])): self.dma_bank(sW5, WT_2 + ch*BANK, bk, 'w2')
        a.wait(vm='st')
        self.setflag(sFLo, 8*l+2)
        a.wait(vm='sth')
        self.setflag(sFLHo, 8*l+2, sc1=True, vmask=sEdge)
        self.dma_bank(sW5, WT_2 + 4*BANK, B[5], 'w2')
        for ch, bk in ((0, B[7]), (1, B[0])): self.dma_bank(sW4, WT_4 + ch*BANK, bk, ('w4', ch))
        if self.stop == f'w1{l}': return True
        w2b = [B[1], B[2], B[3], B[4], B[5]]
        for i in range(10): I(f'v_pk_add_f32 {vr(ACC+2*i,2)}, {vr(XP+2*i,2)}, {vr(NMr,2)} op_sel_hi:[1,0]')
        for i in range(10): I(f'v_pk_mul_f32 {vr(ACC+2*i,2)}, {vr(ACC+2*i,2)}, {vr(R1r,2)} op_sel_hi:[1,0]')
        I(f's_lshl_b32 {sT[3]}, {sTT}, 4')
        I('v_and_b32 v164, 15, v0'); I(f'v_add_u32 v164, {sT[3]}, v164')
        I('v_lshrrev_b32 v165, 4, v0'); I('v_lshlrev_b32 v165, 8, v165')
        I(f'v_mov_b32 v168, {OOB}'); I(f'v_mov_b32 v169, {HD(l)-HB(l)}')
        for gi, dl in enumerate((-1, 1, -2, 2)):
            I(f'v_add_u32 v166, {dl}, v164')
            I('v_lshrrev_b32 v167, 4, v166'); I('v_and_b32 v167, 0xff, v167'); I('v_mul_u32_u24 v167, 20480, v167')
            I(f'v_and_b32 v{160+gi}, 15, v166'); I(f'v_lshl_add_u32 v{160+gi}, v{160+gi}, 4, v167'); I(f'v_add_u32 v{160+gi}, v{160+gi}, v165')
            I('v_lshrrev_b32 v167, 8, v166'); I(f'v_cmp_ne_u32 vcc, {sXG}, v167')
            I('v_cndmask_b32 v167, 0, v169, vcc'); I(f'v_add_u32 v{160+gi}, v{160+gi}, v167')
            I('v_cmp_lt_u32 vcc, 2047, v166' if False else 'v_cmp_gt_u32 vcc, 0x800, v166'); I(f'v_cndmask_b32 v{160+gi}, v168, v{160+gi}, vcc')
        I('v_and_b32 v164, 7, v0')
        I(f's_lshl_b32 {sT[3]}, {sTT}, 5'); I(f's_add_u32 {sT[3]}, {sT[3]}, {FL-SYNC}')
        I(f's_sub_u32 {sT[4]}, {sT[3]}, 32'); I(f's_mov_b32 {sT[5]}, 2')
        I(f's_lshl_b32 {sT[6]}, {sXG}, 11'); I(f's_add_u32 {sT[6]}, {sT[6]}, {FLH-SYNC}')
        I(f's_sub_u32 {sT[7]}, {sT[6]}, 1024')
        I(f's_and_b32 {sT[8]}, {sTT}, 15'); I(f's_cmp_eq_u32 {sT[8]}, 0')
        I(f's_cselect_b32 {sT[4]}, {sT[7]}, {sT[4]}'); I(f's_cselect_b32 {sT[5]}, 7, {sT[5]}')
        I(f's_cmp_eq_u32 {sTT}, 0'); I(f's_cselect_b32 {sT[4]}, {sT[3]}, {sT[4]}'); I(f's_cselect_b32 {sT[5]}, 2, {sT[5]}')
        I(f'v_lshlrev_b32 v166, {sT[5]}, v164'); I(f'v_add_u32 v166, {sT[4]}, v166')
        I(f's_add_u32 {sT[4]}, {sT[3]}, 32'); I(f's_mov_b32 {sT[5]}, 2')
        I(f's_add_u32 {sT[7]}, {sT[6]}, 2048')
        I(f's_cmp_eq_u32 {sT[8]}, 15')
        I(f's_cselect_b32 {sT[4]}, {sT[7]}, {sT[4]}'); I(f's_cselect_b32 {sT[5]}, 7, {sT[5]}')
        I(f's_cmp_eq_u32 {sTT}, 127'); I(f's_cselect_b32 {sT[4]}, {sT[3]}, {sT[4]}'); I(f's_cselect_b32 {sT[5]}, 2, {sT[5]}')
        I(f'v_lshlrev_b32 v167, {sT[5]}, v164'); I(f'v_add_u32 v167, {sT[4]}, v167')
        I(f'v_lshlrev_b32 v165, 2, v164'); I(f'v_add_u32 v165, {sT[3]}, v165')
        I('v_lshrrev_b32 v164, 3, v0')
        I('v_cmp_eq_u32 vcc, 1, v164'); I('v_cndmask_b32 v165, v165, v166, vcc')
        I('v_cmp_eq_u32 vcc, 2, v164'); I('v_cndmask_b32 v165, v165, v167, vcc')
        I(f's_mov_b32 {sT[3]}, {SYNC}')
        self.poll('v165', sT[3], 8*l+2)
        self.stamp(f'w2{l}_go')
        I(f's_mov_b32 {sT[3]}, 0'); self._lf = None
        for s in range(20): self.load_frag(80+4*s, f'v{160+s//5}', sT[3], HB(l), s, ('x', s))
        I('s_barrier')
        self.gemmS(20, w2b, None, ACC, True)
        self.stamp(f'w2{l}_gemm')
        self.pack(PK, ACC, 10)
        self.store_tile(PK, X1(l), sA21, sH21)
        self.prod_stats(ACC, TMP)
        self.store_stats(TMP, X1(l))
        I('s_barrier')
        for ch, bk in ((2, B[6]), (3, B[5])): self.dma_bank(sW4, WT_4 + ch*BANK, bk, ('w4', ch))
        a.wait(vm='st')
        self.setflag(sFLo, 8*l+3)
        for i in range(10): I(f'v_pk_add_f32 {vr(XP+2*i,2)}, {vr(XP+2*i,2)}, {vr(ACC+2*i,2)}')
        if self.stop == f'w2{l}': return True
        xb = [B[1], B[2], B[3], B[4]]
        CW3, ST3, A3, BF = 80, 96, 128, 208
        for i in range(12): I(f'v_accvgpr_read_b32 v{CW3+i}, a{240+i}')
        self.gelu_consts(196)
        I(f's_lshl_b32 {sT[3]}, {sC}, 7'); I(f's_add_u32 {sT[3]}, {sT[3]}, {FL}')
        self.poll(vFl, sT[3], 8*l+3)
        self.stamp(f'w3{l}_go')
        self._lf = None
        I(f's_add_u32 {sT[4]}, {sC21}, {sLW}')
        for t in range(4):
            self.dma_bank(sT[4], X1(l) + t*21504, xb[t], ('x1', t), sc='sc1')
            if t == 0:
                for u in range(4): self.load_frag(ST3+4*u, vL16, sC21, X1(l) + u*21504, 20, 'stat')
        NM3 = [112, 114, 116, 118]; RR3 = [120, 122, 124, 126]
        for t in range(4):
            a.wait(vm=('x1', t)); I('s_barrier')
            if t >= 1:
                ch = 4 + (t-1); self.dma_bank(sW4, WT_4 + ch*BANK, xb[t-1], ('w4', ch))
            def bread(s):
                b, o = self.lds(xb[t]*BANK + s*1024)
                I(f'ds_read_b128 {vr(BF+4*(s%6),4)}, {b} offset:{o}', ('b', s))
            for s in range(4): bread(s)
            acc = A3 + 12*t
            for s in range(20):
                if s + 4 < 20: bread(s+4)
                a.wait(lg=('b', s))
                for i in range(3):
                    d = vr(acc+4*i, 4)
                    I(f'v_mfma_f32_16x16x32_bf16 {d}, {ar(4*(i*20+s),4)}, {vr(BF+4*(s%6),4)}, {d if s else 0}')
            if t == 0:
                a.wait(vm='stat')
                for u in range(4): self.cons_stats(ST3+4*u, NM3[u], RR3[u])
            self.lnfix(acc, CW3, 6, NM3[t], RR3[t])
            self.gelu(acc, 6, 176, 196)
            self.pack(acc, acc, 6)
            I(f's_add_u32 {sT[0]}, {sA48}, {H2(l)+t*49152}'); I(f's_add_u32 {sT[1]}, {sH48}, {H2(l)+t*49152}')
            a.slow_begin(sMODE)
            I(f'buffer_store_dwordx4 {vr(acc,4)}, {vL16}, {WS}, {sT[0]} offen', 'st')
            I(f'buffer_store_dwordx2 {vr(acc+4,2)}, {vS8}, {WS}, {sT[1]} offen', 'st')
            a.slow_end()
        self.stamp(f'w3{l}_gemm')
        I('s_barrier')
        self.dma_bank(sW4, WT_4 + 7*BANK, xb[3], ('w4', 7))
        a.wait(vm='st')
        self.setflag(sFLo, 8*l+4)
        if self.stop == f'w3{l}': return True
        w4b = [B[7], B[0], B[6], B[5], B[1], B[2], B[3], B[4], B[7], B[0], B[6], B[5]]
        I(f's_lshl_b32 {sT[3]}, {sC}, 7'); I(f's_add_u32 {sT[3]}, {sT[3]}, {FL}')
        self.poll(vFl, sT[3], 8*l+4)
        self.stamp(f'w4{l}_go')
        self._lf = None
        xl = lambda s: self.load_frag(80+4*(s % 32), vL16, sT48, H2(l), s, ('x', s))
        for s in range(32): xl(s)
        I('s_barrier')
        hooks = {}
        def refill(chs):
            def f():
                I('s_barrier')
                for ch in chs: self.dma_bank(sW4, WT_4 + ch*BANK, w4b[ch], ('w4', ch))
                self._lf = None
            return f
        hooks[7] = refill((8, 9)); hooks[15] = refill((10, 11))
        def arrive(chs):
            def f():
                a.wait(vm=[('w4', c) for c in chs]); I('s_barrier')
            return f
        hooks[('pre', 32)] = arrive((8, 9)); hooks[('pre', 40)] = arrive((10, 11))
        nB = [B[1], B[2], B[3], B[4], B[7], B[0], B[6], B[5]]
        if not last:
            def nq():
                for ch in range(4): self.dma_bank(sWQ, WT_QKV + ch*BANK, nB[ch], 'wq')
                self._lf = None
            prev = hooks[('pre', 40)]
            def both():
                prev(); nq()
            hooks[('pre', 40)] = both
        self.gemmS(48, w4b, xl, XP, True, hooks)
        self.stamp(f'w4{l}_gemm')
        if not last:
            self.pack(RES, XP, 10)
            self.store_tile(RES, XA(l+1), sA21, sH21)
            self.prod_stats(XP, TMP)
            self.store_stats(TMP, XA(l+1))
            I('s_barrier')
            I(f's_mul_i32 {sT[1]}, {sW}, 3072')
            I(f's_add_u32 {sT[0]}, {sAPH}, {sT[1]}')
            I(f's_add_u32 m0, {sT[1]}, {nB[4]*BANK}')
            for i in range(3): I(f'buffer_load_dwordx4 {vL16}, {WS}, {sT[0]} offen offset:{i*1024} lds', 'wq')
            a.wait(vm='st')
            self.setflag(sFLo, 8*l+5)
        else:
            self.pack(PK, XP, 10)
            I('v_and_b32 v20, 15, v0'); I('v_lshrrev_b32 v21, 4, v0')
            I('v_mul_u32_u24 v26, 1280, v20')
            I('v_lshl_add_u32 v27, v21, 4, v26'); I('v_lshl_add_u32 v28, v21, 3, v26')
            I(f'buffer_store_dwordx4 {vr(PK,4)}, v27, {OUT}, {sOutA} offen')
            I(f'buffer_store_dwordx4 {vr(PK+4,4)}, v27, {OUT}, {sOutA} offen offset:64')
            I(f'buffer_store_dwordx2 {vr(PK+8,2)}, v28, {OUT}, {sOutH} offen')
        self.stamp(f'w4{l}_end')
        self.nB = nB
        return self.stop == f'w4{l}'

    def build(self):
        a = self.a
        self.prologue()
        self.prep()
        if self.stop != 'prep':
            B = list(range(8))
            self.dma_qkv(B[0:4], B[4])
            if not self.layer(0, B):
                self.layer(1, self.nB)
        a.wait(vm=None, lg=None)
        a.label('KEND')
        a.I('s_endpgm')
        main, stubs, n = a.finalize()
        hdr = open('cdna_kernels/' + NAME[:-7] + '.s.ref').read().split('; Override launch')[0]
        out = hdr + f"""; Persistent fused kernel (generated by own script): 256 workgroups, one per CU.
; @launch grid=(256,1,1) block=(256,1,1) lds=163840
.amdgcn_target "amdgcn-amd-amdhsa--gfx950"
.text
.globl {NAME}
.p2align 8
.type {NAME},@function
{NAME}:
KSTART:
{main}
{stubs}
CODE_END:
.section .rodata,"a"
.p2align 6
.amdhsa_kernel {NAME}
  .amdhsa_next_free_vgpr 512
  .amdhsa_next_free_sgpr 102
  .amdhsa_accum_offset 256
  .amdhsa_group_segment_fixed_size 0
  .amdhsa_kernarg_size 96
  .amdhsa_user_sgpr_count 2
  .amdhsa_user_sgpr_kernarg_segment_ptr 1
  .amdhsa_system_sgpr_workgroup_id_x 1
.end_amdhsa_kernel
"""
        return out, n

if __name__ == '__main__':
    import argparse, json
    ap = argparse.ArgumentParser()
    ap.add_argument('-o', default='k.s'); ap.add_argument('--stop'); ap.add_argument('--stamps', action='store_true')
    args = ap.parse_args()
    g = Gen(args.stop, args.stamps)
    s, n = g.build()
    open(args.o, 'w').write(s)
    json.dump(g.stampnames, open(args.o + '.stamps.json', 'w'))
    print('instructions', n, 'bytes', len(s))
```

```python
import sys, struct, math
from asmlib import *

NAME = "interleave_layers__linear_kernel_hedgehog__mixer_s_mlp__prompt_kernel"
MB = 1 << 20
WT_QKV, WT_O, WT_1, WT_2, WT_3, WT_4 = 0, 3*MB, 4*MB, 5*MB, 6*MB, 8*MB
APHI = 10*MB
SYNC = 13*MB
CNT, FL, FLO, FLH = SYNC, SYNC+0x1000, SYNC+0x2000, SYNC+0x4000
KVP = 14*MB
def LB(l): return 18*MB + l*24*MB
import os
SEP = bool(os.environ.get('SEP'))
def XA(l): return LB(l) if SEP else LB(0)
def OB(l): return LB(l)+3*MB if SEP else LB(0)+3*MB
def XB(l): return LB(l)+6*MB if SEP else LB(0)
def HB(l): return LB(l)+9*MB if SEP else LB(0)+3*MB
def HD(l): return LB(l)+12*MB if SEP else LB(0)+12*MB+l*3*MB
def X1(l): return LB(l)+15*MB if SEP else LB(0)
def H2(l): return LB(l)+18*MB if SEP else LB(0)+18*MB
STAMP = 80*MB
BANK = 20480
OOB = 0x80000000
def f2u(x): return struct.unpack('<I', struct.pack('<f', x))[0]
LOG2E = 1.4426950408889634
GC0 = -2.0*math.sqrt(2.0/math.pi)*LOG2E
GC1 = GC0*0.044715

WS = 's[8:11]'; TS = 's[12:15]'; OUT = 's[16:19]'
P_X, P_QKV, P_PHI, P_O, P_1, P_2, P_3, P_4, P_OUT, P_DBG, P_WS = 20, 22, 24, 26, 30, 32, 34, 36, 38, 40, 42
_sn = [44]
def S(n=1, align=1):
    while _sn[0] % align: _sn[0] += 1
    r = _sn[0]; _sn[0] += n; return r
sXG, sH, sCL, sJ, sC, sW, sMODE, sTT = [f's{S()}' for _ in range(8)]
sA21, sH21, sS21, sT21, sA20, sH20, sT20, sT48 = [f's{S()}' for _ in range(8)]
sW5, sW4, sWQ, sLW, sOutA, sOutH, sEdge, sDead = [f's{S()}' for _ in range(8)]
sQT21, sO4, sO1, sKVo, sKVi, sA48, sH48, sC21, sFLo, sFLOo, sWI, sWB, sBot, sW3 = [f's{S()}' for _ in range(14)]
sT = [f's{S()}' for _ in range(10)]
sSpin = f's{S()}'
sDm = f's{S()}'
_p = S(2, 2); sStamp = f's[{_p}:{_p+1}]'; sStampLo = f's{_p}'
sStampOff = f's{S()}'
assert _sn[0] <= 100, _sn

vL16, vL16b, vL16c, vS8, vST, vFl = 'v1', 'v2', 'v3', 'v4', 'v5', 'v6'
vT0, vT1 = 'v7', 'v18'
RES = 8
def v(i): return f'v{i}'
def vr(i, n): return f'v[{i}:{i+n-1}]'
def ar(i, n): return f'a[{i}:{i+n-1}]'

class Gen:
    def __init__(self, stop=None, stamps=False):
        self.a = Asm(); self.stop = stop; self.stamps = stamps; self.nstamp = 0; self.stampnames = []; self._ls = []; self.LSR = os.environ.get('LSR')
    def I(self, t, tag=None): self.a.I(t, tag)
    def lds(self, off):
        base = [vL16, vL16b, vL16c][off >> 16]; return base, off & 0xffff
    def stamp(self, name):
        if not self.stamps: return
        self.lsf()
        I = self.I
        I(f's_memrealtime {sStamp}')
        I(f's_memtime s[100:101]')
        self.a.wait(lg=None)
        I(f'v_mov_b32 v19, {sStampLo}')
        I(f's_add_u32 {sT[9]}, {sStampOff}, {self.nstamp*4}')
        I(f'buffer_store_dword v19, off, {WS}, {sT[9]}', tag='stamp')
        I(f'v_mov_b32 v19, s100')
        I(f'buffer_store_dword v19, off, {WS}, {sT[9]} offset:256', tag='stamp')
        self.nstamp += 1; self.stampnames.append(name)

    def ls(self, name):
        if self.stamps and self.LSR and name.startswith(self.LSR):
            k = len(self._ls); assert k < 10
            self._ls.append(name); self.a.items.append(Raw(f'    s_memtime s[{20+2*k}:{21+2*k}]'))
    def lsf(self):
        if self._ls:
            n = self._ls; self._ls = []; self.lflush(['  ' + x for x in n])
    def lstamp(self, k):
        return [Raw(f'    s_memtime s[{20+2*k}:{21+2*k}]')] if self.stamps else []
    def lflush(self, names):
        if not self.stamps: return
        self.a.wait(lg=None)
        for k, n in enumerate(names):
            self.I(f'v_mov_b32 v19, s{20+2*k}')
            self.I(f's_add_u32 {sT[9]}, {sStampOff}, {self.nstamp*4}')
            self.I(f'buffer_store_dword v19, off, {WS}, {sT[9]} offset:256', tag='stamp')
            self.I(f'v_mov_b32 v19, 0')
            self.I(f'buffer_store_dword v19, off, {WS}, {sT[9]}', tag='stamp')
            self.nstamp += 1; self.stampnames.append(n)
    def dma_b(self, sbase, const, bank, tag, nper=5, sc='', slw=None, ldsoff=None):
        out = []
        slw = slw or sLW
        lo = bank*BANK if ldsoff is None else ldsoff
        for i in range(nper):
            with self.a.capture() as c:
                if i == 0:
                    self.I(f's_add_u32 {sDm}, {sbase}, {const}')
                    self.I(f's_add_u32 m0, {slw}, {lo}')
                if i == 4:
                    self.I(f's_add_u32 {sDm}, {sDm}, 4096')
                    self.I(f's_add_u32 m0, m0, 4096')
                self.I(f'buffer_load_dwordx4 {vL16}, {WS}, {sDm} offen offset:{(i&3)*1024} {sc} lds', tag)
            out.append(c.items)
        return out
    def emit(self, bundles):
        for b in bundles: self.a.extend(b)
    def dma_bank(self, *args, **kw): self.emit(self.dma_b(*args, **kw))
    def cap(self, fn, *args, **kw):
        with self.a.capture() as c: fn(*args, **kw)
        return c.items
    def weave(self, items, bundles, every, first=0):
        bi = 0; acc = every - first
        for k, it in enumerate(items):
            self.a.items.append(it)
            if isinstance(it, Ins):
                assert ('exec', 0) not in it.dst and not it.op.startswith(('s_cbranch', 's_branch')), it.text
                acc += 4 if it.kind == 'mfma' else (2 if it.kind == 'trans' else 1)
                nx = items[k+1] if k+1 < len(items) else None
                scc_live = isinstance(nx, Ins) and nx.op.startswith(('s_cselect', 's_cbranch', 's_addc', 's_subb'))
                if acc >= every and bi < len(bundles) and not scc_live:
                    self.a.extend(bundles[bi]); bi += 1; acc = 0
        self.emit(bundles[bi:])

    def touch(self, base, n, grp=0, tag='touch'):
        with self.a.capture() as c:
            I = self.I
            I(f's_mul_i32 s6, {sWI}, {n*128}'); I(f's_add_u32 s6, s6, {base}')
            if grp: I(f's_mul_i32 s7, {sXG}, {grp}'); I('s_add_u32 s6, s6, s7')
            I(f'v_min_u32 v19, {n-1}, v0'); I('v_lshlrev_b32 v19, 7, v19')
            I(f'buffer_load_dword a252, v19, {WS}, s6 offen sc1', tag)
        return [c.items]
    def touch2(self, sbase, const, n):
        with self.a.capture() as c:
            self.I(f's_add_u32 s6, {sbase}, {const}')
            self.I(f'v_min_u32 v19, {n-1}, v0'); self.I('v_lshlrev_b32 v19, 7, v19')
            self.I(f'buffer_load_dword a252, v19, {WS}, s6 offen sc1', 'touch')
        return [c.items]
    def touchT(self, base, tstride): return self.touch(base, tstride//1024, 16*tstride)
    def decomp(self, dst, areg, n, tmp):
        self.I(f'v_accvgpr_read_b32 v{tmp}, a{areg}')
        for i in range(n): self.I(f'v_mov_b32_dpp v{dst+i}, v{tmp} row_newbcast:{i} row_mask:0xf bank_mask:0xf')

    def cpf(self):
        I = self.I
        pl = self.a.newlabel('PCL')
        I('s_getpc_b64 s[4:5]')
        self.a.label(pl)
        I(f's_lshl_b32 s6, {sH}, 2'); I(f's_add_u32 s6, s6, {sW}'); I('s_and_b32 s6, s6, 31'); I('s_lshl_b32 s6, s6, 10')
        I(f'v_add_u32 v19, s6, {vL16}')
        I(f'v_min_u32 v19, CODE_END-{pl}-16, v19')
        I('global_load_dword a253, v19, s[4:5]', 'cpf')

    def poll(self, voff, soff, val):
        a = self.a; I = self.I
        L = a.newlabel('POLL'); D = a.newlabel('PDONE')
        if self.CPF: self.cpf()
        I(f's_mov_b32 {sSpin}, {sDead}')
        a.label(L)
        I(f'buffer_load_dword {vT0}, {voff}, {WS}, {soff} offen sc1')
        a.wait(vm=None)
        I(f'v_cmp_le_u32 vcc, {val}, {vT0}')
        I(f's_cmp_eq_u64 vcc, -1')
        I(f's_cbranch_scc1 {D}')
        I(f's_sub_u32 {sSpin}, {sSpin}, 1')
        I(f's_cbranch_scc0 {L}')
        I(f's_mov_b32 {sDead}, 0')
        a.label(D)

    def setflag(self, soff, val, sc1=False, vmask=None):
        I = self.I
        I(f'v_mov_b32 {vT0}, {val}')
        I(f'v_mov_b32 {vT1}, {vmask if vmask else 0}')
        I(f's_mov_b64 exec, 1')
        if sc1:
            I(f'buffer_store_dword {vT0}, {vT1}, {WS}, {soff} offen sc1', 'flag')
        else:
            self.a.slow_begin(sMODE)
            I(f'buffer_store_dword {vT0}, {vT1}, {WS}, {soff} offen', 'flag')
            self.a.slow_end()
        I(f's_mov_b64 exec, -1')

    def pack(self, dst, src, n):
        for i in range(n): self.I(f'v_cvt_pk_bf16_f32 v{dst+i}, v{src+2*i}, v{src+2*i+1}')
    def unpack(self, dst, src, n):
        for i in range(n):
            self.I(f'v_lshlrev_b32 v{dst+2*i}, 16, v{src+i}')
            self.I(f'v_and_b32 v{dst+2*i+1}, 0xffff0000, v{src+i}')

    def prod_stats(self, acc, t):
        I = self.I
        I(f'v_pk_add_f32 {vr(t,2)}, {vr(acc,2)}, {vr(acc+2,2)}')
        I(f'v_pk_mul_f32 {vr(t+2,2)}, {vr(acc,2)}, {vr(acc,2)}')
        I(f'v_pk_fma_f32 {vr(t+2,2)}, {vr(acc+2,2)}, {vr(acc+2,2)}, {vr(t+2,2)}')
        for i in range(2, 10):
            I(f'v_pk_add_f32 {vr(t,2)}, {vr(t,2)}, {vr(acc+2*i,2)}')
            I(f'v_pk_fma_f32 {vr(t+2,2)}, {vr(acc+2*i,2)}, {vr(acc+2*i,2)}, {vr(t+2,2)}')
        I(f'v_add_f32 v{t}, v{t}, v{t+1}')
        I(f'v_add_f32 v{t+2}, v{t+2}, v{t+3}')
        I(f'v_permlane32_swap_b32 v{t}, v{t+2}')
        I(f'v_add_f32 v{t}, v{t}, v{t+2}')
        I(f'v_mov_b32 v{t+1}, v{t}')
        I(f'v_permlane16_swap_b32 v{t}, v{t+1}')
        I(f'v_add_f32 v{t}, v{t}, v{t+1}')

    def cons_stats(self, F, nm, r, double=False, r1=None):
        I = self.I
        I(f'v_add_f32 v{F}, v{F}, v{F+2}'); I(f'v_add_f32 v{F+1}, v{F+1}, v{F+3}')
        I(f'v_permlane32_swap_b32 v{F}, v{F+1}')
        I(f'v_add_f32 v{F}, v{F}, v{F+1}')
        I(f'v_mov_b32 v{F+1}, v{F}')
        I(f'v_permlane16_swap_b32 v{F}, v{F+1}')
        I(f'v_add_f32 v{F}, v{F}, v{F+1}')
        I(f'v_mov_b32 v{F+1}, v{F}')
        I(f'v_permlane32_swap_b32 v{F}, v{F+1}')
        I(f'v_mul_f32 v{nm}, {hex(f2u(-1.0/640))}, v{F}')
        I(f'v_mul_f32 v{F+1}, {hex(f2u(1.0/640))}, v{F+1}')
        I(f'v_fma_f32 v{F+1}, -v{nm}, v{nm}, v{F+1}')
        I(f'v_max_f32 v{F+1}, 0, v{F+1}')
        I(f'v_add_f32 v{F+2}, {hex(f2u(1e-5))}, v{F+1}')
        if not double:
            I(f'v_rsq_f32 v{r}, v{F+2}')
        else:
            I(f'v_rsq_f32 v{r1}, v{F+2}')
            I(f'v_mul_f32 v{F+1}, v{F+1}, v{r1}')
            I(f'v_mul_f32 v{F+1}, v{F+1}, v{r1}')
            I(f'v_add_f32 v{F+1}, {hex(f2u(1e-5))}, v{F+1}')
            I(f'v_rsq_f32 v{F+1}, v{F+1}')
            I(f'v_mul_f32 v{r}, v{r1}, v{F+1}')

    def lnfixp(self, acc, cw, n2, p):
        for i in range(n2):
            self.I(f'v_pk_fma_f32 {vr(acc+2*i,2)}, {vr(cw+2*i,2)}, {vr(p,2)}, {vr(acc+2*i,2)} op_sel_hi:[1,0,1]')
        for i in range(n2):
            self.I(f'v_pk_mul_f32 {vr(acc+2*i,2)}, {vr(acc+2*i,2)}, {vr(p,2)} op_sel:[0,1] op_sel_hi:[1,1]')
    def lnfix(self, acc, cw, n2, nm, r):
        for i in range(n2):
            self.I(f'v_pk_fma_f32 {vr(acc+2*i,2)}, {vr(cw+2*i,2)}, {vr(nm,2)}, {vr(acc+2*i,2)} op_sel_hi:[1,0,1]')
        for i in range(n2):
            self.I(f'v_pk_mul_f32 {vr(acc+2*i,2)}, {vr(acc+2*i,2)}, {vr(r,2)} op_sel_hi:[1,0]')

    def gelu(self, x, n2, t, K):
        I = self.I
        for i in range(n2): I(f'v_pk_mul_f32 {vr(t+2*i,2)}, {vr(x+2*i,2)}, {vr(x+2*i,2)}')
        for i in range(n2): I(f'v_pk_fma_f32 {vr(t+2*i,2)}, {vr(t+2*i,2)}, {vr(K,2)}, {vr(K,2)} op_sel:[0,0,1] op_sel_hi:[1,0,1]')
        for i in range(n2): I(f'v_pk_mul_f32 {vr(t+2*i,2)}, {vr(t+2*i,2)}, {vr(x+2*i,2)}')
        for i in range(2*n2): I(f'v_exp_f32 v{t+i}, v{t+i}')
        for i in range(n2): I(f'v_pk_add_f32 {vr(t+2*i,2)}, {vr(t+2*i,2)}, {vr(K+2,2)} op_sel_hi:[1,0]')
        for i in range(2*n2): I(f'v_rcp_f32 v{t+i}, v{t+i}')
        for i in range(n2): I(f'v_pk_mul_f32 {vr(x+2*i,2)}, {vr(x+2*i,2)}, {vr(t+2*i,2)}')
    def geluA(self, x, n2, t, K):
        I = self.I
        for i in range(n2): I(f'v_pk_mul_f32 {vr(t+2*i,2)}, {vr(x+2*i,2)}, {vr(x+2*i,2)}')
        for i in range(n2): I(f'v_pk_fma_f32 {vr(t+2*i,2)}, {vr(t+2*i,2)}, {vr(K,2)}, {vr(K,2)} op_sel:[0,0,1] op_sel_hi:[1,0,1]')
        for i in range(n2): I(f'v_pk_mul_f32 {vr(t+2*i,2)}, {vr(t+2*i,2)}, {vr(x+2*i,2)}')
    def geluB(self, x, n2, t):
        I = self.I
        for i in range(2*n2): I(f'v_exp_f32 v{t+i}, v{t+i}')
        for i in range(2*n2): I(f'v_add_f32 v{t+i}, 1.0, v{t+i}')
        for i in range(2*n2): I(f'v_rcp_f32 v{t+i}, v{t+i}')
        for i in range(2*n2): I(f'v_mul_f32 v{x+i}, v{x+i}, v{t+i}')
    def gelu_consts(self, K):
        self.I(f'v_mov_b32 v{K}, {hex(f2u(GC1))}')
        self.I(f'v_mov_b32 v{K+1}, {hex(f2u(GC0))}')
        self.I(f'v_mov_b32 v{K+2}, 1.0')

    def store_tile(self, P, buf, sA, sHh, sc1=False, vA=vL16, vH=vS8, tag='st'):
        I = self.I
        sc = ' sc1' if sc1 else ''
        I(f's_add_u32 {sT[0]}, {sA}, {buf}')
        I(f's_add_u32 {sT[1]}, {sHh}, {buf}')
        if not sc1: self.a.slow_begin(sMODE)
        I(f'buffer_store_dwordx4 {vr(P,4)}, {vA}, {WS}, {sT[0]} offen{sc}', tag)
        I(f'buffer_store_dwordx4 {vr(P+4,4)}, {vA}, {WS}, {sT[0]} offen offset:1024{sc}', tag)
        I(f'buffer_store_dwordx2 {vr(P+8,2)}, {vH}, {WS}, {sT[1]} offen{sc}', tag)
        if not sc1: self.a.slow_end()
    def store_stats(self, t, buf, sc1=False, tag='st'):
        I = self.I
        I(f's_add_u32 {sT[0]}, {sS21}, {buf}')
        if not sc1: self.a.slow_begin(sMODE)
        I(f'buffer_store_dword v{t}, {vST}, {WS}, {sT[0]} offen' + (' sc1' if sc1 else ''), tag)
        if not sc1: self.a.slow_end()

    def load_frag(self, dst, voff, sbase, const, idx, tag, areg=False, sc=' sc1', state={}):
        key = (sbase, const, idx >> 2)
        if self._lf != key:
            self.I(f's_add_u32 {sT[2]}, {sbase}, {const + (idx >> 2)*4096}')
            self._lf = key
        d = ar(dst, 4) if areg else vr(dst, 4)
        self.I(f'buffer_load_dwordx4 {d}, {voff}, {WS}, {sT[2]} offen offset:{(idx & 3)*1024}{sc}', tag)
    _lf = None

    def tsrd(self, p, nbytes):
        self.I(f's_mov_b32 s12, s{p}'); self.I(f's_and_b32 s13, s{p+1}, 0xffff'); self.I(f's_mov_b32 s14, {nbytes}')

    def rowcol(self, q, magic, lpr, rs):
        I = self.I
        I(f'v_add_u32 v26, {q}, v0')
        I(f'v_mul_u32_u24 v27, {magic}, v26'); I('v_lshrrev_b32 v27, 16, v27')
        I(f'v_mul_u32_u24 v28, {lpr}, v27'); I('v_sub_u32 v28, v26, v28')
        I(f'v_mul_u32_u24 v29, {rs}, v27'); I('v_lshl_add_u32 v29, v28, 4, v29')

    def prologue(self):
        a = self.a; I = self.I
        sRS, sEx, sSrc, sDst, sTile, sU, sLB = sT[3], sT[4], sT[5], sT[6], sT[7], sT[8], sWB
        sInvA, sInvB, sSrc3 = 's6', 's7', 's3'
        I('s_cmp_ge_u32 s2, 256')
        I('s_cbranch_scc1 KEND')
        I('s_load_dwordx16 s[20:35], s[0:1], 0')
        I('s_load_dwordx8 s[36:43], s[0:1], 64')
        if self.stamps: I('s_memrealtime s[98:99]')
        I('s_getpc_b64 s[4:5]')
        a.label('PCL0')
        I(f's_lshr_b32 {sH}, s2, 3')
        I(f's_lshl_b32 {sT[0]}, {sH}, 12')
        I(f'v_lshl_add_u32 v26, v0, 4, {sT[0]}')
        I('v_min_u32 v26, CODE_END-PCL0-16, v26')
        I('global_load_dword a253, v26, s[4:5]')
        I('v_lshrrev_b32 v7, 6, v0')
        I('v_mov_b32 v25, v0')
        I(f'v_readfirstlane_b32 {sW}, v7')
        I('v_and_b32 v0, 63, v0')
        I(f's_and_b32 {sXG}, s2, 7')
        I(f's_lshr_b32 {sCL}, {sH}, 3'); I(f's_and_b32 {sJ}, {sH}, 7')
        I(f's_lshl_b32 {sC}, {sXG}, 2'); I(f's_add_u32 {sC}, {sC}, {sCL}')
        I(f's_lshl_b32 {sTT}, {sC}, 2'); I(f's_add_u32 {sTT}, {sTT}, {sW}')
        I(f's_mul_i32 {sT[0]}, {sJ}, 5'); I(f's_add_u32 {sT[0]}, {sT[0]}, 1'); I(f's_lshr_b32 {sT[0]}, {sT[0]}, 1')
        I(f's_lshl_b32 {sA21}, {sT[0]}, 10')
        I(f's_mul_i32 {sH21}, {sJ}, 2560')
        I(f's_bitcmp0_b32 {sJ}, 0'); I(f's_cselect_b32 {sT[3]}, 2048, 0'); I(f's_add_u32 {sH21}, {sH21}, {sT[3]}')
        I(f's_mul_i32 {sT20}, {sTT}, 20480')
        I(f's_lshr_b32 {sOutA}, {sA21}, 4'); I(f's_lshr_b32 {sOutH}, {sH21}, 4')
        I(f's_add_u32 {sOutA}, {sOutA}, {sT20}'); I(f's_add_u32 {sOutH}, {sOutH}, {sT20}')
        I('v_and_b32 v20, 15, v0'); I('v_lshrrev_b32 v21, 4, v0')
        I('v_mul_u32_u24 v26, 1280, v20')
        I('v_lshl_add_u32 v36, v21, 4, v26'); I('v_lshl_add_u32 v37, v21, 3, v26')
        I(f's_lshr_b32 {sT[1]}, s2, 1'); I(f's_and_b32 {sT[0]}, s2, 1')
        I(f's_mul_i32 {sSrc}, {sT[1]}, {8*3840}'); I(f's_mul_i32 {sT[2]}, {sT[0]}, 640'); I(f's_add_u32 {sSrc}, {sSrc}, {sT[2]}')
        I(f's_cmp_lt_u32 s2, 160'); I(f's_cselect_b32 {sInvA}, 0, {OOB}'); I(f's_cselect_b32 {sSrc}, {sSrc}, 0')
        for k in range(4):
            I(f'v_add_u32 v26, {256*k}, v25')
            I('v_mul_u32_u24 v27, 13108, v26'); I('v_lshrrev_b32 v27, 19, v27')
            I('v_mul_u32_u24 v28, 40, v27'); I('v_sub_u32 v28, v26, v28')
            I('v_and_b32 v29, 7, v27'); I('v_mul_u32_u24 v29, 3840, v29'); I('v_lshl_add_u32 v29, v28, 4, v29')
            I('v_lshrrev_b32 v27, 3, v27'); I('v_mul_u32_u24 v28, 1280, v27'); I(f'v_add3_u32 v{40+k}, v29, v28, {sInvA}')
        I('v_cmp_gt_u32 vcc, 3, v27'); I(f'v_mov_b32 v28, {OOB}'); I('v_cndmask_b32 v43, v28, v43, vcc')
        I(f's_lshl_b32 {sLB}, {sW}, 10')
        I('s_mov_b32 s15, 0x20000'); I('s_mov_b32 s11, 0x20000'); I('s_mov_b32 s19, 0x20000')
        I('s_mov_b32 s10, 0x10000000'); I('s_mov_b32 s18, 2621440')
        a.wait(lg=None)
        self.tsrd(P_QKV, 2457600)
        for k in range(4):
            I(f's_add_u32 m0, {sLB}, {k*4096}')
            I(f'buffer_load_dwordx4 v{40+k}, {TS}, {sSrc} offen lds')
        self.tsrd(P_X, 2621440)
        I(f'buffer_load_dwordx4 {vr(RES,4)}, v36, {TS}, {sOutA} offen')
        I(f'buffer_load_dwordx4 {vr(RES+4,4)}, v36, {TS}, {sOutA} offen offset:64')
        I(f'buffer_load_dwordx2 {vr(RES+8,2)}, v37, {TS}, {sOutH} offen')
        I(f's_mov_b32 s8, s{P_WS}'); I(f's_and_b32 s9, s{P_WS+1}, 0xffff')
        I(f's_mov_b32 s16, s{P_OUT}'); I(f's_and_b32 s17, s{P_OUT+1}, 0xffff')
        I(f's_lshl_b32 {sU}, s2, 2'); I(f's_add_u32 {sU}, {sU}, {sW}')
        I(f's_cmp_lg_u32 {sU}, 1023'); I('s_cbranch_scc1 NOZERO')
        I('v_lshlrev_b32 v26, 7, v0'); I('v_mov_b32 v27, 0'); I('s_mov_b64 exec, 0xffff')
        I(f's_mov_b32 {sT[2]}, {CNT}')
        I(f'buffer_store_dword v27, v26, {WS}, {sT[2]} offen sc1')
        a.wait(vm=None)
        I('s_mov_b64 exec, 1'); I('v_mov_b32 v26, 1')
        I(f'global_store_dword v27, v26, s[{P_DBG}:{P_DBG+1}] sc1')
        I('s_mov_b64 exec, -1')
        a.label('NOZERO')
        I(f's_mul_i32 {sDm}, {sT[0]}, {16*81920}'); I(f's_mul_i32 {sT[2]}, {sW}, {4*81920}'); I(f's_add_u32 {sDm}, {sDm}, {sT[2]}')
        I(f's_lshr_b32 {sT[2]}, {sT[1]}, 2'); I(f's_lshl_b32 {sT[2]}, {sT[2]}, 12'); I(f's_add_u32 {sDm}, {sDm}, {sT[2]}')
        I(f's_and_b32 {sT[2]}, {sT[1]}, 3'); I(f's_lshl_b32 {sT[2]}, {sT[2]}, 8'); I(f's_add_u32 {sDm}, {sDm}, {sT[2]}')
        I(f's_mov_b32 {sDead}, 400000'); I(f's_mov_b32 {sMODE}, 0')
        I(f's_mul_i32 {sT21}, {sTT}, 21504'); I(f's_mul_i32 {sT48}, {sTT}, 49152')
        I(f's_add_u32 {sA20}, {sT20}, {sA21}'); I(f's_add_u32 {sH20}, {sT20}, {sH21}')
        I(f's_add_u32 {sA21}, {sT21}, {sA21}'); I(f's_add_u32 {sH21}, {sT21}, {sH21}')
        I(f's_lshr_b32 {sT[0]}, {sJ}, 1'); I(f's_lshl_b32 {sT[0]}, {sT[0]}, 8')
        I(f's_and_b32 {sT[1]}, {sJ}, 1'); I(f's_lshl_b32 {sT[1]}, {sT[1]}, 3')
        I(f's_add_u32 {sS21}, {sT21}, {sT[0]}'); I(f's_add_u32 {sS21}, {sS21}, {sT[1]}'); I(f's_add_u32 {sS21}, {sS21}, 20480')
        I(f's_mul_i32 {sLW}, {sW}, 5120')
        I(f's_mul_i32 {sW5}, {sJ}, 102400'); I(f's_add_u32 {sW5}, {sW5}, {sLW}')
        I(f's_mul_i32 {sW4}, {sJ}, 245760'); I(f's_add_u32 {sW4}, {sW4}, {sLW}')
        I(f's_mul_i32 {sWQ}, {sH}, 81920');  I(f's_add_u32 {sWQ}, {sWQ}, {sLW}')
        I(f's_lshl_b32 {sWI}, {sH}, 2'); I(f's_add_u32 {sWI}, {sWI}, {sW}')
        I(f's_lshl_b32 {sT[0]}, {sXG}, 2'); I(f's_add_u32 {sT[0]}, {sT[0]}, {sW}')
        I(f's_mul_i32 {sQT21}, {sT[0]}, {4*21504}')
        I(f's_mul_i32 {sT[1]}, {sT[0]}, {4*20480}')
        I(f's_lshl_b32 {sT[2]}, {sH}, 9'); I(f's_add_u32 {sO4}, {sT[1]}, {sT[2]}')
        I(f's_lshr_b32 {sT[2]}, {sH}, 1'); I(f's_lshl_b32 {sT[2]}, {sT[2]}, 8'); I(f's_add_u32 {sO1}, {sT[1]}, {sT[2]}')
        I(f's_and_b32 {sT[2]}, {sH}, 1'); I(f's_lshl_b32 {sT[2]}, {sT[2]}, 3'); I(f's_add_u32 {sO1}, {sO1}, {sT[2]}'); I(f's_add_u32 {sO1}, {sO1}, 16384')
        I(f's_lshl_b32 {sT[2]}, {sT[0]}, 7'); I(f's_lshl_b32 {sFLOo}, {sH}, 2')
        I(f's_add_u32 {sFLOo}, {sT[2]}, {sFLOo}'); I(f's_add_u32 {sFLOo}, {sFLOo}, {FLO}')
        I(f's_lshl_b32 {sKVi}, {sH}, 16'); I(f's_lshl_b32 {sT[2]}, {sW}, 10'); I(f's_add_u32 {sKVi}, {sKVi}, {sT[2]}')
        I(f's_add_u32 {sKVi}, {sKVi}, {KVP}')
        I(f's_lshl_b32 {sT[2]}, {sXG}, 13'); I(f's_add_u32 {sKVo}, {sKVi}, {sT[2]}')
        I(f's_lshl_b32 {sT[0]}, {sJ}, 2'); I(f's_add_u32 {sT[0]}, {sT[0]}, {sW}')
        I(f's_mul_i32 {sW3}, {sT[0]}, 61440')
        I(f's_mul_i32 {sT[1]}, {sT[0]}, 3'); I(f's_add_u32 {sT[1]}, {sT[1]}, 1'); I(f's_lshr_b32 {sT[1]}, {sT[1]}, 1'); I(f's_lshl_b32 {sA48}, {sT[1]}, 10')
        I(f's_mul_i32 {sH48}, {sT[0]}, 1536')
        I(f's_bitcmp0_b32 {sT[0]}, 0'); I(f's_cselect_b32 {sT[2]}, 1024, 0'); I(f's_add_u32 {sH48}, {sH48}, {sT[2]}')
        I(f's_mul_i32 {sT[2]}, {sC}, {4*49152}')
        I(f's_add_u32 {sA48}, {sT[2]}, {sA48}'); I(f's_add_u32 {sH48}, {sT[2]}, {sH48}')
        I(f's_mul_i32 {sC21}, {sC}, {4*21504}')
        I(f's_lshl_b32 {sFLo}, {sTT}, 5'); I(f's_lshl_b32 {sT[2]}, {sJ}, 2'); I(f's_add_u32 {sFLo}, {sFLo}, {sT[2]}'); I(f's_add_u32 {sFLo}, {sFLo}, {FL}')
        I(f's_and_b32 {sT[0]}, {sTT}, 15')
        I(f's_mov_b32 {sEdge}, {OOB}')
        I(f's_cmp_eq_u32 {sT[0]}, 0');  I(f's_cselect_b32 {sEdge}, 0, {sEdge}')
        I(f's_cmp_eq_u32 {sT[0]}, 15'); I(f's_cselect_b32 {sEdge}, 0, {sEdge}'); I(f's_cselect_b32 {sBot}, 1, 0')
        I(f's_cmp_eq_u32 {sTT}, 0');   I(f's_cselect_b32 {sEdge}, {OOB}, {sEdge}')
        I(f's_cmp_eq_u32 {sTT}, 127'); I(f's_cselect_b32 {sEdge}, {OOB}, {sEdge}')
        I(f'v_lshlrev_b32 {vL16}, 4, v0')
        I(f'v_add_u32 {vL16b}, 0x10000, {vL16}'); I(f'v_add_u32 {vL16c}, 0x20000, {vL16}')
        I('v_lshrrev_b32 v22, 5, v0'); I('v_and_b32 v23, 1, v21'); I('v_lshlrev_b32 v24, 4, v20')
        I(f'v_lshl_add_u32 {vS8}, v22, 8, v24'); I(f'v_lshl_add_u32 {vS8}, v23, 3, {vS8}')
        I(f'v_lshl_add_u32 {vST}, v22, 2, v24')
        I(f'v_and_b32 {vFl}, 31, v0'); I(f'v_lshlrev_b32 {vFl}, 2, {vFl}')
        if self.stamps:
            I(f's_lshl_b32 {sStampOff}, {sU}, 9'); I(f's_add_u32 {sStampOff}, {sStampOff}, {STAMP}')
            I('v_mov_b32 v19, s98'); I(f'buffer_store_dword v19, off, {WS}, {sStampOff}'); I(f'buffer_store_dword v19, off, {WS}, {sStampOff} offset:256')
            self.nstamp += 1; self.stampnames.append('entry')
        self.stamp('issued')
        I('v_lshrrev_b32 v26, 2, v20'); I('v_and_b32 v27, 3, v20')
        I(f's_mul_i32 {sT[2]}, {sW}, 160')
        I('v_mul_u32_u24 v29, 640, v26'); I(f'v_add_u32 v29, {sT[2]}, v29'); I('v_mul_u32_u24 v28, 40, v21'); I('v_add_u32 v29, v29, v28')
        I('v_lshl_add_u32 v30, v27, 3, v29')
        I('v_lshlrev_b32 v28, 3, v27'); I(f'v_add_u32 v31, {10240-8}, v28'); I(f'v_mov_b32 v33, {5120+32}')
        I('v_cmp_eq_u32 vcc, 0, v27'); I('v_cndmask_b32 v31, v31, v33, vcc'); I('v_add_u32 v31, v31, v29')
        I('v_min_u32 v28, 2, v27'); I('v_lshlrev_b32 v28, 3, v28'); I(f'v_add_u32 v33, {10240+16}, v28'); I('v_mov_b32 v34, 32')
        I('v_cndmask_b32 v33, v33, v34, vcc'); I('v_add_u32 v33, v33, v29')
        I(f's_mov_b32 {sT[2]}, 81920'); I(f'v_mul_lo_u32 v32, v21, {sT[2]}'); I(f'v_add3_u32 v32, v32, v24, {sInvA}')
        I(f's_mov_b32 s12, s{P_O}'); I(f's_mov_b32 s13, s{P_O+1}'); I(f's_mov_b32 s14, 819200')
        I(f's_mov_b32 {sDst}, {WT_O}'); I(f's_mov_b32 {sTile}, 102400'); I(f's_mov_b32 {sT[0]}, {sU}')
        for thr, p, wt in ((160, P_1, WT_1), (320, P_2, WT_2), (480, P_4, WT_4)):
            I(f's_sub_u32 {sT[1]}, {sU}, {thr}')
            I(f's_cmp_ge_u32 {sU}, {thr}')
            I(f's_cselect_b32 s12, s{p}, s12'); I(f's_cselect_b32 s13, s{p+1}, s13')
            I(f's_cselect_b32 {sDst}, {wt}, {sDst}'); I(f's_cselect_b32 {sT[0]}, {sT[1]}, {sT[0]}')
        I(f's_cselect_b32 {sTile}, 245760, {sTile}'); I(f's_cselect_b32 s14, 1966080, s14')
        I(f's_and_b32 s13, s13, 0xffff')
        I(f's_cmp_lt_u32 {sU}, 864'); I(f's_cselect_b32 {sInvA}, 0, {OOB}'); I(f's_cselect_b32 {sT[0]}, {sT[0]}, 0')
        I(f's_lshr_b32 {sT[1]}, {sT[0]}, 1'); I(f's_and_b32 {sT[0]}, {sT[0]}, 1')
        I(f's_lshl_b32 {sSrc}, {sT[1]}, 3'); I(f's_mov_b32 {sEx}, 0')
        I(f's_cmp_ge_u32 {sU}, 160'); I('s_cbranch_scc1 PREP_RB')
        I(f's_lshr_b32 {sT[2]}, {sT[1]}, 1'); I(f's_mul_i32 {sT[2]}, {sT[2]}, 20')
        I(f's_and_b32 {sSrc}, {sT[1]}, 1'); I(f's_lshl_b32 {sSrc}, {sSrc}, 3'); I(f's_add_u32 {sSrc}, {sSrc}, {sT[2]}')
        I(f's_cmp_lt_u32 {sT[1]}, 64'); I('s_cbranch_scc1 PREP_RB')
        I(f's_sub_u32 {sT[2]}, {sT[1]}, 64'); I(f's_mul_i32 {sSrc}, {sT[2]}, 40'); I(f's_add_u32 {sSrc}, {sSrc}, 16')
        I(f's_mov_b32 {sEx}, {16*1280}')
        a.label('PREP_RB')
        I(f's_mul_i32 {sSrc}, {sSrc}, 1280'); I(f's_mul_i32 {sT[2]}, {sT[0]}, 640'); I(f's_add_u32 {sSrc}, {sSrc}, {sT[2]}')
        I(f's_mul_i32 {sT[2]}, {sT[0]}, {sTile}'); I(f's_lshl_b32 {sT[2]}, {sT[2]}, 2'); I(f's_add_u32 {sDst}, {sDst}, {sT[2]}')
        I(f's_lshr_b32 {sT[2]}, {sT[1]}, 2'); I(f's_mul_i32 {sT[2]}, {sT[2]}, 5120'); I(f's_add_u32 {sDst}, {sDst}, {sT[2]}')
        I(f's_and_b32 {sT[2]}, {sT[1]}, 3'); I(f's_lshl_b32 {sT[2]}, {sT[2]}, 8'); I(f's_add_u32 {sDst}, {sDst}, {sT[2]}')
        I(f's_sub_u32 {sT[0]}, 1023, {sU}')
        I(f's_cmp_lt_u32 {sT[0]}, 640'); I(f's_cselect_b32 {sInvB}, 0, {OOB}'); I(f's_cselect_b32 {sT[0]}, {sT[0]}, 0')
        I(f's_lshr_b32 {sT[1]}, {sT[0]}, 3'); I(f's_and_b32 {sT[0]}, {sT[0]}, 7')
        I(f's_mul_i32 {sSrc3}, {sT[1]}, {8*3072}'); I(f's_mul_i32 {sT[2]}, {sT[0]}, 384'); I(f's_add_u32 {sSrc3}, {sSrc3}, {sT[2]}')
        I(f's_mul_i32 {sRS}, {sT[0]}, 245760'); I(f's_lshl_b32 {sT[2]}, {sT[1]}, 8'); I(f's_add_u32 {sRS}, {sRS}, {sT[2]}'); I(f's_add_u32 {sRS}, {sRS}, {WT_3}')
        for q in range(5):
            self.rowcol(64*q, 1639, 40, 1280)
            I('v_lshrrev_b32 v27, 2, v27'); I(f'v_mad_u32_u24 v29, v27, {sEx}, v29'); I(f'v_or_b32 v{200+q}, {sInvA}, v29')
        for q in range(3):
            self.rowcol(64*q, 2731, 24, 3072)
            I(f'v_or_b32 v{205+q}, {sInvB}, v29')
        I(f's_lshl_b32 {sLB}, {sW}, 13'); I(f's_add_u32 {sLB}, {sLB}, 32768')
        I('v_lshrrev_b32 v26, 2, v20'); I('v_and_b32 v27, 3, v20')
        I('v_mul_u32_u24 v28, 5, v21'); I('v_add_u32 v28, 1, v28'); I('v_lshrrev_b32 v28, 1, v28')
        I('v_mul_u32_u24 v29, 640, v26'); I(f'v_add_u32 v29, {sLB}, v29')
        I('v_lshl_add_u32 v210, v28, 6, v29'); I('v_lshl_add_u32 v210, v27, 4, v210')
        I('v_mul_u32_u24 v211, 160, v21'); I('v_xor_b32 v28, 1, v23'); I('v_lshl_add_u32 v211, v28, 7, v211')
        I('v_add_u32 v211, v211, v29'); I('v_lshl_add_u32 v211, v27, 3, v211')
        I(f'v_mul_lo_u32 v212, v21, {sTile}'); I(f'v_add3_u32 v212, v212, v24, {sInvA}')
        I('v_mul_u32_u24 v29, 384, v26'); I(f'v_add_u32 v29, {sLB}, v29'); I('v_mul_u32_u24 v28, 96, v21'); I('v_add_u32 v29, v29, v28')
        I('v_lshl_add_u32 v213, v23, 5, v29'); I('v_lshl_add_u32 v213, v27, 4, v213')
        I('v_xor_b32 v28, 1, v23'); I('v_lshl_add_u32 v214, v28, 6, v29'); I('v_lshl_add_u32 v214, v27, 3, v214')
        I('v_mul_u32_u24 v215, 61440, v21'); I(f'v_add3_u32 v215, v215, v24, {sInvB}')
        I(f's_getreg_b32 {sT[0]}, hwreg(HW_REG_XCC_ID)'); I(f's_and_b32 {sT[0]}, {sT[0]}, 15')
        I(f's_mul_i32 {sT[1]}, {sT[0]}, {sT[0]}'); I(f's_lshl_b32 {sT[1]}, {sT[1]}, 16'); I(f's_lshl_b32 {sT[0]}, {sT[0]}, 6')
        I(f's_add_u32 {sU}, {sT[0]}, {sT[1]}'); I(f's_add_u32 {sU}, {sU}, 1')
        a.wait(vm=None)
        self.stamp('s1_loaded')
        self.store_tile(RES, XA(0), sA21, sH21, sc1=True)
        I('s_barrier')
        for i, (b_, o) in enumerate((('v30', 5120), ('v31', 0), ('v30', 0), ('v33', 0))):
            I(f'ds_read_b64_tr_b16 {vr(48+4*i,2)}, {b_} offset:{o}')
            I(f'ds_read_b64_tr_b16 {vr(50+4*i,2)}, {b_} offset:{o+2560}')
        self.unpack(140, RES, 10)
        a.wait(lg=None)
        for i in range(4): I(f'buffer_store_dwordx4 {vr(48+4*i,4)}, v32, {WS}, {sDm} offen offset:{i*1024} sc1')
        self.prod_stats(140, 160)
        self.store_stats(160, XA(0), sc1=True)
        I('v_mov_b32 v26, 0')
        I(f'global_load_dword v208, v26, s[{P_DBG}:{P_DBG+1}] sc1')
        a.wait(vm=None)
        self.stamp('s1_drained')
        I('s_barrier')
        I(f's_cmp_lg_u32 {sW}, 0'); I('s_cbranch_scc1 GB_ARR')
        I(f's_mov_b32 {sSpin}, {sDead}')
        a.label('GB_P0')
        I('v_cmp_ne_u32 vcc, 0, v208'); I('s_cmp_eq_u64 vcc, -1'); I('s_cbranch_scc1 GB_P0D')
        I(f'global_load_dword v208, v26, s[{P_DBG}:{P_DBG+1}] sc1')
        I('s_waitcnt vmcnt(0)')
        I(f's_sub_u32 {sSpin}, {sSpin}, 1'); I('s_cbranch_scc0 GB_P0')
        a.label('GB_P0D')
        I(f'v_mov_b32 v27, {sU}')
        I(f's_lshl_b32 {sT[1]}, {sXG}, 7'); I(f's_add_u32 {sT[1]}, {sT[1]}, {CNT}')
        I('s_mov_b64 exec, 1')
        I(f'buffer_atomic_add v27, v26, {WS}, {sT[1]} offen sc1')
        I('s_mov_b64 exec, -1')
        a.label('GB_ARR')
        for q in range(5):
            I(f's_add_u32 m0, {sLB}, {q*1024}')
            I(f'buffer_load_dwordx4 v{200+q}, {TS}, {sSrc} offen lds')
        self.tsrd(P_3, 1966080)
        for q in range(3):
            I(f's_add_u32 m0, {sLB}, {5120+q*1024}')
            I(f'buffer_load_dwordx4 v{205+q}, {TS}, {sSrc3} offen lds')
        self.tsrd(P_PHI, 25600)
        I('v_and_b32 v26, 3, v0'); I('v_lshlrev_b32 v26, 1, v26')
        I(f's_mul_i32 {sT[0]}, {sH}, 800')
        I('v_mul_u32_u24 v27, 160, v21'); I(f'v_add3_u32 v27, v27, v26, {sT[0]}')
        I(f'v_add_u32 v28, {sT[0]}, v26'); I('v_add_u32 v28, 640, v28'); I(f'v_mov_b32 v29, {OOB}')
        I('v_cmp_eq_u32 vcc, 0, v21'); I('v_cndmask_b32 v28, v29, v28, vcc')
        I(f's_lshl_b32 {sT[0]}, {sW}, 3')
        for fr, so in ((0, sT[0]), (1, '32')):
            for e in range(8):
                vo = 'v27' if e < 4 else 'v28'
                I(f'buffer_load_ushort v{(180 if e & 1 else 120)+4*fr+(e>>1)}, {vo}, {TS}, {so} offen offset:{(e&3)*40}')
        I('v_mov_b32 v128, 0')
        I(f's_lshl_b32 {sT[0]}, s2, 7'); I(f's_add_u32 {sT[0]}, {sT[0]}, {FL}')
        I(f's_cmp_eq_u32 {sW}, 1'); I(f's_cselect_b32 {sT[1]}, 0, {OOB}')
        I(f's_cmp_lt_u32 s2, 64'); I(f's_cselect_b32 {sT[1]}, {sT[1]}, {OOB}')
        I(f'v_or_b32 v26, {sT[1]}, {vFl}')
        I(f'buffer_store_dword v128, v26, {WS}, {sT[0]} offen sc1')
        for r in range(132, 142): I(f'v_mov_b32 v{r}, -1')
        for l in range(2):
            I(f's_add_u32 {sT[0]}, {sKVo}, {l*2*MB}')
            I(f'buffer_store_dwordx4 {vr(132,4)}, {vL16}, {WS}, {sT[0]} offen sc1')
        I(f'v_or_b32 v26, {sEdge}, {vL16}'); I(f'v_or_b32 v27, {sEdge}, {vS8}')
        for l in range(2): self.store_tile(132, HD(l), sA20, sH20, sc1=True, vA='v26', vH='v27')
        a.wait(vm=None)
        self.stamp('s2_loaded')
        for i in range(5):
            b_, o = ('v210', 64*(i >> 1) + 8*(i & 1)) if i < 4 else ('v211', 0)
            I(f'ds_read_b64_tr_b16 {vr(48+4*i,2)}, {b_} offset:{o}')
            I(f'ds_read_b64_tr_b16 {vr(50+4*i,2)}, {b_} offset:{o+2560}')
        I(f's_cmp_eq_u32 {sW}, 0'); I(f's_cselect_b32 {sT[0]}, 0, {OOB}')
        I('v_and_b32 v28, 7, v0'); I('v_lshlrev_b32 v28, 7, v28'); I(f'v_or_b32 v28, {sT[0]}, v28')
        I(f's_mov_b32 {sT[1]}, {CNT}')
        I(f'buffer_load_dword v27, v28, {WS}, {sT[1]} offen sc1', 'p1')
        a.wait(lg=None)
        for i in range(3):
            b_, o = ('v213', 8*i) if i < 2 else ('v214', 0)
            I(f'ds_read_b64_tr_b16 {vr(68+4*i,2)}, {b_} offset:{5120+o}')
            I(f'ds_read_b64_tr_b16 {vr(70+4*i,2)}, {b_} offset:{5120+o+1536}')
        for i in range(4): I(f'buffer_store_dwordx4 {vr(48+4*i,4)}, v212, {WS}, {sDst} offen offset:{i*1024} sc1')
        I(f's_add_u32 {sDst}, {sDst}, 4096')
        I(f'buffer_store_dwordx4 {vr(64,4)}, v212, {WS}, {sDst} offen sc1')
        a.wait(lg=None)
        for i in range(3):
            I(f'buffer_store_dwordx4 {vr(68+4*i,4)}, v215, {WS}, {sRS} offen sc1')
            if i < 2: I(f's_add_u32 {sRS}, {sRS}, 20480')
        I('v_bfe_u32 v26, v0, 2, 1'); I(f's_mov_b32 {sT[0]}, 0x80008000'); I(f'v_mul_lo_u32 v26, v26, {sT[0]}')
        for r in range(120, 128): I(f'v_lshl_or_b32 v{r}, v{r+60}, 16, v{r}')
        for r in range(120, 128): I(f'v_xor_b32 v{r}, v{r}, v26')
        for r in range(8): I(f'v_accvgpr_write_b32 a{240+r}, v{120+r}')
        I(f's_cmp_lg_u32 {sW}, 0'); I('s_cbranch_scc1 GB_WAIT')
        a.wait(vm='p1')
        I(f's_mov_b32 {sSpin}, {sDead}')
        a.label('GB_P1')
        I('v_and_b32 v29, 63, v27'); I('v_cmp_eq_u32 vcc, 32, v29'); I('s_cmp_eq_u64 vcc, -1'); I('s_cbranch_scc1 GB_P1D')
        I(f'buffer_load_dword v27, v28, {WS}, {sT[1]} offen sc1')
        I('s_waitcnt vmcnt(0)')
        I(f's_sub_u32 {sSpin}, {sSpin}, 1'); I('s_cbranch_scc0 GB_P1')
        a.label('GB_P1D')
        I(f'v_readlane_b32 {sT[1]}, v27, {sXG}')
        I(f's_lshl_b32 {sT[0]}, {sU}, 5')
        I(f's_cmp_eq_u32 {sT[0]}, {sT[1]}'); I(f's_cselect_b32 {sT[0]}, 1, 0')
        I(f'v_mov_b32 v27, {sT[0]}'); I(f'v_mov_b32 v26, {7*BANK}')
        I('ds_write_b32 v26, v27')
        a.wait(lg=None)
        a.label('GB_WAIT')
        I('s_barrier')
        I(f'v_mov_b32 v26, {7*BANK}')
        I(f'ds_read_b32 {vT0}, v26', 'mode')
        self.stamp('gbar_done')

    def arrive2(self):
        I = self.I
        I(f's_cmp_eq_u32 {sW}, 0'); I(f's_cselect_b32 {sT[0]}, 0, {OOB}')
        I(f'v_mov_b32 {vT0}, {sT[0]}'); I(f'v_mov_b32 {vT1}, 1')
        I(f's_lshl_b32 {sT[1]}, {sXG}, 7'); I(f's_add_u32 {sT[1]}, {sT[1]}, {CNT+1024}')
        I('s_mov_b64 exec, 1')
        I(f'buffer_atomic_add {vT1}, {vT0}, {WS}, {sT[1]} offen sc1')
        I('s_mov_b64 exec, -1')

    def softmax(self, P, t, KL):
        I = self.I
        I(f'v_max3_f32 v{t}, v{P}, v{P+1}, v{P+2}')
        I(f'v_max3_f32 v{t+1}, v{P+3}, v{P+4}, v{P+5}')
        for i in range(6, 18, 4):
            I(f'v_max3_f32 v{t}, v{t}, v{P+i}, v{P+i+1}')
            I(f'v_max3_f32 v{t+1}, v{t+1}, v{P+i+2}, v{P+i+3}')
        I(f'v_max3_f32 v{t}, v{t}, v{P+18}, v{P+19}')
        I(f'v_max_f32 v{t}, v{t}, v{t+1}')
        I(f'v_mul_f32 v{t}, {hex(f2u(-LOG2E))}, v{t}')
        for i in range(10): I(f'v_pk_fma_f32 {vr(P+2*i,2)}, {vr(P+2*i,2)}, {vr(KL,2)}, {vr(t,2)} op_sel_hi:[1,0,0]')
        for i in range(20): I(f'v_exp_f32 v{P+i}, v{P+i}')
        I(f'v_pk_add_f32 {vr(t,2)}, {vr(P,2)}, {vr(P+2,2)}')
        for i in range(2, 10): I(f'v_pk_add_f32 {vr(t,2)}, {vr(t,2)}, {vr(P+2*i,2)}')
        I(f'v_add_f32 v{t}, v{t}, v{t+1}')
        I(f'v_rcp_f32 v{t}, v{t}')
        for i in range(10): I(f'v_pk_mul_f32 {vr(P+2*i,2)}, {vr(P+2*i,2)}, {vr(t,2)} op_sel_hi:[1,0]')
        self.pack(P, P, 10)

    def phi(self, P, B0, B1, AF, bphi):
        for t in range(5):
            self.I(f'v_mfma_f32_16x16x32_bf16 {vr(P+4*t,4)}, {vr(AF+4*t,4)}, {vr(B0,4)}, 0')
        for t in range(5):
            self.I(f'v_mfma_f32_16x16x32_bf16 {vr(P+4*t,4)}, {vr(AF+20+4*t,4)}, {vr(B1,4)}, {vr(P+4*t,4)}')

    def qkv(self, l, wb, bphi, bscr, tail, fill2, fill3, fill4):
        a = self.a; I = self.I
        AF, AR, XR, ACC = 64, 104, 128, 192
        RA, DA, NR, LA = 6, 5, 16, 3
        ONES, CWF, CWA = 20, 24, 32
        NP = [36, 38, 40, 42]
        vX = [vL16, 'v44', 'v45', 'v46']; vCW = [47, 48, 49]
        vPK, vV1, vV3, vTA, vTB, vRS, vKD, vKL, vA0, vA2, vO4, vO1, vCr, vCw = range(50, 64)
        kvl = bphi*BANK + 13312; cwo = bphi*BANK + 12288
        def setup():
            t0, t1, t2, t3, vTok, vG = 64, 65, 66, 67, 68, 69
            for t in range(1, 4): I(f'v_add_u32 {vX[t]}, {t*21504}, {vL16}')
            I(f's_lshl_b32 {sT[3]}, {sW}, 10')
            if l == 0:
                for r in range(4): I(f'v_mov_b32 v{ONES+r}, 0x3f803f80')
                for k, base in enumerate((vL16, vL16b, vL16c)): I(f'v_add_u32 v{vCW[k]}, {sT[3]}, {base}')
            else:
                self.decomp(20, 248, 16, t0)
            for r in range(8): I(f'v_accvgpr_read_b32 v{76+r}, a{240+r}')
            I(f'v_bfe_u32 v{t0}, v0, 3, 1'); I(f'v_add_u32 v{t0}, -1, v{t0}'); I(f'v_not_b32 v{t1}, v{t0}')
            for r in range(8): I(f'v_and_b32 v{84+r}, v{76+r}, v{t0}')
            for r in range(8): I(f'v_and_b32 v{92+r}, v{76+r}, v{t1}')
            I(f'v_add_u32 v{t0}, {bphi*BANK}, {vL16}'); I(f'v_add_u32 v{t1}, {sT[3]}, v{t0}')
            I(f'ds_write_b128 v{t1}, {vr(84,4)}'); I(f'ds_write_b128 v{t0}, {vr(88,4)} offset:4096')
            I(f'ds_write_b128 v{t1}, {vr(92,4)} offset:5120'); I(f'ds_write_b128 v{t0}, {vr(96,4)} offset:9216')
            I(f's_mov_b32 {sWB}, {bscr[1]*BANK}'); I(f's_cmp_lt_u32 {sW}, 2'); I(f's_cselect_b32 {sWB}, {bscr[0]*BANK}, {sWB}')
            I(f's_and_b32 {sT[3]}, {sW}, 1'); I(f's_mul_i32 {sT[3]}, {sT[3]}, 10240'); I(f's_add_u32 {sWB}, {sWB}, {sT[3]}')
            I(f'v_and_b32 v{vTok}, 15, v0'); I(f'v_lshrrev_b32 v{vG}, 4, v0')
            I(f's_lshl_b32 {sT[3]}, {sW}, 6'); I(f's_add_u32 {sT[3]}, {sT[3]}, {cwo}')
            I(f'v_lshlrev_b32 v{t0}, 4, v{vG}'); I(f'v_add_u32 v{vCw}, {sT[3]}, v{t0}'); I(f'v_add_u32 v{vCr}, {cwo}, v{t0}')
            I(f'v_lshrrev_b32 v{t0}, 5, v0'); I(f'v_lshl_add_u32 v{t0}, v{t0}, 4, v{vTok}'); I(f'v_mul_u32_u24 v{vPK}, 80, v{t0}')
            I(f'v_and_b32 v{t0}, 1, v{vG}'); I(f'v_mul_u32_u24 v{t0}, 40, v{t0}'); I(f'v_add3_u32 v{vPK}, v{vPK}, v{t0}, {sWB}')
            I(f'v_mul_u32_u24 v{t0}, 72, v{vTok}'); I(f'v_add_u32 v{t0}, {sWB}, v{t0}'); I(f'v_add_u32 v{t0}, 5120, v{t0}')
            I(f'v_lshlrev_b32 v{t1}, 3, v{vG}'); I(f'v_add_u32 v{vV1}, -8, v{t1}'); I(f'v_add_u32 v{vV3}, 16, v{t1}')
            I(f'v_cmp_eq_u32 vcc, 0, v{vG}'); I(f'v_cndmask_b32 v{vV1}, v{vV1}, 48, vcc'); I(f'v_cndmask_b32 v{vV3}, v{vV3}, 56, vcc')
            I(f'v_add_u32 v{vV1}, v{vV1}, v{t0}'); I(f'v_add_u32 v{vV3}, v{vV3}, v{t0}')
            I(f'v_lshrrev_b32 v{t0}, 2, v{vTok}'); I(f'v_lshl_add_u32 v{t0}, v{vG}, 3, v{t0}')
            I(f'v_and_b32 v{t1}, 3, v0'); I(f'v_lshlrev_b32 v{t1}, 3, v{t1}'); I(f'v_add_u32 v{t1}, {sWB}, v{t1}')
            I(f'v_mad_u32_u24 v{vTA}, v{t0}, 20, v{t1}'); I(f'v_mad_u32_u24 v{vTA}, v{t0}, 60, v{vTA}')
            I(f'v_mad_u32_u24 v{vTB}, v{t0}, 12, v{t1}'); I(f'v_mad_u32_u24 v{vTB}, v{t0}, 60, v{vTB}'); I(f'v_add_u32 v{vTB}, 5120, v{vTB}')
            I(f'v_min_u32 v{t0}, 59, v0')
            I(f'v_mul_u32_u24 v{t1}, 3277, v{t0}'); I(f'v_lshrrev_b32 v{t1}, 16, v{t1}')
            I(f'v_mul_u32_u24 v{t2}, 20, v{t1}'); I(f'v_sub_u32 v{t0}, v{t0}, v{t2}')
            I(f'v_mul_u32_u24 v{t2}, 13108, v{t0}'); I(f'v_lshrrev_b32 v{t2}, 16, v{t2}')
            I(f'v_mul_u32_u24 v{t3}, 5, v{t2}'); I(f'v_sub_u32 v{t0}, v{t0}, v{t3}')
            I(f's_cmp_eq_u32 {sW}, 3'); I('s_cselect_b64 vcc, -1, 0')
            I(f'v_mov_b32 v{t3}, {sW}')
            I(f'v_cndmask_b32 v{t1}, v{t3}, v{t1}, vcc')
            I(f'v_cndmask_b32 v{t2}, v{vG}, v{t2}, vcc')
            I(f'v_cndmask_b32 v{t0}, v{vTok}, v{t0}, vcc')
            I(f'v_cndmask_b32 v{t3}, 0, 1, vcc')
            I(f'v_lshlrev_b32 v{vRS}, 10, v{t1}'); I(f'v_mad_u32_u24 v{vRS}, v{t3}, {self.sconst(3072)}, v{vRS}')
            I(f'v_lshl_add_u32 v{vRS}, v{t2}, 8, v{vRS}'); I(f'v_lshl_add_u32 v{vRS}, v{t0}, 4, v{vRS}')
            I(f'v_lshl_add_u32 v{t1}, v{t1}, 2, v{t2}')
            I(f'v_lshl_add_u32 v{t0}, v{t3}, 4, v{t0}')
            I(f'v_mul_u32_u24 v{vKD}, 96, v{t0}'); I(f'v_lshl_add_u32 v{vKD}, v{t1}, 3, v{vKD}')
            I(f'v_cmp_le_u32 vcc, 5, v{t1}'); I(f'v_cndmask_b32 v{t0}, 0, 8, vcc'); I(f'v_add_u32 v{vKD}, v{vKD}, v{t0}')
            I(f'v_add_u32 v{vKD}, {kvl}, v{vKD}')
            I(f'v_cmp_gt_u32 vcc, 10, v{t1}')
            I(f'v_mov_b32 v{t0}, {kvl + 96*30}'); I(f'v_cndmask_b32 v{vKD}, v{t0}, v{vKD}, vcc')
            I(f'v_mov_b32 v{t0}, {OOB}'); I(f'v_cndmask_b32 v{vKL}, v{t0}, {vL16}, vcc')
            I(f'v_bfe_u32 v{t0}, v0, 2, 1'); I(f'v_and_b32 v{t1}, 3, v0')
            I(f'v_lshl_add_u32 v{t2}, v{t0}, 3, v{t1}')
            I(f'v_lshl_add_u32 v{t3}, v{t0}, 1, v{t1}'); I(f'v_add_u32 v{t3}, 16, v{t3}')
            I(f'v_cmp_le_u32 vcc, 2, v{t1}'); I(f'v_cndmask_b32 v{t3}, v{t3}, 20, vcc')
            I(f'v_bfe_u32 v{t0}, v0, 3, 1'); I(f'v_lshrrev_b32 v{t1}, 5, v0')
            I(f'v_cmp_eq_u32 vcc, v{t0}, v{t1}')
            I(f'v_cndmask_b32 v{t2}, 21, v{t2}, vcc'); I(f'v_cndmask_b32 v{t3}, 21, v{t3}, vcc')
            I(f'v_and_b32 v{t0}, 1, v{vG}'); I(f'v_mul_u32_u24 v{t0}, 48, v{t0}'); I(f'v_add_u32 v{t0}, {kvl}, v{t0}')
            I(f's_movk_i32 {sT[3]}, 96')
            I(f'v_mad_u32_u24 v{vA0}, v{t2}, {sT[3]}, v{t0}'); I(f'v_mad_u32_u24 v{vA2}, v{t3}, {sT[3]}, v{t0}')
            I(f'v_mul_u32_u24 v{vO4}, 20480, v{t1}'); I(f'v_lshl_add_u32 v{vO4}, v{vTok}, 4, v{vO4}')
            I(f'v_and_b32 v{t0}, 1, v{vG}')
            I(f'v_lshl_add_u32 v{vO1}, v{t0}, 2, v{vO4}'); I(f'v_lshl_add_u32 v{vO4}, v{t0}, 8, v{vO4}')
            for r in range(4): I(f'v_mov_b32 v{72+r}, 0')
            I(f'v_min_u32 v{t0}, {35*16}, {vL16}'); I(f'v_add_u32 v{t0}, {kvl+96*21}, v{t0}')
            I(f'ds_write_b128 v{t0}, {vr(72,4)}')
        def aread(f):
            s_, i = f >> 2, f & 3
            b, o = self.lds(wb[s_ // 5]*BANK + ((s_ % 5)*4 + i)*1024)
            I(f'ds_read_b128 {vr(AR+4*(f % RA),4)}, {b} offset:{o}', ('a', f))
        def cwread(s_):
            off = wb[s_ // 5]*BANK + (s_ % 5)*4096
            I(f'ds_read_b128 {vr(CWF+4*(s_&1),4)}, v{vCW[off>>16]} offset:{off & 0xffff}', ('cw', s_))
        def xload(n):
            self.load_frag(XR + 4*(n % NR), vX[n & 3], sQT21, XA(l), n >> 2, ('x', n))
        self._lf = None
        wqb = lambda ch: self.dma_b(sWQ, WT_QKV + ch*BANK, wb[ch], ('wq', ch))
        extra = []
        if l == 0:
            for t in range(1, 4): I(f'v_add_u32 {vX[t]}, {t*21504}, {vL16}')
            self.emit(wqb(0))
            for n in range(4): xload(n)
            c1 = wqb(1)
            for n in range(4, 4*LA):
                if c1: a.extend(c1.pop(0))
                xload(n)
            a.wait(lg='mode'); I(f'v_readfirstlane_b32 {sMODE}, {vT0}')
            setup()
            a.wait(vm=('wq', 0), lg=None); I('s_barrier')
            self.arrive2()
            extra = wqb(2) + wqb(3)
            for f in range(DA): aread(f)
            cwread(0)
        else:
            setup()
            for f in range(DA): aread(f)
            I(f's_lshl_b32 {sT[3]}, {sXG}, 2'); I(f's_add_u32 {sT[3]}, {sT[3]}, {sW}'); I(f's_lshl_b32 {sT[3]}, {sT[3]}, 7'); I(f's_add_u32 {sT[3]}, {sT[3]}, {FL}')
            self.poll(vFl, sT[3], 8*(l-1)+5)
            self.stamp(f'qkv{l}_go')
            for n in range(4*LA): xload(n)
        ST = XR
        tailf = tail() if l else []
        for s_ in range(20):
            for i in range(4):
                f = 4*s_ + i
                for t in range(4):
                    a.wait(vm=('x', 4*s_+t) if i == 0 else False, lg=('a', f) if t == 0 else False)
                    d = vr(ACC + 16*t + 4*i, 4)
                    I(f'v_mfma_f32_16x16x32_bf16 {d}, {vr(AR+4*(f%RA),4)}, {vr(XR+4*((4*s_+t)%NR),4)}, {d if s_ else 0}')
                    if t == 0 and f + DA < 80:
                        if (l == 0 and (f + DA) % 20 == 0):
                            a.wait(vm=('wq', (f+DA)//20)); I('s_barrier')
                        if l and f + DA == 40: I('s_barrier')
                        aread(f + DA)
                    if t == 1:
                        n = 4*(s_+LA) + i
                        if n < 80: xload(n)
                        elif s_ == 17: self.load_frag(ST + 4*i, vX[i], sQT21, XA(l), 20, 'stat')
                        elif l == 0 and s_ == 18 and i == 0:
                            I(f'v_and_b32 {vT1}, 7, v0'); I(f'v_lshlrev_b32 {vT1}, 7, {vT1}')
                            I(f's_mov_b32 {sT[5]}, {CNT+1024}')
                            I(f'buffer_load_dword {vT0}, {vT1}, {WS}, {sT[5]} offen sc1', 'p2')
                        elif tailf: a.extend(tailf.pop(0))
                    if t == 3 and i == 1 and extra: a.extend(extra.pop(0))
                    if l == 0 and t == 2 and i == 0 and s_ + 1 < 20: cwread(s_+1)
                    if t == 2 and s_ >= 17 and 4*(s_-17)+i < 10:
                        k = 4*(s_-17)+i
                        b, o = self.lds(bphi*BANK + k*1024)
                        I(f'ds_read_b128 {vr(AF+4*k,4)}, {b} offset:{o}', 'af')
            if l == 0:
                a.wait(lg=('cw', s_))
                I(f'v_mfma_f32_16x16x32_bf16 {vr(CWA,4)}, {vr(CWF+4*(s_&1),4)}, {vr(ONES,4)}, {vr(CWA,4) if s_ else 0}')
        assert not extra and not tailf
        self.stamp(f'qkv{l}_gemm')
        CW = 20
        if l == 0:
            I(f'ds_write_b128 v{vCw}, {vr(CWA,4)}')
            L = a.newlabel('B2P'); D = a.newlabel('B2D')
            a.wait(vm='p2')
            I(f's_mov_b32 {sSpin}, {sDead}')
            a.label(L)
            I(f'v_and_b32 {vT0}, 63, {vT0}'); I(f'v_cmp_eq_u32 vcc, 32, {vT0}'); I('s_cmp_eq_u64 vcc, -1'); I(f's_cbranch_scc1 {D}')
            I(f'buffer_load_dword {vT0}, {vT1}, {WS}, {sT[5]} offen sc1')
            I('s_waitcnt vmcnt(0)')
            I(f's_sub_u32 {sSpin}, {sSpin}, 1'); I(f's_cbranch_scc0 {L}')
            I(f's_mov_b32 {sDead}, 0')
            a.label(D)
            self.emit(tail())
            a.wait(lg=None); I('s_barrier')
            for i in range(4): I(f'ds_read_b128 {vr(CW+4*i,4)}, v{vCr} offset:{i*64}', 'cwr')
            I(f'v_and_b32 v104, 15, v0'); I('v_lshrrev_b32 v105, 2, v104'); I('v_and_b32 v104, 3, v104')
            I(f'v_lshl_add_u32 v105, v105, 6, v{vCr}'); I('v_lshl_add_u32 v105, v104, 2, v105')
            I('ds_read_b32 v104, v105', 'cwr')
        a.wait(vm='stat')
        for t in range(4): self.cons_stats(ST+4*t, NP[t], NP[t]+1)
        self.ls(f'e{l}_st')
        KL, tmp = 44, 46
        PP = (128+16, 128+36); KVA = 208; TA = 104; TB = 116
        def seg1():
            a.wait(lg=['cwr', 'af'])
            if l == 0: I('v_accvgpr_write_b32 a248, v104')
            for t in range(4): self.lnfixp(ACC+16*t, CW, 8, NP[t])
            self.ls(f'e{l}_fix')
            for t in range(4): self.pack(ACC+8*t, ACC+16*t, 8)
            I(f'v_lshrrev_b32 v24, 4, v0'); I('v_cmp_eq_u32 vcc, 3, v24'); I('v_mov_b32 v24, 0x3f80')
            I(f'v_mov_b32 v{KL}, {hex(f2u(LOG2E))}')
            for p in range(2): self.phi(PP[p], ACC+16*p, ACC+16*p+8, AF, bphi)
            for t in range(4):
                q = ACC + 8*t + 6
                I(f'v_cndmask_b32 v{q}, v{q}, v24, vcc'); I(f'v_cndmask_b32 v{q+1}, v{q+1}, 0, vcc')
                I(f'ds_write_b64 v{vV1}, {vr(ACC+8*t+2,2)} offset:{16*t*72}')
                I(f'ds_write_b64 v{vV3}, {vr(ACC+8*t+6,2)} offset:{16*t*72}')
        def seg2():
            self.ls(f'e{l}_phi')
            for p in range(2):
                self.softmax(PP[p], tmp, KL)
                for i in range(5): I(f'ds_write_b64 v{vPK}, {vr(PP[p]+2*i,2)} offset:{32*p*80+8*i}')
        KVA = 224
        def seg3():
            self.ls(f'e{l}_sm')
            a.wait(lg=None)
            for p in range(2):
                for ft in range(3):
                    I(f'ds_read_b64_tr_b16 {vr(TA+20*p+4*ft,2)}, v{vTA} offset:{32*p*80+32*ft}', ('tr', p))
                    I(f'ds_read_b64_tr_b16 {vr(TA+20*p+4*ft+2,2)}, v{vTA} offset:{32*p*80+32*ft+320}', ('tr', p))
                for dt in range(2):
                    I(f'ds_read_b64_tr_b16 {vr(TB+20*p+4*dt,2)}, v{vTB} offset:{32*p*72+32*dt}', ('tr', p))
                    I(f'ds_read_b64_tr_b16 {vr(TB+20*p+4*dt+2,2)}, v{vTB} offset:{32*p*72+32*dt+288}', ('tr', p))
            I(f'v_add_u32 v24, {sWB}, {vL16}')
            for p in range(2):
                a.wait(lg=('tr', p))
                for dt in range(2):
                    for ft in range(3):
                        d = vr(KVA + 4*(dt*3+ft), 4)
                        I(f'v_mfma_f32_16x16x32_bf16 {d}, {vr(TA+20*p+4*ft,4)}, {vr(TB+20*p+4*dt,4)}, {d if p else 0}')
            for k in range(6): I(f'ds_write_b128 v24, {vr(KVA+4*k,4)} offset:{k*1024}')
            for k in range(4): I(f'v_add_u32 v{24+k}, {bscr[k >> 1]*BANK + (k & 1)*10240}, v{vRS}')
        seg1(); seg2(); seg3()
        self.ls(f'e{l}_kv')
        a.wait(lg=None); I('s_barrier')
        self.ls(f'e{l}_bar2')
        for k in range(4): I(f'ds_read_b128 {vr(TA+4*k,4)}, v{24+k}')
        I(f's_add_u32 {sT[3]}, {sKVo}, {l*2*MB}')
        a.wait(lg=None)
        for h in range(2):
            I(f'v_pk_add_f32 {vr(TA+2*h,2)}, {vr(TA+2*h,2)}, {vr(TA+4+2*h,2)}')
            I(f'v_pk_add_f32 {vr(TA+8+2*h,2)}, {vr(TA+8+2*h,2)}, {vr(TA+12+2*h,2)}')
        for h in range(2):
            I(f'v_pk_add_f32 {vr(TA+2*h,2)}, {vr(TA+2*h,2)}, {vr(TA+8+2*h,2)}')
        I(f'buffer_store_dwordx4 {vr(TA,4)}, v{vKL}, {WS}, {sT[3]} offen sc1', 'kvst')
        self.stamp(f'qkv{l}_kvpub')
        def seg4():
            for p in range(2): self.phi(PP[p], ACC+16*p+4, ACC+16*p+12, AF, bphi)
            for p in range(2): self.softmax(PP[p], tmp, KL)
        seg4()
        self.stamp(f'qkv{l}_qsm')
        self.emit(fill2())
        self.stamp(f'qkv{l}_hopdma')
        G0 = 224
        L = a.newlabel('KVPOLL'); D = a.newlabel('KVDONE')
        I(f's_mov_b32 {sSpin}, {sDead}')
        a.label(L)
        for x in range(8):
            I(f's_add_u32 {sT[3]}, {sKVi}, {l*2*MB + x*8192}')
            I(f'buffer_load_dwordx4 {vr(G0+4*x,4)}, v{vKL}, {WS}, {sT[3]} offen sc1')
        a.wait(vm=None)
        I(f'v_max3_u32 v24, v{G0}, v{G0+1}, v{G0+2}')
        I(f'v_max3_u32 v25, v{G0+3}, v{G0+4}, v{G0+5}')
        for i in range(6, 30, 4):
            I(f'v_max3_u32 v24, v24, v{G0+i}, v{G0+i+1}'); I(f'v_max3_u32 v25, v25, v{G0+i+2}, v{G0+i+3}')
        I(f'v_max3_u32 v24, v24, v{G0+30}, v{G0+31}')
        I(f'v_max_u32 v24, v24, v25')
        I('v_cmp_eq_u32 vcc, -1, v24')
        I('s_cmp_eq_u64 vcc, 0'); I(f's_cbranch_scc1 {D}')
        I(f's_sub_u32 {sSpin}, {sSpin}, 1'); I(f's_cbranch_scc0 {L}')
        I(f's_mov_b32 {sDead}, 0')
        a.label(D)
        self.stamp(f'qkv{l}_kvgot')
        for st in (16, 8, 4):
            for b in range(0, st, 2):
                I(f'v_pk_add_f32 {vr(G0+b,2)}, {vr(G0+b,2)}, {vr(G0+st+b,2)}')
        self.pack(G0, G0, 2)
        I(f'ds_write_b64 v{vKD}, {vr(G0,2)}')
        a.wait(lg=None); I('s_barrier')
        AO = 64
        for t in range(3):
            b, o = (vA0, 384*t) if t < 2 else (vA2, 0)
            I(f'ds_read_b128 {vr(AO+12*t,4)}, v{b} offset:{o}')
            I(f'ds_read_b128 {vr(AO+12*t+4,4)}, v{b} offset:{o+16}')
            I(f'ds_read_b64 {vr(AO+12*t+8,2)}, v{b} offset:{o+32}')
        self.emit(fill3())
        for p in range(2):
            I(f's_add_u32 {sT[4+2*p]}, {sO4}, {OB(l)+2*p*20480}')
            I(f's_add_u32 {sT[5+2*p]}, {sO1}, {OB(l)+2*p*20480}')
        a.wait(lg=None)
        DO = (224, 240)
        for p in range(2):
            for t in range(3):
                I(f'v_mfma_f32_16x16x32_bf16 {vr(DO[p]+4*t,4)}, {vr(AO+12*t,4)}, {vr(PP[p],4)}, 0')
            for t in range(3):
                I(f'v_mfma_f32_16x16x32_bf16 {vr(DO[p]+4*t,4)}, {vr(AO+12*t+4,4)}, {vr(PP[p]+4,4)}, {vr(DO[p]+4*t,4)}')
            for t in range(3):
                I(f'v_mfma_f32_16x16x16_bf16 {vr(DO[p]+4*t,4)}, {vr(AO+12*t+8,2)}, {vr(PP[p]+8,2)}, {vr(DO[p]+4*t,4)}')
        for p in range(2):
            I(f'v_add_f32 v{DO[p]+10}, {hex(f2u(1e-6))}, v{DO[p]+10}')
            I(f'v_rcp_f32 v{DO[p]+10}, v{DO[p]+10}')
            for i in range(5): I(f'v_pk_mul_f32 {vr(DO[p]+2*i,2)}, {vr(DO[p]+2*i,2)}, {vr(DO[p]+10,2)} op_sel_hi:[1,0]')
            self.pack(DO[p], DO[p], 5)
        a.slow_begin(sMODE)
        for p in range(2):
            I(f'buffer_store_dwordx4 {vr(DO[p],4)}, v{vO4}, {WS}, {sT[4+2*p]} offen', 'st')
            I(f'buffer_store_dword v{DO[p]+4}, v{vO1}, {WS}, {sT[5+2*p]} offen', 'st')
        a.slow_end()
        self.emit(fill4())
        a.wait(vm='st')
        self.setflag(sFLOo, l+1)
        self.stamp(f'qkv{l}_end')

    def sconst(self, val):
        self.I(f's_movk_i32 {sT[4]}, {val}'); return sT[4]

    AR5, RA5, DA5 = 208, 12, 10
    def areadS(self, banks, m):
        s_, i = divmod(m, 5)
        b, o = self.lds(banks[s_ // 4]*BANK + ((s_ % 4)*5 + i)*1024)
        self.I(f'ds_read_b128 {vr(self.AR5+4*(m % self.RA5),4)}, {b} offset:{o}', ('a', m))
    def preloadS(self, banks):
        for m in range(self.DA5): self.areadS(banks, m)
    def gemmS(self, KS, banks, ACC, init, side, XR=80, NR=20):
        a = self.a; I = self.I
        NM = 5*KS
        for m in range(NM):
            s_, i = divmod(m, 5)
            a.wait(vm=('x', s_) if i == 0 else False, lg=('a', m))
            d = vr(ACC+4*i, 4)
            I(f'v_mfma_f32_16x16x32_bf16 {d}, {vr(self.AR5+4*(m % self.RA5),4)}, {vr(XR+4*(s_%NR),4)}, {d if (s_ or init) else 0}')
            for it in side.get(m, []): a.extend(it() if callable(it) else it)
            if m + self.DA5 < NM: self.areadS(banks, m + self.DA5)
    def put(self, side, bundles, start, every):
        for k, b in enumerate(bundles): side.setdefault(start + int(k*every), []).append(b)
    def bar(self, vm=False, lg=False):
        return [Wait(vm, lg), Ins('s_barrier')]

    def small(self, banks, xl, ACC, init, tail, extra=None, NUP=8, name=''):
        self._lf = None
        for s_ in range(NUP): xl(s_)
        side = {}
        self.put(side, [(lambda s_=s_: self.cap(xl, s_)) for s_ in range(NUP, 20)], 1, self.XE)
        side.setdefault(44, []).append(self.bar())
        t0 = max(46, int(1 + (20-NUP)*self.XE) + 1)
        if tail: self.put(side, [(lambda b=b: b() if callable(b) else b) for b in tail], t0, min(4.0, (94-t0)/len(tail)))
        if extra: extra(side)
        for m in (0, 43, 45, 99): side.setdefault(m, []).append(lambda m=m: self.cap(self.ls, f'{name}_m{m}'))
        self.gemmS(20, banks, ACC, init, side)
    XE = 4.0

    def layer(self, l, B):
        a = self.a; I = self.I
        last = (l == 1)
        ACC, XP, PK, TMP = 20, 40, 60, 72
        NMr, R1r, RRr = 76, 78, 74
        self.w3n = getattr(self, 'w3n', 0)
        def w3b(n):
            out = []
            if l: return out
            for k in range(self.w3n, min(60, self.w3n + n)):
                kk = (k % 3)*20 + k // 3
                out.append([Ins(f's_add_u32 s3, {sW3}, {WT_3 + kk*1024}'), Ins(f'buffer_load_dwordx4 {ar(4*kk,4)}, {vL16}, {WS}, s3 offen', 'w3')])
            self.w3n = min(60, self.w3n + n)
            return out
        wo = lambda ch, bk: self.dma_b(sW5, WT_O + ch*BANK, bk, 'wo')
        w1 = lambda ch, bk: self.dma_b(sW5, WT_1 + ch*BANK, bk, 'w1')
        w2 = lambda ch, bk: self.dma_b(sW5, WT_2 + ch*BANK, bk, 'w2')
        w4 = lambda ch, bk: self.dma_b(sW4, WT_4 + ch*BANK, bk, ('w4', ch))
        def tq():
            r = self.touchT(OB(l), 20480) + self.touch(WT_O, 50) + self.touch(WT_1, 50)
            if l == 0: r += self.touchT(H2(l), 49152) + self.touch(FL, 1, 0)
            return r + self.touch(WT_2, 50)
        f2 = lambda: wo(0, B[7]) + wo(1, B[0]) + wo(2, B[1]) + wo(3, B[2]) + wo(4, B[3]) + w3b(self.W3H)
        f3 = lambda: w1(0, B[5])
        f4 = lambda: w1(1, B[6])
        self.qkv(l, B[0:4], B[4], B[5:7], tq, f2, f3, f4)
        if self.stop == f'qkv{l}': return True
        wob = [B[7], B[0], B[1], B[2], B[3]]
        I('s_barrier')
        self.preloadS(wob)
        self.emit(w1(2, B[4]))
        self.unpack(ACC, RES, 10)
        I(f's_lshl_b32 {sT[3]}, {sC}, 7'); I(f's_add_u32 {sT[3]}, {sT[3]}, {FLO}')
        self.poll(vFl, sT[3], l+1)
        self.stamp(f'wo{l}_go')
        self.small(wob, lambda s_: self.load_frag(80+4*s_, vL16, sT20, OB(l), s_, ('x', s_)), ACC, True, w3b(2) + w1(3, B[7]) + w1(4, B[0]), name=f'wo{l}')
        self.stamp(f'wo{l}_gemm')
        self.pack(PK, ACC, 10)
        self.store_tile(PK, XB(l), sA21, sH21)
        self.prod_stats(ACC, TMP)
        self.store_stats(TMP, XB(l))
        self.emit(w3b(self.W3G))
        for i in range(20): I(f'v_mov_b32 v{XP+i}, v{ACC+i}')
        I('v_and_b32 v165, 7, v0'); I('v_lshlrev_b32 v165, 2, v165')
        self.gelu_consts(196)
        CW = 176
        if l: self.decomp(CW, 249, 16, 160); self.decomp(CW+16, 250, 4, 160)
        a.wait(vm='st')
        self.setflag(sFLo, 8*l+1)
        I('s_barrier')
        if self.stop == f'wo{l}': return True
        w1b = [B[5], B[6], B[4], B[7], B[0]]
        def cw1():
            I(f'v_add_u32 v160, {sLW}, {vL16}'); I(f'v_add_u32 v161, {sLW}, {vL16b}'); I(f'v_add_u32 v162, {sLW}, {vL16c}')
            for r in range(4): I(f'v_mov_b32 v{TMP+r}, 0x3f803f80')
            def rd(k):
                ch, i = divmod(k, 5); off = w1b[ch]*BANK + i*1024
                I(f'ds_read_b128 {vr(80+4*(k % 12),4)}, v{160+(off>>16)} offset:{off&0xffff}', ('cw', k))
            for k in range(10): rd(k)
            for k in range(25):
                a.wait(lg=('cw', k))
                d = vr(CW+4*(k % 5), 4); I(f'v_mfma_f32_16x16x32_bf16 {d}, {vr(80+4*(k % 12),4)}, {vr(TMP,4)}, {d if k >= 5 else 0}')
                if k + 10 < 25: rd(k+10)
            cwo = B[3]*BANK
            I('v_lshrrev_b32 v163, 4, v0'); I('v_lshlrev_b32 v163, 4, v163'); I(f'v_add_u32 v163, {cwo}, v163')
            I(f's_mul_i32 {sT[3]}, {sW}, 320'); I(f'v_add_u32 v164, {sT[3]}, v163')
            I('v_bfe_u32 v166, v0, 2, 2'); I('v_and_b32 v167, 3, v0')
            I('v_lshl_add_u32 v163, v167, 2, v163'); I('v_lshl_add_u32 v166, v166, 6, v163')
            for i in range(5): I(f'ds_write_b128 v164, {vr(CW+4*i,4)} offset:{i*64}', 'cww')
        if l == 0:
            self.weave(self.cap(cw1), w2(0, B[1]) + w2(1, B[2]), 14)
            self.preloadS(w1b)
        else:
            self.preloadS(w1b)
            self.emit(w2(0, B[1]) + w2(1, B[2]))
        I(f's_lshl_b32 {sT[3]}, {sTT}, 5'); I(f's_add_u32 {sT[3]}, {sT[3]}, {FL}')
        self.poll('v165', sT[3], 8*l+1)
        self.stamp(f'w1{l}_go')
        def ex1(side):
            its = []
            if l == 0:
                for k in range(4):
                    its.append([Ins(f'ds_read_b32 v{80+k}, v166 offset:{k*320}', 'cr')])
                    its.append([Ins(f'ds_read_b32 v{84+k}, v163 offset:{k*320+256}', 'cr')])
                its += [[] for _ in range(8)]
                its.append([Wait(lg='cr'), Ins('v_add_f32 v80, v80, v81'), Ins('v_add_f32 v82, v82, v83')])
                its.append([Ins('v_add_f32 v84, v84, v85'), Ins('v_add_f32 v86, v86, v87')])
                its.append([Ins('v_add_f32 v80, v80, v82'), Ins('v_add_f32 v84, v84, v86')])
                its.append([Ins('v_accvgpr_write_b32 a249, v80'), Ins('v_accvgpr_write_b32 a250, v84')])
                for i in range(0, 20, 2):
                    its.append([Ins(f'v_mov_b32_dpp v{CW+q}, v{80 if q < 16 else 84} row_newbcast:{q & 15} row_mask:0xf bank_mask:0xf') for q in (i, i+1)])
                self.put(side, its, 46, 1)
            cs = [Wait(vm='stat')] + self.cap(self.cons_stats, 168, NMr, RRr, double=True, r1=R1r)
            self.put(side, [[x] for x in cs], 76, 1)
        stl = [lambda: self.cap(self.load_frag, 168, vL16, sT21, XB(l), 20, 'stat')]
        self.small(w1b, lambda s_: self.load_frag(80+4*s_, vL16, sT21, XB(l), s_, ('x', s_)), ACC, False, stl + w3b(1) + w2(2, B[5]) + w2(3, B[6]), ex1, name=f'w1{l}')
        self.stamp(f'w1{l}_gemm')
        self.lnfix(ACC, CW, 10, NMr, RRr)
        self.gelu(ACC, 10, 208, 196)
        self.pack(PK, ACC, 10)
        I(f'v_or_b32 v160, {sEdge}, {vL16}'); I(f'v_or_b32 v161, {sEdge}, {vS8}')
        self.store_tile(PK, HB(l), sA20, sH20)
        self.store_tile(PK, HD(l), sA20, sH20, sc1=True, vA='v160', vH='v161', tag='sth')
        for i in range(10): I(f'v_pk_add_f32 {vr(ACC+2*i,2)}, {vr(XP+2*i,2)}, {vr(NMr,2)} op_sel_hi:[1,0]')
        for i in range(10): I(f'v_pk_mul_f32 {vr(ACC+2*i,2)}, {vr(ACC+2*i,2)}, {vr(R1r,2)} op_sel_hi:[1,0]')
        I(f's_lshl_b32 {sT[3]}, {sTT}, 4')
        I('v_and_b32 v164, 15, v0'); I(f'v_add_u32 v164, {sT[3]}, v164')
        I('v_lshrrev_b32 v165, 4, v0'); I('v_lshlrev_b32 v165, 8, v165')
        I(f'v_mov_b32 v168, {OOB}'); I(f'v_mov_b32 v169, {HD(l)-HB(l)}')
        for gi, dl in enumerate((-1, 1, -2, 2)):
            I(f'v_add_u32 v166, {dl}, v164')
            I('v_lshrrev_b32 v167, 4, v166'); I('v_and_b32 v167, 0xff, v167'); I('v_mul_u32_u24 v167, 20480, v167')
            I(f'v_and_b32 v{160+gi}, 15, v166'); I(f'v_lshl_add_u32 v{160+gi}, v{160+gi}, 4, v167'); I(f'v_add_u32 v{160+gi}, v{160+gi}, v165')
            I('v_lshrrev_b32 v167, 8, v166'); I(f'v_cmp_ne_u32 vcc, {sXG}, v167')
            I('v_cndmask_b32 v167, 0, v169, vcc'); I(f'v_add_u32 v{160+gi}, v{160+gi}, v167')
            I('v_cmp_gt_u32 vcc, 0x800, v166'); I(f'v_cndmask_b32 v{160+gi}, v168, v{160+gi}, vcc')
        a.wait(vm='st')
        self.setflag(sFLo, 8*l+2)
        I('s_barrier')
        if self.stop == f'w1{l}': return True
        w2b = [B[1], B[2], B[5], B[6], B[3]]
        self.preloadS(w2b)
        self.emit(w2(4, B[3]))
        I(f's_and_b32 {sT[8]}, {sTT}, 15')
        I(f's_cmp_eq_u32 {sT[8]}, 0'); I(f's_cselect_b32 {sT[4]}, 32, 0')
        I(f's_cmp_eq_u32 {sT[8]}, 15'); I(f's_cselect_b32 {sT[5]}, 32, 64')
        I('v_and_b32 v164, 7, v0'); I('v_lshlrev_b32 v164, 2, v164'); I('v_lshrrev_b32 v166, 3, v0')
        I('v_mov_b32 v165, 32'); I(f'v_mov_b32 v167, {sT[4]}'); I(f'v_mov_b32 v168, {sT[5]}')
        I('v_cmp_eq_u32 vcc, 1, v166'); I('v_cndmask_b32 v165, v165, v167, vcc')
        I('v_cmp_eq_u32 vcc, 2, v166'); I('v_cndmask_b32 v165, v165, v168, vcc')
        I('v_add_u32 v165, v165, v164')
        I(f's_lshl_b32 {sT[3]}, {sTT}, 5'); I(f's_add_u32 {sT[3]}, {sT[3]}, {FL-32}')
        I('v_min_u32 v164, 59, v0'); I('v_add_u32 v167, -20, v164')
        I('v_lshrrev_b32 v168, 1, v167'); I('v_add_u32 v168, 40, v168'); I('v_and_b32 v167, 1, v167')
        I(f's_xor_b32 {sT[4]}, {sBot}, 1')
        I('v_cmp_gt_u32 vcc, 20, v164'); I('v_cndmask_b32 v168, v168, v164, vcc'); I(f'v_mov_b32 v169, {sT[4]}'); I('v_cndmask_b32 v167, v167, v169, vcc')
        I('v_lshlrev_b32 v166, 8, v168'); I('v_lshl_add_u32 v166, v167, 4, v166'); I(f'v_or_b32 v166, {sEdge}, v166')
        I(f's_cmp_eq_u32 {sBot}, 1'); I(f's_mov_b32 {sT[4]}, {HD(l) - 20480 + 14*16}'); I(f's_cselect_b32 {sT[4]}, {HD(l) + 20480 + 5120}, {sT[4]}')
        I(f's_add_u32 {sT[4]}, {sT[4]}, {sT20}')
        L = a.newlabel('POLL'); D = a.newlabel('PDONE')
        I(f's_mov_b32 {sSpin}, {sDead}')
        a.label(L)
        I(f'buffer_load_dword {vT0}, v165, {WS}, {sT[3]} offen sc1')
        I(f'buffer_load_dwordx4 {vr(168,4)}, v166, {WS}, {sT[4]} offen sc1')
        a.wait(vm=None)
        I(f'v_max3_u32 v168, v168, v169, v170'); I('v_max_u32 v168, v168, v171')
        I(f'v_cmp_le_u32 vcc, {8*l+2}, {vT0}'); I('v_cmp_ne_u32 s[6:7], -1, v168')
        I('s_and_b64 vcc, vcc, s[6:7]')
        I('s_cmp_eq_u64 vcc, -1'); I(f's_cbranch_scc1 {D}')
        I(f's_sub_u32 {sSpin}, {sSpin}, 1'); I(f's_cbranch_scc0 {L}')
        I(f's_mov_b32 {sDead}, 0')
        a.label(D)
        self.stamp(f'w2{l}_go')
        I(f's_mov_b32 {sT[3]}, 0')
        self.small(w2b, lambda s_: self.load_frag(80+4*s_, f'v{160+s_//5}', sT[3], HB(l), s_, ('x', s_)), ACC, True, self.touchT(H2(l), 49152) + w3b(11), name=f'w2{l}')
        self.stamp(f'w2{l}_gemm')
        self.pack(PK, ACC, 10)
        self.store_tile(PK, X1(l), sA21, sH21)
        self.prod_stats(ACC, TMP)
        self.store_stats(TMP, X1(l))
        self.emit(w3b(60))
        for i in range(10): I(f'v_pk_add_f32 {vr(XP+2*i,2)}, {vr(XP+2*i,2)}, {vr(ACC+2*i,2)}')
        CW3, ST3, A3, BF, GT = 80, 96, 128, 208, 176
        self.gelu_consts(196)
        if l: self.decomp(CW3, 251, 12, 92)
        a.wait(vm='st')
        self.setflag(sFLo, 8*l+3)
        I('s_barrier')
        if self.stop == f'w2{l}': return True
        xb = [B[1], B[2], B[5], B[6]]
        if l == 0:
            a.wait(vm='w3')
            for r in range(4): I(f'v_mov_b32 v{TMP+r}, 0x3f803f80')
            for s_ in range(20):
                for i in range(3):
                    d = vr(CW3+4*i, 4)
                    I(f'v_mfma_f32_16x16x32_bf16 {d}, {ar(4*(i*20+s_),4)}, {vr(TMP,4)}, {d if s_ else 0}')
        I(f's_lshl_b32 {sT[3]}, {sC}, 7'); I(f's_add_u32 {sT[3]}, {sT[3]}, {FL}')
        I(f's_add_u32 {sT[4]}, {sC21}, {sLW}')
        self.poll(vFl, sT[3], 8*l+3)
        self.stamp(f'w3{l}_go')
        self._lf = None
        x1 = lambda t: self.dma_b(sT[4], X1(l) + t*21504, xb[t], ('x1', t), sc='sc1')
        self.emit(x1(0) + x1(1))
        if l == 0:
            I('v_and_b32 v93, 15, v0'); I(f'v_mov_b32 v92, v{CW3}')
            for i in range(1, 12):
                I(f'v_cmp_eq_u32 vcc, {i}, v93'); I(f'v_cndmask_b32 v92, v92, v{CW3+i}, vcc')
            I('v_accvgpr_write_b32 a251, v92')
        NP3 = [112, 114, 116, 118]
        RB, DB = 8, 6
        def bread(n):
            t, s_ = divmod(n, 20)
            b, o = self.lds(xb[t]*BANK + s_*1024)
            I(f'ds_read_b128 {vr(BF+4*(n % RB),4)}, {b} offset:{o}', ('b', n))
        def epiA(t):
            self.lnfixp(A3+12*t, CW3, 6, NP3[t]); self.geluA(A3+12*t, 6, GT, 196)
        def epiB(t):
            self.geluB(A3+12*t, 6, GT); self.pack(A3+12*t, A3+12*t, 6)
        def st3(t):
            acc = A3 + 12*t
            I(f's_add_u32 {sT[0]}, {sA48}, {H2(l)+t*49152}'); I(f's_add_u32 {sT[1]}, {sH48}, {H2(l)+t*49152}')
            a.slow_begin(sMODE)
            I(f'buffer_store_dwordx4 {vr(acc,4)}, {vL16}, {WS}, {sT[0]} offen', 'st')
            I(f'buffer_store_dwordx2 {vr(acc+4,2)}, {vS8}, {WS}, {sT[1]} offen', 'st')
            a.slow_end()
        a.wait(vm=('x1', 0)); I('s_barrier')
        self.ls(f'w3{l}_x0')
        for n in range(DB): bread(n)
        w4b = [B[4], B[7], B[0], B[3], B[1], B[2], B[5], B[6], B[4], B[7], B[0], B[3]]
        vm_side = {}
        self.put(vm_side, [self.cap(self.load_frag, ST3+4*u, vL16, sC21, X1(l) + u*21504, 20, 'stat') for u in range(4)] + x1(2) + x1(3), 0, 4)
        if not last:
            for ch in range(self.NTQ): self.put(vm_side, self.touch2(sWQ, WT_QKV + ch*BANK, 40), 57 + 36*ch, 1)
        self.put(vm_side, w4(0, w4b[0]) + w4(1, w4b[1]), 60, 4)
        self.put(vm_side, w4(4, xb[0]) + w4(2, w4b[2]) + w4(3, w4b[3]), 104, 3.8)
        self.put(vm_side, w4(5, xb[1]), 164, 4)
        self.put(vm_side, w4(6, xb[2]), 190, 4)
        for t in range(4):
            with a.capture() as c:
                for s_ in range(20):
                    n = 20*t + s_
                    for i in range(3):
                        m = 3*n + i
                        if i == 0: a.wait(lg=('b', n))
                        d = vr(A3+12*t+4*i, 4)
                        I(f'v_mfma_f32_16x16x32_bf16 {d}, {ar(4*(i*20+s_),4)}, {vr(BF+4*(n % RB),4)}, {d if s_ else 0}')
                        if i == 0 and n + DB < 80:
                            if n == 14: a.wait(vm=('x1', 1)); I('s_barrier')
                            if n == 34: a.wait(vm=('x1', 3)); I('s_barrier')
                            if n == 54 or n == 62: I('s_barrier')
                            bread(n + DB)
                        for it in vm_side.get(m, []): a.extend(it)
            if t == 0:
                fill = [Wait(vm='stat')]
                for u in range(4): fill += self.cap(self.cons_stats, ST3+4*u, NP3[u], NP3[u]+1)
                a.extend(interleave(c.items, fill, 1.6, start=20))
            else:
                a.extend(interleave(c.items, self.cap(epiB, t-1), self.R3, start=0))
                st3(t-1)
            if t < 3: epiA(t)
            self.ls(f'w3{l}_t{t}')
        self.lnfixp(A3+36, CW3, 6, NP3[3]); self.gelu(A3+36, 6, GT, 196); self.pack(A3+36, A3+36, 6); st3(3)
        self.stamp(f'w3{l}_gemm')
        a.wait(vm='st')
        self.setflag(sFLo, 8*l+4)
        I('s_barrier')
        if self.stop == f'w3{l}': return True
        self.preloadS(w4b)
        I(f's_lshl_b32 {sT[3]}, {sC}, 7'); I(f's_add_u32 {sT[3]}, {sT[3]}, {FL}')
        self.poll(vFl, sT[3], 8*l+4)
        self.stamp(f'w4{l}_go')
        self._lf = None
        xl = lambda s_: self.load_frag(80+4*(s_ % 32), vL16, sT48, H2(l), s_, ('x', s_))
        NUP = 10
        for s_ in range(NUP): xl(s_)
        side = {}
        self.put(side, [(lambda s_=s_: self.cap(xl, s_)) for s_ in range(NUP, 48)], 1, 5)
        self.put(side, w4(7, w4b[7]), 3, 8)
        side.setdefault(40, []).append(self.bar());  self.put(side, w4(8, w4b[8]) + w4(9, w4b[9]), 43, 5)
        side.setdefault(90, []).append(self.bar(vm=('w4', 7)));  self.put(side, w4(10, w4b[10]) + w4(11, w4b[11]), 93, 5)
        side.setdefault(149, []).append(self.bar(vm=[('w4', 8), ('w4', 9)]))
        side.setdefault(189, []).append(self.bar(vm=[('w4', 10), ('w4', 11)]))
        nB = [B[1], B[2], B[5], B[6], B[4], B[7], B[0], B[3]]
        wq = lambda ch: self.dma_b(sWQ, WT_QKV + ch*BANK, nB[ch], 'wq')
        if not last: self.put(side, wq(0) + wq(1), 192, 4)
        self.gemmS(48, w4b, XP, True, side, NR=32)
        self.stamp(f'w4{l}_gemm')
        if not last:
            self.pack(RES, XP, 10)
            self.store_tile(RES, XA(l+1), sA21, sH21)
            self.prod_stats(XP, TMP)
            self.store_stats(TMP, XA(l+1))
            self.emit(wq(2))
            a.wait(vm='st')
            self.setflag(sFLo, 8*l+5)
            self.emit(wq(3))
            I('s_barrier')
        else:
            self.pack(PK, XP, 10)
            I('v_and_b32 v20, 15, v0'); I('v_lshrrev_b32 v21, 4, v0')
            I('v_mul_u32_u24 v26, 1280, v20')
            I('v_lshl_add_u32 v27, v21, 4, v26'); I('v_lshl_add_u32 v28, v21, 3, v26')
            I(f'buffer_store_dwordx4 {vr(PK,4)}, v27, {OUT}, {sOutA} offen')
            I(f'buffer_store_dwordx4 {vr(PK+4,4)}, v27, {OUT}, {sOutA} offen offset:64')
            I(f'buffer_store_dwordx2 {vr(PK+8,2)}, v28, {OUT}, {sOutH} offen')
        self.stamp(f'w4{l}_end')
        self.nB = nB
        return self.stop == f'w4{l}'
    NTQ = int(os.environ.get('NTQ', 3))
    W3H = int(os.environ.get('W3H', 20)); W3G = int(os.environ.get('W3G', 6))
    R3 = float(os.environ.get('R3', 1.4))
    CPF = False
    LS = 0

    def build(self):
        a = self.a
        self.prologue()
        if self.stop != 'prep':
            B = list(range(8))
            if not self.layer(0, B):
                self.layer(1, self.nB)
        a.wait(vm=None, lg=None)
        a.label('KEND')
        a.I('s_endpgm')
        main, stubs, n = a.finalize()
        hdr = open('cdna_kernels/' + NAME[:-7] + '.s.ref').read().split('; Override launch')[0]
        out = hdr + f"""; Persistent fused kernel (generated by own script): 256 workgroups, one per CU.
; @launch grid=(256,1,1) block=(256,1,1) lds=163840
.amdgcn_target "amdgcn-amd-amdhsa--gfx950"
.text
.globl {NAME}
.p2align 8
.type {NAME},@function
{NAME}:
KSTART:
{main}
{stubs}
CODE_END:
.section .rodata,"a"
.p2align 6
.amdhsa_kernel {NAME}
  .amdhsa_next_free_vgpr 512
  .amdhsa_next_free_sgpr 102
  .amdhsa_accum_offset 256
  .amdhsa_group_segment_fixed_size 0
  .amdhsa_kernarg_size 96
  .amdhsa_user_sgpr_count 2
  .amdhsa_user_sgpr_kernarg_segment_ptr 1
  .amdhsa_system_sgpr_workgroup_id_x 1
.end_amdhsa_kernel
"""
        return out, n

if __name__ == '__main__':
    import argparse, json
    ap = argparse.ArgumentParser()
    ap.add_argument('-o', default='k.s'); ap.add_argument('--stop'); ap.add_argument('--stamps', action='store_true')
    args = ap.parse_args()
    g = Gen(args.stop, args.stamps)
    s, n = g.build()
    open(args.o, 'w').write(s)
    json.dump(g.stampnames, open(args.o + '.stamps.json', 'w'))
    print('instructions', n, 'bytes', len(s))
```

```python
import re

REG_RE = re.compile(r'(?<![\w.])([vas])\[(\d+):(\d+)\]|(?<![\w.])([vas])(\d+)(?![\w])|(?<![\w])(vcc|exec|m0)(?:_lo|_hi)?(?![\w])')
TRANS = ('v_exp_f32', 'v_rcp_f32', 'v_rsq_f32', 'v_log_f32', 'v_sqrt_f32', 'v_sin_f32', 'v_cos_f32')

def regs_of(tok):
    out = []
    for m in REG_RE.finditer(tok):
        if m.group(1):
            out += [(m.group(1), i) for i in range(int(m.group(2)), int(m.group(3)) + 1)]
        elif m.group(4):
            out.append((m.group(4), int(m.group(5))))
        else:
            out.append((m.group(6), 0))
    return out

def split_ops(rest):
    ops, depth, cur = [], 0, ''
    for ch in rest:
        if ch in '[(': depth += 1
        if ch in '])': depth -= 1
        if ch == ',' and depth == 0:
            ops.append(cur.strip()); cur = ''
        else:
            cur += ch
    if cur.strip(): ops.append(cur.strip())
    if ops:
        last = ops[-1].split()
        ops[-1] = last[0]
        mods = last[1:]
    else:
        mods = []
    return ops, mods

class Ins:
    __slots__ = ('text', 'op', 'kind', 'dst', 'src', 'srcA', 'srcC', 'tag', 'wide', 'sdata', 'slowmark')
    def __init__(self, text, tag=None):
        self.text = text.strip(); self.tag = tag; self.slowmark = None
        parts = self.text.split(None, 1)
        op = parts[0]; self.op = op
        ops, mods = split_ops(parts[1]) if len(parts) > 1 else ([], [])
        R = [regs_of(o) for o in ops]
        flat = lambda L: [r for x in L for r in x]
        self.dst, self.src, self.srcA, self.srcC, self.wide, self.sdata = [], [], [], [], False, []
        if op.startswith('v_mfma'):
            self.kind = 'mfma'; self.dst = R[0]; self.srcA = R[1] + R[2]; self.srcC = R[3]; self.src = self.srcA + self.srcC
        elif op.startswith('v_'):
            self.kind = 'trans' if op in TRANS else 'valu'
            if op.startswith('v_permlane') and 'swap' in op:
                self.kind = 'permlane'; self.dst = R[0] + R[1]; self.src = R[0] + R[1]
            elif op.startswith(('v_add_co', 'v_sub_co', 'v_addc_co', 'v_subb_co')):
                self.dst = R[0] + R[1]; self.src = flat(R[2:])
            else:
                self.dst = R[0]; self.src = flat(R[1:])
                if op.startswith(('v_fmac', 'v_mac', 'v_dot2c', 'v_writelane')): self.src += R[0]
            if op.startswith(('v_readfirstlane', 'v_readlane')): self.kind = 'readlane'
            if op.endswith('_dpp'): self.kind = 'permlane'
        elif op.startswith(('buffer_load', 'global_load')):
            self.kind = 'vmem'
            if 'lds' in mods or '_lds_' in op:
                self.src = flat(R) + [('m0', 0)]; self.kind = 'dma'
            else:
                self.dst = R[0]; self.src = flat(R[1:])
                if 'd16' in op: self.src += R[0]
        elif op.startswith(('buffer_store', 'global_store', 'buffer_atomic', 'global_atomic')):
            self.kind = 'vmem'; self.src = flat(R)
            if op.startswith('buffer'): self.sdata = R[0]
            else: self.sdata = R[1]
            self.wide = op.endswith(('x3', 'x4'))
            if 'atomic' in op and 'sc0' in mods: self.dst = R[0]
        elif op.startswith('ds_'):
            self.kind = 'ds'
            if op.startswith(('ds_read', 'ds_bpermute', 'ds_permute', 'ds_swizzle')):
                self.dst = R[0]; self.src = flat(R[1:])
            else:
                self.src = flat(R)
        elif op == 's_nop':
            self.kind = 'nop'
        elif op.startswith(('s_load', 's_memtime', 's_memrealtime')):
            self.kind = 'smem'; self.dst = R[0]; self.src = flat(R[1:])
        elif op.startswith('s_'):
            self.kind = 'salu'
            if op.startswith(('s_cmp', 's_cbranch', 's_branch', 's_waitcnt', 's_barrier', 's_sleep', 's_endpgm', 's_setprio', 's_bitcmp')):
                self.src = flat(R)
            else:
                self.dst = R[0] if R else []; self.src = flat(R[1:])
                if 'saveexec' in op: self.dst = self.dst + [('exec', 0)]
        else:
            raise ValueError('unknown op ' + text)
    def states(self):
        if self.kind == 'nop': return int(self.text.split()[1], 0) + 1
        return 1

class Wait:
    def __init__(self, vm=False, lg=False):
        self.vm = vm; self.lg = lg
class Label:
    def __init__(self, name): self.name = name
class Raw:
    def __init__(self, text): self.text = text
class Mark:
    def __init__(self, kind, idx): self.kind = kind; self.idx = idx

VALU_KINDS = ('valu', 'trans', 'permlane', 'readlane')

def need_states(p, c):
    n = 0
    pd, cs, cd = set(p.dst), set(c.src), set(c.dst)
    if p.kind in VALU_KINDS:
        vd = {r for r in pd if r[0] in 'va'}
        sd = {r for r in pd if r[0] in ('s', 'vcc', 'exec')}
        if vd:
            if c.kind == 'mfma' and vd & cs: n = max(n, 2)
            if c.kind == 'permlane' and vd & cs: n = max(n, 2)
            if c.kind == 'readlane' and vd & cs: n = max(n, 1)
            if p.kind == 'trans' and c.kind in ('valu', 'permlane', 'readlane', 'mfma') and vd & cs: n = max(n, 1)
        if sd:
            if c.kind in VALU_KINDS and sd & cs: n = max(n, 4 if c.kind == 'readlane' else 2)
            if c.kind in ('vmem', 'dma') and sd & cs: n = max(n, 5)
            if c.kind in ('salu', 'smem') and sd & cs: n = max(n, 1)
    if p.kind == 'mfma':
        if c.kind == 'mfma':
            if pd & set(c.srcA): n = max(n, 8)
            if pd & set(c.srcC) and p.dst != c.srcC: n = max(n, 6)
            if pd & cd and p.dst != c.srcC: n = max(n, 8)
        elif c.kind in VALU_KINDS or c.kind in ('vmem', 'dma', 'ds'):
            if pd & (cs | cd): n = max(n, 8)
        if c.kind in VALU_KINDS and set(p.srcC) & cd: n = max(n, 3)
    if p.kind == 'salu' and ('m0', 0) in pd and c.kind == 'dma': n = max(n, 1)
    if p.kind == 'vmem' and p.wide and set(p.sdata) & cd:
        n = max(n, 2 if c.kind in VALU_KINDS or c.kind == 'mfma' else 1)
    return n

class Asm:
    def __init__(self):
        self.items = []
        self.nslow = 0
        self.nlab = 0
    def I(self, text, tag=None):
        for t in text.split('\n'):
            t = t.split(';')[0].strip()
            if t: self.items.append(Ins(t, tag))
    def wait(self, vm=False, lg=False): self.items.append(Wait(vm, lg))
    def label(self, name): self.items.append(Label(name))
    def raw(self, text): self.items.append(Raw(text))
    def comment(self, text): self.items.append(Raw('    ; ' + text))
    def newlabel(self, base='L'):
        self.nlab += 1; return f'{base}_{self.nlab}'
    def extend(self, items): self.items.extend(items)
    def capture(self):
        asm = self
        class C:
            def __enter__(s):
                s.saved = asm.items; asm.items = []; s.items = asm.items; return s
            def __exit__(s, *a):
                asm.items = s.saved
        return C()
    def slow_begin(self, smode):
        self.nslow += 1
        self.I(f's_cmp_eq_u32 {smode}, 0')
        self.I(f's_cbranch_scc1 SLOW_{self.nslow}')
        self.items.append(Mark('sb', self.nslow))
    def slow_end(self):
        self.items.append(Mark('se', self.nslow))
        self.items.append(Label(f'BACK_{self.nslow}'))
    def finalize(self):
        out = []; vmq = []; lgq = []
        def resolve(q, t, mx):
            if t is False: return None
            if t is None:
                q.clear(); return 0
            tags = t if isinstance(t, (list, set)) else (t,)
            idx = -1
            for i, x in enumerate(q):
                if x in tags: idx = i
            if idx < 0: return None
            n = len(q) - 1 - idx
            if n > mx: n = mx
            del q[:len(q) - n]
            return n
        for it in self.items:
            if isinstance(it, Wait):
                v = resolve(vmq, it.vm, 63); l = resolve(lgq, it.lg, 15)
                parts = []
                if v is not None: parts.append(f'vmcnt({v})')
                if l is not None: parts.append(f'lgkmcnt({l})')
                if parts:
                    prev = out[-1] if out else None
                    if isinstance(prev, Ins) and prev.op == 's_waitcnt' and not any(p.split('(')[0] in prev.text for p in parts):
                        out[-1] = Ins(prev.text + ' ' + ' '.join(parts))
                    else:
                        out.append(Ins('s_waitcnt ' + ' '.join(parts)))
                continue
            if isinstance(it, Ins):
                if it.kind in ('vmem', 'dma'): vmq.append(it.tag)
                elif it.kind == 'ds': lgq.append(it.tag)
                elif it.kind == 'smem': lgq.append('SMEM'); lgq.append('SMEM')
            out.append(it)
        res = []; hist = []
        for it in out:
            if isinstance(it, Ins):
                need = 0; dist = 0
                for p in reversed(hist):
                    if dist >= 12: break
                    n = need_states(p, it)
                    if n > dist: need = max(need, n - dist)
                    dist += p.states()
                if need > 0:
                    nop = Ins(f's_nop {need - 1}')
                    res.append(nop); hist.append(nop)
                hist.append(it)
                if len(hist) > 16: del hist[:-16]
            res.append(it)
        stubs = []; cur = None
        main = []
        for it in res:
            if isinstance(it, Mark):
                if it.kind == 'sb': cur = [Label(f'SLOW_{it.idx}')]
                else:
                    cur.append(Ins(f's_branch BACK_{it.idx}')); stubs += cur; cur = None
                continue
            main.append(it)
            if cur is not None and isinstance(it, Ins):
                if it.kind == 'vmem' and 'store' in it.op and ' sc1' not in it.text:
                    cur.append(Ins(it.text + ' sc1'))
                else:
                    cur.append(it)
        def fmt(it):
            if isinstance(it, Ins): return '    ' + it.text
            if isinstance(it, Label): return it.name + ':'
            return it.text
        n = sum(isinstance(x, Ins) for x in main + stubs)
        return '\n'.join(fmt(x) for x in main), '\n'.join(fmt(x) for x in stubs), n

def interleave(main, fill, ratio=2, after=lambda it: isinstance(it, Ins) and it.kind == 'mfma', start=0):
    out = []; fi = 0; cnt = 0; credit = 0.0
    def cost(x):
        if isinstance(x, Ins): return 2 if x.kind == 'trans' else 1
        return 0
    for it in main:
        out.append(it)
        if after(it):
            cnt += 1
            if cnt > start:
                credit += ratio
                while fi < len(fill) and credit >= cost(fill[fi]):
                    credit -= cost(fill[fi]); out.append(fill[fi]); fi += 1
    out += fill[fi:]
    return out


def gapfill(main, fill, start=0, dscap=1):
    segs = []; cur = []
    for it in main:
        if isinstance(it, Ins) and it.kind == 'mfma' and cur:
            segs.append(cur); cur = []
        cur.append(it)
    if cur: segs.append(cur)
    out = []; fi = 0; n = 0
    for seg in segs:
        head = seg[0]
        if not (isinstance(head, Ins) and head.kind == 'mfma'):
            out += seg; continue
        n += 1
        other = 0; valu = 0; hasds = False
        for it in seg[1:]:
            if isinstance(it, Wait): other += 1
            elif isinstance(it, Ins):
                if it.kind in VALU_KINDS: valu += 2 if it.kind == 'trans' else 1
                else: other += 3 if it.kind in ('vmem', 'dma') else 1
                if it.kind == 'ds': hasds = True
        out += seg
        if n > start:
            while fi < len(fill):
                f = fill[fi]
                if isinstance(f, list):
                    if other <= 1 and valu == 0 and not hasds:
                        out += f; fi += 1; other = 9
                    break
                isv = isinstance(f, Ins) and f.kind in VALU_KINDS
                if isv:
                    c = 2 if f.kind == 'trans' else 1
                    cap = 3 - max(other, 1)
                    if hasds: cap = min(cap, dscap)
                    if valu + c > cap: break
                    valu += c
                else:
                    if valu > 0 or other >= 2: break
                    other += 1
                    if isinstance(f, Ins) and f.kind == 'ds': hasds = True
                out.append(f); fi += 1
    return out, fill[fi:]

def rr(*lists):
    out = []; k = 0
    while any(k < len(l) for l in lists):
        for l in lists:
            if k < len(l): out.append(l[k])
        k += 1
    return out
```

```python
import sys, struct, math
from asmlib import *

NAME = "interleave_layers__linear_kernel_hedgehog__mixer_s_mlp__prompt_kernel"
MB = 1 << 20
WT_QKV, WT_O, WT_1, WT_2, WT_3, WT_4 = 0, 3*MB, 4*MB, 5*MB, 6*MB, 8*MB
APHI = 10*MB
SYNC = 13*MB
CNT, FL, FLO, FLH = SYNC+0x10000, SYNC+0x1000, SYNC+0x2000, SYNC+0x4000
KVP = 14*MB
def LB(l): return 18*MB + l*24*MB
import os
SEP = bool(os.environ.get('SEP'))
def XA(l): return LB(l) if SEP else LB(0)
def OB(l): return LB(l)+3*MB if SEP else LB(0)+3*MB
def XB(l): return LB(l)+6*MB if SEP else LB(0)
def HB(l): return LB(l)+9*MB if SEP else LB(0)+3*MB
def HD(l): return LB(l)+12*MB if SEP else LB(0)+12*MB+l*3*MB
def X1(l): return LB(l)+15*MB if SEP else LB(0)
def H2(l): return LB(l)+18*MB if SEP else LB(0)+18*MB
STAMP = 80*MB
BANK = 20480
OOB = 0x80000000
def f2u(x): return struct.unpack('<I', struct.pack('<f', x))[0]
LOG2E = 1.4426950408889634
GC0 = -2.0*math.sqrt(2.0/math.pi)*LOG2E
GC1 = GC0*0.044715

WS = 's[8:11]'; TS = 's[12:15]'; OUT = 's[16:19]'
P_X, P_QKV, P_PHI, P_O, P_1, P_2, P_3, P_4, P_OUT, P_DBG, P_WS = 20, 22, 24, 26, 30, 32, 34, 36, 38, 40, 42
_sn = [44]
def S(n=1, align=1):
    while _sn[0] % align: _sn[0] += 1
    r = _sn[0]; _sn[0] += n; return r
sXG, sH, sCL, sJ, sC, sW, sMODE, sTT = [f's{S()}' for _ in range(8)]
sA21, sH21, sS21, sT21, sA20, sH20, sT20, sT48 = [f's{S()}' for _ in range(8)]
sW5, sW4, sWQ, sLW, sOutA, sOutH, sEdge, sDead = [f's{S()}' for _ in range(8)]
sQT21, sO4, sO1, sKVo, sKVi, sA48, sH48, sC21, sFLo, sFLOo, sWI, sWB, sBot, sW3 = [f's{S()}' for _ in range(14)]
sT = [f's{S()}' for _ in range(10)]
sSpin = f's{S()}'
sDm = f's{S()}'
sN0 = 's0'; sN1 = 's1'
_p = S(2, 2); sStamp = f's[{_p}:{_p+1}]'; sStampLo = f's{_p}'
sStampOff = f's{S()}'
assert _sn[0] <= 100, _sn

vL16, vL16b, vL16c, vS8, vST, vFl = 'v1', 'v2', 'v3', 'v4', 'v5', 'v6'
vT0, vT1 = 'v7', 'v18'
RES = 8
def v(i): return f'v{i}'
def vr(i, n): return f'v[{i}:{i+n-1}]'
def ar(i, n): return f'a[{i}:{i+n-1}]'

class Gen:
    def __init__(self, stop=None, stamps=False):
        self.a = Asm(); self.stop = stop; self.stamps = stamps; self.nstamp = 0; self.stampnames = []; self.ool = []; self._ls = []; self.LSR = os.environ.get('LSR')
    def I(self, t, tag=None): self.a.I(t, tag)
    def lds(self, off):
        base = [vL16, vL16b, vL16c][off >> 16]; return base, off & 0xffff
    def stamp(self, name):
        if not self.stamps: return
        self.lsf()
        I = self.I
        I(f's_memrealtime {sStamp}')
        I(f's_memtime s[100:101]')
        self.a.wait(lg=None)
        I(f'v_mov_b32 v19, {sStampLo}')
        I(f's_add_u32 {sT[9]}, {sStampOff}, {self.nstamp*4}')
        I(f'buffer_store_dword v19, off, {WS}, {sT[9]}', tag='stamp')
        I(f'v_mov_b32 v19, s100')
        I(f'buffer_store_dword v19, off, {WS}, {sT[9]} offset:256', tag='stamp')
        self.nstamp += 1; self.stampnames.append(name)

    def ls(self, name):
        if self.stamps and self.LSR and name.startswith(self.LSR):
            k = len(self._ls); assert k < 8
            self._ls.append(name); self.a.items.append(Raw(f'    s_memtime s[{20+2*k}:{21+2*k}]'))
    def lsf(self):
        if self._ls:
            n = self._ls; self._ls = []; self.lflush(['  ' + x for x in n])
    def lstamp(self, k):
        return [Raw(f'    s_memtime s[{20+2*k}:{21+2*k}]')] if self.stamps else []
    def lflush(self, names):
        if not self.stamps: return
        self.a.wait(lg=None)
        for k, n in enumerate(names):
            self.I(f'v_mov_b32 v19, s{20+2*k}')
            self.I(f's_add_u32 {sT[9]}, {sStampOff}, {self.nstamp*4}')
            self.I(f'buffer_store_dword v19, off, {WS}, {sT[9]} offset:256', tag='stamp')
            self.I(f'v_mov_b32 v19, 0')
            self.I(f'buffer_store_dword v19, off, {WS}, {sT[9]}', tag='stamp')
            self.nstamp += 1; self.stampnames.append(n)
    def dma_b(self, sbase, const, bank, tag, nper=5, sc='', slw=None, ldsoff=None):
        out = []
        slw = slw or sLW
        lo = bank*BANK if ldsoff is None else ldsoff
        for i in range(nper):
            with self.a.capture() as c:
                if i == 0:
                    self.I(f's_add_u32 m0, {slw}, {lo}')
                    self.I(f's_add_u32 {sDm}, {sbase}, {const}')
                if i == 4:
                    self.I(f's_add_u32 m0, m0, 4096')
                    self.I(f's_add_u32 {sDm}, {sDm}, 4096')
                self.I(f'buffer_load_dwordx4 {vL16}, {WS}, {sDm} offen offset:{(i&3)*1024} {sc} lds', tag)
            out.append(c.items)
        return out
    def emit(self, bundles):
        for b in bundles: self.a.extend(b)
    def dma_bank(self, *args, **kw): self.emit(self.dma_b(*args, **kw))
    def cap(self, fn, *args, **kw):
        with self.a.capture() as c: fn(*args, **kw)
        return c.items
    def weave(self, items, bundles, every, first=0):
        bi = 0; acc = every - first
        for k, it in enumerate(items):
            self.a.items.append(it)
            if isinstance(it, Ins):
                assert ('exec', 0) not in it.dst and not it.op.startswith(('s_cbranch', 's_branch')), it.text
                acc += 4 if it.kind == 'mfma' else (2 if it.kind == 'trans' else 1)
                nx = items[k+1] if k+1 < len(items) else None
                scc_live = isinstance(nx, Ins) and nx.op.startswith(('s_cselect', 's_cbranch', 's_addc', 's_subb'))
                if acc >= every and bi < len(bundles) and not scc_live:
                    self.a.extend(bundles[bi]); bi += 1; acc = 0
        self.emit(bundles[bi:])

    def touch(self, base, n, grp=0, tag='touch'):
        with self.a.capture() as c:
            I = self.I
            I(f's_mul_i32 s6, {sWI}, {n*128}'); I(f's_add_u32 s6, s6, {base}')
            if grp: I(f's_mul_i32 s7, {sXG}, {grp}'); I('s_add_u32 s6, s6, s7')
            I(f'v_min_u32 v19, {n-1}, v0'); I('v_lshlrev_b32 v19, 7, v19')
            I(f'buffer_load_dword a252, v19, {WS}, s6 offen sc1', tag)
        return [c.items]
    def touch2(self, sbase, const, n):
        with self.a.capture() as c:
            self.I(f's_add_u32 s6, {sbase}, {const}')
            self.I(f'v_min_u32 v19, {n-1}, v0'); self.I('v_lshlrev_b32 v19, 7, v19')
            self.I(f'buffer_load_dword a252, v19, {WS}, s6 offen sc1', 'touch')
        return [c.items]
    def touchT(self, base, tstride): return self.touch(base, tstride//1024, 16*tstride)
    def decomp(self, dst, areg, n, tmp):
        self.I(f'v_accvgpr_read_b32 v{tmp}, a{areg}')
        for i in range(n): self.I(f'v_mov_b32_dpp v{dst+i}, v{tmp} row_newbcast:{i} row_mask:0xf bank_mask:0xf')

    def cpf(self):
        I = self.I
        pl = self.a.newlabel('PCL')
        I('s_getpc_b64 s[4:5]')
        self.a.label(pl)
        I(f's_lshl_b32 s6, {sH}, 2'); I(f's_add_u32 s6, s6, {sW}'); I('s_and_b32 s6, s6, 31'); I('s_lshl_b32 s6, s6, 10')
        I(f'v_add_u32 v19, s6, {vL16}')
        I(f'v_min_u32 v19, CODE_END-{pl}-16, v19')
        I('global_load_dword a253, v19, s[4:5]', 'cpf')

    def poll(self, voff, soff, val):
        a = self.a; I = self.I
        L = a.newlabel('POLL'); D = a.newlabel('PDONE')
        if self.CPF: self.cpf()
        I(f's_mov_b32 {sSpin}, {sDead}')
        a.label(L)
        I(f'buffer_load_dword {vT0}, {voff}, {WS}, {soff} offen sc1')
        a.wait(vm=None)
        I(f'v_cmp_le_u32 vcc, {val}, {vT0}')
        I(f's_cmp_eq_u64 vcc, -1')
        I(f's_cbranch_scc1 {D}')
        I(f's_sub_u32 {sSpin}, {sSpin}, 1')
        I(f's_cbranch_scc0 {L}')
        I(f's_mov_b32 {sDead}, 0')
        a.label(D)

    def setflag(self, soff, val, sc1=False, vmask=None):
        I = self.I
        I(f'v_mov_b32 {vT0}, {val}')
        I(f'v_mov_b32 {vT1}, {vmask if vmask else 0}')
        I(f's_mov_b64 exec, 1')
        if sc1:
            I(f'buffer_store_dword {vT0}, {vT1}, {WS}, {soff} offen sc1', 'flag')
        else:
            self.a.slow_begin(sMODE)
            I(f'buffer_store_dword {vT0}, {vT1}, {WS}, {soff} offen', 'flag')
            self.a.slow_end()
        I(f's_mov_b64 exec, -1')

    def pack(self, dst, src, n):
        for i in range(n): self.I(f'v_cvt_pk_bf16_f32 v{dst+i}, v{src+2*i}, v{src+2*i+1}')
    def unpack(self, dst, src, n):
        for i in range(n):
            self.I(f'v_lshlrev_b32 v{dst+2*i}, 16, v{src+i}')
            self.I(f'v_and_b32 v{dst+2*i+1}, 0xffff0000, v{src+i}')

    def prod_stats(self, acc, t):
        I = self.I
        I(f'v_pk_add_f32 {vr(t,2)}, {vr(acc,2)}, {vr(acc+2,2)}')
        I(f'v_pk_mul_f32 {vr(t+2,2)}, {vr(acc,2)}, {vr(acc,2)}')
        I(f'v_pk_fma_f32 {vr(t+2,2)}, {vr(acc+2,2)}, {vr(acc+2,2)}, {vr(t+2,2)}')
        for i in range(2, 10):
            I(f'v_pk_add_f32 {vr(t,2)}, {vr(t,2)}, {vr(acc+2*i,2)}')
            I(f'v_pk_fma_f32 {vr(t+2,2)}, {vr(acc+2*i,2)}, {vr(acc+2*i,2)}, {vr(t+2,2)}')
        I(f'v_add_f32 v{t}, v{t}, v{t+1}')
        I(f'v_add_f32 v{t+2}, v{t+2}, v{t+3}')
        I(f'v_permlane32_swap_b32 v{t}, v{t+2}')
        I(f'v_add_f32 v{t}, v{t}, v{t+2}')
        I(f'v_mov_b32 v{t+1}, v{t}')
        I(f'v_permlane16_swap_b32 v{t}, v{t+1}')
        I(f'v_add_f32 v{t}, v{t}, v{t+1}')

    def cons_stats(self, F, nm, r, double=False, r1=None):
        I = self.I
        I(f'v_add_f32 v{F}, v{F}, v{F+2}'); I(f'v_add_f32 v{F+1}, v{F+1}, v{F+3}')
        I(f'v_permlane32_swap_b32 v{F}, v{F+1}')
        I(f'v_add_f32 v{F}, v{F}, v{F+1}')
        I(f'v_mov_b32 v{F+1}, v{F}')
        I(f'v_permlane16_swap_b32 v{F}, v{F+1}')
        I(f'v_add_f32 v{F}, v{F}, v{F+1}')
        I(f'v_mov_b32 v{F+1}, v{F}')
        I(f'v_permlane32_swap_b32 v{F}, v{F+1}')
        I(f'v_mul_f32 v{nm}, {hex(f2u(-1.0/640))}, v{F}')
        I(f'v_mul_f32 v{F+1}, {hex(f2u(1.0/640))}, v{F+1}')
        I(f'v_fma_f32 v{F+1}, -v{nm}, v{nm}, v{F+1}')
        I(f'v_max_f32 v{F+1}, 0, v{F+1}')
        I(f'v_add_f32 v{F+2}, {hex(f2u(1e-5))}, v{F+1}')
        if not double:
            I(f'v_rsq_f32 v{r}, v{F+2}')
        else:
            I(f'v_rsq_f32 v{r1}, v{F+2}')
            I(f'v_mul_f32 v{F+1}, v{F+1}, v{r1}')
            I(f'v_mul_f32 v{F+1}, v{F+1}, v{r1}')
            I(f'v_add_f32 v{F+1}, {hex(f2u(1e-5))}, v{F+1}')
            I(f'v_rsq_f32 v{F+1}, v{F+1}')
            I(f'v_mul_f32 v{r}, v{r1}, v{F+1}')

    def lnfixp(self, acc, cw, n2, p):
        for i in range(n2):
            self.I(f'v_pk_fma_f32 {vr(acc+2*i,2)}, {vr(cw+2*i,2)}, {vr(p,2)}, {vr(acc+2*i,2)} op_sel_hi:[1,0,1]')
        for i in range(n2):
            self.I(f'v_pk_mul_f32 {vr(acc+2*i,2)}, {vr(acc+2*i,2)}, {vr(p,2)} op_sel:[0,1] op_sel_hi:[1,1]')
    def lnfix(self, acc, cw, n2, nm, r):
        for i in range(n2):
            self.I(f'v_pk_fma_f32 {vr(acc+2*i,2)}, {vr(cw+2*i,2)}, {vr(nm,2)}, {vr(acc+2*i,2)} op_sel_hi:[1,0,1]')
        for i in range(n2):
            self.I(f'v_pk_mul_f32 {vr(acc+2*i,2)}, {vr(acc+2*i,2)}, {vr(r,2)} op_sel_hi:[1,0]')

    def gelu(self, x, n2, t, K):
        I = self.I
        for i in range(n2): I(f'v_pk_mul_f32 {vr(t+2*i,2)}, {vr(x+2*i,2)}, {vr(x+2*i,2)}')
        for i in range(n2): I(f'v_pk_fma_f32 {vr(t+2*i,2)}, {vr(t+2*i,2)}, {vr(K,2)}, {vr(K,2)} op_sel:[0,0,1] op_sel_hi:[1,0,1]')
        for i in range(n2): I(f'v_pk_mul_f32 {vr(t+2*i,2)}, {vr(t+2*i,2)}, {vr(x+2*i,2)}')
        for i in range(2*n2): I(f'v_exp_f32 v{t+i}, v{t+i}')
        for i in range(n2): I(f'v_pk_add_f32 {vr(t+2*i,2)}, {vr(t+2*i,2)}, {vr(K+2,2)} op_sel_hi:[1,0]')
        for i in range(2*n2): I(f'v_rcp_f32 v{t+i}, v{t+i}')
        for i in range(n2): I(f'v_pk_mul_f32 {vr(x+2*i,2)}, {vr(x+2*i,2)}, {vr(t+2*i,2)}')
    def gconst(self, G, r):
        I = self.I
        I(f'v_rcp_f32 v{G+1}, v{r}')
        I(f'v_mul_f32 v{G+3}, {hex(f2u(GC0))}, v{r}')
        I(f'v_mul_f32 v{G+2}, v{r}, v{r}')
        I(f'v_mul_f32 v{G+2}, v{G+2}, v{G+3}')
        I(f'v_mul_f32 v{G+2}, {hex(f2u(0.044715))}, v{G+2}')
    def lgA(self, x, cw, n2, t, G):
        I = self.I
        for i in range(n2): I(f'v_pk_fma_f32 {vr(x+2*i,2)}, {vr(cw+2*i,2)}, {vr(G,2)}, {vr(x+2*i,2)} op_sel_hi:[1,0,1]')
        for i in range(n2): I(f'v_pk_mul_f32 {vr(t+2*i,2)}, {vr(x+2*i,2)}, {vr(x+2*i,2)}')
        for i in range(n2): I(f'v_pk_fma_f32 {vr(t+2*i,2)}, {vr(t+2*i,2)}, {vr(G+2,2)}, {vr(G+2,2)} op_sel:[0,0,1] op_sel_hi:[1,0,1]')
        for i in range(n2): I(f'v_pk_mul_f32 {vr(t+2*i,2)}, {vr(t+2*i,2)}, {vr(x+2*i,2)}')
    def lgB(self, x, n2, t, G, pk):
        I = self.I
        for i in range(2*n2): I(f'v_exp_f32 v{t+i}, v{t+i}')
        if pk:
            for i in range(n2): I(f'v_pk_fma_f32 {vr(t+2*i,2)}, {vr(t+2*i,2)}, {vr(G,2)}, {vr(G,2)} op_sel:[0,1,1] op_sel_hi:[1,1,1]')
        else:
            for i in range(2*n2): I(f'v_fma_f32 v{t+i}, v{t+i}, v{G+1}, v{G+1}')
        for i in range(2*n2): I(f'v_rcp_f32 v{t+i}, v{t+i}')
        if pk:
            for i in range(n2): I(f'v_pk_mul_f32 {vr(x+2*i,2)}, {vr(x+2*i,2)}, {vr(t+2*i,2)}')
        else:
            for i in range(2*n2): I(f'v_mul_f32 v{x+i}, v{x+i}, v{t+i}')
    def geluA(self, x, n2, t, K):
        I = self.I
        for i in range(n2): I(f'v_pk_mul_f32 {vr(t+2*i,2)}, {vr(x+2*i,2)}, {vr(x+2*i,2)}')
        for i in range(n2): I(f'v_pk_fma_f32 {vr(t+2*i,2)}, {vr(t+2*i,2)}, {vr(K,2)}, {vr(K,2)} op_sel:[0,0,1] op_sel_hi:[1,0,1]')
        for i in range(n2): I(f'v_pk_mul_f32 {vr(t+2*i,2)}, {vr(t+2*i,2)}, {vr(x+2*i,2)}')
    def geluB(self, x, n2, t):
        I = self.I
        for i in range(2*n2): I(f'v_exp_f32 v{t+i}, v{t+i}')
        for i in range(2*n2): I(f'v_add_f32 v{t+i}, 1.0, v{t+i}')
        for i in range(2*n2): I(f'v_rcp_f32 v{t+i}, v{t+i}')
        for i in range(2*n2): I(f'v_mul_f32 v{x+i}, v{x+i}, v{t+i}')
    def gelu_consts(self, K):
        self.I(f'v_mov_b32 v{K}, {hex(f2u(GC1))}')
        self.I(f'v_mov_b32 v{K+1}, {hex(f2u(GC0))}')
        self.I(f'v_mov_b32 v{K+2}, 1.0')

    def store_tile(self, P, buf, sA, sHh, sc1=False, vA=vL16, vH=vS8, tag='st'):
        I = self.I
        sc = ' sc1' if sc1 else ''
        I(f's_add_u32 {sT[0]}, {sA}, {buf}')
        I(f's_add_u32 {sT[1]}, {sHh}, {buf}')
        if not sc1: self.a.slow_begin(sMODE)
        I(f'buffer_store_dwordx4 {vr(P,4)}, {vA}, {WS}, {sT[0]} offen{sc}', tag)
        I(f'buffer_store_dwordx4 {vr(P+4,4)}, {vA}, {WS}, {sT[0]} offen offset:1024{sc}', tag)
        I(f'buffer_store_dwordx2 {vr(P+8,2)}, {vH}, {WS}, {sT[1]} offen{sc}', tag)
        if not sc1: self.a.slow_end()
    def store_stats(self, t, buf, sc1=False, tag='st'):
        I = self.I
        I(f's_add_u32 {sT[0]}, {sS21}, {buf}')
        if not sc1: self.a.slow_begin(sMODE)
        I(f'buffer_store_dword v{t}, {vST}, {WS}, {sT[0]} offen' + (' sc1' if sc1 else ''), tag)
        if not sc1: self.a.slow_end()

    def load_frag(self, dst, voff, sbase, const, idx, tag, areg=False, sc=' sc1', state={}):
        key = (sbase, const, idx >> 2)
        if self._lf != key:
            self.I(f's_add_u32 {sT[2]}, {sbase}, {const + (idx >> 2)*4096}')
            self._lf = key
        d = ar(dst, 4) if areg else vr(dst, 4)
        self.I(f'buffer_load_dwordx4 {d}, {voff}, {WS}, {sT[2]} offen offset:{(idx & 3)*1024}{sc}', tag)
    _lf = None

    def tsrd(self, p, nbytes):
        self.I(f's_mov_b32 s12, s{p}'); self.I(f's_and_b32 s13, s{p+1}, 0xffff'); self.I(f's_mov_b32 s14, {nbytes}')

    def rowcol(self, q, magic, lpr, rs):
        I = self.I
        I(f'v_add_u32 v26, {q}, v0')
        I(f'v_mul_u32_u24 v27, {magic}, v26'); I('v_lshrrev_b32 v27, 16, v27')
        I(f'v_mul_u32_u24 v28, {lpr}, v27'); I('v_sub_u32 v28, v26, v28')
        I(f'v_mul_u32_u24 v29, {rs}, v27'); I('v_lshl_add_u32 v29, v28, 4, v29')

    def prologue(self):
        a = self.a; I = self.I
        sRS, sEx, sSrc, sDst, sTile, sU, sLB = sT[3], sT[4], sT[5], sT[6], sT[7], sT[8], sWB
        sInvA, sInvB, sSrc3 = 's6', 's7', 's3'
        I('s_cmp_ge_u32 s2, 256')
        I('s_cbranch_scc1 KEND')
        I('s_load_dwordx16 s[20:35], s[0:1], 0')
        I('s_load_dwordx8 s[36:43], s[0:1], 64')
        if self.stamps: I('s_memrealtime s[98:99]')
        I('s_getpc_b64 s[4:5]')
        a.label('PCL0')
        I(f's_lshr_b32 {sH}, s2, 3')
        I(f's_lshl_b32 {sT[0]}, {sH}, 12')
        I(f'v_lshl_add_u32 v26, v0, 4, {sT[0]}')
        I('v_min_u32 v26, CODE_END-PCL0-16, v26')
        I('global_load_dword a253, v26, s[4:5]')
        I('v_lshrrev_b32 v7, 6, v0')
        I('v_mov_b32 v25, v0')
        I(f'v_readfirstlane_b32 {sW}, v7')
        I('v_and_b32 v0, 63, v0')
        I(f's_and_b32 {sXG}, s2, 7')
        I(f's_lshr_b32 {sCL}, {sH}, 3'); I(f's_and_b32 {sJ}, {sH}, 7')
        I(f's_lshl_b32 {sC}, {sXG}, 2'); I(f's_add_u32 {sC}, {sC}, {sCL}')
        I(f's_lshl_b32 {sTT}, {sC}, 2'); I(f's_add_u32 {sTT}, {sTT}, {sW}')
        I(f's_mul_i32 {sT[0]}, {sJ}, 5'); I(f's_add_u32 {sT[0]}, {sT[0]}, 1'); I(f's_lshr_b32 {sT[0]}, {sT[0]}, 1')
        I(f's_lshl_b32 {sA21}, {sT[0]}, 10')
        I(f's_mul_i32 {sH21}, {sJ}, 2560')
        I(f's_bitcmp0_b32 {sJ}, 0'); I(f's_cselect_b32 {sT[3]}, 2048, 0'); I(f's_add_u32 {sH21}, {sH21}, {sT[3]}')
        I(f's_mul_i32 {sT20}, {sTT}, 20480')
        I(f's_lshr_b32 {sOutA}, {sA21}, 4'); I(f's_lshr_b32 {sOutH}, {sH21}, 4')
        I(f's_add_u32 {sOutA}, {sOutA}, {sT20}'); I(f's_add_u32 {sOutH}, {sOutH}, {sT20}')
        I('v_and_b32 v20, 15, v0'); I('v_lshrrev_b32 v21, 4, v0')
        I('v_mul_u32_u24 v26, 1280, v20')
        I('v_lshl_add_u32 v36, v21, 4, v26'); I('v_lshl_add_u32 v37, v21, 3, v26')
        I(f's_lshr_b32 {sT[1]}, s2, 1'); I(f's_and_b32 {sT[0]}, s2, 1')
        I(f's_mul_i32 {sSrc}, {sT[1]}, {8*3840}'); I(f's_mul_i32 {sT[2]}, {sT[0]}, 640'); I(f's_add_u32 {sSrc}, {sSrc}, {sT[2]}')
        I(f's_cmp_lt_u32 s2, 160'); I(f's_cselect_b32 {sInvA}, 0, {OOB}'); I(f's_cselect_b32 {sSrc}, {sSrc}, 0')
        for k in range(4):
            I(f'v_add_u32 v26, {256*k}, v25')
            I('v_mul_u32_u24 v27, 13108, v26'); I('v_lshrrev_b32 v27, 19, v27')
            I('v_mul_u32_u24 v28, 40, v27'); I('v_sub_u32 v28, v26, v28')
            I('v_and_b32 v29, 7, v27'); I('v_mul_u32_u24 v29, 3840, v29'); I('v_lshl_add_u32 v29, v28, 4, v29')
            I('v_lshrrev_b32 v27, 3, v27'); I('v_mul_u32_u24 v28, 1280, v27'); I(f'v_add3_u32 v{40+k}, v29, v28, {sInvA}')
        I('v_cmp_gt_u32 vcc, 3, v27'); I(f'v_mov_b32 v28, {OOB}'); I('v_cndmask_b32 v43, v28, v43, vcc')
        I(f's_lshl_b32 {sLB}, {sW}, 10')
        I('s_mov_b32 s15, 0x20000'); I('s_mov_b32 s11, 0x20000'); I('s_mov_b32 s19, 0x20000')
        I('s_mov_b32 s10, 0x10000000'); I('s_mov_b32 s18, 2621440')
        I(f's_lshl_b32 {sU}, s2, 2'); I(f's_add_u32 {sU}, {sU}, {sW}')
        I('s_memrealtime s[94:95]')
        a.wait(lg=None)
        I(f's_mov_b32 s8, s{P_WS}'); I(f's_and_b32 s9, s{P_WS+1}, 0xffff')
        I(f's_cmp_lg_u32 {sU}, 3'); I('s_cbranch_scc1 NOTAG')
        I('s_lshl_b32 s95, s95, 4'); I('s_or_b32 s95, s95, 0x80000000')
        I('v_mov_b32 v26, s94'); I('v_mov_b32 v27, s95'); I('v_mov_b32 v28, 0')
        I('s_mov_b64 exec, 1')
        a.raw(f'    global_store_dwordx2 v28, v[26:27], s[{P_DBG}:{P_DBG+1}] sc1')
        I('s_mov_b64 exec, -1')
        a.label('NOTAG')
        self.tsrd(P_QKV, 2457600)
        for k in range(4):
            I(f's_add_u32 m0, {sLB}, {k*4096}')
            I(f'buffer_load_dwordx4 v{40+k}, {TS}, {sSrc} offen nt lds', 's1')
        self.tsrd(P_X, 2621440)
        I(f'buffer_load_dwordx4 {vr(RES,4)}, v36, {TS}, {sOutA} offen nt', 's1')
        I(f'buffer_load_dwordx4 {vr(RES+4,4)}, v36, {TS}, {sOutA} offen offset:64 nt', 's1')
        I(f'buffer_load_dwordx2 {vr(RES+8,2)}, v37, {TS}, {sOutH} offen nt', 's1')
        I(f's_mov_b32 s16, s{P_OUT}'); I(f's_and_b32 s17, s{P_OUT+1}, 0xffff')
        I(f's_mul_i32 {sDm}, {sT[0]}, {16*81920}'); I(f's_mul_i32 {sT[2]}, {sW}, {4*81920}'); I(f's_add_u32 {sDm}, {sDm}, {sT[2]}')
        I(f's_lshr_b32 {sT[2]}, {sT[1]}, 2'); I(f's_lshl_b32 {sT[2]}, {sT[2]}, 12'); I(f's_add_u32 {sDm}, {sDm}, {sT[2]}')
        I(f's_and_b32 {sT[2]}, {sT[1]}, 3'); I(f's_lshl_b32 {sT[2]}, {sT[2]}, 8'); I(f's_add_u32 {sDm}, {sDm}, {sT[2]}')
        I(f's_mov_b32 s4, {sInvA}')
        if self.stamps: I(f's_lshl_b32 {sStampOff}, {sU}, 9'); I(f's_add_u32 {sStampOff}, {sStampOff}, {STAMP}')
        I(f's_add_u32 {sU}, {sU}, 384'); I(f's_and_b32 {sU}, {sU}, 1023')
        I(f's_mov_b32 s12, s{P_O}'); I(f's_mov_b32 s13, s{P_O+1}'); I(f's_mov_b32 s14, 819200')
        I(f's_mov_b32 {sDst}, {WT_O}'); I(f's_mov_b32 {sTile}, 102400'); I(f's_mov_b32 {sT[0]}, {sU}')
        for thr, p, wt in ((160, P_1, WT_1), (320, P_2, WT_2), (480, P_4, WT_4)):
            I(f's_sub_u32 {sT[1]}, {sU}, {thr}')
            I(f's_cmp_ge_u32 {sU}, {thr}')
            I(f's_cselect_b32 s12, s{p}, s12'); I(f's_cselect_b32 s13, s{p+1}, s13')
            I(f's_cselect_b32 {sDst}, {wt}, {sDst}'); I(f's_cselect_b32 {sT[0]}, {sT[1]}, {sT[0]}')
        I(f's_cselect_b32 {sTile}, 245760, {sTile}'); I(f's_cselect_b32 s14, 1966080, s14')
        I(f's_and_b32 s13, s13, 0xffff')
        I(f's_cmp_lt_u32 {sU}, 864'); I(f's_cselect_b32 {sInvA}, s4, {OOB}'); I(f's_cselect_b32 {sT[0]}, {sT[0]}, 0')
        I(f's_xor_b32 s5, s4, {OOB}')
        I(f's_lshr_b32 {sT[1]}, {sT[0]}, 1'); I(f's_and_b32 {sT[0]}, {sT[0]}, 1')
        I(f's_lshl_b32 {sSrc}, {sT[1]}, 3'); I(f's_mov_b32 {sEx}, 0')
        I(f's_cmp_ge_u32 {sU}, 160'); I('s_cbranch_scc1 PREP_RB')
        I(f's_lshr_b32 {sT[2]}, {sT[1]}, 1'); I(f's_mul_i32 {sT[2]}, {sT[2]}, 20')
        I(f's_and_b32 {sSrc}, {sT[1]}, 1'); I(f's_lshl_b32 {sSrc}, {sSrc}, 3'); I(f's_add_u32 {sSrc}, {sSrc}, {sT[2]}')
        I(f's_cmp_lt_u32 {sT[1]}, 64'); I('s_cbranch_scc1 PREP_RB')
        I(f's_sub_u32 {sT[2]}, {sT[1]}, 64'); I(f's_mul_i32 {sSrc}, {sT[2]}, 40'); I(f's_add_u32 {sSrc}, {sSrc}, 16')
        I(f's_mov_b32 {sEx}, {16*1280}')
        a.label('PREP_RB')
        I(f's_mul_i32 {sSrc}, {sSrc}, 1280'); I(f's_mul_i32 {sT[2]}, {sT[0]}, 640'); I(f's_add_u32 {sSrc}, {sSrc}, {sT[2]}')
        I(f's_lshl_b32 {sLB}, {sW}, 13'); I(f's_add_u32 {sLB}, {sLB}, 32768')
        for q in range(5):
            self.rowcol(64*q, 1639, 40, 1280)
            I('v_lshrrev_b32 v27, 2, v27'); I(f'v_mad_u32_u24 v29, v27, {sEx}, v29'); I(f'v_or_b32 v{200+q}, {sInvA}, v29')
            I('v_or_b32 v29, s5, v29')
            I(f's_add_u32 m0, {sLB}, {q*1024}')
            I(f'buffer_load_dwordx4 v29, {TS}, {sSrc} offen nt lds', 's1')
        I(f's_mul_i32 {sT[2]}, {sT[0]}, {sTile}'); I(f's_lshl_b32 {sT[2]}, {sT[2]}, 2'); I(f's_add_u32 {sDst}, {sDst}, {sT[2]}')
        I(f's_lshr_b32 {sT[2]}, {sT[1]}, 2'); I(f's_mul_i32 {sT[2]}, {sT[2]}, 5120'); I(f's_add_u32 {sDst}, {sDst}, {sT[2]}')
        I(f's_and_b32 {sT[2]}, {sT[1]}, 3'); I(f's_lshl_b32 {sT[2]}, {sT[2]}, 8'); I(f's_add_u32 {sDst}, {sDst}, {sT[2]}')
        I(f's_add_u32 {sT[0]}, {sU}, 160'); I(f's_and_b32 {sT[0]}, {sT[0]}, 1023')
        I(f's_cmp_lt_u32 {sT[0]}, 640'); I(f's_cselect_b32 {sInvB}, 0, {OOB}'); I(f's_cselect_b32 {sT[0]}, {sT[0]}, 0')
        I(f's_lshr_b32 {sT[1]}, {sT[0]}, 3'); I(f's_and_b32 {sT[0]}, {sT[0]}, 7')
        I(f's_mul_i32 {sSrc3}, {sT[1]}, {8*3072}'); I(f's_mul_i32 {sT[2]}, {sT[0]}, 384'); I(f's_add_u32 {sSrc3}, {sSrc3}, {sT[2]}')
        I(f's_mul_i32 {sRS}, {sT[0]}, 245760'); I(f's_lshl_b32 {sT[2]}, {sT[1]}, 8'); I(f's_add_u32 {sRS}, {sRS}, {sT[2]}'); I(f's_add_u32 {sRS}, {sRS}, {WT_3}')
        I(f's_mov_b32 {sDead}, 400000'); I(f's_mov_b32 {sMODE}, 0')
        I(f's_mul_i32 {sT21}, {sTT}, 21504'); I(f's_mul_i32 {sT48}, {sTT}, 49152')
        I(f's_add_u32 {sA20}, {sT20}, {sA21}'); I(f's_add_u32 {sH20}, {sT20}, {sH21}')
        I(f's_add_u32 {sA21}, {sT21}, {sA21}'); I(f's_add_u32 {sH21}, {sT21}, {sH21}')
        I(f's_lshr_b32 {sT[0]}, {sJ}, 1'); I(f's_lshl_b32 {sT[0]}, {sT[0]}, 8')
        I(f's_and_b32 {sT[1]}, {sJ}, 1'); I(f's_lshl_b32 {sT[1]}, {sT[1]}, 3')
        I(f's_add_u32 {sS21}, {sT21}, {sT[0]}'); I(f's_add_u32 {sS21}, {sS21}, {sT[1]}'); I(f's_add_u32 {sS21}, {sS21}, 20480')
        I(f's_mul_i32 {sLW}, {sW}, 5120')
        I(f's_mul_i32 {sW5}, {sJ}, 102400'); I(f's_add_u32 {sW5}, {sW5}, {sLW}')
        I(f's_mul_i32 {sW4}, {sJ}, 245760'); I(f's_add_u32 {sW4}, {sW4}, {sLW}')
        I(f's_mul_i32 {sWQ}, {sH}, 81920');  I(f's_add_u32 {sWQ}, {sWQ}, {sLW}')
        I(f's_lshl_b32 {sWI}, {sH}, 2'); I(f's_add_u32 {sWI}, {sWI}, {sW}')
        I(f's_lshl_b32 {sT[0]}, {sXG}, 2'); I(f's_add_u32 {sT[0]}, {sT[0]}, {sW}')
        I(f's_mul_i32 {sQT21}, {sT[0]}, {4*21504}')
        I(f's_mul_i32 {sT[1]}, {sT[0]}, {4*20480}')
        I(f's_lshl_b32 {sT[2]}, {sH}, 9'); I(f's_add_u32 {sO4}, {sT[1]}, {sT[2]}')
        I(f's_lshr_b32 {sT[2]}, {sH}, 1'); I(f's_lshl_b32 {sT[2]}, {sT[2]}, 8'); I(f's_add_u32 {sO1}, {sT[1]}, {sT[2]}')
        I(f's_and_b32 {sT[2]}, {sH}, 1'); I(f's_lshl_b32 {sT[2]}, {sT[2]}, 3'); I(f's_add_u32 {sO1}, {sO1}, {sT[2]}'); I(f's_add_u32 {sO1}, {sO1}, 16384')
        I(f's_lshl_b32 {sT[2]}, {sT[0]}, 7'); I(f's_lshl_b32 {sFLOo}, {sH}, 2')
        I(f's_add_u32 {sFLOo}, {sT[2]}, {sFLOo}'); I(f's_add_u32 {sFLOo}, {sFLOo}, {FLO}')
        I(f's_lshl_b32 {sKVi}, {sH}, 16'); I(f's_lshl_b32 {sT[2]}, {sW}, 10'); I(f's_add_u32 {sKVi}, {sKVi}, {sT[2]}')
        I(f's_add_u32 {sKVi}, {sKVi}, {KVP}')
        I(f's_lshl_b32 {sT[2]}, {sXG}, 13'); I(f's_add_u32 {sKVo}, {sKVi}, {sT[2]}')
        I(f's_lshl_b32 {sT[0]}, {sJ}, 2'); I(f's_add_u32 {sT[0]}, {sT[0]}, {sW}')
        I(f's_mul_i32 {sW3}, {sT[0]}, 61440')
        I(f's_mul_i32 {sT[1]}, {sT[0]}, 3'); I(f's_add_u32 {sT[1]}, {sT[1]}, 1'); I(f's_lshr_b32 {sT[1]}, {sT[1]}, 1'); I(f's_lshl_b32 {sA48}, {sT[1]}, 10')
        I(f's_mul_i32 {sH48}, {sT[0]}, 1536')
        I(f's_bitcmp0_b32 {sT[0]}, 0'); I(f's_cselect_b32 {sT[2]}, 1024, 0'); I(f's_add_u32 {sH48}, {sH48}, {sT[2]}')
        I(f's_mul_i32 {sT[2]}, {sC}, {4*49152}')
        I(f's_add_u32 {sA48}, {sT[2]}, {sA48}'); I(f's_add_u32 {sH48}, {sT[2]}, {sH48}')
        I(f's_mul_i32 {sC21}, {sC}, {4*21504}')
        I(f's_lshl_b32 {sFLo}, {sTT}, 5'); I(f's_lshl_b32 {sT[2]}, {sJ}, 2'); I(f's_add_u32 {sFLo}, {sFLo}, {sT[2]}'); I(f's_add_u32 {sFLo}, {sFLo}, {FL}')
        I(f's_and_b32 {sT[0]}, {sTT}, 15')
        I(f's_mov_b32 {sEdge}, {OOB}')
        I(f's_cmp_eq_u32 {sT[0]}, 0');  I(f's_cselect_b32 {sEdge}, 0, {sEdge}')
        I(f's_cmp_eq_u32 {sT[0]}, 15'); I(f's_cselect_b32 {sEdge}, 0, {sEdge}'); I(f's_cselect_b32 {sBot}, 1, 0')
        I(f's_cmp_eq_u32 {sTT}, 0');   I(f's_cselect_b32 {sEdge}, {OOB}, {sEdge}')
        I(f's_cmp_eq_u32 {sTT}, 127'); I(f's_cselect_b32 {sEdge}, {OOB}, {sEdge}')
        I(f'v_lshlrev_b32 {vL16}, 4, v0')
        I(f'v_add_u32 {vL16b}, 0x10000, {vL16}'); I(f'v_add_u32 {vL16c}, 0x20000, {vL16}')
        I('v_lshrrev_b32 v22, 5, v0'); I('v_and_b32 v23, 1, v21'); I('v_lshlrev_b32 v24, 4, v20')
        I(f'v_lshl_add_u32 {vS8}, v22, 8, v24'); I(f'v_lshl_add_u32 {vS8}, v23, 3, {vS8}')
        I(f'v_lshl_add_u32 {vST}, v22, 2, v24')
        I(f'v_and_b32 {vFl}, 31, v0'); I(f'v_lshlrev_b32 {vFl}, 2, {vFl}')
        if self.stamps:
            I('v_mov_b32 v19, s98'); I(f'buffer_store_dword v19, off, {WS}, {sStampOff}'); I(f'buffer_store_dword v19, off, {WS}, {sStampOff} offset:256')
            self.nstamp += 1; self.stampnames.append('entry')
        self.stamp('issued')
        I('v_lshrrev_b32 v26, 2, v20'); I('v_and_b32 v27, 3, v20')
        I(f's_mul_i32 {sT[2]}, {sW}, 160')
        I('v_mul_u32_u24 v29, 640, v26'); I(f'v_add_u32 v29, {sT[2]}, v29'); I('v_mul_u32_u24 v28, 40, v21'); I('v_add_u32 v29, v29, v28')
        I('v_lshl_add_u32 v30, v27, 3, v29')
        I('v_lshlrev_b32 v28, 3, v27'); I(f'v_add_u32 v31, {10240-8}, v28'); I(f'v_mov_b32 v33, {5120+32}')
        I('v_cmp_eq_u32 vcc, 0, v27'); I('v_cndmask_b32 v31, v31, v33, vcc'); I('v_add_u32 v31, v31, v29')
        I('v_min_u32 v28, 2, v27'); I('v_lshlrev_b32 v28, 3, v28'); I(f'v_add_u32 v33, {10240+16}, v28'); I('v_mov_b32 v34, 32')
        I('v_cndmask_b32 v33, v33, v34, vcc'); I('v_add_u32 v33, v33, v29')
        I(f's_mov_b32 {sT[2]}, 81920'); I(f'v_mul_lo_u32 v32, v21, {sT[2]}'); I(f'v_add3_u32 v32, v32, v24, s4')
        for q in range(3):
            self.rowcol(64*q, 2731, 24, 3072)
            I(f'v_or_b32 v{205+q}, {sInvB}, v29')
        I('v_lshrrev_b32 v26, 2, v20'); I('v_and_b32 v27, 3, v20')
        I('v_mul_u32_u24 v28, 5, v21'); I('v_add_u32 v28, 1, v28'); I('v_lshrrev_b32 v28, 1, v28')
        I('v_mul_u32_u24 v29, 640, v26'); I(f'v_add_u32 v29, {sLB}, v29')
        I('v_lshl_add_u32 v210, v28, 6, v29'); I('v_lshl_add_u32 v210, v27, 4, v210')
        I('v_mul_u32_u24 v211, 160, v21'); I('v_xor_b32 v28, 1, v23'); I('v_lshl_add_u32 v211, v28, 7, v211')
        I('v_add_u32 v211, v211, v29'); I('v_lshl_add_u32 v211, v27, 3, v211')
        I(f'v_mul_lo_u32 v212, v21, {sTile}'); I(f'v_add3_u32 v216, v212, v24, s5'); I(f'v_add3_u32 v212, v212, v24, {sInvA}')
        I('v_mul_u32_u24 v29, 384, v26'); I(f'v_add_u32 v29, {sLB}, v29'); I('v_mul_u32_u24 v28, 96, v21'); I('v_add_u32 v29, v29, v28')
        I('v_lshl_add_u32 v213, v23, 5, v29'); I('v_lshl_add_u32 v213, v27, 4, v213')
        I('v_xor_b32 v28, 1, v23'); I('v_lshl_add_u32 v214, v28, 6, v29'); I('v_lshl_add_u32 v214, v27, 3, v214')
        I('v_mul_u32_u24 v215, 61440, v21'); I(f'v_add3_u32 v215, v215, v24, {sInvB}')
        I(f's_getreg_b32 {sU}, hwreg(HW_REG_XCC_ID)'); I(f's_and_b32 {sU}, {sU}, 15')
        for r in range(132, 142): I(f'v_mov_b32 v{r}, -1')
        I('v_mov_b32 v128, 0')
        a.wait(vm='s1')
        self.stamp('s1_loaded')
        I('v_mov_b32 v26, 0')
        I(f'global_load_dwordx2 v[208:209], v26, s[{P_DBG}:{P_DBG+1}] sc1', 'st')
        self.store_tile(RES, XA(0), sA21, sH21, sc1=True)
        for i in range(5):
            b_, o = ('v210', 64*(i >> 1) + 8*(i & 1)) if i < 4 else ('v211', 0)
            I(f'ds_read_b64_tr_b16 {vr(64+4*i,2)}, {b_} offset:{o}')
            I(f'ds_read_b64_tr_b16 {vr(66+4*i,2)}, {b_} offset:{o+2560}')
        I('s_barrier')
        a.wait(lg=None)
        for i, (b_, o) in enumerate((('v30', 5120), ('v31', 0), ('v30', 0), ('v33', 0))):
            I(f'ds_read_b64_tr_b16 {vr(48+4*i,2)}, {b_} offset:{o}')
            I(f'ds_read_b64_tr_b16 {vr(50+4*i,2)}, {b_} offset:{o+2560}')
        for i in range(4): I(f'buffer_store_dwordx4 {vr(64+4*i,4)}, v216, {WS}, {sDst} offen offset:{i*1024} sc1', 'st')
        I(f's_add_u32 {sT[0]}, {sDst}, 4096')
        I(f'buffer_store_dwordx4 {vr(80,4)}, v216, {WS}, {sT[0]} offen sc1', 'st')
        a.wait(lg=None)
        for i in range(4): I(f'buffer_store_dwordx4 {vr(48+4*i,4)}, v32, {WS}, {sDm} offen offset:{i*1024} sc1', 'st')
        self.unpack(144, RES, 10)
        self.prod_stats(144, 164)
        self.store_stats(164, XA(0), sc1=True)
        I(f'buffer_store_dwordx4 {vr(132,4)}, {vL16}, {WS}, {sKVo} offen sc1', 'st')
        I(f's_lshl_b32 {sT[0]}, s2, 7'); I(f's_add_u32 {sT[0]}, {sT[0]}, {FL}')
        I(f's_cmp_eq_u32 {sW}, 1'); I(f's_cselect_b32 {sT[1]}, 0, {OOB}')
        I(f's_cmp_lt_u32 s2, 64'); I(f's_cselect_b32 {sT[1]}, {sT[1]}, {OOB}')
        I(f'v_or_b32 v26, {sT[1]}, {vFl}')
        I(f'buffer_store_dword v128, v26, {WS}, {sT[0]} offen sc1', 'st')
        for q in range(5):
            I(f's_add_u32 m0, {sLB}, {q*1024}')
            I(f'buffer_load_dwordx4 v{200+q}, {TS}, {sSrc} offen nt lds', 's2')
        self.tsrd(P_3, 1966080)
        for q in range(3):
            I(f's_add_u32 m0, {sLB}, {5120+q*1024}')
            I(f'buffer_load_dwordx4 v{205+q}, {TS}, {sSrc3} offen nt lds', 's2')
        self.tsrd(P_PHI, 25600)
        I('v_and_b32 v26, 3, v0'); I('v_lshlrev_b32 v26, 1, v26')
        I(f's_mul_i32 {sT[0]}, {sH}, 800')
        I('v_mul_u32_u24 v27, 160, v21'); I(f'v_add3_u32 v27, v27, v26, {sT[0]}')
        I(f'v_add_u32 v28, {sT[0]}, v26'); I('v_add_u32 v28, 640, v28'); I(f'v_mov_b32 v29, {OOB}')
        I('v_cmp_eq_u32 vcc, 0, v21'); I('v_cndmask_b32 v28, v29, v28, vcc')
        I(f's_lshl_b32 {sT[0]}, {sW}, 3')
        for fr, so in ((0, sT[0]), (1, '32')):
            for e in range(8):
                vo = 'v27' if e < 4 else 'v28'
                I(f'buffer_load_ushort v{(180 if e & 1 else 120)+4*fr+(e>>1)}, {vo}, {TS}, {so} offen offset:{(e&3)*40}')
        I('v_mov_b32 v26, 0')
        a.wait(vm='st')
        self.stamp('s1_drained')
        I(f's_mov_b32 {sSpin}, {sDead}')
        a.label('GB_P0')
        I('v_cmp_ne_u32 vcc, 0, v209'); I('s_cmp_eq_u64 vcc, -1'); I('s_cbranch_scc1 GB_P0D')
        a.raw(f'    global_load_dwordx2 v[208:209], v26, s[{P_DBG}:{P_DBG+1}] sc1')
        I('s_waitcnt vmcnt(0)')
        I(f's_sub_u32 {sSpin}, {sSpin}, 1'); I('s_cbranch_scc0 GB_P0')
        a.label('GB_P0D')
        I(f'v_readfirstlane_b32 {sN0}, v208'); I(f'v_readfirstlane_b32 {sN1}, v209')
        I('s_barrier')
        self.arrive(0, 208, sU)
        a.wait(vm=None)
        for i in range(5):
            b_, o = ('v210', 64*(i >> 1) + 8*(i & 1)) if i < 4 else ('v211', 0)
            I(f'ds_read_b64_tr_b16 {ar(4*i,2)}, {b_} offset:{o}')
            I(f'ds_read_b64_tr_b16 {ar(4*i+2,2)}, {b_} offset:{o+2560}')
        a.wait(lg=None)
        for i in range(3):
            b_, o = ('v213', 8*i) if i < 2 else ('v214', 0)
            I(f'ds_read_b64_tr_b16 {ar(20+4*i,2)}, {b_} offset:{5120+o}')
            I(f'ds_read_b64_tr_b16 {ar(22+4*i,2)}, {b_} offset:{5120+o+1536}')
        for r in range(32, 36): I(f'v_accvgpr_write_b32 a{r}, -1')
        I(f's_mov_b32 s4, {sDst}'); I(f's_mov_b32 s5, {sRS}')
        I('v_accvgpr_write_b32 a38, v212'); I('v_accvgpr_write_b32 a39, v215')
        I('v_bfe_u32 v26, v0, 2, 1'); I(f's_mov_b32 {sT[0]}, 0x80008000'); I(f'v_mul_lo_u32 v26, v26, {sT[0]}')
        for r in range(120, 128): I(f'v_lshl_or_b32 v{r}, v{r+60}, 16, v{r}')
        for r in range(120, 128): I(f'v_xor_b32 v{r}, v{r}, v26')
        for r in range(8): I(f'v_accvgpr_write_b32 a{240+r}, v{120+r}')
        I(f's_add_u32 s36, {sH}, {sXG}') if self.ROT == 1 else I(f's_mov_b32 s36, {sXG if self.ROT == 2 else 0}')
        I('s_mul_i32 s37, s36, 52429'); I('s_lshr_b32 s37, s37, 18'); I('s_mul_i32 s37, s37, 5'); I('s_sub_u32 s36, s36, s37')
        I('s_lshl_b32 s36, s36, 12')
        for q in range(1, 5):
            I(f's_add_u32 s{36+q}, s{35+q}, 4096'); I(f's_cmp_eq_u32 s{36+q}, 20480'); I(f's_cselect_b32 s{36+q}, 0, s{36+q}')
        self.stamp('s2_issued')

    def arrive(self, which, t, sx='0'):
        I = self.I
        I(f's_cmp_eq_u32 {sW}, 0'); I(f's_cselect_b32 {sT[0]}, 0, {OOB}')
        I(f's_add_u32 {sT[1]}, {sN1}, {sx}')
        I(f'v_mov_b32 v{t}, {sN0}'); I(f'v_mov_b32 v{t+1}, {sT[1]}')
        I(f'v_lshlrev_b32 {vT0}, 3, v0'); I(f'v_or_b32 {vT0}, {sT[0]}, {vT0}')
        I(f's_lshl_b32 {sT[1]}, s2, 7'); I(f's_add_u32 {sT[1]}, {sT[1]}, {CNT + which*32768}')
        I('s_mov_b64 exec, 0xffff')
        I(f'buffer_store_dwordx2 {vr(t,2)}, {vT0}, {WS}, {sT[1]} offen sc1')
        I('s_mov_b64 exec, -1')
    def allchk_issue(self, which, t):
        with self.a.capture() as c:
            I = self.I
            I(f'v_lshlrev_b32 v{t+2}, 7, v0')
            I(f's_lshl_b32 {sT[5]}, {sW}, 13'); I(f's_add_u32 {sT[5]}, {sT[5]}, {CNT + which*32768}')
            I(f'buffer_load_dwordx2 {vr(t,2)}, v{t+2}, {WS}, {sT[5]} offen sc1', 'pall')
        return [c.items]
    def allchk(self, t):
        a = self.a; I = self.I
        L = a.newlabel('ACP'); D = a.newlabel('ACD')
        a.wait(vm='pall')
        I(f's_mov_b32 {sSpin}, {sDead}')
        a.label(L)
        I(f'v_and_b32 v{t+1}, -16, v{t+1}'); I(f'v_cmp_eq_u64 vcc, s[0:1], {vr(t,2)}'); I('s_cmp_eq_u64 vcc, -1'); I(f's_cbranch_scc1 {D}')
        a.raw(f'    buffer_load_dwordx2 {vr(t,2)}, v{t+2}, {WS}, {sT[5]} offen sc1')
        I('s_waitcnt vmcnt(0)')
        I(f's_sub_u32 {sSpin}, {sSpin}, 1'); I(f's_cbranch_scc0 {L}')
        I(f's_mov_b32 {sDead}, 0')
        a.label(D)

    def s2_stores(self, v0_, v1_):
        out = []
        for i in range(4): out.append([Ins(f'buffer_store_dwordx4 {ar(4*i,4)}, {v0_}, {WS}, s4 offen offset:{i*1024} sc1', 's2s')])
        out.append([Ins('s_add_u32 s4, s4, 4096'), Ins(f'buffer_store_dwordx4 {ar(16,4)}, {v0_}, {WS}, s4 offen sc1', 's2s')])
        for i in range(3):
            out.append([Ins(f'buffer_store_dwordx4 {ar(20+4*i,4)}, {v1_}, {WS}, s5 offen sc1', 's2s'), Ins('s_add_u32 s5, s5, 20480')])
        out.append([Ins(f's_add_u32 s4, {sKVo}, {2*MB}'), Ins(f'buffer_store_dwordx4 {ar(32,4)}, {vL16}, {WS}, s4 offen sc1', 's2s'),
                    Ins(f'v_or_b32 {v0_}, {sEdge}, {vL16}'), Ins(f'v_or_b32 {v1_}, {sEdge}, {vS8}')])
        for l in range(2):
            out.append([Ins(f's_add_u32 s4, {sA20}, {HD(l)}'), Ins(f'buffer_store_dwordx4 {ar(32,4)}, {v0_}, {WS}, s4 offen sc1', 's2s'),
                        Ins(f'buffer_store_dwordx4 {ar(32,4)}, {v0_}, {WS}, s4 offen offset:1024 sc1', 's2s'),
                        Ins(f's_add_u32 s4, {sH20}, {HD(l)}'), Ins(f'buffer_store_dwordx2 {ar(32,2)}, {v1_}, {WS}, s4 offen sc1', 's2s')])
        return out

    def gwait(self):
        a = self.a; I = self.I
        sU = sT[8]
        I(f's_cmp_lg_u32 {sW}, 0'); I('s_cbranch_scc1 GB_WAIT')
        I(f's_lshr_b32 {sT[0]}, {sH}, 4')
        I(f'v_lshlrev_b32 v201, 1, v0'); I(f'v_add_u32 v201, {sT[0]}, v201')
        I('v_and_b32 v203, 15, v0'); I('v_lshlrev_b32 v203, 1, v203'); I(f'v_add_u32 v203, {sT[0]}, v203'); I('v_add_u32 v203, 128, v203')
        I('v_and_b32 v204, 31, v0'); I('v_lshlrev_b32 v204, 3, v204'); I(f'v_add_u32 v204, {sXG}, v204')
        I('v_cmp_gt_u32 vcc, 32, v0'); I('v_cndmask_b32 v203, v203, v204, vcc')
        I('v_lshlrev_b32 v201, 7, v201'); I('v_lshlrev_b32 v203, 7, v203')
        I(f's_mov_b32 {sT[1]}, {CNT}')
        I(f's_mov_b32 {sSpin}, {sDead}')
        a.label('GB_P1')
        a.raw(f'    buffer_load_dwordx2 v[206:207], v201, {WS}, {sT[1]} offen sc1')
        a.raw(f'    buffer_load_dwordx2 v[208:209], v203, {WS}, {sT[1]} offen sc1')
        I('s_waitcnt vmcnt(0)')
        I('v_and_b32 v207, -16, v207'); I('v_and_b32 v202, 15, v209'); I('v_and_b32 v209, -16, v209')
        I('v_cmp_eq_u64 vcc, s[0:1], v[206:207]'); I('v_cmp_eq_u64 s[6:7], s[0:1], v[208:209]')
        I('s_and_b64 vcc, vcc, s[6:7]'); I('s_cmp_eq_u64 vcc, -1'); I('s_cbranch_scc1 GB_P1D')
        I(f's_sub_u32 {sSpin}, {sSpin}, 1'); I('s_cbranch_scc0 GB_P1')
        a.label('GB_P1D')
        I(f'v_cmp_eq_u32 vcc, {sU}, v202')
        I(f's_cmp_eq_u32 vcc_lo, -1'); I(f's_cselect_b32 {sT[0]}, 1, 0')
        I(f'v_mov_b32 v200, {sT[0]}'); I(f'v_mov_b32 v201, {7*BANK}')
        I('ds_write_b32 v201, v200')
        a.label('GB_WAIT')
        a.wait(lg=None)
        I('s_barrier')
        I(f'v_mov_b32 v201, {7*BANK}')
        I(f'ds_read_b32 {vT0}, v201', 'mode')
        self.stamp('gbar_done')

    def softmax(self, P, t, KL):
        I = self.I
        I(f'v_max3_f32 v{t}, v{P}, v{P+1}, v{P+2}')
        I(f'v_max3_f32 v{t+1}, v{P+3}, v{P+4}, v{P+5}')
        for i in range(6, 18, 4):
            I(f'v_max3_f32 v{t}, v{t}, v{P+i}, v{P+i+1}')
            I(f'v_max3_f32 v{t+1}, v{t+1}, v{P+i+2}, v{P+i+3}')
        I(f'v_max3_f32 v{t}, v{t}, v{P+18}, v{P+19}')
        I(f'v_max_f32 v{t}, v{t}, v{t+1}')
        I(f'v_mul_f32 v{t}, {hex(f2u(-LOG2E))}, v{t}')
        for i in range(10): I(f'v_pk_fma_f32 {vr(P+2*i,2)}, {vr(P+2*i,2)}, {vr(KL,2)}, {vr(t,2)} op_sel_hi:[1,0,0]')
        for i in range(20): I(f'v_exp_f32 v{P+i}, v{P+i}')
        I(f'v_pk_add_f32 {vr(t,2)}, {vr(P,2)}, {vr(P+2,2)}')
        for i in range(2, 10): I(f'v_pk_add_f32 {vr(t,2)}, {vr(t,2)}, {vr(P+2*i,2)}')
        I(f'v_add_f32 v{t}, v{t}, v{t+1}')
        I(f'v_rcp_f32 v{t}, v{t}')
        for i in range(10): I(f'v_pk_mul_f32 {vr(P+2*i,2)}, {vr(P+2*i,2)}, {vr(t,2)} op_sel_hi:[1,0]')
        self.pack(P, P, 10)

    def phi(self, P, B0, B1, AF, bphi):
        for t in range(5):
            self.I(f'v_mfma_f32_16x16x32_bf16 {vr(P+4*t,4)}, {vr(AF+4*t,4)}, {vr(B0,4)}, 0')
        for t in range(5):
            self.I(f'v_mfma_f32_16x16x32_bf16 {vr(P+4*t,4)}, {vr(AF+20+4*t,4)}, {vr(B1,4)}, {vr(P+4*t,4)}')

    def qkv(self, l, wb, bphi, bscr, tail, fill2, fill4):
        a = self.a; I = self.I
        AF, ACC = 64, 192
        RA, DA = 6, 5
        LA = self.LA0 if l == 0 else self.LA1
        NR = 4*(LA+1); XR = 192 - 4*NR; AR = XR - 24
        assert AR >= 104
        ONES, CWF, CWA = 20, 24, 32
        NP = [36, 38, 40, 42]
        vX = [vL16, 'v44', 'v45', 'v46']; vCW = [47, 48, 49]
        vPK, vV1, vV3, vTA, vTB, vRS, vKD, vKL, vA0, vA2, vO4, vO1, vCr, vCw = range(50, 64)
        kvl = bphi*BANK + 13312; cwo = bphi*BANK + 12288
        def setup():
            t0, t1, t2, t3, vTok, vG = 64, 65, 66, 67, 68, 69
            for t in range(1, 4): I(f'v_add_u32 {vX[t]}, {t*21504}, {vL16}')
            I(f's_lshl_b32 {sT[3]}, {sW}, 10')
            if l == 0:
                for r in range(4): I(f'v_mov_b32 v{ONES+r}, 0x3f803f80')
                for k, base in enumerate((vL16, vL16b, vL16c)): I(f'v_add_u32 v{vCW[k]}, {sT[3]}, {base}')
            else:
                self.decomp(20, 248, 16, t0)
            for r in range(8): I(f'v_accvgpr_read_b32 v{76+r}, a{240+r}')
            I(f'v_bfe_u32 v{t0}, v0, 3, 1'); I(f'v_add_u32 v{t0}, -1, v{t0}'); I(f'v_not_b32 v{t1}, v{t0}')
            for r in range(8): I(f'v_and_b32 v{84+r}, v{76+r}, v{t0}')
            for r in range(8): I(f'v_and_b32 v{92+r}, v{76+r}, v{t1}')
            I(f'v_add_u32 v{t0}, {bphi*BANK}, {vL16}'); I(f'v_add_u32 v{t1}, {sT[3]}, v{t0}')
            I(f'ds_write_b128 v{t1}, {vr(84,4)}'); I(f'ds_write_b128 v{t0}, {vr(88,4)} offset:4096')
            I(f'ds_write_b128 v{t1}, {vr(92,4)} offset:5120'); I(f'ds_write_b128 v{t0}, {vr(96,4)} offset:9216')
            I(f's_mov_b32 {sWB}, {bscr[1]*BANK}'); I(f's_cmp_lt_u32 {sW}, 2'); I(f's_cselect_b32 {sWB}, {bscr[0]*BANK}, {sWB}')
            I(f's_and_b32 {sT[3]}, {sW}, 1'); I(f's_mul_i32 {sT[3]}, {sT[3]}, 10240'); I(f's_add_u32 {sWB}, {sWB}, {sT[3]}')
            I(f'v_and_b32 v{vTok}, 15, v0'); I(f'v_lshrrev_b32 v{vG}, 4, v0')
            I(f's_lshl_b32 {sT[3]}, {sW}, 6'); I(f's_add_u32 {sT[3]}, {sT[3]}, {cwo}')
            I(f'v_lshlrev_b32 v{t0}, 4, v{vG}'); I(f'v_add_u32 v{vCw}, {sT[3]}, v{t0}'); I(f'v_add_u32 v{vCr}, {cwo}, v{t0}')
            I(f'v_lshrrev_b32 v{t0}, 5, v0'); I(f'v_lshl_add_u32 v{t0}, v{t0}, 4, v{vTok}'); I(f'v_mul_u32_u24 v{vPK}, 80, v{t0}')
            I(f'v_and_b32 v{t0}, 1, v{vG}'); I(f'v_mul_u32_u24 v{t0}, 40, v{t0}'); I(f'v_add3_u32 v{vPK}, v{vPK}, v{t0}, {sWB}')
            I(f'v_mul_u32_u24 v{t0}, 72, v{vTok}'); I(f'v_add_u32 v{t0}, {sWB}, v{t0}'); I(f'v_add_u32 v{t0}, 5120, v{t0}')
            I(f'v_lshlrev_b32 v{t1}, 3, v{vG}'); I(f'v_add_u32 v{vV1}, -8, v{t1}'); I(f'v_add_u32 v{vV3}, 16, v{t1}')
            I(f'v_cmp_eq_u32 vcc, 0, v{vG}'); I(f'v_cndmask_b32 v{vV1}, v{vV1}, 48, vcc'); I(f'v_cndmask_b32 v{vV3}, v{vV3}, 56, vcc')
            I(f'v_add_u32 v{vV1}, v{vV1}, v{t0}'); I(f'v_add_u32 v{vV3}, v{vV3}, v{t0}')
            I(f'v_lshrrev_b32 v{t0}, 2, v{vTok}'); I(f'v_lshl_add_u32 v{t0}, v{vG}, 3, v{t0}')
            I(f'v_and_b32 v{t1}, 3, v0'); I(f'v_lshlrev_b32 v{t1}, 3, v{t1}'); I(f'v_add_u32 v{t1}, {sWB}, v{t1}')
            I(f'v_mad_u32_u24 v{vTA}, v{t0}, 20, v{t1}'); I(f'v_mad_u32_u24 v{vTA}, v{t0}, 60, v{vTA}')
            I(f'v_mad_u32_u24 v{vTB}, v{t0}, 12, v{t1}'); I(f'v_mad_u32_u24 v{vTB}, v{t0}, 60, v{vTB}'); I(f'v_add_u32 v{vTB}, 5120, v{vTB}')
            I(f'v_min_u32 v{t0}, 59, v0')
            I(f'v_mul_u32_u24 v{t1}, 3277, v{t0}'); I(f'v_lshrrev_b32 v{t1}, 16, v{t1}')
            I(f'v_mul_u32_u24 v{t2}, 20, v{t1}'); I(f'v_sub_u32 v{t0}, v{t0}, v{t2}')
            I(f'v_mul_u32_u24 v{t2}, 13108, v{t0}'); I(f'v_lshrrev_b32 v{t2}, 16, v{t2}')
            I(f'v_mul_u32_u24 v{t3}, 5, v{t2}'); I(f'v_sub_u32 v{t0}, v{t0}, v{t3}')
            I(f's_cmp_eq_u32 {sW}, 3'); I('s_cselect_b64 vcc, -1, 0')
            I(f'v_mov_b32 v{t3}, {sW}')
            I(f'v_cndmask_b32 v{t1}, v{t3}, v{t1}, vcc')
            I(f'v_cndmask_b32 v{t2}, v{vG}, v{t2}, vcc')
            I(f'v_cndmask_b32 v{t0}, v{vTok}, v{t0}, vcc')
            I(f'v_cndmask_b32 v{t3}, 0, 1, vcc')
            I(f'v_lshlrev_b32 v{vRS}, 10, v{t1}'); I(f'v_mad_u32_u24 v{vRS}, v{t3}, {self.sconst(3072)}, v{vRS}')
            I(f'v_lshl_add_u32 v{vRS}, v{t2}, 8, v{vRS}'); I(f'v_lshl_add_u32 v{vRS}, v{t0}, 4, v{vRS}')
            I(f'v_lshl_add_u32 v{t1}, v{t1}, 2, v{t2}')
            I(f'v_lshl_add_u32 v{t0}, v{t3}, 4, v{t0}')
            I(f'v_mul_u32_u24 v{vKD}, 96, v{t0}'); I(f'v_lshl_add_u32 v{vKD}, v{t1}, 3, v{vKD}')
            I(f'v_cmp_le_u32 vcc, 5, v{t1}'); I(f'v_cndmask_b32 v{t0}, 0, 8, vcc'); I(f'v_add_u32 v{vKD}, v{vKD}, v{t0}')
            I(f'v_add_u32 v{vKD}, {kvl}, v{vKD}')
            I(f'v_cmp_gt_u32 vcc, 10, v{t1}')
            I(f'v_mov_b32 v{t0}, {kvl + 96*30}'); I(f'v_cndmask_b32 v{vKD}, v{t0}, v{vKD}, vcc')
            I(f'v_mov_b32 v{t0}, {OOB}'); I(f'v_cndmask_b32 v{vKL}, v{t0}, {vL16}, vcc')
            I(f'v_bfe_u32 v{t0}, v0, 2, 1'); I(f'v_and_b32 v{t1}, 3, v0')
            I(f'v_lshl_add_u32 v{t2}, v{t0}, 3, v{t1}')
            I(f'v_lshl_add_u32 v{t3}, v{t0}, 1, v{t1}'); I(f'v_add_u32 v{t3}, 16, v{t3}')
            I(f'v_cmp_le_u32 vcc, 2, v{t1}'); I(f'v_cndmask_b32 v{t3}, v{t3}, 20, vcc')
            I(f'v_bfe_u32 v{t0}, v0, 3, 1'); I(f'v_lshrrev_b32 v{t1}, 5, v0')
            I(f'v_cmp_eq_u32 vcc, v{t0}, v{t1}')
            I(f'v_cndmask_b32 v{t2}, 21, v{t2}, vcc'); I(f'v_cndmask_b32 v{t3}, 21, v{t3}, vcc')
            I(f'v_and_b32 v{t0}, 1, v{vG}'); I(f'v_mul_u32_u24 v{t0}, 48, v{t0}'); I(f'v_add_u32 v{t0}, {kvl}, v{t0}')
            I(f's_movk_i32 {sT[3]}, 96')
            I(f'v_mad_u32_u24 v{vA0}, v{t2}, {sT[3]}, v{t0}'); I(f'v_mad_u32_u24 v{vA2}, v{t3}, {sT[3]}, v{t0}')
            I(f'v_mul_u32_u24 v{vO4}, 20480, v{t1}'); I(f'v_lshl_add_u32 v{vO4}, v{vTok}, 4, v{vO4}')
            I(f'v_and_b32 v{t0}, 1, v{vG}')
            I(f'v_lshl_add_u32 v{vO1}, v{t0}, 2, v{vO4}'); I(f'v_lshl_add_u32 v{vO4}, v{t0}, 8, v{vO4}')
            for r in range(4): I(f'v_mov_b32 v{72+r}, 0')
            I(f'v_min_u32 v{t0}, {35*16}, {vL16}'); I(f'v_add_u32 v{t0}, {kvl+96*21}, v{t0}')
            I(f'ds_write_b128 v{t0}, {vr(72,4)}')
        def aread(f):
            s_, i = f >> 2, f & 3
            b, o = self.lds(wb[s_ // 5]*BANK + ((s_ % 5)*4 + i)*1024)
            I(f'ds_read_b128 {vr(AR+4*(f % RA),4)}, {b} offset:{o}', ('a', f))
        def cwread(s_):
            off = wb[s_ // 5]*BANK + (s_ % 5)*4096
            I(f'ds_read_b128 {vr(CWF+4*(s_&1),4)}, v{vCW[off>>16]} offset:{off & 0xffff}', ('cw', s_))
        def xload(n):
            s_ = n >> 2
            if n % 16 == 0:
                I(f's_add_u32 {sT[2]}, {sQT21}, s{36 + (s_ >> 2)}'); I(f's_add_u32 {sT[2]}, {sT[2]}, {XA(l)}')
            I(f'buffer_load_dwordx4 {vr(XR + 4*(n % NR),4)}, {vX[n & 3]}, {WS}, {sT[2]} offen offset:{(s_ & 3)*1024} sc1', ('x', n))
        self._lf = None
        def wstep(q):
            if q >= 20: return
            I(f's_lshl_b32 {sDm}, s{36 + (q >> 2)}, 2'); I(f's_add_u32 {sDm}, {sDm}, {sT[6]}'); I(f's_add_u32 {sDm}, {sDm}, {WT_QKV + (q & 3)*4096}')
            I(f's_add_u32 m0, s3, {wb[q//5]*BANK + (q % 5)*4096}')
            I(f'buffer_load_dwordx4 {vL16}, {WS}, {sDm} offen lds', ('wq', q))
        if l == 0:
            setup()
            self.gwait()
            self.emit(self.touchT(XA(0), 21504))
            I(f's_lshl_b32 s3, {sW}, 10')
            I(f's_mul_i32 {sT[6]}, {sH}, 81920'); I(f's_add_u32 {sT[6]}, {sT[6]}, s3')
            BS = self.BS; WO_ = BS + 2
            for q in range(3): wstep(q)
            nq = 3
            for q in range(LA):
                for t in range(4):
                    xload(4*q+t)
                    if nq < WO_ + q + 1 and t % 2 == 1: wstep(nq); nq += 1
            while nq < WO_ + LA: wstep(nq); nq += 1
            a.wait(lg='mode'); I(f'v_readfirstlane_b32 {sMODE}, {vT0}')
            a.wait(vm=('wq', 1)); I('s_barrier')
            self.ls('g0_bar')
            for f in range(DA): aread(f)
            cwread(0)
        else:
            setup()
            a.wait(lg=None); I('s_barrier')
            for f in range(DA): aread(f)
            I(f's_lshl_b32 {sT[3]}, {sXG}, 2'); I(f's_add_u32 {sT[3]}, {sT[3]}, {sW}'); I(f's_lshl_b32 {sT[3]}, {sT[3]}, 7'); I(f's_add_u32 {sT[3]}, {sT[3]}, {FL}')
            self.poll(vFl, sT[3], 8*(l-1)+5)
            self.stamp(f'qkv{l}_go')
            for n in range(4*LA): xload(n)
        ST = XR + 4*(80 % NR)
        tailf = tail()
        with a.capture() as G:
          for s_ in range(20):
            for i in range(4):
                f = 4*s_ + i
                for t in range(4):
                    if i == 0 or t == 0: a.wait(vm=('x', 4*s_+t) if i == 0 else False, lg=('a', f) if t == 0 else False)
                    d = vr(ACC + 16*t + 4*i, 4)
                    I(f'v_mfma_f32_16x16x32_bf16 {d}, {vr(AR+4*(f%RA),4)}, {vr(XR+4*((4*s_+t)%NR),4)}, {d if s_ else 0}')
                    if t == 0 and f + DA < 80:
                        if l == 0 and i == 0 and s_ + 2 < 20 and (s_ < 2 or (s_ - 2) % self.BS == 0):
                            a.wait(vm=('wq', min(19, s_+2 if s_ < 2 else s_+1+self.BS))); I('s_barrier')
                        aread(f + DA)
                    if t == 1:
                        n = 4*(s_+LA) + i
                        if n < 80: xload(n)
                        elif s_ == 20 - LA: self.load_frag(ST + 4*i, vX[i], sQT21, XA(l), 20, 'stat')
                    if l == 0 and t == 3 and i == 3: wstep(s_ + LA + self.BS + 2)
                    if l == 0 and t == 2 and i == 0 and s_ + 1 < 20: cwread(s_+1)
                    if t == 2 and 14 <= s_ and 4*(s_-14)+i < 10:
                        k = 4*(s_-14)+i
                        b, o = self.lds(bphi*BANK + k*1024)
                        I(f'ds_read_b128 {vr(AF+4*k,4)}, {b} offset:{o}', 'af')
            if s_ in (0, 4, 9, 14, 19): self.ls(f'g{l}_s{s_}')
            if l == 0:
                a.wait(lg=('cw', s_))
                I(f'v_mfma_f32_16x16x32_bf16 {vr(CWA,4)}, {vr(CWF+4*(s_&1),4)}, {vr(ONES,4)}, {vr(CWA,4) if s_ else 0}')
        nm = 340 if l == 0 else 320
        fill = [Wait(vm='stat')] + rr(*[self.cap(self.cons_stats, ST+4*t, NP[t], NP[t]+1) for t in range(4)])
        o, left = gapfill(G.items, fill, start=nm - self.STG)
        a.extend(o)
        self.stamp(f'qkv{l}_gemm')
        self.emit(tailf)
        CW = 20
        if l == 0:
            I(f'ds_write_b128 v{vCw}, {vr(CWA,4)}')
            a.extend(left)
            I('v_accvgpr_read_b32 v48, a38'); I('v_accvgpr_read_b32 v49, a39')
            s2s = self.s2_stores('v48', 'v49')
            self.emit(s2s[:3]); s2s = s2s[3:]
            a.wait(lg=None); I('s_barrier')
            for i in range(4): I(f'ds_read_b128 {vr(CW+4*i,4)}, v{vCr} offset:{i*64}', 'cwr')
            I(f'v_and_b32 v46, 15, v0'); I('v_lshrrev_b32 v47, 2, v46'); I('v_and_b32 v46, 3, v46')
            I(f'v_lshl_add_u32 v47, v47, 6, v{vCr}'); I('v_lshl_add_u32 v47, v46, 2, v47')
            I('ds_read_b32 v46, v47', 'cwr')
            self.emit(s2s[:2]); s2s = s2s[2:]
            a.wait(lg='cwr')
            I('v_accvgpr_write_b32 a248, v46')
        else:
            a.extend(left); s2s = []
        self.ls(f'e{l}_st')
        KL, tmp = 44, 46
        PP = (104, 124); PKD = 144; TA = 192; TB = 204; KVA = 232
        for t in range(4):
            for i in (0, 1, 3):
                for h in range(2):
                    r = ACC+16*t+4*i+2*h
                    I(f'v_pk_fma_f32 {vr(r,2)}, {vr(CW+4*i+2*h,2)}, {vr(NP[t],2)}, {vr(r,2)} op_sel_hi:[1,0,1]')
            for i in (0, 1, 3):
                for h in range(2):
                    r = ACC+16*t+4*i+2*h
                    I(f'v_pk_mul_f32 {vr(r,2)}, {vr(r,2)}, {vr(NP[t],2)} op_sel:[0,1] op_sel_hi:[1,1]')
        for t in range(4):
            for h in range(2):
                r = ACC+16*t+8+2*h
                I(f'v_pk_fma_f32 {vr(176+4*t+2*h,2)}, {vr(CW+8+2*h,2)}, {vr(NP[t],2)}, {vr(r,2)} op_sel_hi:[1,0,1]')
        self.ls(f'e{l}_fix')
        for t in range(2): self.pack(PKD+8*t, ACC+16*t, 4)
        I(f'v_lshrrev_b32 v24, 4, v0'); I('v_cmp_eq_u32 vcc, 3, v24'); I('v_mov_b32 v24, 0x3f80')
        I(f'v_mov_b32 v{KL}, {hex(f2u(LOG2E))}')
        a.wait(lg='af')
        f0 = []
        for t in (2, 3): f0 += self.cap(self.pack, PKD+8*t, ACC+16*t, 4)
        f1 = []
        for t in range(4):
            q = PKD + 8*t + 6
            f1 += self.cap(self.pack, q, ACC+16*t+12, 2)
            f1 += [Ins(f'v_cndmask_b32 v{q}, v{q}, v24, vcc'), Ins(f'v_cndmask_b32 v{q+1}, v{q+1}, 0, vcc')]
            f1 += [Ins(f'ds_write_b64 v{vV1}, {vr(PKD+8*t+2,2)} offset:{16*t*72}'), Ins(f'ds_write_b64 v{vV3}, {vr(q,2)} offset:{16*t*72}')]
        o, left = gapfill(self.cap(self.phi, PP[0], PKD, PKD+8, AF, bphi), f0 + f1)
        a.extend(o)
        o, left = gapfill(self.cap(self.phi, PP[1], PKD+16, PKD+24, AF, bphi), left)
        a.extend(o); a.extend(left)
        self.ls(f'e{l}_phi')
        def trr(p):
            for ft in range(3):
                I(f'ds_read_b64_tr_b16 {vr(TA+20*p+4*ft,2)}, v{vTA} offset:{32*p*80+32*ft}', ('tr', p))
                I(f'ds_read_b64_tr_b16 {vr(TA+20*p+4*ft+2,2)}, v{vTA} offset:{32*p*80+32*ft+320}', ('tr', p))
            for dt in range(2):
                I(f'ds_read_b64_tr_b16 {vr(TB+20*p+4*dt,2)}, v{vTB} offset:{32*p*72+32*dt}', ('tr', p))
                I(f'ds_read_b64_tr_b16 {vr(TB+20*p+4*dt+2,2)}, v{vTB} offset:{32*p*72+32*dt+288}', ('tr', p))
        def kvm(p):
            a.wait(lg=('tr', p))
            for dt in range(2):
                for ft in range(3):
                    d = vr(KVA + 4*(dt*3+ft), 4)
                    I(f'v_mfma_f32_16x16x32_bf16 {d}, {vr(TA+20*p+4*ft,4)}, {vr(TB+20*p+4*dt,4)}, {d if p else 0}')
        for p in range(2):
            self.weave(self.cap(self.softmax, PP[p], tmp, KL), s2s[:3], 30); s2s = s2s[3:]
            for i in range(5): I(f'ds_write_b64 v{vPK}, {vr(PP[p]+2*i,2)} offset:{32*p*80+8*i}')
            trr(p)
        assert not s2s
        self.ls(f'e{l}_sm')
        I(f'v_add_u32 v24, {sWB}, {vL16}')
        kvm(0); kvm(1)
        for k in range(4): I(f'v_add_u32 v{25+k}, {bscr[k >> 1]*BANK + (k & 1)*10240}, v{vRS}')
        I(f's_add_u32 {sT[3]}, {sKVo}, {l*2*MB}')
        for k in range(6): I(f'ds_write_b128 v24, {vr(KVA+4*k,4)} offset:{k*1024}')
        self.ls(f'e{l}_kv')
        a.wait(lg=None); I('s_barrier')
        self.ls(f'e{l}_bar2')
        for k in range(4): I(f'ds_read_b128 {vr(TA+4*k,4)}, v{25+k}')
        for t in range(4):
            for h in range(2):
                r = 176+4*t+2*h
                I(f'v_pk_mul_f32 {vr(r,2)}, {vr(r,2)}, {vr(NP[t],2)} op_sel:[0,1] op_sel_hi:[1,1]')
        for t in range(4): self.pack(PKD+8*t+4, 176+4*t, 2)
        a.wait(lg=None)
        for h in range(2):
            I(f'v_pk_add_f32 {vr(TA+2*h,2)}, {vr(TA+2*h,2)}, {vr(TA+4+2*h,2)}')
            I(f'v_pk_add_f32 {vr(TA+8+2*h,2)}, {vr(TA+8+2*h,2)}, {vr(TA+12+2*h,2)}')
        for h in range(2):
            I(f'v_pk_add_f32 {vr(TA+2*h,2)}, {vr(TA+2*h,2)}, {vr(TA+8+2*h,2)}')
        I(f'buffer_store_dwordx4 {vr(TA,4)}, v{vKL}, {WS}, {sT[3]} offen sc1', 'kvst')
        if l == 0: self.emit(self.allchk_issue(0, 32))
        self.stamp(f'qkv{l}_kvpub')
        for p in range(2): self.phi(PP[p], PKD+16*p+4, PKD+16*p+12, AF, bphi)
        if l == 0:
            for k, base in enumerate((vL16, vL16b, vL16c)): I(f'v_add_u32 v{24+k}, {sLW}, {base}')
        for p in range(2):
            sm = self.cap(self.softmax, PP[p], tmp, KL)
            st = []
            if l == 0:
                for k in range(10*p, 10*p+10):
                    off = wb[k // 5]*BANK + (k % 5)*1024
                    st.append([Ins(f'ds_read_b128 {vr(176+4*k,4)}, v{24+(off>>16)} offset:{off & 0xffff}', 'stash')])
            self.weave(sm, st, 8)
        if l == 0:
            self.allchk(32)
            a.wait(vm='s2s', lg=None); I('s_barrier')
            self.arrive(1, 32)
        self.stamp(f'qkv{l}_qsm')
        f2 = fill2()
        self.emit(f2[:self.HP])
        G0 = 64
        def kvl8(raw):
            for x in range(8):
                I(f's_add_u32 {sT[3]}, {sKVi}, {l*2*MB + x*8192}')
                t_ = f'buffer_load_dwordx4 {vr(G0+4*x,4)}, v{vKL}, {WS}, {sT[3]} offen sc1'
                if raw: a.raw('    ' + t_)
                else: I(t_, 'kvl')
        L = a.newlabel('KVPOLL'); D = a.newlabel('KVDONE'); C = a.newlabel('KVCHK')
        I(f's_mov_b32 {sSpin}, {sDead}')
        kvl8(False)
        self.emit(f2[self.HP:])
        a.wait(vm='kvl')
        a.label(C)
        I(f'v_max3_u32 v24, v{G0}, v{G0+1}, v{G0+2}')
        I(f'v_max3_u32 v25, v{G0+3}, v{G0+4}, v{G0+5}')
        for i in range(6, 30, 4):
            I(f'v_max3_u32 v24, v24, v{G0+i}, v{G0+i+1}'); I(f'v_max3_u32 v25, v25, v{G0+i+2}, v{G0+i+3}')
        I(f'v_max3_u32 v24, v24, v{G0+30}, v{G0+31}')
        I(f'v_max_u32 v24, v24, v25')
        I('v_cmp_eq_u32 vcc, -1, v24')
        I('s_cmp_lg_u64 vcc, 0'); I(f's_cbranch_scc1 {L}')
        a.label(D)
        with a.capture() as c:
            a.label(L)
            I(f's_sub_u32 {sSpin}, {sSpin}, 1'); I(f's_cbranch_scc0 {L}_go')
            I(f's_mov_b32 {sDead}, 0'); I(f's_branch {D}')
            a.label(f'{L}_go')
            kvl8(True)
            I('s_waitcnt vmcnt(0)')
            I(f's_branch {C}')
        self.ool += c.items
        self.stamp(f'qkv{l}_kvgot')
        for st in (16, 8, 4):
            for b in range(0, st, 2):
                I(f'v_pk_add_f32 {vr(G0+b,2)}, {vr(G0+b,2)}, {vr(G0+st+b,2)}')
        self.pack(G0, G0, 2)
        I(f'ds_write_b64 v{vKD}, {vr(G0,2)}')
        for p in range(2):
            I(f's_add_u32 {sT[4+2*p]}, {sO4}, {OB(l)+2*p*20480}')
            I(f's_add_u32 {sT[5+2*p]}, {sO1}, {OB(l)+2*p*20480}')
        a.wait(lg=None); I('s_barrier')
        AO = 136
        for u in range(3):
            for t in range(3):
                b, o = (vA0, 384*t) if t < 2 else (vA2, 0)
                if u < 2: I(f'ds_read_b128 {vr(AO+12*t+4*u,4)}, v{b} offset:{o+16*u}', ('ao', u))
                else: I(f'ds_read_b64 {vr(AO+12*t+8,2)}, v{b} offset:{o+32}', ('ao', u))
        DO = (64, 80)
        def om(p, u):
            for t in range(3):
                if u < 2: I(f'v_mfma_f32_16x16x32_bf16 {vr(DO[p]+4*t,4)}, {vr(AO+12*t+4*u,4)}, {vr(PP[p]+4*u,4)}, {vr(DO[p]+4*t,4) if u else 0}')
                else: I(f'v_mfma_f32_16x16x16_bf16 {vr(DO[p]+4*t,4)}, {vr(AO+12*t+8,2)}, {vr(PP[p]+8,2)}, {vr(DO[p]+4*t,4)}')
        for u in range(3):
            a.wait(lg=('ao', u)); om(0, u)
        def fin(p, pk):
            I(f'v_add_f32 v{DO[p]+10}, {hex(f2u(1e-6))}, v{DO[p]+10}')
            I(f'v_rcp_f32 v{DO[p]+10}, v{DO[p]+10}')
            if pk:
                for i in range(5): I(f'v_pk_mul_f32 {vr(DO[p]+2*i,2)}, {vr(DO[p]+2*i,2)}, {vr(DO[p]+10,2)} op_sel_hi:[1,0]')
            else:
                for i in range(10): I(f'v_mul_f32 v{DO[p]+i}, v{DO[p]+i}, v{DO[p]+10}')
            self.pack(DO[p], DO[p], 5)
        with a.capture() as c:
            for u in range(3): om(1, u)
        o, left = gapfill(c.items, self.cap(fin, 0, False), start=2)
        a.extend(o); a.extend(left)
        def ost(p):
            a.slow_begin(sMODE)
            I(f'buffer_store_dwordx4 {vr(DO[p],4)}, v{vO4}, {WS}, {sT[4+2*p]} offen', 'st')
            I(f'buffer_store_dword v{DO[p]+4}, v{vO1}, {WS}, {sT[5+2*p]} offen', 'st')
            a.slow_end()
        ost(0); fin(1, True); ost(1)
        self.emit(fill4())
        a.wait(vm='st')
        self.setflag(sFLOo, l+1)
        self.stamp(f'qkv{l}_end')

    def sconst(self, val):
        self.I(f's_movk_i32 {sT[4]}, {val}'); return sT[4]

    def areadS(self, banks, m):
        s_, i = divmod(m, 5)
        b, o = self.lds(banks[s_ // 4]*BANK + ((s_ % 4)*5 + i)*1024)
        self.I(f'ds_read_b128 {vr(self.AR5+4*(m % self.RA5),4)}, {b} offset:{o}', ('a', m))
    def preloadS(self, banks):
        for m in range(self.DA5): self.areadS(banks, m)
    def gemmS(self, KS, banks, ACC, init, side, NR):
        a = self.a; I = self.I
        NM = 5*KS
        for m in range(NM):
            s_, i = divmod(m, 5)
            if i == 0 or m % self.WG == 0:
                a.wait(vm=('x', s_) if i == 0 else False, lg=('a', min(NM-1, m + self.WG - 1)) if m % self.WG == 0 else False)
            d = vr(ACC+4*i, 4)
            I(f'v_mfma_f32_16x16x32_bf16 {d}, {vr(self.AR5+4*(m % self.RA5),4)}, {vr(80+4*(s_%NR),4)}, {d if (s_ or init) else 0}')
            for it in side.get(m, []): a.extend(it() if callable(it) else it)
            if m + self.DA5 < NM: self.areadS(banks, m + self.DA5)
    def put(self, side, bundles, start, every):
        for k, b in enumerate(bundles): side.setdefault(start + int(k*every), []).append(b)
    def put3(self, side, bundles, start, every):
        for k, b in enumerate(bundles):
            m = 3*int(round((start + k*every)/3.0))
            pre, ld = b[:-1], b[-1:]
            assert len(pre) <= 2
            for q, x in enumerate(pre): side.setdefault(m - len(pre) + q, []).append([x])
            side.setdefault(m, []).append(ld)
    def bar(self, vm=False, lg=False):
        return [Wait(vm, lg), Ins('s_barrier')]

    def small(self, banks, xl, ACC, init, tail, fill=None, NUP=8, name=''):
        self._lf = None
        NR = self.NR5
        for s_ in range(NUP): xl(s_, 80+4*(s_ % NR))
        side = {}
        for s_ in range(NUP, 20):
            m = max(1 + int((s_-NUP)*self.XE), 5*(s_-NR) + 5 if s_ >= NR else 0)
            side.setdefault(m, []).append(lambda s_=s_: self.cap(xl, s_, 80+4*(s_ % NR)))
        side.setdefault(44, []).append(self.bar())
        t0 = max(46, int(1 + (20-NUP)*self.XE) + 1)
        if tail: self.put(side, tail, t0, min(4.0, (94-t0)/len(tail)))
        for m in (0, 43, 45, 99): side.setdefault(m, []).append(lambda m=m: self.cap(self.ls, f'{name}_m{m}'))
        items = self.cap(self.gemmS, 20, banks, ACC, init, side, NR)
        left = []
        for st, its in (fill or []):
            items, lf = gapfill(items, its, start=st); left += lf
        self.a.extend(items); self.a.extend(left)
    XE = 4.0

    def layer(self, l, B):
        a = self.a; I = self.I
        last = (l == 1)
        ACC, XP, PK, TMP = 20, 40, 60, 72
        NMr, R1r, RRr = 76, 78, 74
        if l == 0: self.AR5, self.RA5, self.DA5, self.NR5, M = 128, 10, 8, 12, 168
        else:      self.AR5, self.RA5, self.DA5, self.NR5, M = 208, 12, 10, 20, 168
        wo = lambda ch, bk: self.dma_b(sW5, WT_O + ch*BANK, bk, 'wo')
        w1 = lambda ch, bk: self.dma_b(sW5, WT_1 + ch*BANK, bk, 'w1')
        w2 = lambda ch, bk: self.dma_b(sW5, WT_2 + ch*BANK, bk, 'w2')
        w4 = lambda ch, bk: self.dma_b(sW4, WT_4 + ch*BANK, bk, ('w4', ch))
        w4b = [B[4], B[7], B[0], B[3], B[1], B[2], B[5], B[6], B[4], B[7], B[0], B[3]]
        def w3l(k):
            kk = (k % 3)*20 + k // 3
            return [Ins(f's_add_u32 s3, {sW3}, {WT_3 + kk*1024}'), Ins(f'buffer_load_dwordx4 {ar(4*kk,4)}, {vL16}, {WS}, s3 offen', ('w3', k // 3))]
        def tq():
            r = self.touchT(OB(l), 20480)
            if l: r += self.touch(WT_O, 50)
            return r
        f2 = lambda: wo(0, B[7]) + wo(1, B[0]) + wo(2, B[1]) + wo(3, B[2]) + wo(4, B[3])
        f4 = lambda: w1(0, B[5])
        self.qkv(l, B[0:4], B[4], B[5:7], tq, f2, f4)
        if self.stop == f'qkv{l}': return True
        wob = [B[7], B[0], B[1], B[2], B[3]]
        I('s_barrier')
        self.preloadS(wob)
        self.emit(w1(1, B[6]) + (w1(2, B[4]) if self.G1 else []))
        self.unpack(ACC, RES, 10)
        I(f's_lshl_b32 {sT[3]}, {sC}, 7'); I(f's_add_u32 {sT[3]}, {sT[3]}, {FLO}')
        self.poll(vFl, sT[3], l+1)
        self.stamp(f'wo{l}_go')
        tl = (self.allchk_issue(1, M) if l == 0 else []) + ([] if self.G1 else w1(2, B[4])) + w1(3, B[7]) + w1(4, B[0])
        self.small(wob, lambda s_, r: self.load_frag(r, vL16, sT20, OB(l), s_, ('x', s_)), ACC, True, tl, name=f'wo{l}')
        self.stamp(f'wo{l}_gemm')
        self.pack(PK, ACC, 10)
        self.store_tile(PK, XB(l), sA21, sH21)
        self.prod_stats(ACC, TMP)
        self.store_stats(TMP, XB(l))
        for i in range(20): I(f'v_mov_b32 v{XP+i}, v{ACC+i}')
        CW = 176 if l else 128
        if l: self.decomp(CW, 249, 16, 70); self.decomp(CW+16, 250, 4, 70)
        a.wait(vm='st')
        self.setflag(sFLo, 8*l+1)
        if l == 0: self.allchk(M)
        I('s_barrier')
        if self.stop == f'wo{l}': return True
        w1b = [B[5], B[6], B[4], B[7], B[0]]
        def cw1():
            for k, base in enumerate((vL16, vL16b, vL16c)): I(f'v_add_u32 v{60+k}, {sLW}, {base}')
            for r in range(4): I(f'v_mov_b32 v{TMP+r}, 0x3f803f80')
            def rd(k):
                ch, i = divmod(k, 5); off = w1b[ch]*BANK + i*1024
                I(f'ds_read_b128 {vr(80+4*(k % 12),4)}, v{60+(off>>16)} offset:{off&0xffff}', ('cw', k))
            for k in range(10): rd(k)
            for k in range(25):
                a.wait(lg=('cw', k))
                d = vr(ACC+4*(k % 5), 4); I(f'v_mfma_f32_16x16x32_bf16 {d}, {vr(80+4*(k % 12),4)}, {vr(TMP,4)}, {d if k >= 5 else 0}')
                if k + 10 < 25: rd(k+10)
            cwo = B[3]*BANK
            I('v_lshrrev_b32 v70, 4, v0'); I('v_lshlrev_b32 v70, 4, v70'); I(f'v_add_u32 v70, {cwo}, v70')
            I(f's_mul_i32 {sT[3]}, {sW}, 320'); I(f'v_add_u32 v63, {sT[3]}, v70')
            I('v_bfe_u32 v71, v0, 2, 2'); I('v_and_b32 v64, 3, v0')
            I('v_lshl_add_u32 v70, v64, 2, v70'); I('v_lshl_add_u32 v71, v71, 6, v70')
            for i in range(5): I(f'ds_write_b128 v63, {vr(ACC+4*i,4)} offset:{i*64}', 'cww')
        if l == 0:
            self.weave(self.cap(cw1), w2(0, B[1]) + w2(1, B[2]), 14)
            self.preloadS(w1b)
        else:
            self.preloadS(w1b)
            self.emit(w2(0, B[1]) + (w2(1, B[2]) if self.G2 else []))
        I(f'v_and_b32 v{M}, 7, v0'); I(f'v_lshlrev_b32 v{M}, 2, v{M}')
        I(f's_lshl_b32 {sT[3]}, {sTT}, 5'); I(f's_add_u32 {sT[3]}, {sT[3]}, {FL}')
        if l == 0: a.wait(lg='cww')
        self.poll(f'v{M}', sT[3], 8*l+1)
        self.stamp(f'w1{l}_go')
        fills = []
        if l == 0:
            its = []
            for k in range(4):
                its.append(Ins(f'ds_read_b32 v{60+k}, v71 offset:{k*320}', 'cr'))
                its.append(Ins(f'ds_read_b32 v{64+k}, v70 offset:{k*320+256}', 'cr'))
            fills.append((46, its))
            fills.append((66, [Wait(lg='cr'), Ins('v_add_f32 v60, v60, v61'), Ins('v_add_f32 v62, v62, v63'), Ins('v_add_f32 v64, v64, v65'), Ins('v_add_f32 v66, v66, v67'),
                               Ins('v_add_f32 v60, v60, v62'), Ins('v_add_f32 v64, v64, v66'), Ins('v_accvgpr_write_b32 a249, v60'), Ins('v_accvgpr_write_b32 a250, v64')]))
        fills.append((72, [Wait(vm='stat')] + self.cap(self.cons_stats, M+4, NMr, RRr, double=True, r1=R1r) + [Ins(f'v_mov_b32 v{M}, v{NMr}')] + self.cap(self.gconst, M, RRr)))
        stl = [lambda: self.cap(self.load_frag, M+4, vL16, sT21, XB(l), 20, 'stat')]
        tl = stl + (w2(1, B[2]) if (l and not self.G2) else []) + w2(2, B[5]) + w2(3, B[6])
        self.small(w1b, lambda s_, r: self.load_frag(r, vL16, sT21, XB(l), s_, ('x', s_)), ACC, False, tl, fills, name=f'w1{l}')
        self.stamp(f'w1{l}_gemm')
        if l == 0:
            for q in range(20): I(f'v_mov_b32_dpp v{CW+q}, v{60 if q < 16 else 64} row_newbcast:{q & 15} row_mask:0xf bank_mask:0xf')
        self.lgA(ACC, CW, 10, 80, M); self.lgB(ACC, 10, 80, M, True)
        self.pack(PK, ACC, 10)
        I(f'v_or_b32 v70, {sEdge}, {vL16}'); I(f'v_or_b32 v71, {sEdge}, {vS8}')
        self.store_tile(PK, HB(l), sA20, sH20)
        self.store_tile(PK, HD(l), sA20, sH20, sc1=True, vA='v70', vH='v71', tag='sth')
        for i in range(10): I(f'v_pk_add_f32 {vr(ACC+2*i,2)}, {vr(XP+2*i,2)}, {vr(NMr,2)} op_sel_hi:[1,0]')
        for i in range(10): I(f'v_pk_mul_f32 {vr(ACC+2*i,2)}, {vr(ACC+2*i,2)}, {vr(R1r,2)} op_sel_hi:[1,0]')
        I(f's_lshl_b32 {sT[3]}, {sTT}, 4')
        I('v_and_b32 v84, 15, v0'); I(f'v_add_u32 v84, {sT[3]}, v84')
        I('v_lshrrev_b32 v85, 4, v0'); I('v_lshlrev_b32 v85, 8, v85')
        I(f'v_mov_b32 v88, {OOB}'); I(f'v_mov_b32 v89, {HD(l)-HB(l)}')
        for gi, dl in enumerate((-1, 1, -2, 2)):
            I(f'v_add_u32 v86, {dl}, v84')
            I('v_lshrrev_b32 v87, 4, v86'); I('v_and_b32 v87, 0xff, v87'); I('v_mul_u32_u24 v87, 20480, v87')
            I(f'v_and_b32 v{M+gi}, 15, v86'); I(f'v_lshl_add_u32 v{M+gi}, v{M+gi}, 4, v87'); I(f'v_add_u32 v{M+gi}, v{M+gi}, v85')
            I('v_lshrrev_b32 v87, 8, v86'); I(f'v_cmp_ne_u32 vcc, {sXG}, v87')
            I('v_cndmask_b32 v87, 0, v89, vcc'); I(f'v_add_u32 v{M+gi}, v{M+gi}, v87')
            I('v_cmp_gt_u32 vcc, 0x800, v86'); I(f'v_cndmask_b32 v{M+gi}, v88, v{M+gi}, vcc')
        a.wait(vm='st')
        self.setflag(sFLo, 8*l+2)
        I('s_barrier')
        if self.stop == f'w1{l}': return True
        w2b = [B[1], B[2], B[5], B[6], B[3]]
        self.preloadS(w2b)
        self.emit(w2(4, B[3]))
        I(f's_and_b32 {sT[8]}, {sTT}, 15')
        I(f's_cmp_eq_u32 {sT[8]}, 0'); I(f's_cselect_b32 {sT[4]}, 32, 0')
        I(f's_cmp_eq_u32 {sT[8]}, 15'); I(f's_cselect_b32 {sT[5]}, 32, 64')
        I('v_and_b32 v84, 7, v0'); I('v_lshlrev_b32 v84, 2, v84'); I('v_lshrrev_b32 v86, 3, v0')
        I('v_mov_b32 v85, 32'); I(f'v_mov_b32 v87, {sT[4]}'); I(f'v_mov_b32 v88, {sT[5]}')
        I('v_cmp_eq_u32 vcc, 1, v86'); I('v_cndmask_b32 v85, v85, v87, vcc')
        I('v_cmp_eq_u32 vcc, 2, v86'); I('v_cndmask_b32 v85, v85, v88, vcc')
        I('v_add_u32 v85, v85, v84')
        I(f's_lshl_b32 {sT[3]}, {sTT}, 5'); I(f's_add_u32 {sT[3]}, {sT[3]}, {FL-32}')
        I('v_min_u32 v84, 59, v0'); I('v_add_u32 v87, -20, v84')
        I('v_lshrrev_b32 v88, 1, v87'); I('v_add_u32 v88, 40, v88'); I('v_and_b32 v87, 1, v87')
        I(f's_xor_b32 {sT[4]}, {sBot}, 1')
        I('v_cmp_gt_u32 vcc, 20, v84'); I('v_cndmask_b32 v88, v88, v84, vcc'); I(f'v_mov_b32 v89, {sT[4]}'); I('v_cndmask_b32 v87, v87, v89, vcc')
        I('v_lshlrev_b32 v86, 8, v88'); I('v_lshl_add_u32 v86, v87, 4, v86'); I(f'v_or_b32 v86, {sEdge}, v86')
        I(f's_cmp_eq_u32 {sBot}, 1'); I(f's_mov_b32 {sT[4]}, {HD(l) - 20480 + 14*16}'); I(f's_cselect_b32 {sT[4]}, {HD(l) + 20480 + 5120}, {sT[4]}')
        I(f's_add_u32 {sT[4]}, {sT[4]}, {sT20}')
        L = a.newlabel('POLL'); D = a.newlabel('PDONE')
        if self.CPF: self.cpf()
        I(f's_mov_b32 {sSpin}, {sDead}')
        a.label(L)
        I(f'buffer_load_dword {vT0}, v85, {WS}, {sT[3]} offen sc1')
        I(f'buffer_load_dwordx4 {vr(88,4)}, v86, {WS}, {sT[4]} offen sc1')
        a.wait(vm=None)
        I(f'v_max3_u32 v88, v88, v89, v90'); I('v_max_u32 v88, v88, v91')
        I(f'v_cmp_le_u32 vcc, {8*l+2}, {vT0}'); I('v_cmp_ne_u32 s[6:7], -1, v88')
        I('s_and_b64 vcc, vcc, s[6:7]')
        I('s_cmp_eq_u64 vcc, -1'); I(f's_cbranch_scc1 {D}')
        I(f's_sub_u32 {sSpin}, {sSpin}, 1'); I(f's_cbranch_scc0 {L}')
        I(f's_mov_b32 {sDead}, 0')
        a.label(D)
        self.stamp(f'w2{l}_go')
        I(f's_mov_b32 {sT[3]}, 0')
        tl = ([] if self.H2SC else self.touchT(H2(l), 49152)) if l else w4(0, w4b[0]) + w4(1, w4b[1])
        self.small(w2b, lambda s_, r: self.load_frag(r, f'v{M+s_//5}', sT[3], HB(l), s_, ('x', s_)), ACC, True, tl, name=f'w2{l}')
        self.stamp(f'w2{l}_gemm')
        self.pack(PK, ACC, 10)
        self.store_tile(PK, X1(l), sA21, sH21)
        self.prod_stats(ACC, TMP)
        self.store_stats(TMP, X1(l))
        NH = self.W3G if l == 0 else 0
        self.emit([w3l(k) for k in range(NH)])
        for i in range(10): I(f'v_pk_add_f32 {vr(XP+2*i,2)}, {vr(XP+2*i,2)}, {vr(ACC+2*i,2)}')
        xb = [B[1], B[2], B[5], B[6]]
        if l: CW3, ST3, A3, BF, GT = 80, 96, 128, 208, 176; NP3 = [112, 116, 120, 124]
        else: CW3, ST3, A3, BF, GT = 20, 60, 80, 128, 128; NP3 = [160, 164, 168, 172]
        if l: self.decomp(CW3, 251, 12, 92)
        a.wait(vm='st')
        self.setflag(sFLo, 8*l+3)
        I('s_barrier')
        if self.stop == f'w2{l}': return True
        I(f's_lshl_b32 {sT[3]}, {sC}, 7'); I(f's_add_u32 {sT[3]}, {sT[3]}, {FL}')
        def epiA(t): self.lgA(A3+12*t, CW3, 6, GT, NP3[t])
        def epiB(t, pk):
            self.lgB(A3+12*t, 6, GT, NP3[t], pk); self.pack(A3+12*t, A3+12*t, 6)
        def st3(t):
            acc = A3 + 12*t
            I(f's_add_u32 {sT[0]}, {sA48}, {H2(l)+t*49152}'); I(f's_add_u32 {sT[1]}, {sH48}, {H2(l)+t*49152}')
            pl = l and not self.H2SC
            sc = '' if pl else ' sc1'
            if pl: a.slow_begin(sMODE)
            I(f'buffer_store_dwordx4 {vr(acc,4)}, {vL16}, {WS}, {sT[0]} offen{sc}', 'st')
            I(f'buffer_store_dwordx2 {vr(acc+4,2)}, {vS8}, {WS}, {sT[1]} offen{sc}', 'st')
            if pl: a.slow_end()
        stf = [Wait(vm='stat')] + rr(*[self.cap(self.cons_stats, ST3+4*u, NP3[u], ST3+4*u+3) + self.cap(self.gconst, NP3[u], ST3+4*u+3) for u in range(4)])
        stl = lambda: [self.cap(self.load_frag, ST3+4*u, vL16, sC21, X1(l) + u*21504, 20, 'stat') for u in range(4)]
        if l == 0:
            for r in range(4): I(f'v_mov_b32 v{32+r}, 0x3f803f80')
            I(f's_mov_b32 {sT[6]}, {xb[0]*BANK}')
            for t in range(1, 4):
                I(f's_cmp_eq_u32 {sW}, {t}'); I(f's_cselect_b32 {sT[6]}, {xb[t]*BANK}, {sT[6]}')
            self.poll(vFl, sT[3], 8*l+3)
            self.stamp(f'w3{l}_go')
            self._lf = None
            x1 = lambda c: self.dma_b(sT21, X1(l) + c*5120, 0, ('x1', c), sc='sc1', slw=sT[6], ldsoff=c*5120)
            RB, DB = 8, 6
            def bread(n):
                s_, t = divmod(n, 4)
                b, o = self.lds(xb[t]*BANK + s_*1024)
                I(f'ds_read_b128 {vr(BF+4*(n % RB),4)}, {b} offset:{o}', ('b', n))
            WL = self.W3L
            self.emit(x1(0))
            self.emit([w3l(k) for k in range(NH, max(NH, 3*WL))])
            nw = max(NH, 3*WL)
            a.wait(vm=('x1', 0)); I('s_barrier')
            for n in range(DB): bread(n)
            xq = x1(1) + x1(2) + x1(3) + stl() + w4(2, w4b[2]) + w4(3, w4b[3])
            with a.capture() as c:
                for s_ in range(20):
                    if s_ in (0, 5, 10, 15): self.ls(f'w30_s{s_}')
                    a.wait(vm=('w3', s_))
                    for t in range(5):
                        n = 4*s_ + t
                        for i in range(3):
                            if t < 4:
                                if i == 0: a.wait(lg=('b', n))
                                d = vr(A3+12*t+4*i, 4); bop = vr(BF+4*(n % RB), 4)
                            else:
                                d = vr(CW3+4*i, 4); bop = vr(32, 4)
                            I(f'v_mfma_f32_16x16x32_bf16 {d}, {ar(4*(i*20+s_),4)}, {bop}, {d if s_ else 0}')
                            if t < 4 and i == 0 and n + DB < 80:
                                if (n + DB) % 20 == 0:
                                    a.wait(vm=('x1', (n+DB)//20)); I('s_barrier')
                                bread(n + DB)
                            if i == 1:
                                if t < 3 and nw < 60 and nw < 3*(s_+WL+1): a.extend(w3l(nw)); nw += 1
                                elif (t >= 3 or nw >= 60) and xq and (t != 4 or s_ < 8 or nw >= 60): a.extend(xq.pop(0))
            assert nw == 60 and not xq, (nw, len(xq))
            o, left = gapfill(c.items, stf, start=230)
            a.extend(o); a.extend(left)
            self.ls('w30_k')
            I('s_barrier')
            wv = w4(4, xb[0]) + w4(5, xb[1]) + w4(6, xb[2]) + w4(7, xb[3])
            for t in range(4):
                self.weave(self.cap(epiA, t) + self.cap(epiB, t, True), wv[5*t:5*t+5] if t < 3 else [], 16)
                st3(t)
            self.emit(wv[15:])
            I('v_and_b32 v33, 15, v0'); I(f'v_mov_b32 v32, v{CW3}')
            for i in range(1, 12):
                I(f'v_cmp_eq_u32 vcc, {i}, v33'); I(f'v_cndmask_b32 v32, v32, v{CW3+i}, vcc')
            I('v_accvgpr_write_b32 a251, v32')
        else:
            I(f's_add_u32 {sT[4]}, {sC21}, {sLW}')
            self.poll(vFl, sT[3], 8*l+3)
            self.stamp(f'w3{l}_go')
            self._lf = None
            x1 = lambda t: self.dma_b(sT[4], X1(l) + t*21504, xb[t], ('x1', t), sc='sc1')
            self.emit(x1(0) + stl())
            RB, DB = 8, 6
            def bread(n):
                t, s_ = divmod(n, 20)
                b, o = self.lds(xb[t]*BANK + s_*1024)
                I(f'ds_read_b128 {vr(BF+4*(n % RB),4)}, {b} offset:{o}', ('b', n))
            a.wait(vm=('x1', 0)); I('s_barrier')
            self.ls(f'w3{l}_x0')
            for n in range(DB): bread(n)
            vm_side = {}
            self.put3(vm_side, x1(1) + x1(2) + x1(3), 3, 3.9)
            if self.WB:
                wl = a.newlabel('WB')
                self.put(vm_side, [[Ins(f's_cmp_lg_u32 {sWI}, 0'), Ins(f's_cbranch_scc1 {wl}'), Raw('    buffer_wbl2 sc1'), Label(wl)]], self.WB, 1)
            if not self.NOW4: self.put3(vm_side, w4(0, w4b[0]) + w4(1, w4b[1]) + w4(2, w4b[2]) + w4(3, w4b[3]) + w4(4, xb[0]) + w4(5, xb[1]) + w4(6, xb[2]), 63, 4.9)
            for t in range(4):
                with a.capture() as c:
                    for s_ in range(20):
                        n = 20*t + s_
                        for i in range(3):
                            m = 3*n + i
                            if m == 0: a.wait(lg=('b', 0))
                            d = vr(A3+12*t+4*i, 4)
                            I(f'v_mfma_f32_16x16x32_bf16 {d}, {ar(4*(i*20+s_),4)}, {vr(BF+4*(n % RB),4)}, {d if s_ else 0}')
                            if i == 0 and n + DB < 80:
                                if n == 14: a.wait(vm=('x1', 1)); I('s_barrier')
                                if n == 34: a.wait(vm=('x1', 3)); I('s_barrier')
                                if n == 54 or n == 62: I('s_barrier')
                                bread(n + DB)
                            for it in vm_side.get(m, []): a.extend(it)
                            if i == 0 and n + 1 < 80: a.wait(lg=('b', n+1))
                if t == 0: o, left = gapfill(c.items, stf, start=6)
                else: o, left = gapfill(c.items, self.cap(epiB, t-1, False) + [self.cap(st3, t-1)])
                a.extend(o)
                if os.environ.get('V'): print('w3 tile', t, 'left', len(left))
                for x in left:
                    if isinstance(x, list): a.extend(x)
                    else: a.items.append(x)
                epiA(t)
                self.ls(f'w3{l}_t{t}')
            epiB(3, True); st3(3)
        self.stamp(f'w3{l}_gemm')
        a.wait(vm='st')
        self.setflag(sFLo, 8*l+4)
        I('s_barrier')
        if self.stop == f'w3{l}': return True
        self.preloadS(w4b)
        I(f's_lshl_b32 {sT[3]}, {sC}, 7'); I(f's_add_u32 {sT[3]}, {sT[3]}, {FL}')
        self.poll(vFl, sT[3], 8*l+4)
        self.stamp(f'w4{l}_go')
        if self.LOOP4 and l:
            I('s_mov_b32 s41, 0'); a.label('LP4'); a.wait(vm=None, lg=None); I('s_barrier'); self.preloadS(w4b); a.wait(lg=None)
            a.raw('    s_memtime s[20:21]')
        self._lf = None
        NR = 32 if l else 12
        xl = lambda s_: self.load_frag(80+4*(s_ % NR), vL16, sT48, H2(l), s_, ('x', s_))
        NUP = self.W4N
        for s_ in range(NUP): xl(s_)
        side = {}
        self.put(side, [(lambda s_=s_: self.cap(xl, s_)) for s_ in range(NUP, 48)], 1, 5)
        if l: self.put(side, w4(7, w4b[7]), 3, 8)
        side.setdefault(40, []).append(self.bar());  self.put(side, w4(8, w4b[8]) + w4(9, w4b[9]), 43, self.W4P)
        side.setdefault(90, []).append(self.bar(vm=('w4', 7)));  self.put(side, w4(10, w4b[10]) + w4(11, w4b[11]), max(93, int(43+10*self.W4P)), self.W4P)
        side.setdefault(149, []).append(self.bar(vm=[('w4', 8), ('w4', 9)]))
        side.setdefault(189, []).append(self.bar(vm=[('w4', 10), ('w4', 11)]))
        nB = [B[1], B[2], B[5], B[6], B[4], B[7], B[0], B[3]]
        def unst(k):
            off = nB[k // 5]*BANK + (k % 5)*1024
            return [Ins(f'ds_write_b128 v{M+(off>>16)}, {vr(176+4*k,4)} offset:{off & 0xffff}', 'unst')]
        if not last:
            for k, base in enumerate((vL16, vL16b, vL16c)): I(f'v_add_u32 v{M+k}, {sLW}, {base}')
            self.put(side, [unst(k) for k in range(self.NU)], 230 - 1, 1)
            self.put(side, self.touchT(XA(l+1), 21504), 192, 1)
        self.gemmS(48, w4b, XP, True, side, NR)
        if self.LOOP4 and l:
            a.raw('    s_memtime s[22:23]'); I('s_waitcnt lgkmcnt(0)')
            I('s_cmp_eq_u32 s41, 1'); I('s_cbranch_scc1 LP4D')
            I('s_mov_b32 s24, s20'); I('s_mov_b32 s26, s22'); I('s_mov_b32 s41, 1'); I('s_branch LP4')
            a.label('LP4D')
            self.lflush(['  it2start', '  it2', '  it1start', '  it1'])
        self.stamp(f'w4{l}_gemm')
        if not last:
            self.pack(RES, XP, 10)
            self.store_tile(RES, XA(l+1), sA21, sH21)
            self.prod_stats(XP, TMP)
            self.store_stats(TMP, XA(l+1))
            self.emit([unst(k) for k in range(self.NU, self.NU+6)])
            a.wait(vm='st')
            self.setflag(sFLo, 8*l+5)
            self.emit([unst(k) for k in range(self.NU+6, 20)])
        else:
            self.pack(PK, XP, 10)
            I('v_and_b32 v20, 15, v0'); I('v_lshrrev_b32 v21, 4, v0')
            I('v_mul_u32_u24 v26, 1280, v20')
            I('v_lshl_add_u32 v27, v21, 4, v26'); I('v_lshl_add_u32 v28, v21, 3, v26')
            I(f'buffer_store_dwordx4 {vr(PK,4)}, v27, {OUT}, {sOutA} offen')
            I(f'buffer_store_dwordx4 {vr(PK+4,4)}, v27, {OUT}, {sOutA} offen offset:64')
            I(f'buffer_store_dwordx2 {vr(PK+8,2)}, v28, {OUT}, {sOutH} offen')
        self.stamp(f'w4{l}_end')
        self.nB = nB
        return self.stop == f'w4{l}'
    BS = int(os.environ.get('BS', 3)); STG = int(os.environ.get('STG', 8)); NOW4 = int(os.environ.get('NOW4', 0)); W3P = float(os.environ.get('W3P', 5))
    LOOP4 = int(os.environ.get('LOOP4', 0))
    LA0 = 3; LA1 = 3; ROT = int(os.environ.get('ROT', 1))
    H2SC = int(os.environ.get('H2SC', 0)); WB = int(os.environ.get('WB', 0))
    G1 = int(os.environ.get('G1', 0)); G2 = int(os.environ.get('G2', 0)); W3L = int(os.environ.get('W3L', 4)); NU = int(os.environ.get('NU', 6))
    T4 = int(os.environ.get('T4', 0)); HP = int(os.environ.get('HP', 10)); S2M = int(os.environ.get('S2M', 0)); WG = int(os.environ.get('WG', 2))
    W4X = float(os.environ.get('W4X', 5)); W4P = float(os.environ.get('W4P', 5)); W4N = int(os.environ.get('W4N', 10))
    NTQ = int(os.environ.get('NTQ', 0))
    W3H = int(os.environ.get('W3H', 10)); W3G = int(os.environ.get('W3G', 6))
    R3 = float(os.environ.get('R3', 1.4))
    CPF = int(os.environ.get('CPF', 1))
    LS = 0

    def build(self):
        a = self.a
        self.prologue()
        if self.stop != 'prep':
            B = list(range(8))
            if not self.layer(0, B):
                self.layer(1, self.nB)
        a.wait(vm=None, lg=None)
        a.label('KEND')
        a.I('s_endpgm')
        a.extend(self.ool)
        main, stubs, n = a.finalize()
        hdr = open('cdna_kernels/' + NAME[:-7] + '.s.ref').read().split('; Override launch')[0]
        out = hdr + f"""; Persistent fused kernel (generated by own script): 256 workgroups, one per CU.
; @launch grid=(256,1,1) block=(256,1,1) lds=163840
.amdgcn_target "amdgcn-amd-amdhsa--gfx950"
.text
.globl {NAME}
.p2align 8
.type {NAME},@function
{NAME}:
KSTART:
{main}
{stubs}
CODE_END:
.section .rodata,"a"
.p2align 6
.amdhsa_kernel {NAME}
  .amdhsa_next_free_vgpr 512
  .amdhsa_next_free_sgpr 102
  .amdhsa_accum_offset 256
  .amdhsa_group_segment_fixed_size 0
  .amdhsa_kernarg_size 96
  .amdhsa_user_sgpr_count 2
  .amdhsa_user_sgpr_kernarg_segment_ptr 1
  .amdhsa_system_sgpr_workgroup_id_x 1
.end_amdhsa_kernel
"""
        return out, n

if __name__ == '__main__':
    import argparse, json
    ap = argparse.ArgumentParser()
    ap.add_argument('-o', default='k.s'); ap.add_argument('--stop'); ap.add_argument('--stamps', action='store_true')
    args = ap.parse_args()
    g = Gen(args.stop, args.stamps)
    s, n = g.build()
    open(args.o, 'w').write(s)
    json.dump(g.stampnames, open(args.o + '.stamps.json', 'w'))
    print('instructions', n, 'bytes', len(s))
```

```python
import re

REG_RE = re.compile(r'(?<![\w.])([vas])\[(\d+):(\d+)\]|(?<![\w.])([vas])(\d+)(?![\w])|(?<![\w])(vcc|exec|m0)(?:_lo|_hi)?(?![\w])')
TRANS = ('v_exp_f32', 'v_rcp_f32', 'v_rsq_f32', 'v_log_f32', 'v_sqrt_f32', 'v_sin_f32', 'v_cos_f32')

def regs_of(tok):
    out = []
    for m in REG_RE.finditer(tok):
        if m.group(1):
            out += [(m.group(1), i) for i in range(int(m.group(2)), int(m.group(3)) + 1)]
        elif m.group(4):
            out.append((m.group(4), int(m.group(5))))
        else:
            out.append((m.group(6), 0))
    return out

def split_ops(rest):
    ops, depth, cur = [], 0, ''
    for ch in rest:
        if ch in '[(': depth += 1
        if ch in '])': depth -= 1
        if ch == ',' and depth == 0:
            ops.append(cur.strip()); cur = ''
        else:
            cur += ch
    if cur.strip(): ops.append(cur.strip())
    if ops:
        last = ops[-1].split()
        ops[-1] = last[0]
        mods = last[1:]
    else:
        mods = []
    return ops, mods

class Ins:
    __slots__ = ('text', 'op', 'kind', 'dst', 'src', 'srcA', 'srcC', 'tag', 'wide', 'sdata', 'slowmark')
    def __init__(self, text, tag=None):
        self.text = text.strip(); self.tag = tag; self.slowmark = None
        parts = self.text.split(None, 1)
        op = parts[0]; self.op = op
        ops, mods = split_ops(parts[1]) if len(parts) > 1 else ([], [])
        R = [regs_of(o) for o in ops]
        flat = lambda L: [r for x in L for r in x]
        self.dst, self.src, self.srcA, self.srcC, self.wide, self.sdata = [], [], [], [], False, []
        if op.startswith('v_mfma'):
            self.kind = 'mfma'; self.dst = R[0]; self.srcA = R[1] + R[2]; self.srcC = R[3]; self.src = self.srcA + self.srcC
        elif op.startswith('v_'):
            self.kind = 'trans' if op in TRANS else 'valu'
            if op.startswith('v_permlane') and 'swap' in op:
                self.kind = 'permlane'; self.dst = R[0] + R[1]; self.src = R[0] + R[1]
            elif op.startswith(('v_add_co', 'v_sub_co', 'v_addc_co', 'v_subb_co')):
                self.dst = R[0] + R[1]; self.src = flat(R[2:])
            else:
                self.dst = R[0]; self.src = flat(R[1:])
                if op.startswith(('v_fmac', 'v_mac', 'v_dot2c', 'v_writelane')): self.src += R[0]
            if op.startswith(('v_readfirstlane', 'v_readlane')): self.kind = 'readlane'
            if op.endswith('_dpp'): self.kind = 'permlane'
        elif op.startswith(('buffer_load', 'global_load')):
            self.kind = 'vmem'
            if 'lds' in mods or '_lds_' in op:
                self.src = flat(R) + [('m0', 0)]; self.kind = 'dma'
            else:
                self.dst = R[0]; self.src = flat(R[1:])
                if 'd16' in op: self.src += R[0]
        elif op.startswith(('buffer_store', 'global_store', 'buffer_atomic', 'global_atomic')):
            self.kind = 'vmem'; self.src = flat(R)
            if op.startswith('buffer'): self.sdata = R[0]
            else: self.sdata = R[1]
            self.wide = op.endswith(('x3', 'x4'))
            if 'atomic' in op and 'sc0' in mods: self.dst = R[0]
        elif op.startswith('ds_'):
            self.kind = 'ds'
            if op.startswith(('ds_read', 'ds_bpermute', 'ds_permute', 'ds_swizzle')):
                self.dst = R[0]; self.src = flat(R[1:])
            else:
                self.src = flat(R)
        elif op == 's_nop':
            self.kind = 'nop'
        elif op.startswith(('s_load', 's_memtime', 's_memrealtime')):
            self.kind = 'smem'; self.dst = R[0]; self.src = flat(R[1:])
        elif op.startswith('s_'):
            self.kind = 'salu'
            if op.startswith(('s_cmp', 's_cbranch', 's_branch', 's_waitcnt', 's_barrier', 's_sleep', 's_endpgm', 's_setprio', 's_bitcmp')):
                self.src = flat(R)
            else:
                self.dst = R[0] if R else []; self.src = flat(R[1:])
                if 'saveexec' in op: self.dst = self.dst + [('exec', 0)]
        else:
            raise ValueError('unknown op ' + text)
    def states(self):
        if self.kind == 'nop': return int(self.text.split()[1], 0) + 1
        return 1

class Wait:
    def __init__(self, vm=False, lg=False):
        self.vm = vm; self.lg = lg
class Label:
    def __init__(self, name): self.name = name
class Raw:
    def __init__(self, text): self.text = text
class Mark:
    def __init__(self, kind, idx): self.kind = kind; self.idx = idx

VALU_KINDS = ('valu', 'trans', 'permlane', 'readlane')

def need_states(p, c):
    n = 0
    pd, cs, cd = set(p.dst), set(c.src), set(c.dst)
    if p.kind in VALU_KINDS:
        vd = {r for r in pd if r[0] in 'va'}
        sd = {r for r in pd if r[0] in ('s', 'vcc', 'exec')}
        if vd:
            if c.kind == 'mfma' and vd & cs: n = max(n, 2)
            if c.kind == 'permlane' and vd & cs: n = max(n, 2)
            if c.kind == 'readlane' and vd & cs: n = max(n, 1)
            if p.kind == 'trans' and c.kind in ('valu', 'permlane', 'readlane', 'mfma') and vd & cs: n = max(n, 1)
        if sd:
            if c.kind in VALU_KINDS and sd & cs: n = max(n, 4 if c.kind == 'readlane' else 2)
            if c.kind in ('vmem', 'dma') and sd & cs: n = max(n, 5)
            if c.kind in ('salu', 'smem') and sd & cs: n = max(n, 1)
    if p.kind == 'mfma':
        if c.kind == 'mfma':
            if pd & set(c.srcA): n = max(n, 8)
            if pd & set(c.srcC) and p.dst != c.srcC: n = max(n, 6)
            if pd & cd and p.dst != c.srcC: n = max(n, 8)
        elif c.kind in VALU_KINDS or c.kind in ('vmem', 'dma', 'ds'):
            if pd & (cs | cd): n = max(n, 8)
        if c.kind in VALU_KINDS and set(p.srcC) & cd: n = max(n, 3)
    if p.kind == 'salu' and ('m0', 0) in pd and c.kind == 'dma': n = max(n, 1)
    if p.kind == 'vmem' and p.wide and set(p.sdata) & cd:
        n = max(n, 2 if c.kind in VALU_KINDS or c.kind == 'mfma' else 1)
    return n

class Asm:
    def __init__(self):
        self.items = []
        self.nslow = 0
        self.nlab = 0
    def I(self, text, tag=None):
        for t in text.split('\n'):
            t = t.split(';')[0].strip()
            if t: self.items.append(Ins(t, tag))
    def wait(self, vm=False, lg=False): self.items.append(Wait(vm, lg))
    def label(self, name): self.items.append(Label(name))
    def raw(self, text): self.items.append(Raw(text))
    def comment(self, text): self.items.append(Raw('    ; ' + text))
    def newlabel(self, base='L'):
        self.nlab += 1; return f'{base}_{self.nlab}'
    def extend(self, items): self.items.extend(items)
    def capture(self):
        asm = self
        class C:
            def __enter__(s):
                s.saved = asm.items; asm.items = []; s.items = asm.items; return s
            def __exit__(s, *a):
                asm.items = s.saved
        return C()
    def slow_begin(self, smode):
        self.nslow += 1
        self.I(f's_cmp_eq_u32 {smode}, 0')
        self.I(f's_cbranch_scc1 SLOW_{self.nslow}')
        self.items.append(Mark('sb', self.nslow))
    def slow_end(self):
        self.items.append(Mark('se', self.nslow))
        self.items.append(Label(f'BACK_{self.nslow}'))
    def finalize(self):
        out = []; vmq = []; lgq = []
        def resolve(q, t, mx):
            if t is False: return None
            if t is None:
                q.clear(); return 0
            tags = t if isinstance(t, (list, set)) else (t,)
            idx = -1
            for i, x in enumerate(q):
                if x in tags: idx = i
            if idx < 0: return None
            n = len(q) - 1 - idx
            if n > mx: n = mx
            del q[:len(q) - n]
            return n
        for it in self.items:
            if isinstance(it, Wait):
                v = resolve(vmq, it.vm, 63); l = resolve(lgq, it.lg, 15)
                parts = []
                if v is not None: parts.append(f'vmcnt({v})')
                if l is not None: parts.append(f'lgkmcnt({l})')
                if parts:
                    prev = out[-1] if out else None
                    if isinstance(prev, Ins) and prev.op == 's_waitcnt' and not any(p.split('(')[0] in prev.text for p in parts):
                        out[-1] = Ins(prev.text + ' ' + ' '.join(parts))
                    else:
                        out.append(Ins('s_waitcnt ' + ' '.join(parts)))
                continue
            if isinstance(it, Ins):
                if it.kind in ('vmem', 'dma'): vmq.append(it.tag)
                elif it.kind == 'ds': lgq.append(it.tag)
                elif it.kind == 'smem': lgq.append('SMEM'); lgq.append('SMEM')
            out.append(it)
        res = []; hist = []
        for it in out:
            if isinstance(it, Ins):
                need = 0; dist = 0
                for p in reversed(hist):
                    if dist >= 12: break
                    n = need_states(p, it)
                    if n > dist: need = max(need, n - dist)
                    dist += p.states()
                if need > 0:
                    nop = Ins(f's_nop {need - 1}')
                    res.append(nop); hist.append(nop)
                hist.append(it)
                if len(hist) > 16: del hist[:-16]
            res.append(it)
        stubs = []; cur = None
        main = []
        for it in res:
            if isinstance(it, Mark):
                if it.kind == 'sb': cur = [Label(f'SLOW_{it.idx}')]
                else:
                    cur.append(Ins(f's_branch BACK_{it.idx}')); stubs += cur; cur = None
                continue
            main.append(it)
            if cur is not None and isinstance(it, Ins):
                if it.kind == 'vmem' and 'store' in it.op and ' sc1' not in it.text:
                    cur.append(Ins(it.text + ' sc1'))
                else:
                    cur.append(it)
        def fmt(it):
            if isinstance(it, Ins): return '    ' + it.text
            if isinstance(it, Label): return it.name + ':'
            return it.text
        n = sum(isinstance(x, Ins) for x in main + stubs)
        return '\n'.join(fmt(x) for x in main), '\n'.join(fmt(x) for x in stubs), n

def interleave(main, fill, ratio=2, after=lambda it: isinstance(it, Ins) and it.kind == 'mfma', start=0):
    out = []; fi = 0; cnt = 0; credit = 0.0
    def cost(x):
        if isinstance(x, Ins): return 2 if x.kind == 'trans' else 1
        return 0
    for it in main:
        out.append(it)
        if after(it):
            cnt += 1
            if cnt > start:
                credit += ratio
                while fi < len(fill) and credit >= cost(fill[fi]):
                    credit -= cost(fill[fi]); out.append(fill[fi]); fi += 1
    out += fill[fi:]
    return out


def gapfill(main, fill, start=0, dscap=1):
    segs = []; cur = []
    for it in main:
        if isinstance(it, Ins) and it.kind == 'mfma' and cur:
            segs.append(cur); cur = []
        cur.append(it)
    if cur: segs.append(cur)
    out = []; fi = 0; n = 0
    for seg in segs:
        head = seg[0]
        if not (isinstance(head, Ins) and head.kind == 'mfma'):
            out += seg; continue
        n += 1
        other = 0; valu = 0; hasds = False
        for it in seg[1:]:
            if isinstance(it, Wait): other += 1
            elif isinstance(it, Ins):
                if it.kind in VALU_KINDS: valu += 2 if it.kind == 'trans' else 1
                else: other += 3 if it.kind in ('vmem', 'dma') else 1
                if it.kind == 'ds': hasds = True
        out += seg
        if n > start:
            while fi < len(fill):
                f = fill[fi]
                if isinstance(f, list):
                    if (other <= 1 and valu == 0 and not hasds) or not any(isinstance(x, Ins) and x.kind == 'vmem' for x in f):
                        out += f; fi += 1; other = 9
                    break
                isv = isinstance(f, Ins) and f.kind in VALU_KINDS
                if isv:
                    c = 2 if f.kind == 'trans' else 1
                    cap = 3 - max(other, 1)
                    if hasds: cap = min(cap, dscap)
                    if valu + c > cap: break
                    valu += c
                else:
                    if valu > 0 or other >= 2: break
                    other += 1
                    if isinstance(f, Ins) and f.kind == 'ds': hasds = True
                out.append(f); fi += 1
    return out, fill[fi:]

def rr(*lists):
    out = []; k = 0
    while any(k < len(l) for l in lists):
        for l in lists:
            if k < len(l): out.append(l[k])
        k += 1
    return out


def sccgroup(items):
    out = []; k = 0
    while k < len(items):
        it = items[k]
        if isinstance(it, Ins) and it.op.startswith(('s_cmp', 's_bitcmp')):
            g = [it]; k += 1
            while k < len(items) and isinstance(items[k], Ins) and items[k].op.startswith(('s_cselect', 's_cbranch')):
                g.append(items[k]); k += 1
            out.append(g)
        else:
            out.append(it); k += 1
    return out
```

```python
import sys, struct, math
from asmlib import *

NAME = "interleave_layers__linear_kernel_hedgehog__mixer_s_mlp__prompt_kernel"
MB = 1 << 20
WT_QKV, WT_O, WT_1, WT_2, WT_3, WT_4 = 0, 3*MB, 4*MB, 5*MB, 6*MB, 8*MB
APHI = 10*MB
SYNC = 13*MB
CNT, FL, FLO, FLH = SYNC+0x10000, SYNC+0x1000, SYNC+0x2000, SYNC+0x4000
KVP = 14*MB
def LB(l): return 18*MB + l*24*MB
import os
SEP = bool(os.environ.get('SEP'))
def XA(l): return LB(l) if SEP else LB(0)
def OB(l): return LB(l)+3*MB if SEP else LB(0)+3*MB
def XB(l): return LB(l)+6*MB if SEP else LB(0)
def HB(l): return LB(l)+9*MB if SEP else LB(0)+3*MB
def HD(l): return LB(l)+12*MB if SEP else LB(0)+12*MB+l*3*MB
def X1(l): return LB(l)+15*MB if SEP else LB(0)
def H2(l): return LB(l)+18*MB if SEP else LB(0)+18*MB
STAMP = 80*MB
BANK = 20480
OOB = 0x80000000
def f2u(x): return struct.unpack('<I', struct.pack('<f', x))[0]
LOG2E = 1.4426950408889634
GC0 = -2.0*math.sqrt(2.0/math.pi)*LOG2E
GC1 = GC0*0.044715

WS = 's[8:11]'; TS = 's[12:15]'; OUT = 's[16:19]'
P_X, P_QKV, P_PHI, P_O, P_1, P_2, P_3, P_4, P_OUT, P_DBG, P_WS = 20, 22, 24, 26, 30, 32, 34, 36, 38, 40, 42
_sn = [44]
def S(n=1, align=1):
    while _sn[0] % align: _sn[0] += 1
    r = _sn[0]; _sn[0] += n; return r
sXG, sH, sCL, sJ, sC, sW, sMODE, sTT = [f's{S()}' for _ in range(8)]
sA21, sH21, sS21, sT21, sA20, sH20, sT20, sT48 = [f's{S()}' for _ in range(8)]
sW5, sW4, sWQ, sLW, sOutA, sOutH, sEdge, sDead = [f's{S()}' for _ in range(8)]
sQT21, sO4, sO1, sKVo, sKVi, sA48, sH48, sC21, sFLo, sFLOo, sWI, sWB, sBot, sW3 = [f's{S()}' for _ in range(14)]
sT = [f's{S()}' for _ in range(10)]
sSpin = f's{S()}'
sDm = f's{S()}'
sN0 = 's0'; sN1 = 's1'
_p = S(2, 2); sStamp = f's[{_p}:{_p+1}]'; sStampLo = f's{_p}'
sStampOff = f's{S()}'
assert _sn[0] <= 100, _sn

vL16, vL16b, vL16c, vS8, vST, vFl = 'v1', 'v2', 'v3', 'v4', 'v5', 'v6'
vT0, vT1 = 'v7', 'v18'
RES = 8
def v(i): return f'v{i}'
def vr(i, n): return f'v[{i}:{i+n-1}]'
def ar(i, n): return f'a[{i}:{i+n-1}]'

class Gen:
    def __init__(self, stop=None, stamps=False):
        self.a = Asm(); self.stop = stop; self.stamps = stamps; self.nstamp = 0; self.stampnames = []; self.ool = []; self._ls = []; self.LSR = os.environ.get('LSR')
    def I(self, t, tag=None): self.a.I(t, tag)
    def lds(self, off):
        base = [vL16, vL16b, vL16c][off >> 16]; return base, off & 0xffff
    def stamp(self, name):
        if not self.stamps: return
        if name in os.environ.get('NOST', '').split(','): return
        self.lsf()
        I = self.I
        I(f's_memrealtime {sStamp}')
        I(f's_memtime s[100:101]')
        self.a.wait(lg=None)
        I(f'v_mov_b32 v19, {sStampLo}')
        I(f's_add_u32 {sT[9]}, {sStampOff}, {self.nstamp*4}')
        I(f'buffer_store_dword v19, off, {WS}, {sT[9]}', tag='stamp')
        I(f'v_mov_b32 v19, s100')
        I(f'buffer_store_dword v19, off, {WS}, {sT[9]} offset:256', tag='stamp')
        self.nstamp += 1; self.stampnames.append(name)

    def ls(self, name):
        if self.stamps and self.LSR and name.startswith(self.LSR):
            k = len(self._ls); assert k < 8
            self._ls.append(name); self.a.items.append(Raw(f'    s_memtime s[{20+2*k}:{21+2*k}]'))
    def lsf(self):
        if self._ls:
            n = self._ls; self._ls = []; self.lflush(['  ' + x for x in n])
    def lstamp(self, k):
        return [Raw(f'    s_memtime s[{20+2*k}:{21+2*k}]')] if self.stamps else []
    def lflush(self, names):
        if not self.stamps: return
        self.a.wait(lg=None)
        for k, n in enumerate(names):
            self.I(f'v_mov_b32 v19, s{20+2*k}')
            self.I(f's_add_u32 {sT[9]}, {sStampOff}, {self.nstamp*4}')
            self.I(f'buffer_store_dword v19, off, {WS}, {sT[9]} offset:256', tag='stamp')
            self.I(f'v_mov_b32 v19, 0')
            self.I(f'buffer_store_dword v19, off, {WS}, {sT[9]}', tag='stamp')
            self.nstamp += 1; self.stampnames.append(n)
    def dma_b(self, sbase, const, bank, tag, nper=5, sc='', slw=None, ldsoff=None):
        out = []
        slw = slw or sLW
        lo = bank*BANK if ldsoff is None else ldsoff
        for i in range(nper):
            with self.a.capture() as c:
                if i == 0:
                    self.I(f's_add_u32 m0, {slw}, {lo}')
                    self.I(f's_add_u32 {sDm}, {sbase}, {const}')
                if i == 4:
                    self.I(f's_add_u32 m0, m0, 4096')
                    self.I(f's_add_u32 {sDm}, {sDm}, 4096')
                self.I(f'buffer_load_dwordx4 {vL16}, {WS}, {sDm} offen offset:{(i&3)*1024} {sc} lds', tag)
            out.append(c.items)
        return out
    def emit(self, bundles):
        for b in bundles: self.a.extend(b)
    def dma_bank(self, *args, **kw): self.emit(self.dma_b(*args, **kw))
    def cap(self, fn, *args, **kw):
        with self.a.capture() as c: fn(*args, **kw)
        return c.items
    def weave(self, items, bundles, every, first=0):
        bi = 0; acc = every - first
        for k, it in enumerate(items):
            self.a.items.append(it)
            if isinstance(it, Ins):
                assert ('exec', 0) not in it.dst and not it.op.startswith(('s_cbranch', 's_branch')), it.text
                acc += 4 if it.kind == 'mfma' else (2 if it.kind == 'trans' else 1)
                nx = items[k+1] if k+1 < len(items) else None
                scc_live = isinstance(nx, Ins) and nx.op.startswith(('s_cselect', 's_cbranch', 's_addc', 's_subb'))
                if acc >= every and bi < len(bundles) and not scc_live:
                    self.a.extend(bundles[bi]); bi += 1; acc = 0
        self.emit(bundles[bi:])

    def touch(self, base, n, grp=0, tag='touch'):
        with self.a.capture() as c:
            I = self.I
            I(f's_mul_i32 s6, {sWI}, {n*128}'); I(f's_add_u32 s6, s6, {base}')
            if grp: I(f's_mul_i32 s7, {sXG}, {grp}'); I('s_add_u32 s6, s6, s7')
            I(f'v_min_u32 v19, {n-1}, v0'); I('v_lshlrev_b32 v19, 7, v19')
            I(f'buffer_load_dword a252, v19, {WS}, s6 offen sc1', tag)
        return [c.items]
    def touch2(self, sbase, const, n):
        with self.a.capture() as c:
            self.I(f's_add_u32 s6, {sbase}, {const}')
            self.I(f'v_min_u32 v19, {n-1}, v0'); self.I('v_lshlrev_b32 v19, 7, v19')
            self.I(f'buffer_load_dword a252, v19, {WS}, s6 offen sc1', 'touch')
        return [c.items]
    def touchT(self, base, tstride): return self.touch(base, tstride//1024, 16*tstride)
    def decomp(self, dst, areg, n, tmp):
        self.I(f'v_accvgpr_read_b32 v{tmp}, a{areg}')
        for i in range(n): self.I(f'v_mov_b32_dpp v{dst+i}, v{tmp} row_newbcast:{i} row_mask:0xf bank_mask:0xf')

    def cpf(self):
        I = self.I
        pl = self.a.newlabel('PCL')
        I('s_getpc_b64 s[4:5]')
        self.a.label(pl)
        I(f's_lshl_b32 s6, {sH}, 2'); I(f's_add_u32 s6, s6, {sW}'); I('s_and_b32 s6, s6, 31'); I('s_lshl_b32 s6, s6, 10')
        I(f'v_add_u32 v19, s6, {vL16}')
        I(f'v_min_u32 v19, CODE_END-{pl}-16, v19')
        I('global_load_dword a253, v19, s[4:5]', 'cpf')

    def poll(self, voff, soff, val):
        a = self.a; I = self.I
        L = a.newlabel('POLL'); D = a.newlabel('PDONE')
        I(f's_mov_b32 {sSpin}, {sDead}')
        a.label(L)
        I(f'buffer_load_dword {vT0}, {voff}, {WS}, {soff} offen sc1')
        a.wait(vm=None)
        I(f'v_cmp_le_u32 vcc, {val}, {vT0}')
        I(f's_cmp_eq_u64 vcc, -1')
        I(f's_cbranch_scc1 {D}')
        I(f's_sub_u32 {sSpin}, {sSpin}, 1')
        I(f's_cbranch_scc0 {L}')
        I(f's_mov_b32 {sDead}, 0')
        a.label(D)

    def setflag(self, soff, val, sc1=False, vmask=None):
        I = self.I
        I(f'v_mov_b32 {vT0}, {val}')
        I(f'v_mov_b32 {vT1}, {vmask if vmask else 0}')
        I(f's_mov_b64 exec, 1')
        if sc1:
            I(f'buffer_store_dword {vT0}, {vT1}, {WS}, {soff} offen sc1', 'flag')
        else:
            self.a.slow_begin(sMODE)
            I(f'buffer_store_dword {vT0}, {vT1}, {WS}, {soff} offen', 'flag')
            self.a.slow_end()
        I(f's_mov_b64 exec, -1')

    def pack(self, dst, src, n):
        for i in range(n): self.I(f'v_cvt_pk_bf16_f32 v{dst+i}, v{src+2*i}, v{src+2*i+1}')
    def unpack(self, dst, src, n):
        for i in range(n):
            self.I(f'v_lshlrev_b32 v{dst+2*i}, 16, v{src+i}')
            self.I(f'v_and_b32 v{dst+2*i+1}, 0xffff0000, v{src+i}')

    def prod_stats(self, acc, t):
        I = self.I
        I(f'v_pk_add_f32 {vr(t,2)}, {vr(acc,2)}, {vr(acc+2,2)}')
        I(f'v_pk_mul_f32 {vr(t+2,2)}, {vr(acc,2)}, {vr(acc,2)}')
        I(f'v_pk_fma_f32 {vr(t+2,2)}, {vr(acc+2,2)}, {vr(acc+2,2)}, {vr(t+2,2)}')
        for i in range(2, 10):
            I(f'v_pk_add_f32 {vr(t,2)}, {vr(t,2)}, {vr(acc+2*i,2)}')
            I(f'v_pk_fma_f32 {vr(t+2,2)}, {vr(acc+2*i,2)}, {vr(acc+2*i,2)}, {vr(t+2,2)}')
        I(f'v_add_f32 v{t}, v{t}, v{t+1}')
        I(f'v_add_f32 v{t+2}, v{t+2}, v{t+3}')
        I(f'v_permlane32_swap_b32 v{t}, v{t+2}')
        I(f'v_add_f32 v{t}, v{t}, v{t+2}')
        I(f'v_mov_b32 v{t+1}, v{t}')
        I(f'v_permlane16_swap_b32 v{t}, v{t+1}')
        I(f'v_add_f32 v{t}, v{t}, v{t+1}')

    def stchk(self, F, n, par, t, srcs):
        a = self.a
        def ors():
            regs = list(range(F, F+4*n))
            self.I(f'v_or3_b32 v{t}, v{regs[0]}, v{regs[1]}, v{regs[2]}')
            k = 3
            while k + 1 < len(regs):
                self.I(f'v_or3_b32 v{t}, v{t}, v{regs[k]}, v{regs[k+1]}'); k += 2
            self.I(f'v_or_b32 v{t}, v{t}, v{regs[k]}')
            self.I(f'v_and_b32 v{t}, {3 - par}, v{t}')
            self.I(f'v_cmp_ne_u32 vcc, 0, v{t}')
        R = a.newlabel('STR'); Bk = a.newlabel('STB')
        items = [Wait(vm='stat')] + self.cap(ors) + [[Ins('s_cmp_lg_u64 vcc, 0'), Ins(f's_cbranch_scc1 {R}'), Label(Bk)]]
        with a.capture() as c:
            a.label(R)
            self.I(f's_mov_b32 {sSpin}, {sDead}')
            a.label(R + '_l')
            self.I('s_nop 7'); self.I('s_nop 7')
            for k, (vo, sb, co) in enumerate(srcs):
                self.I(f's_add_u32 s7, {sb}, {co}')
                a.raw(f'    buffer_load_dwordx4 {vr(F+4*k,4)}, {vo}, {WS}, s7 offen sc1')
            self.I('s_waitcnt vmcnt(0)')
            ors()
            self.I('s_cmp_eq_u64 vcc, 0'); self.I(f's_cbranch_scc1 {Bk}')
            self.I(f's_sub_u32 {sSpin}, {sSpin}, 1'); self.I(f's_cbranch_scc0 {R}_l')
            self.I(f's_mov_b32 {sDead}, 0'); self.I(f's_branch {Bk}')
        self.ool += c.items
        return items
    def flat(self, items):
        for x in items:
            if isinstance(x, list): self.a.extend(x)
            else: self.a.items.append(x)

    def cons_stats(self, F, nm, r, double=False, r1=None):
        I = self.I
        I(f'v_add_f32 v{F}, v{F}, v{F+2}'); I(f'v_add_f32 v{F+1}, v{F+1}, v{F+3}')
        I(f'v_permlane32_swap_b32 v{F}, v{F+1}')
        I(f'v_add_f32 v{F}, v{F}, v{F+1}')
        I(f'v_mov_b32 v{F+1}, v{F}')
        I(f'v_permlane16_swap_b32 v{F}, v{F+1}')
        I(f'v_add_f32 v{F}, v{F}, v{F+1}')
        I(f'v_mov_b32 v{F+1}, v{F}')
        I(f'v_permlane32_swap_b32 v{F}, v{F+1}')
        I(f'v_mul_f32 v{nm}, {hex(f2u(-1.0/640))}, v{F}')
        I(f'v_mul_f32 v{F+1}, {hex(f2u(1.0/640))}, v{F+1}')
        I(f'v_fma_f32 v{F+1}, -v{nm}, v{nm}, v{F+1}')
        I(f'v_max_f32 v{F+1}, 0, v{F+1}')
        I(f'v_add_f32 v{F+2}, {hex(f2u(1e-5))}, v{F+1}')
        if not double:
            I(f'v_rsq_f32 v{r}, v{F+2}')
        else:
            I(f'v_rsq_f32 v{r1}, v{F+2}')
            I(f'v_mul_f32 v{F+1}, v{F+1}, v{r1}')
            I(f'v_mul_f32 v{F+1}, v{F+1}, v{r1}')
            I(f'v_add_f32 v{F+1}, {hex(f2u(1e-5))}, v{F+1}')
            I(f'v_rsq_f32 v{F+1}, v{F+1}')
            I(f'v_mul_f32 v{r}, v{r1}, v{F+1}')

    def lnfixp(self, acc, cw, n2, p):
        for i in range(n2):
            self.I(f'v_pk_fma_f32 {vr(acc+2*i,2)}, {vr(cw+2*i,2)}, {vr(p,2)}, {vr(acc+2*i,2)} op_sel_hi:[1,0,1]')
        for i in range(n2):
            self.I(f'v_pk_mul_f32 {vr(acc+2*i,2)}, {vr(acc+2*i,2)}, {vr(p,2)} op_sel:[0,1] op_sel_hi:[1,1]')
    def lnfix(self, acc, cw, n2, nm, r):
        for i in range(n2):
            self.I(f'v_pk_fma_f32 {vr(acc+2*i,2)}, {vr(cw+2*i,2)}, {vr(nm,2)}, {vr(acc+2*i,2)} op_sel_hi:[1,0,1]')
        for i in range(n2):
            self.I(f'v_pk_mul_f32 {vr(acc+2*i,2)}, {vr(acc+2*i,2)}, {vr(r,2)} op_sel_hi:[1,0]')

    def gelu(self, x, n2, t, K):
        I = self.I
        for i in range(n2): I(f'v_pk_mul_f32 {vr(t+2*i,2)}, {vr(x+2*i,2)}, {vr(x+2*i,2)}')
        for i in range(n2): I(f'v_pk_fma_f32 {vr(t+2*i,2)}, {vr(t+2*i,2)}, {vr(K,2)}, {vr(K,2)} op_sel:[0,0,1] op_sel_hi:[1,0,1]')
        for i in range(n2): I(f'v_pk_mul_f32 {vr(t+2*i,2)}, {vr(t+2*i,2)}, {vr(x+2*i,2)}')
        for i in range(2*n2): I(f'v_exp_f32 v{t+i}, v{t+i}')
        for i in range(n2): I(f'v_pk_add_f32 {vr(t+2*i,2)}, {vr(t+2*i,2)}, {vr(K+2,2)} op_sel_hi:[1,0]')
        for i in range(2*n2): I(f'v_rcp_f32 v{t+i}, v{t+i}')
        for i in range(n2): I(f'v_pk_mul_f32 {vr(x+2*i,2)}, {vr(x+2*i,2)}, {vr(t+2*i,2)}')
    def gconst(self, G, r):
        I = self.I
        I(f'v_rcp_f32 v{G+1}, v{r}')
        I(f'v_mul_f32 v{G+3}, {hex(f2u(GC0))}, v{r}')
        I(f'v_mul_f32 v{G+2}, v{r}, v{r}')
        I(f'v_mul_f32 v{G+2}, v{G+2}, v{G+3}')
        I(f'v_mul_f32 v{G+2}, {hex(f2u(0.044715))}, v{G+2}')
    def lgA(self, x, cw, n2, t, G):
        I = self.I
        for i in range(n2): I(f'v_pk_fma_f32 {vr(x+2*i,2)}, {vr(cw+2*i,2)}, {vr(G,2)}, {vr(x+2*i,2)} op_sel_hi:[1,0,1]')
        for i in range(n2): I(f'v_pk_mul_f32 {vr(t+2*i,2)}, {vr(x+2*i,2)}, {vr(x+2*i,2)}')
        for i in range(n2): I(f'v_pk_fma_f32 {vr(t+2*i,2)}, {vr(t+2*i,2)}, {vr(G+2,2)}, {vr(G+2,2)} op_sel:[0,0,1] op_sel_hi:[1,0,1]')
        for i in range(n2): I(f'v_pk_mul_f32 {vr(t+2*i,2)}, {vr(t+2*i,2)}, {vr(x+2*i,2)}')
    def lgB(self, x, n2, t, G, pk):
        I = self.I
        for i in range(2*n2): I(f'v_exp_f32 v{t+i}, v{t+i}')
        if pk:
            for i in range(n2): I(f'v_pk_fma_f32 {vr(t+2*i,2)}, {vr(t+2*i,2)}, {vr(G,2)}, {vr(G,2)} op_sel:[0,1,1] op_sel_hi:[1,1,1]')
        else:
            for i in range(2*n2): I(f'v_fma_f32 v{t+i}, v{t+i}, v{G+1}, v{G+1}')
        for i in range(2*n2): I(f'v_rcp_f32 v{t+i}, v{t+i}')
        if pk:
            for i in range(n2): I(f'v_pk_mul_f32 {vr(x+2*i,2)}, {vr(x+2*i,2)}, {vr(t+2*i,2)}')
        else:
            for i in range(2*n2): I(f'v_mul_f32 v{x+i}, v{x+i}, v{t+i}')
    def geluA(self, x, n2, t, K):
        I = self.I
        for i in range(n2): I(f'v_pk_mul_f32 {vr(t+2*i,2)}, {vr(x+2*i,2)}, {vr(x+2*i,2)}')
        for i in range(n2): I(f'v_pk_fma_f32 {vr(t+2*i,2)}, {vr(t+2*i,2)}, {vr(K,2)}, {vr(K,2)} op_sel:[0,0,1] op_sel_hi:[1,0,1]')
        for i in range(n2): I(f'v_pk_mul_f32 {vr(t+2*i,2)}, {vr(t+2*i,2)}, {vr(x+2*i,2)}')
    def geluB(self, x, n2, t):
        I = self.I
        for i in range(2*n2): I(f'v_exp_f32 v{t+i}, v{t+i}')
        for i in range(2*n2): I(f'v_add_f32 v{t+i}, 1.0, v{t+i}')
        for i in range(2*n2): I(f'v_rcp_f32 v{t+i}, v{t+i}')
        for i in range(2*n2): I(f'v_mul_f32 v{x+i}, v{x+i}, v{t+i}')
    def gelu_consts(self, K):
        self.I(f'v_mov_b32 v{K}, {hex(f2u(GC1))}')
        self.I(f'v_mov_b32 v{K+1}, {hex(f2u(GC0))}')
        self.I(f'v_mov_b32 v{K+2}, 1.0')

    def store_tile(self, P, buf, sA, sHh, sc1=False, vA=vL16, vH=vS8, tag='st'):
        I = self.I
        sc = ' sc1' if sc1 else ''
        I(f's_add_u32 {sT[0]}, {sA}, {buf}')
        I(f's_add_u32 {sT[1]}, {sHh}, {buf}')
        if not sc1: self.a.slow_begin(sMODE)
        I(f'buffer_store_dwordx4 {vr(P,4)}, {vA}, {WS}, {sT[0]} offen{sc}', tag)
        I(f'buffer_store_dwordx4 {vr(P+4,4)}, {vA}, {WS}, {sT[0]} offen offset:1024{sc}', tag)
        I(f'buffer_store_dwordx2 {vr(P+8,2)}, {vH}, {WS}, {sT[1]} offen{sc}', tag)
        if not sc1: self.a.slow_end()
    def store_stats(self, t, buf, par, sc1=False, tag='stt'):
        I = self.I
        I(f'v_and_or_b32 v{t}, v{t}, -4, {par}')
        I(f's_add_u32 {sT[0]}, {sS21}, {buf}')
        if not sc1: self.a.slow_begin(sMODE)
        I(f'buffer_store_dword v{t}, {vST}, {WS}, {sT[0]} offen' + (' sc1' if sc1 else ''), tag)
        if not sc1: self.a.slow_end()

    def load_frag(self, dst, voff, sbase, const, idx, tag, areg=False, sc=' sc1', state={}):
        key = (sbase, const, idx >> 2)
        if self._lf != key:
            self.I(f's_add_u32 {sT[2]}, {sbase}, {const + (idx >> 2)*4096}')
            self._lf = key
        d = ar(dst, 4) if areg else vr(dst, 4)
        self.I(f'buffer_load_dwordx4 {d}, {voff}, {WS}, {sT[2]} offen offset:{(idx & 3)*1024}{sc}', tag)
    _lf = None

    def tsrd(self, p, nbytes):
        self.I(f's_mov_b32 s12, s{p}'); self.I(f's_and_b32 s13, s{p+1}, 0xffff'); self.I(f's_mov_b32 s14, {nbytes}')

    def rowcol(self, q, magic, lpr, rs):
        I = self.I
        I(f'v_add_u32 v26, {q}, v0')
        I(f'v_mul_u32_u24 v27, {magic}, v26'); I('v_lshrrev_b32 v27, 16, v27')
        I(f'v_mul_u32_u24 v28, {lpr}, v27'); I('v_sub_u32 v28, v26, v28')
        I(f'v_mul_u32_u24 v29, {rs}, v27'); I('v_lshl_add_u32 v29, v28, 4, v29')

    def prologue(self):
        a = self.a; I = self.I
        sRS, sEx, sSrc, sDst, sTile, sU, sLB = sT[3], sT[4], sT[5], sT[6], sT[7], sT[8], sWB
        sInvA, sInvB, sSrc3 = 's6', 's7', 's3'
        I('s_cmp_ge_u32 s2, 256')
        I('s_cbranch_scc1 KEND')
        I('s_load_dwordx16 s[20:35], s[0:1], 0')
        I('s_load_dwordx8 s[36:43], s[0:1], 64')
        if self.stamps: I('s_memrealtime s[98:99]')
        I('s_getpc_b64 s[4:5]')
        a.label('PCL0')
        I(f's_lshr_b32 {sH}, s2, 3')
        I(f's_lshl_b32 {sT[0]}, {sH}, 12')
        I(f'v_lshl_add_u32 v26, v0, 4, {sT[0]}')
        I('v_min_u32 v26, CODE_END-PCL0-16, v26')
        I('global_load_dword a253, v26, s[4:5]')
        I('v_lshrrev_b32 v7, 6, v0')
        I('v_mov_b32 v25, v0')
        I(f'v_readfirstlane_b32 {sW}, v7')
        I('v_and_b32 v0, 63, v0')
        I(f's_and_b32 {sXG}, s2, 7')
        I(f's_lshr_b32 {sCL}, {sH}, 3'); I(f's_and_b32 {sJ}, {sH}, 7')
        I(f's_lshl_b32 {sC}, {sXG}, 2'); I(f's_add_u32 {sC}, {sC}, {sCL}')
        I(f's_lshl_b32 {sTT}, {sC}, 2'); I(f's_add_u32 {sTT}, {sTT}, {sW}')
        I(f's_mul_i32 {sT[0]}, {sJ}, 5'); I(f's_add_u32 {sT[0]}, {sT[0]}, 1'); I(f's_lshr_b32 {sT[0]}, {sT[0]}, 1')
        I(f's_lshl_b32 {sA21}, {sT[0]}, 10')
        I(f's_mul_i32 {sH21}, {sJ}, 2560')
        I(f's_bitcmp0_b32 {sJ}, 0'); I(f's_cselect_b32 {sT[3]}, 2048, 0'); I(f's_add_u32 {sH21}, {sH21}, {sT[3]}')
        I(f's_mul_i32 {sT20}, {sTT}, 20480')
        I(f's_lshr_b32 {sOutA}, {sA21}, 4'); I(f's_lshr_b32 {sOutH}, {sH21}, 4')
        I(f's_add_u32 {sOutA}, {sOutA}, {sT20}'); I(f's_add_u32 {sOutH}, {sOutH}, {sT20}')
        I('v_and_b32 v20, 15, v0'); I('v_lshrrev_b32 v21, 4, v0')
        I('v_mul_u32_u24 v26, 1280, v20')
        I('v_lshl_add_u32 v36, v21, 4, v26'); I('v_lshl_add_u32 v37, v21, 3, v26')
        I(f's_lshr_b32 {sT[1]}, s2, 1'); I(f's_and_b32 {sT[0]}, s2, 1')
        I(f's_mul_i32 {sSrc}, {sT[1]}, {8*3840}'); I(f's_mul_i32 {sT[2]}, {sT[0]}, 640'); I(f's_add_u32 {sSrc}, {sSrc}, {sT[2]}')
        I(f's_cmp_lt_u32 s2, 160'); I(f's_cselect_b32 {sInvA}, 0, {OOB}'); I(f's_cselect_b32 {sSrc}, {sSrc}, 0')
        for k in range(4):
            I(f'v_add_u32 v26, {256*k}, v25')
            I('v_mul_u32_u24 v27, 13108, v26'); I('v_lshrrev_b32 v27, 19, v27')
            I('v_mul_u32_u24 v28, 40, v27'); I('v_sub_u32 v28, v26, v28')
            I('v_and_b32 v29, 7, v27'); I('v_mul_u32_u24 v29, 3840, v29'); I('v_lshl_add_u32 v29, v28, 4, v29')
            I('v_lshrrev_b32 v27, 3, v27'); I('v_mul_u32_u24 v28, 1280, v27'); I(f'v_add3_u32 v{40+k}, v29, v28, {sInvA}')
        I('v_cmp_gt_u32 vcc, 3, v27'); I(f'v_mov_b32 v28, {OOB}'); I('v_cndmask_b32 v43, v28, v43, vcc')
        I(f's_lshl_b32 {sLB}, {sW}, 10')
        I('s_mov_b32 s15, 0x20000'); I('s_mov_b32 s11, 0x20000'); I('s_mov_b32 s19, 0x20000')
        I('s_mov_b32 s10, 0x10000000'); I('s_mov_b32 s18, 2621440')
        I(f's_lshl_b32 {sU}, s2, 2'); I(f's_add_u32 {sU}, {sU}, {sW}')
        I('s_memrealtime s[94:95]')
        a.wait(lg=None)
        I(f's_mov_b32 s8, s{P_WS}'); I(f's_and_b32 s9, s{P_WS+1}, 0xffff')
        I(f's_cmp_lg_u32 {sU}, 3'); I('s_cbranch_scc1 NOTAG')
        I('s_lshl_b32 s95, s95, 4'); I('s_or_b32 s95, s95, 0x80000000')
        I('v_mov_b32 v26, s94'); I('v_mov_b32 v27, s95'); I('v_mov_b32 v28, 0')
        I('s_mov_b64 exec, 1')
        a.raw(f'    global_store_dwordx2 v28, v[26:27], s[{P_DBG}:{P_DBG+1}] sc1')
        I('s_mov_b64 exec, -1')
        a.label('NOTAG')
        self.tsrd(P_QKV, 2457600)
        for k in range(4):
            I(f's_add_u32 m0, {sLB}, {k*4096}')
            I(f'buffer_load_dwordx4 v{40+k}, {TS}, {sSrc} offen nt lds', 's1')
        self.tsrd(P_X, 2621440)
        I(f'buffer_load_dwordx4 {vr(RES,4)}, v36, {TS}, {sOutA} offen nt', 's1')
        I(f'buffer_load_dwordx4 {vr(RES+4,4)}, v36, {TS}, {sOutA} offen offset:64 nt', 's1')
        I(f'buffer_load_dwordx2 {vr(RES+8,2)}, v37, {TS}, {sOutH} offen nt', 's1')
        I(f's_mov_b32 s16, s{P_OUT}'); I(f's_and_b32 s17, s{P_OUT+1}, 0xffff')
        if self.TLB:
            I('v_min_u32 v26, 42, v0'); I('v_lshlrev_b32 v26, 20, v26'); I('v_add_u32 v26, 0xfff80, v26')
            I(f's_cmp_eq_u32 {sW}, 2'); I(f's_cselect_b32 {sT[2]}, 0, {OOB}'); I(f'v_or_b32 v26, {sT[2]}, v26')
            I(f'buffer_load_dword a252, v26, {WS}, 0 offen nt', 'tlb')
            I('v_min_u32 v26, 2, v0'); I('v_lshlrev_b32 v26, 20, v26'); I(f'v_or_b32 v26, {sT[2]}, v26')
            I(f'buffer_load_dword a252, v26, {OUT}, 0 offen nt', 'tlb')
        I(f's_mul_i32 {sDm}, {sT[0]}, {16*81920}'); I(f's_mul_i32 {sT[2]}, {sW}, {4*81920}'); I(f's_add_u32 {sDm}, {sDm}, {sT[2]}')
        I(f's_lshr_b32 {sT[2]}, {sT[1]}, 2'); I(f's_lshl_b32 {sT[2]}, {sT[2]}, 12'); I(f's_add_u32 {sDm}, {sDm}, {sT[2]}')
        I(f's_and_b32 {sT[2]}, {sT[1]}, 3'); I(f's_lshl_b32 {sT[2]}, {sT[2]}, 8'); I(f's_add_u32 {sDm}, {sDm}, {sT[2]}')
        I(f's_mov_b32 s4, {sInvA}')
        if self.stamps: I(f's_lshl_b32 {sStampOff}, {sU}, 9'); I(f's_add_u32 {sStampOff}, {sStampOff}, {STAMP}')
        I(f's_add_u32 {sU}, {sU}, 384'); I(f's_and_b32 {sU}, {sU}, 1023')
        I(f's_mov_b32 s12, s{P_O}'); I(f's_mov_b32 s13, s{P_O+1}'); I(f's_mov_b32 s14, 819200')
        I(f's_mov_b32 {sDst}, {WT_O}'); I(f's_mov_b32 {sTile}, 102400'); I(f's_mov_b32 {sT[0]}, {sU}')
        for thr, p, wt in ((160, P_1, WT_1), (320, P_2, WT_2), (480, P_4, WT_4)):
            I(f's_sub_u32 {sT[1]}, {sU}, {thr}')
            I(f's_cmp_ge_u32 {sU}, {thr}')
            I(f's_cselect_b32 s12, s{p}, s12'); I(f's_cselect_b32 s13, s{p+1}, s13')
            I(f's_cselect_b32 {sDst}, {wt}, {sDst}'); I(f's_cselect_b32 {sT[0]}, {sT[1]}, {sT[0]}')
        I(f's_cselect_b32 {sTile}, 245760, {sTile}'); I(f's_cselect_b32 s14, 1966080, s14')
        I(f's_and_b32 s13, s13, 0xffff')
        I(f's_cmp_lt_u32 {sU}, 864'); I(f's_cselect_b32 {sInvA}, s4, {OOB}'); I(f's_cselect_b32 {sT[0]}, {sT[0]}, 0')
        I(f's_xor_b32 s5, s4, {OOB}')
        I(f's_lshr_b32 {sT[1]}, {sT[0]}, 1'); I(f's_and_b32 {sT[0]}, {sT[0]}, 1')
        I(f's_lshl_b32 {sSrc}, {sT[1]}, 3'); I(f's_mov_b32 {sEx}, 0')
        I(f's_cmp_ge_u32 {sU}, 160'); I('s_cbranch_scc1 PREP_RB')
        I(f's_lshr_b32 {sT[2]}, {sT[1]}, 1'); I(f's_mul_i32 {sT[2]}, {sT[2]}, 20')
        I(f's_and_b32 {sSrc}, {sT[1]}, 1'); I(f's_lshl_b32 {sSrc}, {sSrc}, 3'); I(f's_add_u32 {sSrc}, {sSrc}, {sT[2]}')
        I(f's_cmp_lt_u32 {sT[1]}, 64'); I('s_cbranch_scc1 PREP_RB')
        I(f's_sub_u32 {sT[2]}, {sT[1]}, 64'); I(f's_mul_i32 {sSrc}, {sT[2]}, 40'); I(f's_add_u32 {sSrc}, {sSrc}, 16')
        I(f's_mov_b32 {sEx}, {16*1280}')
        a.label('PREP_RB')
        I(f's_mul_i32 {sSrc}, {sSrc}, 1280'); I(f's_mul_i32 {sT[2]}, {sT[0]}, 640'); I(f's_add_u32 {sSrc}, {sSrc}, {sT[2]}')
        I(f's_lshl_b32 {sLB}, {sW}, 13'); I(f's_add_u32 {sLB}, {sLB}, 32768')
        for q in range(5):
            self.rowcol(64*q, 1639, 40, 1280)
            I('v_lshrrev_b32 v27, 2, v27'); I(f'v_mad_u32_u24 v29, v27, {sEx}, v29'); I(f'v_or_b32 v{200+q}, {sInvA}, v29')
            I('v_or_b32 v29, s5, v29')
            I(f's_add_u32 m0, {sLB}, {q*1024}')
            I(f'buffer_load_dwordx4 v29, {TS}, {sSrc} offen nt lds', 's1')
        I(f's_mul_i32 {sT[2]}, {sT[0]}, {sTile}'); I(f's_lshl_b32 {sT[2]}, {sT[2]}, 2'); I(f's_add_u32 {sDst}, {sDst}, {sT[2]}')
        I(f's_lshr_b32 {sT[2]}, {sT[1]}, 2'); I(f's_mul_i32 {sT[2]}, {sT[2]}, 5120'); I(f's_add_u32 {sDst}, {sDst}, {sT[2]}')
        I(f's_and_b32 {sT[2]}, {sT[1]}, 3'); I(f's_lshl_b32 {sT[2]}, {sT[2]}, 8'); I(f's_add_u32 {sDst}, {sDst}, {sT[2]}')
        I(f's_add_u32 {sT[0]}, {sU}, 160'); I(f's_and_b32 {sT[0]}, {sT[0]}, 1023')
        I(f's_cmp_lt_u32 {sT[0]}, 640'); I(f's_cselect_b32 {sInvB}, 0, {OOB}'); I(f's_cselect_b32 {sT[0]}, {sT[0]}, 0')
        I(f's_lshr_b32 {sT[1]}, {sT[0]}, 3'); I(f's_and_b32 {sT[0]}, {sT[0]}, 7')
        I(f's_mul_i32 {sSrc3}, {sT[1]}, {8*3072}'); I(f's_mul_i32 {sT[2]}, {sT[0]}, 384'); I(f's_add_u32 {sSrc3}, {sSrc3}, {sT[2]}')
        I(f's_mul_i32 {sRS}, {sT[0]}, 245760'); I(f's_lshl_b32 {sT[2]}, {sT[1]}, 8'); I(f's_add_u32 {sRS}, {sRS}, {sT[2]}'); I(f's_add_u32 {sRS}, {sRS}, {WT_3}')
        I(f's_mov_b32 {sDead}, 400000'); I(f's_mov_b32 {sMODE}, 0')
        I(f's_mul_i32 {sT21}, {sTT}, 21504'); I(f's_mul_i32 {sT48}, {sTT}, 49152')
        I(f's_add_u32 {sA20}, {sT20}, {sA21}'); I(f's_add_u32 {sH20}, {sT20}, {sH21}')
        I(f's_add_u32 {sA21}, {sT21}, {sA21}'); I(f's_add_u32 {sH21}, {sT21}, {sH21}')
        I(f's_lshr_b32 {sT[0]}, {sJ}, 1'); I(f's_lshl_b32 {sT[0]}, {sT[0]}, 8')
        I(f's_and_b32 {sT[1]}, {sJ}, 1'); I(f's_lshl_b32 {sT[1]}, {sT[1]}, 3')
        I(f's_add_u32 {sS21}, {sT21}, {sT[0]}'); I(f's_add_u32 {sS21}, {sS21}, {sT[1]}'); I(f's_add_u32 {sS21}, {sS21}, 20480')
        I(f's_mul_i32 {sLW}, {sW}, 5120')
        I(f's_mul_i32 {sW5}, {sJ}, 102400'); I(f's_add_u32 {sW5}, {sW5}, {sLW}')
        I(f's_mul_i32 {sW4}, {sJ}, 245760'); I(f's_add_u32 {sW4}, {sW4}, {sLW}')
        I(f's_mul_i32 {sWQ}, {sH}, 81920');  I(f's_add_u32 {sWQ}, {sWQ}, {sLW}')
        I(f's_lshl_b32 {sWI}, {sH}, 2'); I(f's_add_u32 {sWI}, {sWI}, {sW}')
        I(f's_lshl_b32 {sT[0]}, {sXG}, 2'); I(f's_add_u32 {sT[0]}, {sT[0]}, {sW}')
        I(f's_mul_i32 {sQT21}, {sT[0]}, {4*21504}')
        I(f's_mul_i32 {sT[1]}, {sT[0]}, {4*20480}')
        I(f's_lshl_b32 {sT[2]}, {sH}, 9'); I(f's_add_u32 {sO4}, {sT[1]}, {sT[2]}')
        I(f's_lshr_b32 {sT[2]}, {sH}, 1'); I(f's_lshl_b32 {sT[2]}, {sT[2]}, 8'); I(f's_add_u32 {sO1}, {sT[1]}, {sT[2]}')
        I(f's_and_b32 {sT[2]}, {sH}, 1'); I(f's_lshl_b32 {sT[2]}, {sT[2]}, 3'); I(f's_add_u32 {sO1}, {sO1}, {sT[2]}'); I(f's_add_u32 {sO1}, {sO1}, 16384')
        I(f's_lshl_b32 {sT[2]}, {sT[0]}, 7'); I(f's_lshl_b32 {sFLOo}, {sH}, 2')
        I(f's_add_u32 {sFLOo}, {sT[2]}, {sFLOo}'); I(f's_add_u32 {sFLOo}, {sFLOo}, {FLO}')
        I(f's_lshl_b32 {sKVi}, {sH}, 16'); I(f's_lshl_b32 {sT[2]}, {sW}, 10'); I(f's_add_u32 {sKVi}, {sKVi}, {sT[2]}')
        I(f's_add_u32 {sKVi}, {sKVi}, {KVP}')
        I(f's_lshl_b32 {sT[2]}, {sXG}, 13'); I(f's_add_u32 {sKVo}, {sKVi}, {sT[2]}')
        I(f's_lshl_b32 {sT[0]}, {sJ}, 2'); I(f's_add_u32 {sT[0]}, {sT[0]}, {sW}')
        I(f's_mul_i32 {sW3}, {sT[0]}, 61440')
        I(f's_mul_i32 {sT[1]}, {sT[0]}, 3'); I(f's_add_u32 {sT[1]}, {sT[1]}, 1'); I(f's_lshr_b32 {sT[1]}, {sT[1]}, 1'); I(f's_lshl_b32 {sA48}, {sT[1]}, 10')
        I(f's_mul_i32 {sH48}, {sT[0]}, 1536')
        I(f's_bitcmp0_b32 {sT[0]}, 0'); I(f's_cselect_b32 {sT[2]}, 1024, 0'); I(f's_add_u32 {sH48}, {sH48}, {sT[2]}')
        I(f's_mul_i32 {sT[2]}, {sC}, {4*49152}')
        I(f's_add_u32 {sA48}, {sT[2]}, {sA48}'); I(f's_add_u32 {sH48}, {sT[2]}, {sH48}')
        I(f's_mul_i32 {sC21}, {sC}, {4*21504}')
        I(f's_lshl_b32 {sFLo}, {sTT}, 5'); I(f's_lshl_b32 {sT[2]}, {sJ}, 2'); I(f's_add_u32 {sFLo}, {sFLo}, {sT[2]}'); I(f's_add_u32 {sFLo}, {sFLo}, {FL}')
        I(f's_and_b32 {sT[0]}, {sTT}, 15')
        I(f's_mov_b32 {sEdge}, {OOB}')
        I(f's_cmp_eq_u32 {sT[0]}, 0');  I(f's_cselect_b32 {sEdge}, 0, {sEdge}')
        I(f's_cmp_eq_u32 {sT[0]}, 15'); I(f's_cselect_b32 {sEdge}, 0, {sEdge}'); I(f's_cselect_b32 {sBot}, 1, 0')
        I(f's_cmp_eq_u32 {sTT}, 0');   I(f's_cselect_b32 {sEdge}, {OOB}, {sEdge}')
        I(f's_cmp_eq_u32 {sTT}, 127'); I(f's_cselect_b32 {sEdge}, {OOB}, {sEdge}')
        I(f'v_lshlrev_b32 {vL16}, 4, v0')
        I(f'v_add_u32 {vL16b}, 0x10000, {vL16}'); I(f'v_add_u32 {vL16c}, 0x20000, {vL16}')
        I('v_lshrrev_b32 v22, 5, v0'); I('v_and_b32 v23, 1, v21'); I('v_lshlrev_b32 v24, 4, v20')
        I(f'v_lshl_add_u32 {vS8}, v22, 8, v24'); I(f'v_lshl_add_u32 {vS8}, v23, 3, {vS8}')
        I(f'v_lshl_add_u32 {vST}, v22, 2, v24')
        I(f'v_and_b32 {vFl}, 31, v0'); I(f'v_lshlrev_b32 {vFl}, 2, {vFl}')
        if self.stamps:
            I('v_mov_b32 v19, s98'); I(f'buffer_store_dword v19, off, {WS}, {sStampOff}'); I(f'buffer_store_dword v19, off, {WS}, {sStampOff} offset:256')
            self.nstamp += 1; self.stampnames.append('entry')
        self.stamp('issued')
        I('v_lshrrev_b32 v26, 2, v20'); I('v_and_b32 v27, 3, v20')
        I(f's_mul_i32 {sT[2]}, {sW}, 160')
        I('v_mul_u32_u24 v29, 640, v26'); I(f'v_add_u32 v29, {sT[2]}, v29'); I('v_mul_u32_u24 v28, 40, v21'); I('v_add_u32 v29, v29, v28')
        I('v_lshl_add_u32 v30, v27, 3, v29')
        I('v_lshlrev_b32 v28, 3, v27'); I(f'v_add_u32 v31, {10240-8}, v28'); I(f'v_mov_b32 v33, {5120+32}')
        I('v_cmp_eq_u32 vcc, 0, v27'); I('v_cndmask_b32 v31, v31, v33, vcc'); I('v_add_u32 v31, v31, v29')
        I('v_min_u32 v28, 2, v27'); I('v_lshlrev_b32 v28, 3, v28'); I(f'v_add_u32 v33, {10240+16}, v28'); I('v_mov_b32 v34, 32')
        I('v_cndmask_b32 v33, v33, v34, vcc'); I('v_add_u32 v33, v33, v29')
        I(f's_mov_b32 {sT[2]}, 81920'); I(f'v_mul_lo_u32 v32, v21, {sT[2]}'); I(f'v_add3_u32 v32, v32, v24, s4')
        for q in range(3):
            self.rowcol(64*q, 2731, 24, 3072)
            I(f'v_or_b32 v{205+q}, {sInvB}, v29')
        I('v_lshrrev_b32 v26, 2, v20'); I('v_and_b32 v27, 3, v20')
        I('v_mul_u32_u24 v28, 5, v21'); I('v_add_u32 v28, 1, v28'); I('v_lshrrev_b32 v28, 1, v28')
        I('v_mul_u32_u24 v29, 640, v26'); I(f'v_add_u32 v29, {sLB}, v29')
        I('v_lshl_add_u32 v210, v28, 6, v29'); I('v_lshl_add_u32 v210, v27, 4, v210')
        I('v_mul_u32_u24 v211, 160, v21'); I('v_xor_b32 v28, 1, v23'); I('v_lshl_add_u32 v211, v28, 7, v211')
        I('v_add_u32 v211, v211, v29'); I('v_lshl_add_u32 v211, v27, 3, v211')
        I(f'v_mul_lo_u32 v212, v21, {sTile}'); I(f'v_add3_u32 v216, v212, v24, s5'); I(f'v_add3_u32 v212, v212, v24, {sInvA}')
        I('v_mul_u32_u24 v29, 384, v26'); I(f'v_add_u32 v29, {sLB}, v29'); I('v_mul_u32_u24 v28, 96, v21'); I('v_add_u32 v29, v29, v28')
        I('v_lshl_add_u32 v213, v23, 5, v29'); I('v_lshl_add_u32 v213, v27, 4, v213')
        I('v_xor_b32 v28, 1, v23'); I('v_lshl_add_u32 v214, v28, 6, v29'); I('v_lshl_add_u32 v214, v27, 3, v214')
        I('v_mul_u32_u24 v215, 61440, v21'); I(f'v_add3_u32 v215, v215, v24, {sInvB}')
        I(f's_getreg_b32 {sU}, hwreg(HW_REG_XCC_ID)'); I(f's_and_b32 {sU}, {sU}, 15')
        for r in range(132, 142): I(f'v_mov_b32 v{r}, -1')
        I('v_mov_b32 v128, 0')
        a.wait(vm='s1')
        self.stamp('s1_loaded')
        I('v_mov_b32 v26, 0')
        I(f'global_load_dwordx2 v[208:209], v26, s[{P_DBG}:{P_DBG+1}] sc1', 'st')
        self.store_tile(RES, XA(0), sA21, sH21, sc1=True)
        for i in range(5):
            b_, o = ('v210', 64*(i >> 1) + 8*(i & 1)) if i < 4 else ('v211', 0)
            I(f'ds_read_b64_tr_b16 {vr(64+4*i,2)}, {b_} offset:{o}')
            I(f'ds_read_b64_tr_b16 {vr(66+4*i,2)}, {b_} offset:{o+2560}')
        I('s_barrier')
        a.wait(lg=None)
        for i, (b_, o) in enumerate((('v30', 5120), ('v31', 0), ('v30', 0), ('v33', 0))):
            I(f'ds_read_b64_tr_b16 {vr(48+4*i,2)}, {b_} offset:{o}')
            I(f'ds_read_b64_tr_b16 {vr(50+4*i,2)}, {b_} offset:{o+2560}')
        for i in range(4): I(f'buffer_store_dwordx4 {vr(64+4*i,4)}, v216, {WS}, {sDst} offen offset:{i*1024} sc1', 'st')
        I(f's_add_u32 {sT[0]}, {sDst}, 4096')
        I(f'buffer_store_dwordx4 {vr(80,4)}, v216, {WS}, {sT[0]} offen sc1', 'st')
        a.wait(lg=None)
        for i in range(4): I(f'buffer_store_dwordx4 {vr(48+4*i,4)}, v32, {WS}, {sDm} offen offset:{i*1024} sc1', 'st')
        self.unpack(144, RES, 10)
        self.prod_stats(144, 164)
        self.store_stats(164, XA(0), 1, sc1=True, tag='st')
        I(f'buffer_store_dwordx4 {vr(132,4)}, {vL16}, {WS}, {sKVo} offen sc1', 'st')
        I(f's_lshl_b32 {sT[0]}, s2, 7'); I(f's_add_u32 {sT[0]}, {sT[0]}, {FL}')
        I(f's_cmp_eq_u32 {sW}, 1'); I(f's_cselect_b32 {sT[1]}, 0, {OOB}')
        I(f's_cmp_lt_u32 s2, 64'); I(f's_cselect_b32 {sT[1]}, {sT[1]}, {OOB}')
        I(f'v_or_b32 v26, {sT[1]}, {vFl}')
        I(f'buffer_store_dword v128, v26, {WS}, {sT[0]} offen sc1', 'st')
        for q in range(5):
            I(f's_add_u32 m0, {sLB}, {q*1024}')
            I(f'buffer_load_dwordx4 v{200+q}, {TS}, {sSrc} offen nt lds', 's2')
        self.tsrd(P_3, 1966080)
        for q in range(3):
            I(f's_add_u32 m0, {sLB}, {5120+q*1024}')
            I(f'buffer_load_dwordx4 v{205+q}, {TS}, {sSrc3} offen nt lds', 's2')
        self.tsrd(P_PHI, 25600)
        I('v_and_b32 v26, 3, v0'); I('v_lshlrev_b32 v26, 1, v26')
        I(f's_mul_i32 {sT[0]}, {sH}, 800')
        I('v_mul_u32_u24 v27, 160, v21'); I(f'v_add3_u32 v27, v27, v26, {sT[0]}')
        I(f'v_add_u32 v28, {sT[0]}, v26'); I('v_add_u32 v28, 640, v28'); I(f'v_mov_b32 v29, {OOB}')
        I('v_cmp_eq_u32 vcc, 0, v21'); I('v_cndmask_b32 v28, v29, v28, vcc')
        I(f's_lshl_b32 {sT[0]}, {sW}, 3')
        for fr, so in ((0, sT[0]), (1, '32')):
            for e in range(8):
                vo = 'v27' if e < 4 else 'v28'
                I(f'buffer_load_ushort v{(180 if e & 1 else 120)+4*fr+(e>>1)}, {vo}, {TS}, {so} offen offset:{(e&3)*40}')
        I('v_mov_b32 v26, 0')
        a.wait(vm='st')
        self.stamp('s1_drained')
        I(f's_mov_b32 {sSpin}, {sDead}')
        a.label('GB_P0')
        I('v_cmp_ne_u32 vcc, 0, v209'); I('s_cmp_eq_u64 vcc, -1'); I('s_cbranch_scc1 GB_P0D')
        a.raw(f'    global_load_dwordx2 v[208:209], v26, s[{P_DBG}:{P_DBG+1}] sc1')
        I('s_waitcnt vmcnt(0)')
        I(f's_sub_u32 {sSpin}, {sSpin}, 1'); I('s_cbranch_scc0 GB_P0')
        a.label('GB_P0D')
        I(f'v_readfirstlane_b32 {sN0}, v208'); I(f'v_readfirstlane_b32 {sN1}, v209')
        I('s_barrier')
        self.arrive(0, 208, sU)
        a.wait(vm=None)
        for i in range(5):
            b_, o = ('v210', 64*(i >> 1) + 8*(i & 1)) if i < 4 else ('v211', 0)
            I(f'ds_read_b64_tr_b16 {ar(4*i,2)}, {b_} offset:{o}')
            I(f'ds_read_b64_tr_b16 {ar(4*i+2,2)}, {b_} offset:{o+2560}')
        a.wait(lg=None)
        for i in range(3):
            b_, o = ('v213', 8*i) if i < 2 else ('v214', 0)
            I(f'ds_read_b64_tr_b16 {ar(20+4*i,2)}, {b_} offset:{5120+o}')
            I(f'ds_read_b64_tr_b16 {ar(22+4*i,2)}, {b_} offset:{5120+o+1536}')
        for r in range(32, 36): I(f'v_accvgpr_write_b32 a{r}, -1')
        I(f's_mov_b32 s4, {sDst}'); I(f's_mov_b32 s5, {sRS}')
        I('v_accvgpr_write_b32 a38, v212'); I('v_accvgpr_write_b32 a39, v215')
        I('v_bfe_u32 v26, v0, 2, 1'); I(f's_mov_b32 {sT[0]}, 0x80008000'); I(f'v_mul_lo_u32 v26, v26, {sT[0]}')
        for r in range(120, 128): I(f'v_lshl_or_b32 v{r}, v{r+60}, 16, v{r}')
        for r in range(120, 128): I(f'v_xor_b32 v{r}, v{r}, v26')
        for r in range(8): I(f'v_accvgpr_write_b32 a{240+r}, v{120+r}')
        I(f's_add_u32 s36, {sH}, {sXG}') if self.ROT == 1 else I(f's_mov_b32 s36, {sXG if self.ROT == 2 else 0}')
        I('s_mul_i32 s37, s36, 52429'); I('s_lshr_b32 s37, s37, 18'); I('s_mul_i32 s37, s37, 5'); I('s_sub_u32 s36, s36, s37')
        I('s_lshl_b32 s36, s36, 12')
        for q in range(1, 5):
            I(f's_add_u32 s{36+q}, s{35+q}, 4096'); I(f's_cmp_eq_u32 s{36+q}, 20480'); I(f's_cselect_b32 s{36+q}, 0, s{36+q}')
        self.stamp('s2_issued')

    def arrive(self, which, t, sx='0'):
        I = self.I
        I(f's_cmp_eq_u32 {sW}, 0'); I(f's_cselect_b32 {sT[0]}, 0, {OOB}')
        I(f's_add_u32 {sT[1]}, {sN1}, {sx}')
        I(f'v_mov_b32 v{t}, {sN0}'); I(f'v_mov_b32 v{t+1}, {sT[1]}')
        I(f'v_lshlrev_b32 {vT0}, 3, v0'); I(f'v_or_b32 {vT0}, {sT[0]}, {vT0}')
        I(f's_lshl_b32 {sT[1]}, s2, 7'); I(f's_add_u32 {sT[1]}, {sT[1]}, {CNT + which*32768}')
        I('s_mov_b64 exec, 0xffff')
        I(f'buffer_store_dwordx2 {vr(t,2)}, {vT0}, {WS}, {sT[1]} offen sc1')
        I('s_mov_b64 exec, -1')
    def allchk_issue(self, which, t):
        with self.a.capture() as c:
            I = self.I
            I(f'v_lshlrev_b32 v{t+2}, 7, v0')
            I(f's_lshl_b32 {sT[5]}, {sW}, 13'); I(f's_add_u32 {sT[5]}, {sT[5]}, {CNT + which*32768}')
            I(f'buffer_load_dwordx2 {vr(t,2)}, v{t+2}, {WS}, {sT[5]} offen sc1', 'pall')
        return [c.items]
    def allchk(self, t):
        a = self.a; I = self.I
        L = a.newlabel('ACP'); D = a.newlabel('ACD')
        a.wait(vm='pall')
        I(f's_mov_b32 {sSpin}, {sDead}')
        a.label(L)
        I(f'v_and_b32 v{t+1}, -16, v{t+1}'); I(f'v_cmp_eq_u64 vcc, s[0:1], {vr(t,2)}'); I('s_cmp_eq_u64 vcc, -1'); I(f's_cbranch_scc1 {D}')
        a.raw(f'    buffer_load_dwordx2 {vr(t,2)}, v{t+2}, {WS}, {sT[5]} offen sc1')
        I('s_waitcnt vmcnt(0)')
        I(f's_sub_u32 {sSpin}, {sSpin}, 1'); I(f's_cbranch_scc0 {L}')
        I(f's_mov_b32 {sDead}, 0')
        a.label(D)

    def s2_stores(self, v0_, v1_):
        out = []
        for i in range(4): out.append([Ins(f'buffer_store_dwordx4 {ar(4*i,4)}, {v0_}, {WS}, s4 offen offset:{i*1024} sc1', 's2s')])
        out.append([Ins('s_add_u32 s4, s4, 4096'), Ins(f'buffer_store_dwordx4 {ar(16,4)}, {v0_}, {WS}, s4 offen sc1', 's2s')])
        for i in range(3):
            out.append([Ins(f'buffer_store_dwordx4 {ar(20+4*i,4)}, {v1_}, {WS}, s5 offen sc1', 's2s'), Ins('s_add_u32 s5, s5, 20480')])
        out.append([Ins(f's_add_u32 s4, {sKVo}, {2*MB}'), Ins(f'buffer_store_dwordx4 {ar(32,4)}, {vL16}, {WS}, s4 offen sc1', 's2s'),
                    Ins(f'v_or_b32 {v0_}, {sEdge}, {vL16}'), Ins(f'v_or_b32 {v1_}, {sEdge}, {vS8}')])
        for l in range(2):
            out.append([Ins(f's_add_u32 s4, {sA20}, {HD(l)}'), Ins(f'buffer_store_dwordx4 {ar(32,4)}, {v0_}, {WS}, s4 offen sc1', 's2s'),
                        Ins(f'buffer_store_dwordx4 {ar(32,4)}, {v0_}, {WS}, s4 offen offset:1024 sc1', 's2s'),
                        Ins(f's_add_u32 s4, {sH20}, {HD(l)}'), Ins(f'buffer_store_dwordx2 {ar(32,2)}, {v1_}, {WS}, s4 offen sc1', 's2s')])
        return out

    def gwait(self):
        a = self.a; I = self.I
        sU = sT[8]
        I(f's_cmp_lg_u32 {sW}, 0'); I('s_cbranch_scc1 GB_WAIT')
        I(f's_lshr_b32 {sT[0]}, {sH}, 4')
        I(f'v_lshlrev_b32 v201, 1, v0'); I(f'v_add_u32 v201, {sT[0]}, v201')
        I('v_and_b32 v203, 15, v0'); I('v_lshlrev_b32 v203, 1, v203'); I(f'v_add_u32 v203, {sT[0]}, v203'); I('v_add_u32 v203, 128, v203')
        I('v_and_b32 v204, 31, v0'); I('v_lshlrev_b32 v204, 3, v204'); I(f'v_add_u32 v204, {sXG}, v204')
        I('v_cmp_gt_u32 vcc, 32, v0'); I('v_cndmask_b32 v203, v203, v204, vcc')
        I('v_lshlrev_b32 v201, 7, v201'); I('v_lshlrev_b32 v203, 7, v203')
        I(f's_mov_b32 {sT[1]}, {CNT}')
        I(f's_mov_b32 {sSpin}, {sDead}')
        a.label('GB_P1')
        a.raw(f'    buffer_load_dwordx2 v[206:207], v201, {WS}, {sT[1]} offen sc1')
        a.raw(f'    buffer_load_dwordx2 v[208:209], v203, {WS}, {sT[1]} offen sc1')
        I('s_waitcnt vmcnt(0)')
        I('v_and_b32 v207, -16, v207'); I('v_and_b32 v202, 15, v209'); I('v_and_b32 v209, -16, v209')
        I('v_cmp_eq_u64 vcc, s[0:1], v[206:207]'); I('v_cmp_eq_u64 s[6:7], s[0:1], v[208:209]')
        I('s_and_b64 vcc, vcc, s[6:7]'); I('s_cmp_eq_u64 vcc, -1'); I('s_cbranch_scc1 GB_P1D')
        I(f's_sub_u32 {sSpin}, {sSpin}, 1'); I('s_cbranch_scc0 GB_P1')
        a.label('GB_P1D')
        I(f'v_cmp_eq_u32 vcc, {sU}, v202')
        I(f's_cmp_eq_u32 vcc_lo, -1'); I(f's_cselect_b32 {sT[0]}, 1, 0')
        I(f'v_mov_b32 v200, {sT[0]}'); I(f'v_mov_b32 v201, {7*BANK}')
        I('ds_write_b32 v201, v200')
        a.label('GB_WAIT')
        a.wait(lg=None)
        I('s_barrier')
        I(f'v_mov_b32 v201, {7*BANK}')
        I(f'ds_read_b32 {vT0}, v201', 'mode')
        self.stamp('gbar_done')

    def softmax(self, P, t, KL):
        I = self.I
        I(f'v_max3_f32 v{t}, v{P}, v{P+1}, v{P+2}')
        I(f'v_max3_f32 v{t+1}, v{P+3}, v{P+4}, v{P+5}')
        for i in range(6, 18, 4):
            I(f'v_max3_f32 v{t}, v{t}, v{P+i}, v{P+i+1}')
            I(f'v_max3_f32 v{t+1}, v{t+1}, v{P+i+2}, v{P+i+3}')
        I(f'v_max3_f32 v{t}, v{t}, v{P+18}, v{P+19}')
        I(f'v_max_f32 v{t}, v{t}, v{t+1}')
        I(f'v_mul_f32 v{t}, {hex(f2u(-LOG2E))}, v{t}')
        for i in range(10): I(f'v_pk_fma_f32 {vr(P+2*i,2)}, {vr(P+2*i,2)}, {vr(KL,2)}, {vr(t,2)} op_sel_hi:[1,0,0]')
        for i in range(20): I(f'v_exp_f32 v{P+i}, v{P+i}')
        I(f'v_pk_add_f32 {vr(t,2)}, {vr(P,2)}, {vr(P+2,2)}')
        for i in range(2, 10): I(f'v_pk_add_f32 {vr(t,2)}, {vr(t,2)}, {vr(P+2*i,2)}')
        I(f'v_add_f32 v{t}, v{t}, v{t+1}')
        I(f'v_rcp_f32 v{t}, v{t}')
        for i in range(10): I(f'v_pk_mul_f32 {vr(P+2*i,2)}, {vr(P+2*i,2)}, {vr(t,2)} op_sel_hi:[1,0]')
        self.pack(P, P, 10)

    def phi(self, P, B0, B1, AF, bphi):
        for t in range(5):
            self.I(f'v_mfma_f32_16x16x32_bf16 {vr(P+4*t,4)}, {vr(AF+4*t,4)}, {vr(B0,4)}, 0')
        for t in range(5):
            self.I(f'v_mfma_f32_16x16x32_bf16 {vr(P+4*t,4)}, {vr(AF+20+4*t,4)}, {vr(B1,4)}, {vr(P+4*t,4)}')

    def qkv(self, l, wb, bphi, bscr, tail, fill1, fill2, fill4):
        a = self.a; I = self.I
        AF, ACC = 64, 192
        RA, DA = 6, 5
        LA = self.LA0 if l == 0 else self.LA1
        NR = 4*(LA+1); XR = 192 - 4*NR; AR = XR - 24
        assert AR >= 104
        ONES, CWF, CWA = 20, 24, 32
        NP = [36, 38, 40, 42]
        vX = [vL16, 'v44', 'v45', 'v46']; vCW = [47, 48, 49]
        vPK, vV1, vV3, vTA, vTB, vRS, vKD, vKL, vA0, vA2, vO4, vO1, vCr, vCw = range(50, 64)
        kvl = bphi*BANK + 13312; cwo = bphi*BANK + 12288
        def setup():
            t0, t1, t2, t3, vTok, vG = 64, 65, 66, 67, 68, 69
            for t in range(1, 4): I(f'v_add_u32 {vX[t]}, {t*21504}, {vL16}')
            I(f's_lshl_b32 {sT[3]}, {sW}, 10')
            if l == 0:
                for r in range(4): I(f'v_mov_b32 v{ONES+r}, 0x3f803f80')
                for k, base in enumerate((vL16, vL16b, vL16c)): I(f'v_add_u32 v{vCW[k]}, {sT[3]}, {base}')
            for r in range(8): I(f'v_accvgpr_read_b32 v{76+r}, a{240+r}')
            I(f'v_bfe_u32 v{t0}, v0, 3, 1'); I(f'v_add_u32 v{t0}, -1, v{t0}'); I(f'v_not_b32 v{t1}, v{t0}')
            for r in range(8): I(f'v_and_b32 v{84+r}, v{76+r}, v{t0}')
            for r in range(8): I(f'v_and_b32 v{92+r}, v{76+r}, v{t1}')
            I(f'v_add_u32 v{t0}, {bphi*BANK}, {vL16}'); I(f'v_add_u32 v{t1}, {sT[3]}, v{t0}')
            I(f'ds_write_b128 v{t1}, {vr(84,4)}'); I(f'ds_write_b128 v{t0}, {vr(88,4)} offset:4096')
            I(f'ds_write_b128 v{t1}, {vr(92,4)} offset:5120'); I(f'ds_write_b128 v{t0}, {vr(96,4)} offset:9216')
            for r in range(4): I(f'v_mov_b32 v{72+r}, 0')
            I(f'v_min_u32 v{t0}, {35*16}, {vL16}'); I(f'v_add_u32 v{t0}, {kvl+96*21}, v{t0}')
            I(f'ds_write_b128 v{t0}, {vr(72,4)}')
        def setupB():
            t0, t1, t2, t3, vTok, vG = 64, 65, 66, 67, 68, 69
            if l: self.decomp(20, 248, 16, t0)
            I(f's_mov_b32 {sWB}, {bscr[1]*BANK}'); I(f's_cmp_lt_u32 {sW}, 2'); I(f's_cselect_b32 {sWB}, {bscr[0]*BANK}, {sWB}')
            I(f's_and_b32 {sT[3]}, {sW}, 1'); I(f's_mul_i32 {sT[3]}, {sT[3]}, 10240'); I(f's_add_u32 {sWB}, {sWB}, {sT[3]}')
            I(f'v_and_b32 v{vTok}, 15, v0'); I(f'v_lshrrev_b32 v{vG}, 4, v0')
            I(f's_lshl_b32 {sT[3]}, {sW}, 6'); I(f's_add_u32 {sT[3]}, {sT[3]}, {cwo}')
            I(f'v_lshlrev_b32 v{t0}, 4, v{vG}'); I(f'v_add_u32 v{vCw}, {sT[3]}, v{t0}'); I(f'v_add_u32 v{vCr}, {cwo}, v{t0}')
            I(f'v_lshrrev_b32 v{t0}, 5, v0'); I(f'v_lshl_add_u32 v{t0}, v{t0}, 4, v{vTok}'); I(f'v_mul_u32_u24 v{vPK}, 80, v{t0}')
            I(f'v_and_b32 v{t0}, 1, v{vG}'); I(f'v_mul_u32_u24 v{t0}, 40, v{t0}'); I(f'v_add3_u32 v{vPK}, v{vPK}, v{t0}, {sWB}')
            I(f'v_mul_u32_u24 v{t0}, 72, v{vTok}'); I(f'v_add_u32 v{t0}, {sWB}, v{t0}'); I(f'v_add_u32 v{t0}, 5120, v{t0}')
            I(f'v_lshlrev_b32 v{t1}, 3, v{vG}'); I(f'v_add_u32 v{vV1}, -8, v{t1}'); I(f'v_add_u32 v{vV3}, 16, v{t1}')
            I(f'v_cmp_eq_u32 vcc, 0, v{vG}'); I(f'v_cndmask_b32 v{vV1}, v{vV1}, 48, vcc'); I(f'v_cndmask_b32 v{vV3}, v{vV3}, 56, vcc')
            I(f'v_add_u32 v{vV1}, v{vV1}, v{t0}'); I(f'v_add_u32 v{vV3}, v{vV3}, v{t0}')
            I(f'v_lshrrev_b32 v{t0}, 2, v{vTok}'); I(f'v_lshl_add_u32 v{t0}, v{vG}, 3, v{t0}')
            I(f'v_and_b32 v{t1}, 3, v0'); I(f'v_lshlrev_b32 v{t1}, 3, v{t1}'); I(f'v_add_u32 v{t1}, {sWB}, v{t1}')
            I(f'v_mad_u32_u24 v{vTA}, v{t0}, 20, v{t1}'); I(f'v_mad_u32_u24 v{vTA}, v{t0}, 60, v{vTA}')
            I(f'v_mad_u32_u24 v{vTB}, v{t0}, 12, v{t1}'); I(f'v_mad_u32_u24 v{vTB}, v{t0}, 60, v{vTB}'); I(f'v_add_u32 v{vTB}, 5120, v{vTB}')
            I(f'v_min_u32 v{t0}, 59, v0')
            I(f'v_mul_u32_u24 v{t1}, 3277, v{t0}'); I(f'v_lshrrev_b32 v{t1}, 16, v{t1}')
            I(f'v_mul_u32_u24 v{t2}, 20, v{t1}'); I(f'v_sub_u32 v{t0}, v{t0}, v{t2}')
            I(f'v_mul_u32_u24 v{t2}, 13108, v{t0}'); I(f'v_lshrrev_b32 v{t2}, 16, v{t2}')
            I(f'v_mul_u32_u24 v{t3}, 5, v{t2}'); I(f'v_sub_u32 v{t0}, v{t0}, v{t3}')
            I(f's_cmp_eq_u32 {sW}, 3'); I('s_cselect_b64 vcc, -1, 0')
            I(f'v_mov_b32 v{t3}, {sW}')
            I(f'v_cndmask_b32 v{t1}, v{t3}, v{t1}, vcc')
            I(f'v_cndmask_b32 v{t2}, v{vG}, v{t2}, vcc')
            I(f'v_cndmask_b32 v{t0}, v{vTok}, v{t0}, vcc')
            I(f'v_cndmask_b32 v{t3}, 0, 1, vcc')
            I(f'v_lshlrev_b32 v{vRS}, 10, v{t1}'); I(f'v_mad_u32_u24 v{vRS}, v{t3}, {self.sconst(3072)}, v{vRS}')
            I(f'v_lshl_add_u32 v{vRS}, v{t2}, 8, v{vRS}'); I(f'v_lshl_add_u32 v{vRS}, v{t0}, 4, v{vRS}')
            I(f'v_lshl_add_u32 v{t1}, v{t1}, 2, v{t2}')
            I(f'v_lshl_add_u32 v{t0}, v{t3}, 4, v{t0}')
            I(f'v_mul_u32_u24 v{vKD}, 96, v{t0}'); I(f'v_lshl_add_u32 v{vKD}, v{t1}, 3, v{vKD}')
            I(f'v_cmp_le_u32 vcc, 5, v{t1}'); I(f'v_cndmask_b32 v{t0}, 0, 8, vcc'); I(f'v_add_u32 v{vKD}, v{vKD}, v{t0}')
            I(f'v_add_u32 v{vKD}, {kvl}, v{vKD}')
            I(f'v_cmp_gt_u32 vcc, 10, v{t1}')
            I(f'v_mov_b32 v{t0}, {kvl + 96*30}'); I(f'v_cndmask_b32 v{vKD}, v{t0}, v{vKD}, vcc')
            I(f'v_mov_b32 v{t0}, {OOB}'); I(f'v_lshlrev_b32 v{vKL}, 3, v0'); I(f'v_cndmask_b32 v{vKL}, v{t0}, v{vKL}, vcc')
            I(f'v_bfe_u32 v{t0}, v0, 2, 1'); I(f'v_and_b32 v{t1}, 3, v0')
            I(f'v_lshl_add_u32 v{t2}, v{t0}, 3, v{t1}')
            I(f'v_lshl_add_u32 v{t3}, v{t0}, 1, v{t1}'); I(f'v_add_u32 v{t3}, 16, v{t3}')
            I(f'v_cmp_le_u32 vcc, 2, v{t1}'); I(f'v_cndmask_b32 v{t3}, v{t3}, 20, vcc')
            I(f'v_bfe_u32 v{t0}, v0, 3, 1'); I(f'v_lshrrev_b32 v{t1}, 5, v0')
            I(f'v_cmp_eq_u32 vcc, v{t0}, v{t1}')
            I(f'v_cndmask_b32 v{t2}, 21, v{t2}, vcc'); I(f'v_cndmask_b32 v{t3}, 21, v{t3}, vcc')
            I(f'v_and_b32 v{t0}, 1, v{vG}'); I(f'v_mul_u32_u24 v{t0}, 48, v{t0}'); I(f'v_add_u32 v{t0}, {kvl}, v{t0}')
            I(f's_movk_i32 {sT[3]}, 96')
            I(f'v_mad_u32_u24 v{vA0}, v{t2}, {sT[3]}, v{t0}'); I(f'v_mad_u32_u24 v{vA2}, v{t3}, {sT[3]}, v{t0}')
            I(f'v_mul_u32_u24 v{vO4}, 20480, v{t1}'); I(f'v_lshl_add_u32 v{vO4}, v{vTok}, 4, v{vO4}')
            I(f'v_and_b32 v{t0}, 1, v{vG}')
            I(f'v_lshl_add_u32 v{vO1}, v{t0}, 2, v{vO4}'); I(f'v_lshl_add_u32 v{vO4}, v{t0}, 8, v{vO4}')
        def aread(f):
            s_, i = f >> 2, f & 3
            b, o = self.lds(wb[s_ // 5]*BANK + ((s_ % 5)*4 + i)*1024)
            I(f'ds_read_b128 {vr(AR+4*(f % RA),4)}, {b} offset:{o}', ('a', f))
        def cwread(s_):
            off = wb[s_ // 5]*BANK + (s_ % 5)*4096
            I(f'ds_read_b128 {vr(CWF+4*(s_&1),4)}, v{vCW[off>>16]} offset:{off & 0xffff}', ('cw', s_))
        def xload(n):
            s_ = n >> 2
            if n % 16 == 0:
                I(f's_add_u32 {sT[2]}, {sQT21}, s{36 + (s_ >> 2)}'); I(f's_add_u32 {sT[2]}, {sT[2]}, {XA(l)}')
            I(f'buffer_load_dwordx4 {vr(XR + 4*(n % NR),4)}, {vX[n & 3]}, {WS}, {sT[2]} offen offset:{(s_ & 3)*1024} sc1', ('x', n))
        self._lf = None
        def wstep(q):
            if q >= 20: return
            I(f's_lshl_b32 {sDm}, s{36 + (q >> 2)}, 2'); I(f's_add_u32 {sDm}, {sDm}, {sT[6]}'); I(f's_add_u32 {sDm}, {sDm}, {WT_QKV + (q & 3)*4096}')
            I(f's_add_u32 m0, s3, {wb[q//5]*BANK + (q % 5)*4096}')
            I(f'buffer_load_dwordx4 {vL16}, {WS}, {sDm} offen lds', ('wq', q))
        if l == 0:
            setup(); setupB()
            self.gwait()
            self.emit(self.touchT(XA(0), 21504))
            I(f's_lshl_b32 s3, {sW}, 10')
            I(f's_mul_i32 {sT[6]}, {sH}, 81920'); I(f's_add_u32 {sT[6]}, {sT[6]}, s3')
            BS = self.BS; WO_ = BS + 2
            for q in range(3): wstep(q)
            nq = 3
            for q in range(LA):
                for t in range(4):
                    xload(4*q+t)
                    if nq < WO_ + q + 1 and t % 2 == 1: wstep(nq); nq += 1
            while nq < WO_ + LA: wstep(nq); nq += 1
            a.wait(lg='mode'); I(f'v_readfirstlane_b32 {sMODE}, {vT0}')
            a.wait(vm=('wq', 1)); I('s_barrier')
            self.ls('g0_bar')
            for f in range(DA): aread(f)
            cwread(0)
        else:
            setup()
            a.wait(lg=None); I('s_barrier')
            for f in range(DA): aread(f)
            I(f's_lshl_b32 {sT[3]}, {sXG}, 2'); I(f's_add_u32 {sT[3]}, {sT[3]}, {sW}'); I(f's_lshl_b32 {sT[3]}, {sT[3]}, 7'); I(f's_add_u32 {sT[3]}, {sT[3]}, {FL}')
            self.poll(vFl, sT[3], 8*(l-1)+5)
            self.stamp(f'qkv{l}_go')
            for n in range(4*LA): xload(n)
        ST = XR + 4*(80 % NR)
        tailf = tail()
        with a.capture() as G:
          for s_ in range(20):
            for i in range(4):
                f = 4*s_ + i
                for t in range(4):
                    if i == 0 or t == 0: a.wait(vm=('x', 4*s_+t) if i == 0 else False, lg=('a', f) if t == 0 else False)
                    d = vr(ACC + 16*t + 4*i, 4)
                    I(f'v_mfma_f32_16x16x32_bf16 {d}, {vr(AR+4*(f%RA),4)}, {vr(XR+4*((4*s_+t)%NR),4)}, {d if s_ else 0}')
                    if t == 0 and f + DA < 80:
                        if l == 0 and i == 0 and s_ + 2 < 20 and (s_ < 2 or (s_ - 2) % self.BS == 0):
                            a.wait(vm=('wq', min(19, s_+2 if s_ < 2 else s_+1+self.BS))); I('s_barrier')
                        aread(f + DA)
                    if t == 1:
                        n = 4*(s_+LA) + i
                        if n < 80: xload(n)
                        elif s_ == 20 - LA: self.load_frag(ST + 4*i, vX[i], sQT21, XA(l), 20, 'stat')
                        elif l == 0 and s_ == 18 and i == 0: self.emit(self.allchk_issue(0, XR + 4*(68 % NR)))
                    if l == 0 and t == 3 and i == 3: wstep(s_ + LA + self.BS + 2)
                    if l == 0 and t == 2 and i == 0 and s_ + 1 < 20: cwread(s_+1)
                    if t == 2 and 14 <= s_ and 4*(s_-14)+i < 10:
                        k = 4*(s_-14)+i
                        b, o = self.lds(bphi*BANK + k*1024)
                        I(f'ds_read_b128 {vr(AF+4*k,4)}, {b} offset:{o}', 'af')
            if s_ in (0, 4, 9, 14, 19): self.ls(f'g{l}_s{s_}')
            if l == 0:
                a.wait(lg=('cw', s_))
                I(f'v_mfma_f32_16x16x32_bf16 {vr(CWA,4)}, {vr(CWF+4*(s_&1),4)}, {vr(ONES,4)}, {vr(CWA,4) if s_ else 0}')
        nm = 340 if l == 0 else 320
        fill = (self.stchk(ST, 4, 2, NP[0], [(vX[t], sQT21, XA(l)+20480) for t in range(4)]) if l else [Wait(vm='stat')]) + rr(*[self.cap(self.cons_stats, ST+4*t, NP[t], NP[t]+1) for t in range(4)])
        gi = G.items
        if l:
            gi, lf = gapfill(gi, sccgroup(self.cap(setupB)), start=4)
            assert not lf
        o, left = gapfill(gi, fill, start=nm - self.STG)
        a.extend(o)
        self.stamp(f'qkv{l}_gemm')
        self.emit(tailf)
        if l: self.cpf()
        CW = 20
        if l == 0:
            I(f'ds_write_b128 v{vCw}, {vr(CWA,4)}')
            self.flat(left)
            I('v_accvgpr_read_b32 v48, a38'); I('v_accvgpr_read_b32 v49, a39')
            s2s = self.s2_stores('v48', 'v49')
            self.allchk(XR + 4*(68 % NR))
            a.wait(lg=None); I('s_barrier')
            self.emit(self.touch(WT_O, 50))
            self.emit(s2s[:3]); s2s = s2s[3:]
            for i in range(4): I(f'ds_read_b128 {vr(CW+4*i,4)}, v{vCr} offset:{i*64}', 'cwr')
            I(f'v_and_b32 v46, 15, v0'); I('v_lshrrev_b32 v47, 2, v46'); I('v_and_b32 v46, 3, v46')
            I(f'v_lshl_add_u32 v47, v47, 6, v{vCr}'); I('v_lshl_add_u32 v47, v46, 2, v47')
            I('ds_read_b32 v46, v47', 'cwr')
            self.emit(s2s[:2]); s2s = s2s[2:]
            a.wait(lg='cwr')
            I('v_accvgpr_write_b32 a248, v46')
        else:
            self.flat(left); s2s = []
        self.ls(f'e{l}_st')
        KL, tmp = 44, 46
        PP = (104, 124); PKD = 144; TA = 192; TB = 204; KVA = 232
        for t in range(4):
            for i in (0, 1, 3):
                for h in range(2):
                    r = ACC+16*t+4*i+2*h
                    I(f'v_pk_fma_f32 {vr(r,2)}, {vr(CW+4*i+2*h,2)}, {vr(NP[t],2)}, {vr(r,2)} op_sel_hi:[1,0,1]')
            for i in (0, 1, 3):
                for h in range(2):
                    r = ACC+16*t+4*i+2*h
                    I(f'v_pk_mul_f32 {vr(r,2)}, {vr(r,2)}, {vr(NP[t],2)} op_sel:[0,1] op_sel_hi:[1,1]')
        for t in range(4):
            for h in range(2):
                r = ACC+16*t+8+2*h
                I(f'v_pk_fma_f32 {vr(176+4*t+2*h,2)}, {vr(CW+8+2*h,2)}, {vr(NP[t],2)}, {vr(r,2)} op_sel_hi:[1,0,1]')
        self.ls(f'e{l}_fix')
        for t in range(2): self.pack(PKD+8*t, ACC+16*t, 4)
        I(f'v_lshrrev_b32 v24, 4, v0'); I('v_cmp_eq_u32 vcc, 3, v24'); I('v_mov_b32 v24, 0x3f80')
        I(f'v_mov_b32 v{KL}, {hex(f2u(LOG2E))}')
        a.wait(lg='af')
        f0 = []
        for t in (2, 3): f0 += self.cap(self.pack, PKD+8*t, ACC+16*t, 4)
        f1 = []
        for t in range(4):
            q = PKD + 8*t + 6
            f1 += self.cap(self.pack, q, ACC+16*t+12, 2)
            f1 += [Ins(f'v_cndmask_b32 v{q}, v{q}, v24, vcc'), Ins(f'v_cndmask_b32 v{q+1}, v{q+1}, 0, vcc')]
            f1 += [Ins(f'ds_write_b64 v{vV1}, {vr(PKD+8*t+2,2)} offset:{16*t*72}'), Ins(f'ds_write_b64 v{vV3}, {vr(q,2)} offset:{16*t*72}')]
        o, left = gapfill(self.cap(self.phi, PP[0], PKD, PKD+8, AF, bphi), f0 + f1)
        a.extend(o)
        o, left = gapfill(self.cap(self.phi, PP[1], PKD+16, PKD+24, AF, bphi), left)
        a.extend(o); a.extend(left)
        self.ls(f'e{l}_phi')
        def trr(p):
            for ft in range(3):
                I(f'ds_read_b64_tr_b16 {vr(TA+20*p+4*ft,2)}, v{vTA} offset:{32*p*80+32*ft}', ('tr', p))
                I(f'ds_read_b64_tr_b16 {vr(TA+20*p+4*ft+2,2)}, v{vTA} offset:{32*p*80+32*ft+320}', ('tr', p))
            for dt in range(2):
                I(f'ds_read_b64_tr_b16 {vr(TB+20*p+4*dt,2)}, v{vTB} offset:{32*p*72+32*dt}', ('tr', p))
                I(f'ds_read_b64_tr_b16 {vr(TB+20*p+4*dt+2,2)}, v{vTB} offset:{32*p*72+32*dt+288}', ('tr', p))
        def kvm(p):
            a.wait(lg=('tr', p))
            for dt in range(2):
                for ft in range(3):
                    d = vr(KVA + 4*(dt*3+ft), 4)
                    I(f'v_mfma_f32_16x16x32_bf16 {d}, {vr(TA+20*p+4*ft,4)}, {vr(TB+20*p+4*dt,4)}, {d if p else 0}')
        for p in range(2):
            self.weave(self.cap(self.softmax, PP[p], tmp, KL), s2s[:3], 30); s2s = s2s[3:]
            for i in range(5): I(f'ds_write_b64 v{vPK}, {vr(PP[p]+2*i,2)} offset:{32*p*80+8*i}')
            trr(p)
        assert not s2s
        self.ls(f'e{l}_sm')
        I(f'v_add_u32 v24, {sWB}, {vL16}')
        kvm(0); kvm(1)
        for k in range(4): I(f'v_add_u32 v{25+k}, {bscr[k >> 1]*BANK + (k & 1)*10240}, v{vRS}')
        I(f's_add_u32 {sT[3]}, {sKVo}, {l*2*MB}')
        for k in range(6): I(f'ds_write_b128 v24, {vr(KVA+4*k,4)} offset:{k*1024}')
        self.ls(f'e{l}_kv')
        a.wait(lg=None); I('s_barrier')
        self.ls(f'e{l}_bar2')
        for k in range(4): I(f'ds_read_b128 {vr(TA+4*k,4)}, v{25+k}')
        for t in range(4):
            for h in range(2):
                r = 176+4*t+2*h
                I(f'v_pk_mul_f32 {vr(r,2)}, {vr(r,2)}, {vr(NP[t],2)} op_sel:[0,1] op_sel_hi:[1,1]')
        for t in range(4): self.pack(PKD+8*t+4, 176+4*t, 2)
        a.wait(lg=None)
        for h in range(2):
            I(f'v_pk_add_f32 {vr(TA+2*h,2)}, {vr(TA+2*h,2)}, {vr(TA+4+2*h,2)}')
            I(f'v_pk_add_f32 {vr(TA+8+2*h,2)}, {vr(TA+8+2*h,2)}, {vr(TA+12+2*h,2)}')
        for h in range(2):
            I(f'v_pk_add_f32 {vr(TA+2*h,2)}, {vr(TA+2*h,2)}, {vr(TA+8+2*h,2)}')
        self.pack(TA, TA, 2)
        I(f'buffer_store_dwordx2 {vr(TA,2)}, v{vKL}, {WS}, {sT[3]} offen sc1', 'kvst')
        self.stamp(f'qkv{l}_kvpub')
        self.emit(fill1())
        f2 = fill2()
        NW = self.NW if l else self.NW0
        wv = f2[:NW]; f2 = f2[NW:]
        ph = self.cap(self.phi, PP[0], PKD+4, PKD+12, AF, bphi) + self.cap(self.phi, PP[1], PKD+20, PKD+28, AF, bphi)
        if l == 0:
            for k, base in enumerate((vL16, vL16b, vL16c)): I(f'v_add_u32 v{24+k}, {sLW}, {base}')
            st = []
            for k in range(20):
                off = wb[k // 5]*BANK + (k % 5)*1024
                st.append([Ins(f'ds_read_b128 {vr(176+4*k,4)}, v{24+(off>>16)} offset:{off & 0xffff}', 'stash')])
            self.weave(ph, st, 4)
            a.wait(lg=None)
        else:
            self.weave(ph, wv[:5], 16); wv = wv[5:]
        for p in range(2):
            sm = self.cap(self.softmax, PP[p], tmp, KL)
            h_ = (len(wv)+1)//2 if p == 0 else len(wv)
            self.weave(sm, wv[:h_], max(8, 90//max(1, h_))); wv = wv[h_:]
        self.stamp(f'qkv{l}_qsm')
        HP = 0
        self.emit(f2[:HP])
        G0 = 64
        L = a.newlabel('KVPOLL'); D = a.newlabel('KVDONE'); C = a.newlabel('KVCHK')
        I(f's_mov_b32 {sSpin}, {sDead}')
        for x in range(8):
            I(f's_add_u32 {sT[3]}, {sKVi}, {l*2*MB + x*8192}')
            I(f'buffer_load_dwordx2 {vr(G0+2*x,2)}, v{vKL}, {WS}, {sT[3]} offen sc1', 'kvl')
        self.emit(f2[HP:])
        if self.TW1 == 3: self.emit(self.touch(WT_1, 50))
        I('v_mov_b32 v26, 0x3f80'); I('v_mov_b32 v27, 0x3f800000')
        for r in range(4): I(f'v_mov_b32 v{80+r}, 0')
        a.wait(vm='kvl')
        a.label(C)
        I(f'v_max3_u32 v24, v{G0}, v{G0+1}, v{G0+2}')
        I(f'v_max3_u32 v25, v{G0+3}, v{G0+4}, v{G0+5}')
        for i in range(6, 14, 4):
            I(f'v_max3_u32 v24, v24, v{G0+i}, v{G0+i+1}'); I(f'v_max3_u32 v25, v25, v{G0+i+2}, v{G0+i+3}')
        I(f'v_max3_u32 v24, v24, v{G0+14}, v{G0+15}')
        I(f'v_max_u32 v24, v24, v25')
        I('v_cmp_eq_u32 vcc, -1, v24')
        I('s_cmp_lg_u64 vcc, 0'); I(f's_cbranch_scc1 {L}')
        a.label(D)
        with a.capture() as c:
            a.label(L)
            I(f's_sub_u32 {sSpin}, {sSpin}, 1'); I(f's_cbranch_scc0 {L}_go')
            I(f's_mov_b32 {sDead}, 0'); I(f's_branch {D}')
            a.label(f'{L}_go')
            for x in range(8):
                r = G0+2*x
                I(f'v_max_u32 v24, v{r}, v{r+1}')
                I(f's_add_u32 {sT[3]}, {sKVi}, {l*2*MB + x*8192}')
                I('v_cmp_eq_u32 vcc, -1, v24')
                I('s_mov_b64 exec, vcc')
                I(f's_cbranch_execz {L}_s{x}')
                a.raw(f'    buffer_load_dwordx2 {vr(r,2)}, v{vKL}, {WS}, {sT[3]} offen sc1')
                a.label(f'{L}_s{x}')
                I('s_mov_b64 exec, -1')
            I('s_waitcnt vmcnt(0)')
            I(f's_branch {C}')
        self.ool += c.items
        self.stamp(f'qkv{l}_kvgot')
        for x in range(8):
            for r in range(4): I(f'v_dot2c_f32_bf16 v{80+r}, v{G0+2*x+(r>>1)}, v{26+(r&1)}')
        I('s_nop 2')
        self.pack(G0, 80, 2)
        I(f'ds_write_b64 v{vKD}, {vr(G0,2)}')
        for p in range(2):
            I(f's_add_u32 {sT[4+2*p]}, {sO4}, {OB(l)+2*p*20480}')
            I(f's_add_u32 {sT[5+2*p]}, {sO1}, {OB(l)+2*p*20480}')
        a.wait(vm='s2s' if l == 0 else False, lg=None); I('s_barrier')
        if l == 0: self.arrive(1, 32)
        AO = 136
        for u in range(3):
            for t in range(3):
                b, o = (vA0, 384*t) if t < 2 else (vA2, 0)
                if u < 2: I(f'ds_read_b128 {vr(AO+12*t+4*u,4)}, v{b} offset:{o+16*u}', ('ao', u))
                else: I(f'ds_read_b64 {vr(AO+12*t+8,2)}, v{b} offset:{o+32}', ('ao', u))
        DO = (64, 80)
        def om(p, u):
            for t in range(3):
                if u < 2: I(f'v_mfma_f32_16x16x32_bf16 {vr(DO[p]+4*t,4)}, {vr(AO+12*t+4*u,4)}, {vr(PP[p]+4*u,4)}, {vr(DO[p]+4*t,4) if u else 0}')
                else: I(f'v_mfma_f32_16x16x16_bf16 {vr(DO[p]+4*t,4)}, {vr(AO+12*t+8,2)}, {vr(PP[p]+8,2)}, {vr(DO[p]+4*t,4)}')
        for u in range(3):
            a.wait(lg=('ao', u)); om(0, u)
        def fin(p, pk):
            I(f'v_add_f32 v{DO[p]+10}, {hex(f2u(1e-6))}, v{DO[p]+10}')
            I(f'v_rcp_f32 v{DO[p]+10}, v{DO[p]+10}')
            if pk:
                for i in range(5): I(f'v_pk_mul_f32 {vr(DO[p]+2*i,2)}, {vr(DO[p]+2*i,2)}, {vr(DO[p]+10,2)} op_sel_hi:[1,0]')
            else:
                for i in range(10): I(f'v_mul_f32 v{DO[p]+i}, v{DO[p]+i}, v{DO[p]+10}')
            self.pack(DO[p], DO[p], 5)
        with a.capture() as c:
            for u in range(3): om(1, u)
        o, left = gapfill(c.items, self.cap(fin, 0, False), start=2)
        a.extend(o); a.extend(left)
        def ost(p):
            a.slow_begin(sMODE)
            I(f'buffer_store_dwordx4 {vr(DO[p],4)}, v{vO4}, {WS}, {sT[4+2*p]} offen', 'st')
            I(f'buffer_store_dword v{DO[p]+4}, v{vO1}, {WS}, {sT[5+2*p]} offen', 'st')
            a.slow_end()
        ost(0); fin(1, True); ost(1)
        self.emit(fill4())
        a.wait(vm='st')
        self.setflag(sFLOo, l+1)
        self.stamp(f'qkv{l}_end')

    def sconst(self, val):
        self.I(f's_movk_i32 {sT[4]}, {val}'); return sT[4]

    def areadS(self, banks, m):
        s_, i = divmod(m, 5)
        b, o = self.lds(banks[s_ // 4]*BANK + ((s_ % 4)*5 + i)*1024)
        self.I(f'ds_read_b128 {vr(self.AR5+4*(m % self.RA5),4)}, {b} offset:{o}', ('a', m))
    def preloadS(self, banks):
        for m in range(self.DA5): self.areadS(banks, m)
    def gemmS(self, KS, banks, ACC, init, side, NR):
        a = self.a; I = self.I
        NM = 5*KS
        for m in range(NM):
            s_, i = divmod(m, 5)
            if i == 0 or m % self.WG == 0:
                a.wait(vm=('x', s_) if i == 0 else False, lg=('a', min(NM-1, m + self.WG - 1)) if m % self.WG == 0 else False)
            d = vr(ACC+4*i, 4)
            I(f'v_mfma_f32_16x16x32_bf16 {d}, {vr(self.AR5+4*(m % self.RA5),4)}, {vr(80+4*(s_%NR),4)}, {d if (s_ or init) else 0}')
            for it in side.get(m, []): a.extend(it() if callable(it) else it)
            if m + self.DA5 < NM: self.areadS(banks, m + self.DA5)
    def put(self, side, bundles, start, every):
        for k, b in enumerate(bundles): side.setdefault(start + int(k*every), []).append(b)
    def put3(self, side, bundles, start, every):
        for k, b in enumerate(bundles):
            m = 3*int(round((start + k*every)/3.0))
            pre, ld = b[:-1], b[-1:]
            assert len(pre) <= 2
            for q, x in enumerate(pre): side.setdefault(m - len(pre) + q, []).append([x])
            side.setdefault(m, []).append(ld)
    def bar(self, vm=False, lg=False):
        return [Wait(vm, lg), Ins('s_barrier')]

    def small(self, banks, xl, ACC, init, tail, fill=None, NUP=8, name=''):
        self._lf = None
        NR = self.NR5
        for s_ in range(NUP): xl(s_, 80+4*(s_ % NR))
        side = {}
        for s_ in range(NUP, 20):
            m = max(1 + int((s_-NUP)*self.XE), 5*(s_-NR) + 5 if s_ >= NR else 0)
            side.setdefault(m, []).append(lambda s_=s_: self.cap(xl, s_, 80+4*(s_ % NR)))
        side.setdefault(44, []).append(self.bar())
        t0 = max(46, int(1 + (20-NUP)*self.XE) + 1)
        tail = [self.cap(self.cpf)] + list(tail)
        self.put(side, tail, t0, min(4.0, (self.TE-t0)/len(tail)))
        for m in (0, 43, 45, 99): side.setdefault(m, []).append(lambda m=m: self.cap(self.ls, f'{name}_m{m}'))
        if name[:2] == 'w1': side.setdefault(0, []).append(lambda: self.cap(self.ls, f'ga{name[2]}_m0'))
        items = self.cap(self.gemmS, 20, banks, ACC, init, side, NR)
        left = []
        for st, its in (fill or []):
            items, lf = gapfill(items, its, start=st); left += lf
        self.a.extend(items); self.flat(left)
    XE = 4.0

    def layer(self, l, B):
        a = self.a; I = self.I
        last = (l == 1)
        ACC, XP, PK, TMP = 20, 40, 60, 72
        NMr, R1r, RRr = 76, 78, 74
        if l == 0: self.AR5, self.RA5, self.DA5, self.NR5, M = 128, 10, 8, 12, 168
        else:      self.AR5, self.RA5, self.DA5, self.NR5, M = 208, 12, 10, 20, 168
        wo = lambda ch, bk: self.dma_b(sW5, WT_O + ch*BANK, bk, 'wo')
        w1 = lambda ch, bk: self.dma_b(sW5, WT_1 + ch*BANK, bk, 'w1')
        w2 = lambda ch, bk: self.dma_b(sW5, WT_2 + ch*BANK, bk, 'w2')
        w4 = lambda ch, bk: self.dma_b(sW4, WT_4 + ch*BANK, bk, ('w4', ch))
        w4b = [B[4], B[7], B[0], B[3], B[1], B[2], B[5], B[6], B[4], B[7], B[0], B[3]]
        def w3l(k):
            kk = (k % 3)*20 + k // 3
            return [Ins(f's_add_u32 s3, {sW3}, {WT_3 + kk*1024}'), Ins(f'buffer_load_dwordx4 {ar(4*kk,4)}, {vL16}, {WS}, s3 offen', ('w3', k // 3))]
        def tq():
            r = self.touchT(OB(l), 20480)
            if l:
                r += self.touch(WT_O, 50)
                if self.TW1 == 2: r += self.touch(WT_1, 50)
                if self.TW2:
                    with a.capture() as c2:
                        I(f's_lshr_b32 s7, {sWI}, 4'); I('s_mul_i32 s7, s7, 102400'); I(f's_and_b32 s6, {sWI}, 7'); I('s_mul_i32 s6, s6, 2560'); I('s_add_u32 s7, s7, s6')
                        I(f's_bitcmp1_b32 {sWI}, 3'); I(f's_cselect_b32 s6, {4*BANK}, 0'); I('s_add_u32 s7, s7, s6')
                    r.append(c2.items + self.touch2('s7', WT_2, 20)[0])
            return r
        f1 = lambda: self.touch(WT_1, 50) if (l and self.TW1 == 1) else []
        f2 = lambda: wo(0, B[7]) + wo(1, B[0]) + wo(2, B[1]) + wo(3, B[2]) + wo(4, B[3])
        f4 = lambda: w1(0, B[5])
        self.qkv(l, B[0:4], B[4], B[5:7], tq, f1, f2, f4)
        if self.stop == f'qkv{l}': return True
        wob = [B[7], B[0], B[1], B[2], B[3]]
        I('s_barrier')
        self.preloadS(wob)
        self.emit(w1(1, B[6]) + (w1(2, B[4]) if self.G1 else []))
        self.unpack(ACC, RES, 10)
        I(f's_lshl_b32 {sT[3]}, {sC}, 7'); I(f's_add_u32 {sT[3]}, {sT[3]}, {FLO}')
        self.poll(vFl, sT[3], l+1)
        self.stamp(f'wo{l}_go')
        tl = ([] if self.G1 else w1(2, B[4])) + w1(3, B[7]) + w1(4, B[0])
        self.small(wob, lambda s_, r: self.load_frag(r, vL16, sT20, OB(l), s_, ('x', s_)), ACC, True, tl, name=f'wo{l}')
        self.stamp(f'wo{l}_gemm')
        self.ls(f'ga{l}_0')
        self.pack(PK, ACC, 10)
        self.store_tile(PK, XB(l), sA21, sH21)
        self.ls(f'ga{l}_st')
        self.prod_stats(ACC, TMP)
        self.store_stats(TMP, XB(l), 2 - l)
        self.ls(f'ga{l}_stats')
        if l == 0: self.emit(self.allchk_issue(1, M))
        for i in range(20): I(f'v_mov_b32 v{XP+i}, v{ACC+i}')
        a.wait(vm='st')
        self.ls(f'ga{l}_drain')
        self.setflag(sFLo, 8*l+1)
        CW = 176 if l else 128
        if l: self.decomp(CW, 249, 16, 70); self.decomp(CW+16, 250, 4, 70)
        I('s_barrier')
        self.ls(f'ga{l}_bar')
        if self.stop == f'wo{l}': return True
        w1b = [B[5], B[6], B[4], B[7], B[0]]
        def cw1():
            for k, base in enumerate((vL16, vL16b, vL16c)): I(f'v_add_u32 v{60+k}, {sLW}, {base}')
            for r in range(4): I(f'v_mov_b32 v{TMP+r}, 0x3f803f80')
            def rd(k):
                ch, i = divmod(k, 5); off = w1b[ch]*BANK + i*1024
                I(f'ds_read_b128 {vr(80+4*(k % 12),4)}, v{60+(off>>16)} offset:{off&0xffff}', ('cw', k))
            for k in range(10): rd(k)
            for k in range(25):
                a.wait(lg=('cw', k))
                d = vr(ACC+4*(k % 5), 4); I(f'v_mfma_f32_16x16x32_bf16 {d}, {vr(80+4*(k % 12),4)}, {vr(TMP,4)}, {d if k >= 5 else 0}')
                if k + 10 < 25: rd(k+10)
            cwo = B[3]*BANK
            I('v_lshrrev_b32 v70, 4, v0'); I('v_lshlrev_b32 v70, 4, v70'); I(f'v_add_u32 v70, {cwo}, v70')
            I(f's_mul_i32 {sT[3]}, {sW}, 320'); I(f'v_add_u32 v63, {sT[3]}, v70')
            I('v_bfe_u32 v71, v0, 2, 2'); I('v_and_b32 v64, 3, v0')
            I('v_lshl_add_u32 v70, v64, 2, v70'); I('v_lshl_add_u32 v71, v71, 6, v70')
            for i in range(5): I(f'ds_write_b128 v63, {vr(ACC+4*i,4)} offset:{i*64}', 'cww')
        if l == 0:
            cw1()
            self.preloadS(w1b)
            self.allchk(M)
        else:
            self.preloadS(w1b)
            self.emit(w2(0, B[1]) + (w2(1, B[2]) if self.G2 else []))
        I(f'v_and_b32 v{M}, 7, v0'); I(f'v_lshlrev_b32 v{M}, 2, v{M}')
        I(f's_lshl_b32 {sT[3]}, {sTT}, 5'); I(f's_add_u32 {sT[3]}, {sT[3]}, {FL}')
        if l == 0: a.wait(lg='cww')
        self.ls(f'ga{l}_pre')
        self.poll(f'v{M}', sT[3], 8*l+1)
        self.ls(f'ga{l}_poll')
        self.stamp(f'w1{l}_go')
        fills = []
        if l == 0:
            its = []
            for k in range(4):
                its.append(Ins(f'ds_read_b32 v{60+k}, v71 offset:{k*320}', 'cr'))
                its.append(Ins(f'ds_read_b32 v{64+k}, v70 offset:{k*320+256}', 'cr'))
            fills.append((46, its))
            fills.append((66, [Wait(lg='cr'), Ins('v_add_f32 v60, v60, v61'), Ins('v_add_f32 v62, v62, v63'), Ins('v_add_f32 v64, v64, v65'), Ins('v_add_f32 v66, v66, v67'),
                               Ins('v_add_f32 v60, v60, v62'), Ins('v_add_f32 v64, v64, v66'), Ins('v_accvgpr_write_b32 a249, v60'), Ins('v_accvgpr_write_b32 a250, v64')]))
        fills.append((68, self.stchk(M+4, 1, 2 - l, NMr, [(vL16, sT21, XB(l)+20480)]) + self.cap(self.cons_stats, M+4, NMr, RRr, double=True, r1=R1r) + [Ins(f'v_mov_b32 v{M}, v{NMr}')] + self.cap(self.gconst, M, RRr)))
        stl = [lambda: self.cap(self.load_frag, M+4, vL16, sT21, XB(l), 20, 'stat')]
        tl = stl + (w2(0, B[1]) if l == 0 else []) + w2(1, B[2]) + w2(2, B[5]) + (w2(3, B[6]) if l else [])
        self.small(w1b, lambda s_, r: self.load_frag(r, vL16, sT21, XB(l), s_, ('x', s_)), ACC, False, tl, fills, name=f'w1{l}')
        self.stamp(f'w1{l}_gemm')
        if l == 0:
            for q in range(20): I(f'v_mov_b32_dpp v{CW+q}, v{60 if q < 16 else 64} row_newbcast:{q & 15} row_mask:0xf bank_mask:0xf')
        self.weave(self.cap(self.lgA, ACC, CW, 10, 80, M), w2(3, B[6]) if l == 0 else [], 8); self.lgB(ACC, 10, 80, M, True)
        self.pack(PK, ACC, 10)
        I(f'v_or_b32 v70, {sEdge}, {vL16}'); I(f'v_or_b32 v71, {sEdge}, {vS8}')
        self.store_tile(PK, HB(l), sA20, sH20)
        self.store_tile(PK, HD(l), sA20, sH20, sc1=True, vA='v70', vH='v71', tag='sth')
        for i in range(10): I(f'v_pk_add_f32 {vr(ACC+2*i,2)}, {vr(XP+2*i,2)}, {vr(NMr,2)} op_sel_hi:[1,0]')
        for i in range(10): I(f'v_pk_mul_f32 {vr(ACC+2*i,2)}, {vr(ACC+2*i,2)}, {vr(R1r,2)} op_sel_hi:[1,0]')
        I(f's_lshl_b32 {sT[3]}, {sTT}, 4')
        I('v_and_b32 v84, 15, v0'); I(f'v_add_u32 v84, {sT[3]}, v84')
        I('v_lshrrev_b32 v85, 4, v0'); I('v_lshlrev_b32 v85, 8, v85')
        I(f'v_mov_b32 v88, {OOB}'); I(f'v_mov_b32 v89, {HD(l)-HB(l)}')
        for gi, dl in enumerate((-1, 1, -2, 2)):
            if gi == 2:
                a.wait(vm='st'); self.setflag(sFLo, 8*l+2)
            I(f'v_add_u32 v86, {dl}, v84')
            I('v_lshrrev_b32 v87, 4, v86'); I('v_and_b32 v87, 0xff, v87'); I('v_mul_u32_u24 v87, 20480, v87')
            I(f'v_and_b32 v{M+gi}, 15, v86'); I(f'v_lshl_add_u32 v{M+gi}, v{M+gi}, 4, v87'); I(f'v_add_u32 v{M+gi}, v{M+gi}, v85')
            I('v_lshrrev_b32 v87, 8, v86'); I(f'v_cmp_ne_u32 vcc, {sXG}, v87')
            I('v_cndmask_b32 v87, 0, v89, vcc'); I(f'v_add_u32 v{M+gi}, v{M+gi}, v87')
            I('v_cmp_gt_u32 vcc, 0x800, v86'); I(f'v_cndmask_b32 v{M+gi}, v88, v{M+gi}, vcc')
        I('s_barrier')
        if self.stop == f'w1{l}': return True
        w2b = [B[1], B[2], B[5], B[6], B[3]]
        self.preloadS(w2b)
        self.emit(w2(4, B[3]))
        I(f's_and_b32 {sT[8]}, {sTT}, 15')
        I(f's_cmp_eq_u32 {sT[8]}, 0'); I(f's_cselect_b32 {sT[4]}, 32, 0')
        I(f's_cmp_eq_u32 {sT[8]}, 15'); I(f's_cselect_b32 {sT[5]}, 32, 64')
        I('v_and_b32 v84, 7, v0'); I('v_lshlrev_b32 v84, 2, v84'); I('v_lshrrev_b32 v86, 3, v0')
        I('v_mov_b32 v85, 32'); I(f'v_mov_b32 v87, {sT[4]}'); I(f'v_mov_b32 v88, {sT[5]}')
        I('v_cmp_eq_u32 vcc, 1, v86'); I('v_cndmask_b32 v85, v85, v87, vcc')
        I('v_cmp_eq_u32 vcc, 2, v86'); I('v_cndmask_b32 v85, v85, v88, vcc')
        I('v_add_u32 v85, v85, v84')
        I(f's_lshl_b32 {sT[3]}, {sTT}, 5'); I(f's_add_u32 {sT[3]}, {sT[3]}, {FL-32}')
        I('v_min_u32 v84, 59, v0'); I('v_add_u32 v87, -20, v84')
        I('v_lshrrev_b32 v88, 1, v87'); I('v_add_u32 v88, 40, v88'); I('v_and_b32 v87, 1, v87')
        I(f's_xor_b32 {sT[4]}, {sBot}, 1')
        I('v_cmp_gt_u32 vcc, 20, v84'); I('v_cndmask_b32 v88, v88, v84, vcc'); I(f'v_mov_b32 v89, {sT[4]}'); I('v_cndmask_b32 v87, v87, v89, vcc')
        I('v_lshlrev_b32 v86, 8, v88'); I('v_lshl_add_u32 v86, v87, 4, v86'); I(f'v_or_b32 v86, {sEdge}, v86')
        I(f's_cmp_eq_u32 {sBot}, 1'); I(f's_mov_b32 {sT[4]}, {HD(l) - 20480 + 14*16}'); I(f's_cselect_b32 {sT[4]}, {HD(l) + 20480 + 5120}, {sT[4]}')
        I(f's_add_u32 {sT[4]}, {sT[4]}, {sT20}')
        L = a.newlabel('POLL'); D = a.newlabel('PDONE')
        I(f's_mov_b32 {sSpin}, {sDead}')
        a.label(L)
        I(f'buffer_load_dword {vT0}, v85, {WS}, {sT[3]} offen sc1')
        I(f'buffer_load_dwordx4 {vr(88,4)}, v86, {WS}, {sT[4]} offen sc1')
        a.wait(vm=None)
        I(f'v_max3_u32 v88, v88, v89, v90'); I('v_max_u32 v88, v88, v91')
        I(f'v_cmp_le_u32 vcc, {8*l+2}, {vT0}'); I('v_cmp_ne_u32 s[6:7], -1, v88')
        I('s_and_b64 vcc, vcc, s[6:7]')
        I('s_cmp_eq_u64 vcc, -1'); I(f's_cbranch_scc1 {D}')
        I(f's_sub_u32 {sSpin}, {sSpin}, 1'); I(f's_cbranch_scc0 {L}')
        I(f's_mov_b32 {sDead}, 0')
        a.label(D)
        self.stamp(f'w2{l}_go')
        I(f's_mov_b32 {sT[3]}, 0')
        tl = ([] if self.H2SC else self.touchT(H2(l), 49152)) if l else w4(0, w4b[0]) + w4(1, w4b[1])
        self.small(w2b, lambda s_, r: self.load_frag(r, f'v{M+s_//5}', sT[3], HB(l), s_, ('x', s_)), ACC, True, tl, name=f'w2{l}')
        self.stamp(f'w2{l}_gemm')
        self.pack(PK, ACC, 10)
        self.store_tile(PK, X1(l), sA21, sH21)
        self.prod_stats(ACC, TMP)
        self.store_stats(TMP, X1(l), 1 + l)
        NH = self.W3G if l == 0 else 0
        self.emit([w3l(k) for k in range(NH)])
        for i in range(10): I(f'v_pk_add_f32 {vr(XP+2*i,2)}, {vr(XP+2*i,2)}, {vr(ACC+2*i,2)}')
        xb = [B[1], B[2], B[5], B[6]]
        if l: CW3, ST3, A3, BF, GT = 80, 96, 128, 208, 176; NP3 = [112, 116, 120, 124]
        else: CW3, ST3, A3, BF, GT = 20, 60, 80, 128, 60; NP3 = [160, 164, 168, 172]
        a.wait(vm='st')
        self.setflag(sFLo, 8*l+3)
        if l: self.decomp(CW3, 251, 12, 92)
        I('s_barrier')
        if self.stop == f'w2{l}': return True
        I(f's_lshl_b32 {sT[3]}, {sC}, 7'); I(f's_add_u32 {sT[3]}, {sT[3]}, {FL}')
        def epiA(t): self.lgA(A3+12*t, CW3, 6, GT, NP3[t])
        def epiB(t, pk):
            self.lgB(A3+12*t, 6, GT, NP3[t], pk); self.pack(A3+12*t, A3+12*t, 6)
        def st3(t):
            acc = A3 + 12*t
            I(f's_add_u32 {sT[0]}, {sA48}, {H2(l)+t*49152}'); I(f's_add_u32 {sT[1]}, {sH48}, {H2(l)+t*49152}')
            pl = l and not self.H2SC
            sc = '' if pl else ' sc1'
            if pl: a.slow_begin(sMODE)
            I(f'buffer_store_dwordx4 {vr(acc,4)}, {vL16}, {WS}, {sT[0]} offen{sc}', 'st')
            I(f'buffer_store_dwordx2 {vr(acc+4,2)}, {vS8}, {WS}, {sT[1]} offen{sc}', 'st')
            if pl: a.slow_end()
        stf = self.stchk(ST3, 4, 1 + l, NP3[0], [(vL16, sC21, X1(l)+u*21504+20480) for u in range(4)]) + rr(*[self.cap(self.cons_stats, ST3+4*u, NP3[u], ST3+4*u+3) + self.cap(self.gconst, NP3[u], ST3+4*u+3) for u in range(4)])
        stl = lambda: [self.cap(self.load_frag, ST3+4*u, vL16, sC21, X1(l) + u*21504, 20, 'stat') for u in range(4)]
        if l == 0:
            for r in range(4): I(f'v_mov_b32 v{32+r}, 0x3f803f80')
            I(f's_mov_b32 {sT[6]}, {xb[0]*BANK}')
            for t in range(1, 4):
                I(f's_cmp_eq_u32 {sW}, {t}'); I(f's_cselect_b32 {sT[6]}, {xb[t]*BANK}, {sT[6]}')
            self.poll(vFl, sT[3], 8*l+3)
            self.stamp(f'w3{l}_go')
            self._lf = None
            x1 = lambda c: self.dma_b(sT21, X1(l) + c*5120, 0, ('x1', c), sc='sc1', slw=sT[6], ldsoff=c*5120)
            RB, DB = 8, 6
            def bread(n):
                s_, t = divmod(n, 4)
                b, o = self.lds(xb[t]*BANK + s_*1024)
                I(f'ds_read_b128 {vr(BF+4*(n % RB),4)}, {b} offset:{o}', ('b', n))
            WL = self.W3L
            self.emit(x1(0) + x1(1))
            self.emit([w3l(k) for k in range(NH, max(NH, 3*WL))])
            nw = max(NH, 3*WL)
            a.wait(vm=('x1', 0)); I('s_barrier')
            for n in range(DB): bread(n)
            xq = x1(2) + x1(3) + stl()
            late = w4(2, w4b[2]) + w4(3, w4b[3])
            with a.capture() as c:
                for s_ in range(20):
                    if s_ in (0, 5, 10, 15): self.ls(f'w30_s{s_}')
                    a.wait(vm=('w3', s_))
                    for t in range(5):
                        n = 4*s_ + t
                        for i in range(3):
                            if t < 4:
                                if i == 0: a.wait(lg=('b', n))
                                d = vr(A3+12*t+4*i, 4); bop = vr(BF+4*(n % RB), 4)
                            else:
                                d = vr(CW3+4*i, 4); bop = vr(32, 4)
                            I(f'v_mfma_f32_16x16x32_bf16 {d}, {ar(4*(i*20+s_),4)}, {bop}, {d if s_ else 0}')
                            if t < 4 and i == 0 and n + DB < 80:
                                if (n + DB) % 20 == 0:
                                    a.wait(vm=('x1', (n+DB)//20)); I('s_barrier')
                                bread(n + DB)
                            if i == 1:
                                if t < self.W3R and nw < 60: a.extend(w3l(nw)); nw += 1
                                elif xq and (t == 4 or nw >= 60): a.extend(xq.pop(0))
                                elif late and nw >= 60 and t % 2 == 0: a.extend(late.pop(0))
            assert nw == 60 and not xq, (nw, len(xq))
            o, left = gapfill(c.items, stf, start=240)
            a.extend(o); self.flat(left)
            self.ls('w30_k')
            I('s_barrier')
            wv = late + w4(4, xb[0]) + w4(5, xb[1]) + w4(6, xb[2]) + w4(7, xb[3])
            for t in range(4):
                k = (len(wv) - 5 + 2 - t)//(3 - t) if t < 3 else 0
                self.weave(self.cap(epiA, t) + self.cap(epiB, t, True), wv[:k], 16); wv = wv[k:]
                st3(t)
            self.emit(wv)
            I('v_and_b32 v33, 15, v0'); I(f'v_mov_b32 v32, v{CW3}')
            for i in range(1, 12):
                I(f'v_cmp_eq_u32 vcc, {i}, v33'); I(f'v_cndmask_b32 v32, v32, v{CW3+i}, vcc')
            I('v_accvgpr_write_b32 a251, v32')
        else:
            I(f's_add_u32 {sT[4]}, {sC21}, {sLW}')
            self.poll(vFl, sT[3], 8*l+3)
            self.stamp(f'w3{l}_go')
            self._lf = None
            x1 = lambda t: self.dma_b(sT[4], X1(l) + t*21504, xb[t], ('x1', t), sc='sc1')
            self.emit(x1(0) + stl())
            RB, DB = 8, 6
            def bread(n):
                t, s_ = divmod(n, 20)
                b, o = self.lds(xb[t]*BANK + s_*1024)
                I(f'ds_read_b128 {vr(BF+4*(n % RB),4)}, {b} offset:{o}', ('b', n))
            a.wait(vm=('x1', 0)); I('s_barrier')
            self.ls(f'w3{l}_x0')
            for n in range(DB): bread(n)
            vm_side = {}
            self.put3(vm_side, x1(1) + x1(2) + x1(3), 3, 3.9)
            self.put(vm_side, [self.cap(self.cpf)], 61, 1)
            if self.WB:
                wl = a.newlabel('WB')
                self.put(vm_side, [[Ins(f's_cmp_lg_u32 {sWI}, 0'), Ins(f's_cbranch_scc1 {wl}'), Raw('    buffer_wbl2 sc1'), Label(wl)]], self.WB, 1)
            if not self.NOW4: self.put3(vm_side, w4(0, w4b[0]) + w4(1, w4b[1]) + w4(2, w4b[2]) + w4(3, w4b[3]) + w4(4, xb[0]) + w4(5, xb[1]) + w4(6, xb[2]), 63, 4.9)
            for t in range(4):
                with a.capture() as c:
                    for s_ in range(20):
                        n = 20*t + s_
                        for i in range(3):
                            m = 3*n + i
                            if m == 0: a.wait(lg=('b', 0))
                            d = vr(A3+12*t+4*i, 4)
                            I(f'v_mfma_f32_16x16x32_bf16 {d}, {ar(4*(i*20+s_),4)}, {vr(BF+4*(n % RB),4)}, {d if s_ else 0}')
                            if i == 0 and n + DB < 80:
                                if n == 14: a.wait(vm=('x1', 1)); I('s_barrier')
                                if n == 34: a.wait(vm=('x1', 3)); I('s_barrier')
                                if n == 54 or n == 62: I('s_barrier')
                                bread(n + DB)
                            for it in vm_side.get(m, []): a.extend(it)
                            if i == 0 and n + 1 < 80: a.wait(lg=('b', n+1))
                if t == 0: o, left = gapfill(c.items, stf, start=6)
                else: o, left = gapfill(c.items, self.cap(epiB, t-1, False) + [self.cap(st3, t-1)])
                a.extend(o)
                if os.environ.get('V'): print('w3 tile', t, 'left', len(left))
                for x in left:
                    if isinstance(x, list): a.extend(x)
                    else: a.items.append(x)
                epiA(t)
                self.ls(f'w3{l}_t{t}')
            epiB(3, True); st3(3)
        self.stamp(f'w3{l}_gemm')
        a.wait(vm='st')
        self.setflag(sFLo, 8*l+4)
        I('s_barrier')
        if self.stop == f'w3{l}': return True
        self.preloadS(w4b)
        if l and self.C7: self.emit(w4(7, w4b[7]))
        I(f's_lshl_b32 {sT[3]}, {sC}, 7'); I(f's_add_u32 {sT[3]}, {sT[3]}, {FL}')
        self.poll(vFl, sT[3], 8*l+4)
        self.stamp(f'w4{l}_go')
        if self.LOOP4 and l:
            I('s_mov_b32 s41, 0'); a.label('LP4'); a.wait(vm=None, lg=None); I('s_barrier'); self.preloadS(w4b); a.wait(lg=None)
            a.raw('    s_memtime s[20:21]')
        self._lf = None
        NR = 32 if l else 12
        xl = lambda s_: self.load_frag(80+4*(s_ % NR), vL16, sT48, H2(l), s_, ('x', s_))
        NUP = self.W4N
        for s_ in range(NUP): xl(s_)
        side = {}
        self.put(side, [(lambda s_=s_: self.cap(xl, s_)) for s_ in range(NUP, 48)], 1, 5)
        if l and not self.C7: self.put(side, w4(7, w4b[7]), 3, 8)
        side.setdefault(40, []).append(self.bar());  self.put(side, w4(8, w4b[8]) + w4(9, w4b[9]), 43, self.W4P)
        side.setdefault(90, []).append(self.bar(vm=('w4', 7)));  self.put(side, w4(10, w4b[10]) + w4(11, w4b[11]), max(93, int(43+10*self.W4P)), self.W4P)
        side.setdefault(195, []).append(self.cap(self.cpf))
        side.setdefault(149, []).append(self.bar(vm=[('w4', 8), ('w4', 9)]))
        side.setdefault(189, []).append(self.bar(vm=[('w4', 10), ('w4', 11)]))
        nB = [B[1], B[2], B[5], B[6], B[4], B[7], B[0], B[3]]
        def unst(k):
            off = nB[k // 5]*BANK + (k % 5)*1024
            return [Ins(f'ds_write_b128 v{M+(off>>16)}, {vr(176+4*k,4)} offset:{off & 0xffff}', 'unst')]
        if not last:
            for k, base in enumerate((vL16, vL16b, vL16c)): I(f'v_add_u32 v{M+k}, {sLW}, {base}')
            self.put(side, [unst(k) for k in range(self.NU)], 230 - 1, 1)
            self.put(side, self.touchT(XA(l+1), 21504), 192, 1)
        self.gemmS(48, w4b, XP, True, side, NR)
        if self.LOOP4 and l:
            a.raw('    s_memtime s[22:23]'); I('s_waitcnt lgkmcnt(0)')
            I('s_cmp_eq_u32 s41, 1'); I('s_cbranch_scc1 LP4D')
            I('s_mov_b32 s24, s20'); I('s_mov_b32 s26, s22'); I('s_mov_b32 s41, 1'); I('s_branch LP4')
            a.label('LP4D')
            self.lflush(['  it2start', '  it2', '  it1start', '  it1'])
        self.stamp(f'w4{l}_gemm')
        if not last:
            self.pack(RES, XP, 10)
            self.store_tile(RES, XA(l+1), sA21, sH21)
            self.prod_stats(XP, TMP)
            self.store_stats(TMP, XA(l+1), 2)
            self.emit([unst(k) for k in range(self.NU, self.NU+6)])
            a.wait(vm='st')
            self.setflag(sFLo, 8*l+5)
            self.emit([unst(k) for k in range(self.NU+6, 20)])
        else:
            self.pack(PK, XP, 10)
            I('v_and_b32 v20, 15, v0'); I('v_lshrrev_b32 v21, 4, v0')
            I('v_mul_u32_u24 v26, 1280, v20')
            I('v_lshl_add_u32 v27, v21, 4, v26'); I('v_lshl_add_u32 v28, v21, 3, v26')
            I(f'buffer_store_dwordx4 {vr(PK,4)}, v27, {OUT}, {sOutA} offen')
            I(f'buffer_store_dwordx4 {vr(PK+4,4)}, v27, {OUT}, {sOutA} offen offset:64')
            I(f'buffer_store_dwordx2 {vr(PK+8,2)}, v28, {OUT}, {sOutH} offen')
        self.stamp(f'w4{l}_end')
        self.nB = nB
        return self.stop == f'w4{l}'
    BS = int(os.environ.get('BS', 3)); STG = int(os.environ.get('STG', 8)); NOW4 = int(os.environ.get('NOW4', 0)); W3P = float(os.environ.get('W3P', 5))
    TLB = int(os.environ.get('TLB', 0))
    W3R = int(os.environ.get('W3R', 3))
    NW = int(os.environ.get('NW', 20)); NW0 = int(os.environ.get('NW0', 16)); C7 = int(os.environ.get('C7', 0))
    TE = int(os.environ.get('TE', 94)); TW1 = int(os.environ.get('TW1', 0)); TW2 = int(os.environ.get('TW2', 1))
    LOOP4 = int(os.environ.get('LOOP4', 0))
    LA0 = 3; LA1 = 3; ROT = int(os.environ.get('ROT', 1))
    H2SC = int(os.environ.get('H2SC', 0)); WB = int(os.environ.get('WB', 0))
    G1 = int(os.environ.get('G1', 0)); G2 = int(os.environ.get('G2', 0)); W3L = int(os.environ.get('W3L', 5)); NU = int(os.environ.get('NU', 6))
    T4 = int(os.environ.get('T4', 0)); HP = int(os.environ.get('HP', 10)); S2M = int(os.environ.get('S2M', 0)); WG = int(os.environ.get('WG', 2))
    W4X = float(os.environ.get('W4X', 5)); W4P = float(os.environ.get('W4P', 5)); W4N = int(os.environ.get('W4N', 10))
    NTQ = int(os.environ.get('NTQ', 0))
    W3H = int(os.environ.get('W3H', 10)); W3G = int(os.environ.get('W3G', 6))
    R3 = float(os.environ.get('R3', 1.4))
    CPF = int(os.environ.get('CPF', 1))
    LS = 0

    def build(self):
        a = self.a
        self.prologue()
        if self.stop != 'prep':
            B = list(range(8))
            if not self.layer(0, B):
                self.layer(1, self.nB)
        a.wait(vm=None, lg=None)
        a.label('KEND')
        a.I('s_endpgm')
        a.extend(self.ool)
        main, stubs, n = a.finalize()
        hdr = open('cdna_kernels/' + NAME[:-7] + '.s.ref').read().split('; Override launch')[0]
        out = hdr + f"""; Persistent fused kernel (generated by own script): 256 workgroups, one per CU.
; @launch grid=(256,1,1) block=(256,1,1) lds=163840
.amdgcn_target "amdgcn-amd-amdhsa--gfx950"
.text
.globl {NAME}
.p2align 8
.type {NAME},@function
{NAME}:
KSTART:
{main}
{stubs}
CODE_END:
.section .rodata,"a"
.p2align 6
.amdhsa_kernel {NAME}
  .amdhsa_next_free_vgpr 512
  .amdhsa_next_free_sgpr 102
  .amdhsa_accum_offset 256
  .amdhsa_group_segment_fixed_size 0
  .amdhsa_kernarg_size 96
  .amdhsa_user_sgpr_count 2
  .amdhsa_user_sgpr_kernarg_segment_ptr 1
  .amdhsa_system_sgpr_workgroup_id_x 1
.end_amdhsa_kernel
"""
        return out, n

if __name__ == '__main__':
    import argparse, json
    ap = argparse.ArgumentParser()
    ap.add_argument('-o', default='k.s'); ap.add_argument('--stop'); ap.add_argument('--stamps', action='store_true')
    args = ap.parse_args()
    g = Gen(args.stop, args.stamps)
    s, n = g.build()
    open(args.o, 'w').write(s)
    json.dump(g.stampnames, open(args.o + '.stamps.json', 'w'))
    print('instructions', n, 'bytes', len(s))
```

```python
import sys, struct, math
from asmlib import *

NAME = "interleave_layers__linear_kernel_hedgehog__mixer_s_mlp__prompt_kernel"
MB = 1 << 20
WT_QKV, WT_O, WT_1, WT_2, WT_3, WT_4 = 0, 3*MB, 4*MB, 5*MB, 6*MB, 8*MB
APHI = 10*MB
SYNC = 13*MB
CNT, FL, FLO, FLH = SYNC+0x10000, SYNC+0x1000, SYNC+0x2000, SYNC+0x4000
KVP = 14*MB
def LB(l): return 18*MB + l*24*MB
import os
SEP = bool(os.environ.get('SEP'))
def XA(l): return LB(l) if SEP else LB(0)
def OB(l): return LB(l)+3*MB if SEP else LB(0)+3*MB
def XB(l): return LB(l)+6*MB if SEP else LB(0)
def HB(l): return LB(l)+9*MB if SEP else LB(0)+3*MB
def HD(l): return LB(l)+12*MB if SEP else LB(0)+12*MB+l*3*MB
def X1(l): return LB(l)+15*MB if SEP else LB(0)
def H2(l): return LB(l)+18*MB if SEP else LB(0)+18*MB
STAMP = 80*MB
BANK = 20480
OOB = 0x80000000
def f2u(x): return struct.unpack('<I', struct.pack('<f', x))[0]
LOG2E = 1.4426950408889634
GC0 = -2.0*math.sqrt(2.0/math.pi)*LOG2E
GC1 = GC0*0.044715

WS = 's[8:11]'; TS = 's[12:15]'; OUT = 's[16:19]'
P_X, P_QKV, P_PHI, P_O, P_1, P_2, P_3, P_4, P_OUT, P_DBG, P_WS = 20, 22, 24, 26, 30, 32, 34, 36, 38, 40, 42
_sn = [44]
def S(n=1, align=1):
    while _sn[0] % align: _sn[0] += 1
    r = _sn[0]; _sn[0] += n; return r
sXG, sH, sCL, sJ, sC, sW, sMODE, sTT = [f's{S()}' for _ in range(8)]
sA21, sH21, sS21, sT21, sA20, sH20, sT20, sT48 = [f's{S()}' for _ in range(8)]
sW5, sW4, sWQ, sLW, sOutA, sOutH, sEdge, sDead = [f's{S()}' for _ in range(8)]
sQT21, sO4, sO1, sKVo, sKVi, sA48, sH48, sC21, sFLo, sFLOo, sWI, sWB, sBot, sW3 = [f's{S()}' for _ in range(14)]
sT = [f's{S()}' for _ in range(10)]
sSpin = f's{S()}'
sDm = f's{S()}'
sN0 = 's0'; sN1 = 's1'
_p = S(2, 2); sStamp = f's[{_p}:{_p+1}]'; sStampLo = f's{_p}'
sStampOff = f's{S()}'
assert _sn[0] <= 100, _sn

vL16, vL16b, vL16c, vS8, vST, vFl = 'v1', 'v2', 'v3', 'v4', 'v5', 'v6'
vT0, vT1 = 'v7', 'v18'
RES = 8
def v(i): return f'v{i}'
def vr(i, n): return f'v[{i}:{i+n-1}]'
def ar(i, n): return f'a[{i}:{i+n-1}]'

class Gen:
    def __init__(self, stop=None, stamps=False):
        self.a = Asm(); self.stop = stop; self.stamps = stamps; self.nstamp = 0; self.stampnames = []; self.ool = []; self._ls = []; self.LSR = os.environ.get('LSR')
    def I(self, t, tag=None): self.a.I(t, tag)
    def lds(self, off):
        base = [vL16, vL16b, vL16c][off >> 16]; return base, off & 0xffff
    DBGN = ['s1_loaded', 's1_drained', 'gbar_done', 'qkv0_gemm', 'qkv0_end', 'w10_go', 'w30_go', 'w40_go', 'qkv1_go', 'qkv1_gemm', 'qkv1_end', 'w31_go', 'w41_go', 'w41_end']
    def dbgstamp(self, name):
        if name not in self.DBGN: return
        k = self.DBGN.index(name); I = self.I
        L = self.a.newlabel('DBG')
        I(f's_lshl_b32 {sT[9]}, s2, 2'); I(f's_add_u32 {sT[9]}, {sT[9]}, {sW}'); I(f's_cmp_lg_u32 {sT[9]}, {int(os.environ["DBG"])}'); I(f's_cbranch_scc1 {L}')
        self.a.raw('    s_memrealtime s[94:95]'); I('s_waitcnt lgkmcnt(0)')
        I('s_sub_u32 s94, s94, s98'); I('v_mov_b32 v19, s94'); I('v_accvgpr_write_b32 a254, v19'); I(f'v_mov_b32 v19, {8+4*k}')
        self.a.raw('    global_store_dword v19, a254, s[42:43]')
        self.a.label(L)
    def stamp(self, name):
        if os.environ.get('DBG'): self.dbgstamp(name)
        if not self.stamps: return
        if name in os.environ.get('NOST', '').split(','): return
        self.lsf()
        I = self.I
        I(f's_memrealtime {sStamp}')
        I(f's_memtime s[100:101]')
        self.a.wait(lg=None)
        I(f'v_mov_b32 v19, {sStampLo}')
        I(f's_add_u32 {sT[9]}, {sStampOff}, {self.nstamp*4}')
        I(f'buffer_store_dword v19, off, {WS}, {sT[9]}', tag='stamp')
        I(f'v_mov_b32 v19, s100')
        I(f'buffer_store_dword v19, off, {WS}, {sT[9]} offset:256', tag='stamp')
        self.nstamp += 1; self.stampnames.append(name)

    def ls(self, name):
        if self.stamps and self.LSR and name.startswith(self.LSR):
            k = len(self._ls); assert k < 8
            self._ls.append(name); self.a.items.append(Raw(f'    s_memtime s[{20+2*k}:{21+2*k}]'))
    def lsf(self):
        if self._ls:
            n = self._ls; self._ls = []; self.lflush(['  ' + x for x in n])
    def lstamp(self, k):
        return [Raw(f'    s_memtime s[{20+2*k}:{21+2*k}]')] if self.stamps else []
    def lflush(self, names):
        if not self.stamps: return
        self.a.wait(lg=None)
        for k, n in enumerate(names):
            self.I(f'v_mov_b32 v19, s{20+2*k}')
            self.I(f's_add_u32 {sT[9]}, {sStampOff}, {self.nstamp*4}')
            self.I(f'buffer_store_dword v19, off, {WS}, {sT[9]} offset:256', tag='stamp')
            self.I(f'v_mov_b32 v19, 0')
            self.I(f'buffer_store_dword v19, off, {WS}, {sT[9]}', tag='stamp')
            self.nstamp += 1; self.stampnames.append(n)
    def dma_b(self, sbase, const, bank, tag, nper=5, sc='', slw=None, ldsoff=None):
        out = []
        slw = slw or sLW
        lo = bank*BANK if ldsoff is None else ldsoff
        for i in range(nper):
            with self.a.capture() as c:
                if i == 0:
                    self.I(f's_add_u32 m0, {slw}, {lo}')
                    self.I(f's_add_u32 {sDm}, {sbase}, {const}')
                if i == 4:
                    self.I(f's_add_u32 m0, m0, 4096')
                    self.I(f's_add_u32 {sDm}, {sDm}, 4096')
                self.I(f'buffer_load_dwordx4 {vL16}, {WS}, {sDm} offen offset:{(i&3)*1024} {sc} lds', tag)
            out.append(c.items)
        return out
    def emit(self, bundles):
        for b in bundles: self.a.extend(b)
    def dma_bank(self, *args, **kw): self.emit(self.dma_b(*args, **kw))
    def cap(self, fn, *args, **kw):
        with self.a.capture() as c: fn(*args, **kw)
        return c.items
    def weave(self, items, bundles, every, first=0):
        bi = 0; acc = every - first
        for k, it in enumerate(items):
            self.a.items.append(it)
            if isinstance(it, Ins):
                assert ('exec', 0) not in it.dst and not it.op.startswith(('s_cbranch', 's_branch')), it.text
                acc += 4 if it.kind == 'mfma' else (2 if it.kind == 'trans' else 1)
                nx = items[k+1] if k+1 < len(items) else None
                scc_live = isinstance(nx, Ins) and nx.op.startswith(('s_cselect', 's_cbranch', 's_addc', 's_subb'))
                if acc >= every and bi < len(bundles) and not scc_live:
                    self.a.extend(bundles[bi]); bi += 1; acc = 0
        self.emit(bundles[bi:])

    def touch(self, base, n, grp=0, tag='touch'):
        with self.a.capture() as c:
            I = self.I
            I(f's_mul_i32 s6, {sWI}, {n*128}'); I(f's_add_u32 s6, s6, {base}')
            if grp: I(f's_mul_i32 s7, {sXG}, {grp}'); I('s_add_u32 s6, s6, s7')
            I(f'v_min_u32 v19, {n-1}, v0'); I('v_lshlrev_b32 v19, 7, v19')
            I(f'buffer_load_dword a252, v19, {WS}, s6 offen sc1', tag)
        return [c.items]
    def touch2(self, sbase, const, n):
        with self.a.capture() as c:
            self.I(f's_add_u32 s6, {sbase}, {const}')
            self.I(f'v_min_u32 v19, {n-1}, v0'); self.I('v_lshlrev_b32 v19, 7, v19')
            self.I(f'buffer_load_dword a252, v19, {WS}, s6 offen sc1', 'touch')
        return [c.items]
    def touchT(self, base, tstride): return self.touch(base, tstride//1024, 16*tstride)
    def decomp(self, dst, areg, n, tmp):
        self.I(f'v_accvgpr_read_b32 v{tmp}, a{areg}')
        for i in range(n): self.I(f'v_mov_b32_dpp v{dst+i}, v{tmp} row_newbcast:{i} row_mask:0xf bank_mask:0xf')

    def cpf(self):
        I = self.I
        pl = self.a.newlabel('PCL')
        I('s_getpc_b64 s[4:5]')
        self.a.label(pl)
        I(f's_lshl_b32 s6, {sH}, 2'); I(f's_add_u32 s6, s6, {sW}'); I('s_and_b32 s6, s6, 31'); I('s_lshl_b32 s6, s6, 10')
        I(f'v_add_u32 v19, s6, {vL16}')
        I(f'v_min_u32 v19, CODE_END-{pl}-16, v19')
        I('global_load_dword a253, v19, s[4:5]', 'cpf')

    def poll(self, voff, soff, val):
        a = self.a; I = self.I
        L = a.newlabel('POLL'); D = a.newlabel('PDONE')
        I(f's_mov_b32 {sSpin}, {sDead}')
        a.label(L)
        I(f'buffer_load_dword {vT0}, {voff}, {WS}, {soff} offen sc1')
        a.wait(vm=None)
        I(f'v_cmp_le_u32 vcc, {val}, {vT0}')
        I(f's_cmp_eq_u64 vcc, -1')
        I(f's_cbranch_scc1 {D}')
        I(f's_sub_u32 {sSpin}, {sSpin}, 1')
        I(f's_cbranch_scc0 {L}')
        I(f's_mov_b32 {sDead}, 0')
        a.label(D)

    def setflag(self, soff, val, sc1=False, vmask=None):
        I = self.I
        I(f'v_mov_b32 {vT0}, {val}')
        I(f'v_mov_b32 {vT1}, {vmask if vmask else 0}')
        I(f's_mov_b64 exec, 1')
        if sc1:
            I(f'buffer_store_dword {vT0}, {vT1}, {WS}, {soff} offen sc1', 'flag')
        else:
            self.a.slow_begin(sMODE)
            I(f'buffer_store_dword {vT0}, {vT1}, {WS}, {soff} offen', 'flag')
            self.a.slow_end()
        I(f's_mov_b64 exec, -1')

    def pack(self, dst, src, n):
        for i in range(n): self.I(f'v_cvt_pk_bf16_f32 v{dst+i}, v{src+2*i}, v{src+2*i+1}')
    def unpack(self, dst, src, n):
        for i in range(n):
            self.I(f'v_lshlrev_b32 v{dst+2*i}, 16, v{src+i}')
            self.I(f'v_and_b32 v{dst+2*i+1}, 0xffff0000, v{src+i}')

    def prod_stats(self, acc, t):
        I = self.I
        I(f'v_pk_add_f32 {vr(t,2)}, {vr(acc,2)}, {vr(acc+2,2)}')
        I(f'v_pk_mul_f32 {vr(t+2,2)}, {vr(acc,2)}, {vr(acc,2)}')
        I(f'v_pk_fma_f32 {vr(t+2,2)}, {vr(acc+2,2)}, {vr(acc+2,2)}, {vr(t+2,2)}')
        for i in range(2, 10):
            I(f'v_pk_add_f32 {vr(t,2)}, {vr(t,2)}, {vr(acc+2*i,2)}')
            I(f'v_pk_fma_f32 {vr(t+2,2)}, {vr(acc+2*i,2)}, {vr(acc+2*i,2)}, {vr(t+2,2)}')
        I(f'v_add_f32 v{t}, v{t}, v{t+1}')
        I(f'v_add_f32 v{t+2}, v{t+2}, v{t+3}')
        I(f'v_permlane32_swap_b32 v{t}, v{t+2}')
        I(f'v_add_f32 v{t}, v{t}, v{t+2}')
        I(f'v_mov_b32 v{t+1}, v{t}')
        I(f'v_permlane16_swap_b32 v{t}, v{t+1}')
        I(f'v_add_f32 v{t}, v{t}, v{t+1}')

    def stchk(self, F, n, par, t, srcs):
        a = self.a
        def ors():
            regs = list(range(F, F+4*n))
            self.I(f'v_or3_b32 v{t}, v{regs[0]}, v{regs[1]}, v{regs[2]}')
            k = 3
            while k + 1 < len(regs):
                self.I(f'v_or3_b32 v{t}, v{t}, v{regs[k]}, v{regs[k+1]}'); k += 2
            self.I(f'v_or_b32 v{t}, v{t}, v{regs[k]}')
            self.I(f'v_and_b32 v{t}, {3 - par}, v{t}')
            self.I(f'v_cmp_ne_u32 vcc, 0, v{t}')
        R = a.newlabel('STR'); Bk = a.newlabel('STB')
        items = [Wait(vm='stat')] + self.cap(ors) + [[Ins('s_cmp_lg_u64 vcc, 0'), Ins(f's_cbranch_scc1 {R}'), Label(Bk)]]
        with a.capture() as c:
            a.label(R)
            self.I(f's_mov_b32 {sSpin}, {sDead}')
            a.label(R + '_l')
            self.I('s_nop 7'); self.I('s_nop 7')
            for k, (vo, sb, co) in enumerate(srcs):
                self.I(f's_add_u32 s7, {sb}, {co}')
                a.raw(f'    buffer_load_dwordx4 {vr(F+4*k,4)}, {vo}, {WS}, s7 offen sc1')
            self.I('s_waitcnt vmcnt(0)')
            ors()
            self.I('s_cmp_eq_u64 vcc, 0'); self.I(f's_cbranch_scc1 {Bk}')
            self.I(f's_sub_u32 {sSpin}, {sSpin}, 1'); self.I(f's_cbranch_scc0 {R}_l')
            self.I(f's_mov_b32 {sDead}, 0'); self.I(f's_branch {Bk}')
        self.ool += c.items
        return items
    def flat(self, items):
        for x in items:
            if isinstance(x, list): self.a.extend(x)
            else: self.a.items.append(x)

    def cons_stats(self, F, nm, r, double=False, r1=None):
        I = self.I
        I(f'v_add_f32 v{F}, v{F}, v{F+2}'); I(f'v_add_f32 v{F+1}, v{F+1}, v{F+3}')
        I(f'v_permlane32_swap_b32 v{F}, v{F+1}')
        I(f'v_add_f32 v{F}, v{F}, v{F+1}')
        I(f'v_mov_b32 v{F+1}, v{F}')
        I(f'v_permlane16_swap_b32 v{F}, v{F+1}')
        I(f'v_add_f32 v{F}, v{F}, v{F+1}')
        I(f'v_mov_b32 v{F+1}, v{F}')
        I(f'v_permlane32_swap_b32 v{F}, v{F+1}')
        I(f'v_mul_f32 v{nm}, {hex(f2u(-1.0/640))}, v{F}')
        I(f'v_mul_f32 v{F+1}, {hex(f2u(1.0/640))}, v{F+1}')
        I(f'v_fma_f32 v{F+1}, -v{nm}, v{nm}, v{F+1}')
        I(f'v_max_f32 v{F+1}, 0, v{F+1}')
        I(f'v_add_f32 v{F+2}, {hex(f2u(1e-5))}, v{F+1}')
        if not double:
            I(f'v_rsq_f32 v{r}, v{F+2}')
        else:
            I(f'v_rsq_f32 v{r1}, v{F+2}')
            I(f'v_mul_f32 v{F+1}, v{F+1}, v{r1}')
            I(f'v_mul_f32 v{F+1}, v{F+1}, v{r1}')
            I(f'v_add_f32 v{F+1}, {hex(f2u(1e-5))}, v{F+1}')
            I(f'v_rsq_f32 v{F+1}, v{F+1}')
            I(f'v_mul_f32 v{r}, v{r1}, v{F+1}')

    def lnfixp(self, acc, cw, n2, p):
        for i in range(n2):
            self.I(f'v_pk_fma_f32 {vr(acc+2*i,2)}, {vr(cw+2*i,2)}, {vr(p,2)}, {vr(acc+2*i,2)} op_sel_hi:[1,0,1]')
        for i in range(n2):
            self.I(f'v_pk_mul_f32 {vr(acc+2*i,2)}, {vr(acc+2*i,2)}, {vr(p,2)} op_sel:[0,1] op_sel_hi:[1,1]')
    def lnfix(self, acc, cw, n2, nm, r):
        for i in range(n2):
            self.I(f'v_pk_fma_f32 {vr(acc+2*i,2)}, {vr(cw+2*i,2)}, {vr(nm,2)}, {vr(acc+2*i,2)} op_sel_hi:[1,0,1]')
        for i in range(n2):
            self.I(f'v_pk_mul_f32 {vr(acc+2*i,2)}, {vr(acc+2*i,2)}, {vr(r,2)} op_sel_hi:[1,0]')

    def gelu(self, x, n2, t, K):
        I = self.I
        for i in range(n2): I(f'v_pk_mul_f32 {vr(t+2*i,2)}, {vr(x+2*i,2)}, {vr(x+2*i,2)}')
        for i in range(n2): I(f'v_pk_fma_f32 {vr(t+2*i,2)}, {vr(t+2*i,2)}, {vr(K,2)}, {vr(K,2)} op_sel:[0,0,1] op_sel_hi:[1,0,1]')
        for i in range(n2): I(f'v_pk_mul_f32 {vr(t+2*i,2)}, {vr(t+2*i,2)}, {vr(x+2*i,2)}')
        for i in range(2*n2): I(f'v_exp_f32 v{t+i}, v{t+i}')
        for i in range(n2): I(f'v_pk_add_f32 {vr(t+2*i,2)}, {vr(t+2*i,2)}, {vr(K+2,2)} op_sel_hi:[1,0]')
        for i in range(2*n2): I(f'v_rcp_f32 v{t+i}, v{t+i}')
        for i in range(n2): I(f'v_pk_mul_f32 {vr(x+2*i,2)}, {vr(x+2*i,2)}, {vr(t+2*i,2)}')
    def gconst(self, G, r):
        I = self.I
        I(f'v_rcp_f32 v{G+1}, v{r}')
        I(f'v_mul_f32 v{G+3}, {hex(f2u(GC0))}, v{r}')
        I(f'v_mul_f32 v{G+2}, v{r}, v{r}')
        I(f'v_mul_f32 v{G+2}, v{G+2}, v{G+3}')
        I(f'v_mul_f32 v{G+2}, {hex(f2u(0.044715))}, v{G+2}')
    def lgA(self, x, cw, n2, t, G):
        I = self.I
        for i in range(n2): I(f'v_pk_fma_f32 {vr(x+2*i,2)}, {vr(cw+2*i,2)}, {vr(G,2)}, {vr(x+2*i,2)} op_sel_hi:[1,0,1]')
        for i in range(n2): I(f'v_pk_mul_f32 {vr(t+2*i,2)}, {vr(x+2*i,2)}, {vr(x+2*i,2)}')
        for i in range(n2): I(f'v_pk_fma_f32 {vr(t+2*i,2)}, {vr(t+2*i,2)}, {vr(G+2,2)}, {vr(G+2,2)} op_sel:[0,0,1] op_sel_hi:[1,0,1]')
        for i in range(n2): I(f'v_pk_mul_f32 {vr(t+2*i,2)}, {vr(t+2*i,2)}, {vr(x+2*i,2)}')
    def lgB(self, x, n2, t, G, pk):
        I = self.I
        for i in range(2*n2): I(f'v_exp_f32 v{t+i}, v{t+i}')
        if pk:
            for i in range(n2): I(f'v_pk_fma_f32 {vr(t+2*i,2)}, {vr(t+2*i,2)}, {vr(G,2)}, {vr(G,2)} op_sel:[0,1,1] op_sel_hi:[1,1,1]')
        else:
            for i in range(2*n2): I(f'v_fma_f32 v{t+i}, v{t+i}, v{G+1}, v{G+1}')
        for i in range(2*n2): I(f'v_rcp_f32 v{t+i}, v{t+i}')
        if pk:
            for i in range(n2): I(f'v_pk_mul_f32 {vr(x+2*i,2)}, {vr(x+2*i,2)}, {vr(t+2*i,2)}')
        else:
            for i in range(2*n2): I(f'v_mul_f32 v{x+i}, v{x+i}, v{t+i}')
    def geluA(self, x, n2, t, K):
        I = self.I
        for i in range(n2): I(f'v_pk_mul_f32 {vr(t+2*i,2)}, {vr(x+2*i,2)}, {vr(x+2*i,2)}')
        for i in range(n2): I(f'v_pk_fma_f32 {vr(t+2*i,2)}, {vr(t+2*i,2)}, {vr(K,2)}, {vr(K,2)} op_sel:[0,0,1] op_sel_hi:[1,0,1]')
        for i in range(n2): I(f'v_pk_mul_f32 {vr(t+2*i,2)}, {vr(t+2*i,2)}, {vr(x+2*i,2)}')
    def geluB(self, x, n2, t):
        I = self.I
        for i in range(2*n2): I(f'v_exp_f32 v{t+i}, v{t+i}')
        for i in range(2*n2): I(f'v_add_f32 v{t+i}, 1.0, v{t+i}')
        for i in range(2*n2): I(f'v_rcp_f32 v{t+i}, v{t+i}')
        for i in range(2*n2): I(f'v_mul_f32 v{x+i}, v{x+i}, v{t+i}')
    def gelu_consts(self, K):
        self.I(f'v_mov_b32 v{K}, {hex(f2u(GC1))}')
        self.I(f'v_mov_b32 v{K+1}, {hex(f2u(GC0))}')
        self.I(f'v_mov_b32 v{K+2}, 1.0')

    def store_tile(self, P, buf, sA, sHh, sc1=False, vA=vL16, vH=vS8, tag='st'):
        I = self.I
        sc = ' sc1' if sc1 else ''
        I(f's_add_u32 {sT[0]}, {sA}, {buf}')
        I(f's_add_u32 {sT[1]}, {sHh}, {buf}')
        if not sc1: self.a.slow_begin(sMODE)
        I(f'buffer_store_dwordx4 {vr(P,4)}, {vA}, {WS}, {sT[0]} offen{sc}', tag)
        I(f'buffer_store_dwordx4 {vr(P+4,4)}, {vA}, {WS}, {sT[0]} offen offset:1024{sc}', tag)
        I(f'buffer_store_dwordx2 {vr(P+8,2)}, {vH}, {WS}, {sT[1]} offen{sc}', tag)
        if not sc1: self.a.slow_end()
    def store_stats(self, t, buf, par, sc1=False, tag='stt'):
        I = self.I
        I(f'v_and_or_b32 v{t}, v{t}, -4, {par}')
        I(f's_add_u32 {sT[0]}, {sS21}, {buf}')
        if not sc1: self.a.slow_begin(sMODE)
        I(f'buffer_store_dword v{t}, {vST}, {WS}, {sT[0]} offen' + (' sc1' if sc1 else ''), tag)
        if not sc1: self.a.slow_end()

    def load_frag(self, dst, voff, sbase, const, idx, tag, areg=False, sc=' sc1', state={}):
        key = (sbase, const, idx >> 2)
        if self._lf != key:
            self.I(f's_add_u32 {sT[2]}, {sbase}, {const + (idx >> 2)*4096}')
            self._lf = key
        d = ar(dst, 4) if areg else vr(dst, 4)
        self.I(f'buffer_load_dwordx4 {d}, {voff}, {WS}, {sT[2]} offen offset:{(idx & 3)*1024}{sc}', tag)
    _lf = None

    def tsrd(self, p, nbytes):
        self.I(f's_mov_b32 s12, s{p}'); self.I(f's_and_b32 s13, s{p+1}, 0xffff'); self.I(f's_mov_b32 s14, {nbytes}')

    def rowcol(self, q, magic, lpr, rs):
        I = self.I
        I(f'v_add_u32 v26, {q}, v0')
        I(f'v_mul_u32_u24 v27, {magic}, v26'); I('v_lshrrev_b32 v27, 16, v27')
        I(f'v_mul_u32_u24 v28, {lpr}, v27'); I('v_sub_u32 v28, v26, v28')
        I(f'v_mul_u32_u24 v29, {rs}, v27'); I('v_lshl_add_u32 v29, v28, 4, v29')

    def prologue(self):
        a = self.a; I = self.I
        sRS, sEx, sSrc, sDst, sTile, sU, sLB = sT[3], sT[4], sT[5], sT[6], sT[7], sT[8], sWB
        sInvA, sInvB, sSrc3 = 's6', 's7', 's3'
        I('s_cmp_ge_u32 s2, 256')
        I('s_cbranch_scc1 KEND')
        I('s_load_dwordx16 s[20:35], s[0:1], 0')
        I('s_load_dwordx8 s[36:43], s[0:1], 64')
        if self.stamps or os.environ.get('DBG'): I('s_memrealtime s[98:99]')
        I('s_getpc_b64 s[4:5]')
        a.label('PCL0')
        I(f's_lshr_b32 {sH}, s2, 3')
        I(f's_lshl_b32 {sT[0]}, {sH}, 12')
        I(f'v_lshl_add_u32 v26, v0, 4, {sT[0]}')
        I('v_min_u32 v26, CODE_END-PCL0-16, v26')
        I('global_load_dword a253, v26, s[4:5]')
        I('v_lshrrev_b32 v7, 6, v0')
        I('v_mov_b32 v25, v0')
        I(f'v_readfirstlane_b32 {sW}, v7')
        I('v_and_b32 v0, 63, v0')
        I(f's_and_b32 {sXG}, s2, 7')
        I(f's_lshr_b32 {sCL}, {sH}, 3'); I(f's_and_b32 {sJ}, {sH}, 7')
        I(f's_lshl_b32 {sC}, {sXG}, 2'); I(f's_add_u32 {sC}, {sC}, {sCL}')
        I(f's_lshl_b32 {sTT}, {sC}, 2'); I(f's_add_u32 {sTT}, {sTT}, {sW}')
        I(f's_mul_i32 {sT[0]}, {sJ}, 5'); I(f's_add_u32 {sT[0]}, {sT[0]}, 1'); I(f's_lshr_b32 {sT[0]}, {sT[0]}, 1')
        I(f's_lshl_b32 {sA21}, {sT[0]}, 10')
        I(f's_mul_i32 {sH21}, {sJ}, 2560')
        I(f's_bitcmp0_b32 {sJ}, 0'); I(f's_cselect_b32 {sT[3]}, 2048, 0'); I(f's_add_u32 {sH21}, {sH21}, {sT[3]}')
        I(f's_mul_i32 {sT20}, {sTT}, 20480')
        I(f's_lshr_b32 {sOutA}, {sA21}, 4'); I(f's_lshr_b32 {sOutH}, {sH21}, 4')
        I(f's_add_u32 {sOutA}, {sOutA}, {sT20}'); I(f's_add_u32 {sOutH}, {sOutH}, {sT20}')
        I('v_and_b32 v20, 15, v0'); I('v_lshrrev_b32 v21, 4, v0')
        I('v_mul_u32_u24 v26, 1280, v20')
        I('v_lshl_add_u32 v36, v21, 4, v26'); I('v_lshl_add_u32 v37, v21, 3, v26')
        I(f's_lshr_b32 {sT[1]}, s2, 1'); I(f's_and_b32 {sT[0]}, s2, 1')
        I(f's_mul_i32 {sSrc}, {sT[1]}, {8*3840}'); I(f's_mul_i32 {sT[2]}, {sT[0]}, 640'); I(f's_add_u32 {sSrc}, {sSrc}, {sT[2]}')
        I(f's_cmp_lt_u32 s2, 160'); I(f's_cselect_b32 {sInvA}, 0, {OOB}'); I(f's_cselect_b32 {sSrc}, {sSrc}, 0')
        for k in range(4):
            I(f'v_add_u32 v26, {256*k}, v25')
            I('v_mul_u32_u24 v27, 13108, v26'); I('v_lshrrev_b32 v27, 19, v27')
            I('v_mul_u32_u24 v28, 40, v27'); I('v_sub_u32 v28, v26, v28')
            I('v_and_b32 v29, 7, v27'); I('v_mul_u32_u24 v29, 3840, v29'); I('v_lshl_add_u32 v29, v28, 4, v29')
            I('v_lshrrev_b32 v27, 3, v27'); I('v_mul_u32_u24 v28, 1280, v27'); I(f'v_add3_u32 v{40+k}, v29, v28, {sInvA}')
        I('v_cmp_gt_u32 vcc, 3, v27'); I(f'v_mov_b32 v28, {OOB}'); I('v_cndmask_b32 v43, v28, v43, vcc')
        I(f's_lshl_b32 {sLB}, {sW}, 10')
        I('s_mov_b32 s15, 0x20000'); I('s_mov_b32 s11, 0x20000'); I('s_mov_b32 s19, 0x20000')
        I('s_mov_b32 s10, 0x10000000'); I('s_mov_b32 s18, 2621440')
        I(f's_lshl_b32 {sU}, s2, 2'); I(f's_add_u32 {sU}, {sU}, {sW}')
        I('s_memrealtime s[94:95]')
        a.wait(lg=None)
        I(f's_mov_b32 s8, s{P_WS}'); I(f's_and_b32 s9, s{P_WS+1}, 0xffff')
        I(f's_cmp_lg_u32 {sU}, 3'); I('s_cbranch_scc1 NOTAG')
        I('s_lshl_b32 s95, s95, 4'); I('s_or_b32 s95, s95, 0x80000000')
        I('v_mov_b32 v26, s94'); I('v_mov_b32 v27, s95'); I('v_mov_b32 v28, 0')
        I('s_mov_b64 exec, 1')
        a.raw(f'    global_store_dwordx2 v28, v[26:27], s[{P_DBG}:{P_DBG+1}] sc1')
        I('s_mov_b64 exec, -1')
        a.label('NOTAG')
        if os.environ.get('DBG'): I(f's_mov_b32 s42, s{P_DBG}'); I(f's_mov_b32 s43, s{P_DBG+1}')
        self.tsrd(P_QKV, 2457600)
        for k in range(4):
            I(f's_add_u32 m0, {sLB}, {k*4096}')
            I(f'buffer_load_dwordx4 v{40+k}, {TS}, {sSrc} offen nt lds', 's1')
        self.tsrd(P_X, 2621440)
        I(f'buffer_load_dwordx4 {vr(RES,4)}, v36, {TS}, {sOutA} offen nt', 's1')
        I(f'buffer_load_dwordx4 {vr(RES+4,4)}, v36, {TS}, {sOutA} offen offset:64 nt', 's1')
        I(f'buffer_load_dwordx2 {vr(RES+8,2)}, v37, {TS}, {sOutH} offen nt', 's1')
        I(f's_mov_b32 s16, s{P_OUT}'); I(f's_and_b32 s17, s{P_OUT+1}, 0xffff')
        if self.TLB:
            I('v_min_u32 v26, 42, v0'); I('v_lshlrev_b32 v26, 20, v26'); I('v_add_u32 v26, 0xfff80, v26')
            I(f's_cmp_eq_u32 {sW}, 2'); I(f's_cselect_b32 {sT[2]}, 0, {OOB}'); I(f'v_or_b32 v26, {sT[2]}, v26')
            I(f'buffer_load_dword a252, v26, {WS}, 0 offen nt', 'tlb')
            I('v_min_u32 v26, 2, v0'); I('v_lshlrev_b32 v26, 20, v26'); I(f'v_or_b32 v26, {sT[2]}, v26')
            I(f'buffer_load_dword a252, v26, {OUT}, 0 offen nt', 'tlb')
        I(f's_mul_i32 {sDm}, {sT[0]}, {16*81920}'); I(f's_mul_i32 {sT[2]}, {sW}, {4*81920}'); I(f's_add_u32 {sDm}, {sDm}, {sT[2]}')
        I(f's_lshr_b32 {sT[2]}, {sT[1]}, 2'); I(f's_lshl_b32 {sT[2]}, {sT[2]}, 12'); I(f's_add_u32 {sDm}, {sDm}, {sT[2]}')
        I(f's_and_b32 {sT[2]}, {sT[1]}, 3'); I(f's_lshl_b32 {sT[2]}, {sT[2]}, 8'); I(f's_add_u32 {sDm}, {sDm}, {sT[2]}')
        I(f's_mov_b32 s4, {sInvA}')
        if self.stamps: I(f's_lshl_b32 {sStampOff}, {sU}, 9'); I(f's_add_u32 {sStampOff}, {sStampOff}, {STAMP}')
        I(f's_add_u32 {sU}, {sU}, 384'); I(f's_and_b32 {sU}, {sU}, 1023')
        I(f's_mov_b32 s12, s{P_O}'); I(f's_mov_b32 s13, s{P_O+1}'); I(f's_mov_b32 s14, 819200')
        I(f's_mov_b32 {sDst}, {WT_O}'); I(f's_mov_b32 {sTile}, 102400'); I(f's_mov_b32 {sT[0]}, {sU}')
        for thr, p, wt in ((160, P_1, WT_1), (320, P_2, WT_2), (480, P_4, WT_4)):
            I(f's_sub_u32 {sT[1]}, {sU}, {thr}')
            I(f's_cmp_ge_u32 {sU}, {thr}')
            I(f's_cselect_b32 s12, s{p}, s12'); I(f's_cselect_b32 s13, s{p+1}, s13')
            I(f's_cselect_b32 {sDst}, {wt}, {sDst}'); I(f's_cselect_b32 {sT[0]}, {sT[1]}, {sT[0]}')
        I(f's_cselect_b32 {sTile}, 245760, {sTile}'); I(f's_cselect_b32 s14, 1966080, s14')
        I(f's_and_b32 s13, s13, 0xffff')
        I(f's_cmp_lt_u32 {sU}, 864'); I(f's_cselect_b32 {sInvA}, s4, {OOB}'); I(f's_cselect_b32 {sT[0]}, {sT[0]}, 0')
        I(f's_xor_b32 s5, s4, {OOB}')
        I(f's_lshr_b32 {sT[1]}, {sT[0]}, 1'); I(f's_and_b32 {sT[0]}, {sT[0]}, 1')
        I(f's_lshl_b32 {sSrc}, {sT[1]}, 3'); I(f's_mov_b32 {sEx}, 0')
        I(f's_cmp_ge_u32 {sU}, 160'); I('s_cbranch_scc1 PREP_RB')
        I(f's_lshr_b32 {sT[2]}, {sT[1]}, 1'); I(f's_mul_i32 {sT[2]}, {sT[2]}, 20')
        I(f's_and_b32 {sSrc}, {sT[1]}, 1'); I(f's_lshl_b32 {sSrc}, {sSrc}, 3'); I(f's_add_u32 {sSrc}, {sSrc}, {sT[2]}')
        I(f's_cmp_lt_u32 {sT[1]}, 64'); I('s_cbranch_scc1 PREP_RB')
        I(f's_sub_u32 {sT[2]}, {sT[1]}, 64'); I(f's_mul_i32 {sSrc}, {sT[2]}, 40'); I(f's_add_u32 {sSrc}, {sSrc}, 16')
        I(f's_mov_b32 {sEx}, {16*1280}')
        a.label('PREP_RB')
        I(f's_mul_i32 {sSrc}, {sSrc}, 1280'); I(f's_mul_i32 {sT[2]}, {sT[0]}, 640'); I(f's_add_u32 {sSrc}, {sSrc}, {sT[2]}')
        I(f's_lshl_b32 {sLB}, {sW}, 13'); I(f's_add_u32 {sLB}, {sLB}, 32768')
        for q in range(5):
            self.rowcol(64*q, 1639, 40, 1280)
            I('v_lshrrev_b32 v27, 2, v27'); I(f'v_mad_u32_u24 v29, v27, {sEx}, v29'); I(f'v_or_b32 v{200+q}, {sInvA}, v29')
            I('v_or_b32 v29, s5, v29')
            I(f's_add_u32 m0, {sLB}, {q*1024}')
            I(f'buffer_load_dwordx4 v29, {TS}, {sSrc} offen nt lds', 's1')
        I(f's_mul_i32 {sT[2]}, {sT[0]}, {sTile}'); I(f's_lshl_b32 {sT[2]}, {sT[2]}, 2'); I(f's_add_u32 {sDst}, {sDst}, {sT[2]}')
        I(f's_lshr_b32 {sT[2]}, {sT[1]}, 2'); I(f's_mul_i32 {sT[2]}, {sT[2]}, 5120'); I(f's_add_u32 {sDst}, {sDst}, {sT[2]}')
        I(f's_and_b32 {sT[2]}, {sT[1]}, 3'); I(f's_lshl_b32 {sT[2]}, {sT[2]}, 8'); I(f's_add_u32 {sDst}, {sDst}, {sT[2]}')
        I(f's_add_u32 {sT[0]}, {sU}, 160'); I(f's_and_b32 {sT[0]}, {sT[0]}, 1023')
        I(f's_cmp_lt_u32 {sT[0]}, 640'); I(f's_cselect_b32 {sInvB}, 0, {OOB}'); I(f's_cselect_b32 {sT[0]}, {sT[0]}, 0')
        I(f's_lshr_b32 {sT[1]}, {sT[0]}, 3'); I(f's_and_b32 {sT[0]}, {sT[0]}, 7')
        I(f's_mul_i32 {sSrc3}, {sT[1]}, {8*3072}'); I(f's_mul_i32 {sT[2]}, {sT[0]}, 384'); I(f's_add_u32 {sSrc3}, {sSrc3}, {sT[2]}')
        I(f's_mul_i32 {sRS}, {sT[0]}, 245760'); I(f's_lshl_b32 {sT[2]}, {sT[1]}, 8'); I(f's_add_u32 {sRS}, {sRS}, {sT[2]}'); I(f's_add_u32 {sRS}, {sRS}, {WT_3}')
        I(f's_mov_b32 {sDead}, 400000'); I(f's_mov_b32 {sMODE}, 0')
        I(f's_mul_i32 {sT21}, {sTT}, 21504'); I(f's_mul_i32 {sT48}, {sTT}, 49152')
        I(f's_add_u32 {sA20}, {sT20}, {sA21}'); I(f's_add_u32 {sH20}, {sT20}, {sH21}')
        I(f's_add_u32 {sA21}, {sT21}, {sA21}'); I(f's_add_u32 {sH21}, {sT21}, {sH21}')
        I(f's_lshr_b32 {sT[0]}, {sJ}, 1'); I(f's_lshl_b32 {sT[0]}, {sT[0]}, 8')
        I(f's_and_b32 {sT[1]}, {sJ}, 1'); I(f's_lshl_b32 {sT[1]}, {sT[1]}, 3')
        I(f's_add_u32 {sS21}, {sT21}, {sT[0]}'); I(f's_add_u32 {sS21}, {sS21}, {sT[1]}'); I(f's_add_u32 {sS21}, {sS21}, 20480')
        I(f's_mul_i32 {sLW}, {sW}, 5120')
        I(f's_mul_i32 {sW5}, {sJ}, 102400'); I(f's_add_u32 {sW5}, {sW5}, {sLW}')
        I(f's_mul_i32 {sW4}, {sJ}, 245760'); I(f's_add_u32 {sW4}, {sW4}, {sLW}')
        I(f's_mul_i32 {sWQ}, {sH}, 81920');  I(f's_add_u32 {sWQ}, {sWQ}, {sLW}')
        I(f's_lshl_b32 {sWI}, {sH}, 2'); I(f's_add_u32 {sWI}, {sWI}, {sW}')
        I(f's_lshl_b32 {sT[0]}, {sXG}, 2'); I(f's_add_u32 {sT[0]}, {sT[0]}, {sW}')
        I(f's_mul_i32 {sQT21}, {sT[0]}, {4*21504}')
        I(f's_mul_i32 {sT[1]}, {sT[0]}, {4*20480}')
        I(f's_lshl_b32 {sT[2]}, {sH}, 9'); I(f's_add_u32 {sO4}, {sT[1]}, {sT[2]}')
        I(f's_lshr_b32 {sT[2]}, {sH}, 1'); I(f's_lshl_b32 {sT[2]}, {sT[2]}, 8'); I(f's_add_u32 {sO1}, {sT[1]}, {sT[2]}')
        I(f's_and_b32 {sT[2]}, {sH}, 1'); I(f's_lshl_b32 {sT[2]}, {sT[2]}, 3'); I(f's_add_u32 {sO1}, {sO1}, {sT[2]}'); I(f's_add_u32 {sO1}, {sO1}, 16384')
        I(f's_lshl_b32 {sT[2]}, {sT[0]}, 7'); I(f's_lshl_b32 {sFLOo}, {sH}, 2')
        I(f's_add_u32 {sFLOo}, {sT[2]}, {sFLOo}'); I(f's_add_u32 {sFLOo}, {sFLOo}, {FLO}')
        I(f's_lshl_b32 {sKVi}, {sH}, 16'); I(f's_lshl_b32 {sT[2]}, {sW}, 10'); I(f's_add_u32 {sKVi}, {sKVi}, {sT[2]}')
        I(f's_add_u32 {sKVi}, {sKVi}, {KVP}')
        I(f's_lshl_b32 {sT[2]}, {sXG}, 13'); I(f's_add_u32 {sKVo}, {sKVi}, {sT[2]}')
        I(f's_lshl_b32 {sT[0]}, {sJ}, 2'); I(f's_add_u32 {sT[0]}, {sT[0]}, {sW}')
        I(f's_mul_i32 {sW3}, {sT[0]}, 61440')
        I(f's_mul_i32 {sT[1]}, {sT[0]}, 3'); I(f's_add_u32 {sT[1]}, {sT[1]}, 1'); I(f's_lshr_b32 {sT[1]}, {sT[1]}, 1'); I(f's_lshl_b32 {sA48}, {sT[1]}, 10')
        I(f's_mul_i32 {sH48}, {sT[0]}, 1536')
        I(f's_bitcmp0_b32 {sT[0]}, 0'); I(f's_cselect_b32 {sT[2]}, 1024, 0'); I(f's_add_u32 {sH48}, {sH48}, {sT[2]}')
        I(f's_mul_i32 {sT[2]}, {sC}, {4*49152}')
        I(f's_add_u32 {sA48}, {sT[2]}, {sA48}'); I(f's_add_u32 {sH48}, {sT[2]}, {sH48}')
        I(f's_mul_i32 {sC21}, {sC}, {4*21504}')
        I(f's_lshl_b32 {sFLo}, {sTT}, 5'); I(f's_lshl_b32 {sT[2]}, {sJ}, 2'); I(f's_add_u32 {sFLo}, {sFLo}, {sT[2]}'); I(f's_add_u32 {sFLo}, {sFLo}, {FL}')
        I(f's_and_b32 {sT[0]}, {sTT}, 15')
        I(f's_mov_b32 {sEdge}, {OOB}')
        I(f's_cmp_eq_u32 {sT[0]}, 0');  I(f's_cselect_b32 {sEdge}, 0, {sEdge}')
        I(f's_cmp_eq_u32 {sT[0]}, 15'); I(f's_cselect_b32 {sEdge}, 0, {sEdge}'); I(f's_cselect_b32 {sBot}, 1, 0')
        I(f's_cmp_eq_u32 {sTT}, 0');   I(f's_cselect_b32 {sEdge}, {OOB}, {sEdge}')
        I(f's_cmp_eq_u32 {sTT}, 127'); I(f's_cselect_b32 {sEdge}, {OOB}, {sEdge}')
        I(f'v_lshlrev_b32 {vL16}, 4, v0')
        I(f'v_add_u32 {vL16b}, 0x10000, {vL16}'); I(f'v_add_u32 {vL16c}, 0x20000, {vL16}')
        I('v_lshrrev_b32 v22, 5, v0'); I('v_and_b32 v23, 1, v21'); I('v_lshlrev_b32 v24, 4, v20')
        I(f'v_lshl_add_u32 {vS8}, v22, 8, v24'); I(f'v_lshl_add_u32 {vS8}, v23, 3, {vS8}')
        I(f'v_lshl_add_u32 {vST}, v22, 2, v24')
        I(f'v_and_b32 {vFl}, 31, v0'); I(f'v_lshlrev_b32 {vFl}, 2, {vFl}')
        if self.stamps:
            I('v_mov_b32 v19, s98'); I(f'buffer_store_dword v19, off, {WS}, {sStampOff}'); I(f'buffer_store_dword v19, off, {WS}, {sStampOff} offset:256')
            self.nstamp += 1; self.stampnames.append('entry')
        self.stamp('issued')
        I('v_lshrrev_b32 v26, 2, v20'); I('v_and_b32 v27, 3, v20')
        I(f's_mul_i32 {sT[2]}, {sW}, 160')
        I('v_mul_u32_u24 v29, 640, v26'); I(f'v_add_u32 v29, {sT[2]}, v29'); I('v_mul_u32_u24 v28, 40, v21'); I('v_add_u32 v29, v29, v28')
        I('v_lshl_add_u32 v30, v27, 3, v29')
        I('v_lshlrev_b32 v28, 3, v27'); I(f'v_add_u32 v31, {10240-8}, v28'); I(f'v_mov_b32 v33, {5120+32}')
        I('v_cmp_eq_u32 vcc, 0, v27'); I('v_cndmask_b32 v31, v31, v33, vcc'); I('v_add_u32 v31, v31, v29')
        I('v_min_u32 v28, 2, v27'); I('v_lshlrev_b32 v28, 3, v28'); I(f'v_add_u32 v33, {10240+16}, v28'); I('v_mov_b32 v34, 32')
        I('v_cndmask_b32 v33, v33, v34, vcc'); I('v_add_u32 v33, v33, v29')
        I(f's_mov_b32 {sT[2]}, 81920'); I(f'v_mul_lo_u32 v32, v21, {sT[2]}'); I(f'v_add3_u32 v32, v32, v24, s4')
        for q in range(3):
            self.rowcol(64*q, 2731, 24, 3072)
            I(f'v_or_b32 v{205+q}, {sInvB}, v29')
        I('v_lshrrev_b32 v26, 2, v20'); I('v_and_b32 v27, 3, v20')
        I('v_mul_u32_u24 v28, 5, v21'); I('v_add_u32 v28, 1, v28'); I('v_lshrrev_b32 v28, 1, v28')
        I('v_mul_u32_u24 v29, 640, v26'); I(f'v_add_u32 v29, {sLB}, v29')
        I('v_lshl_add_u32 v210, v28, 6, v29'); I('v_lshl_add_u32 v210, v27, 4, v210')
        I('v_mul_u32_u24 v211, 160, v21'); I('v_xor_b32 v28, 1, v23'); I('v_lshl_add_u32 v211, v28, 7, v211')
        I('v_add_u32 v211, v211, v29'); I('v_lshl_add_u32 v211, v27, 3, v211')
        I(f'v_mul_lo_u32 v212, v21, {sTile}'); I(f'v_add3_u32 v216, v212, v24, s5'); I(f'v_add3_u32 v212, v212, v24, {sInvA}')
        I('v_mul_u32_u24 v29, 384, v26'); I(f'v_add_u32 v29, {sLB}, v29'); I('v_mul_u32_u24 v28, 96, v21'); I('v_add_u32 v29, v29, v28')
        I('v_lshl_add_u32 v213, v23, 5, v29'); I('v_lshl_add_u32 v213, v27, 4, v213')
        I('v_xor_b32 v28, 1, v23'); I('v_lshl_add_u32 v214, v28, 6, v29'); I('v_lshl_add_u32 v214, v27, 3, v214')
        I('v_mul_u32_u24 v215, 61440, v21'); I(f'v_add3_u32 v215, v215, v24, {sInvB}')
        I(f's_getreg_b32 {sU}, hwreg(HW_REG_XCC_ID)'); I(f's_and_b32 {sU}, {sU}, 15')
        for r in range(132, 142): I(f'v_mov_b32 v{r}, -1')
        I('v_mov_b32 v128, 0')
        a.wait(vm='s1')
        self.stamp('s1_loaded')
        I('v_mov_b32 v26, 0')
        I(f'global_load_dwordx2 v[208:209], v26, s[{P_DBG}:{P_DBG+1}] sc1', 'st')
        self.store_tile(RES, XA(0), sA21, sH21, sc1=True)
        for i in range(5):
            b_, o = ('v210', 64*(i >> 1) + 8*(i & 1)) if i < 4 else ('v211', 0)
            I(f'ds_read_b64_tr_b16 {vr(64+4*i,2)}, {b_} offset:{o}')
            I(f'ds_read_b64_tr_b16 {vr(66+4*i,2)}, {b_} offset:{o+2560}')
        I('s_barrier')
        a.wait(lg=None)
        for i, (b_, o) in enumerate((('v30', 5120), ('v31', 0), ('v30', 0), ('v33', 0))):
            I(f'ds_read_b64_tr_b16 {vr(48+4*i,2)}, {b_} offset:{o}')
            I(f'ds_read_b64_tr_b16 {vr(50+4*i,2)}, {b_} offset:{o+2560}')
        for i in range(4): I(f'buffer_store_dwordx4 {vr(64+4*i,4)}, v216, {WS}, {sDst} offen offset:{i*1024} sc1', 'st')
        I(f's_add_u32 {sT[0]}, {sDst}, 4096')
        I(f'buffer_store_dwordx4 {vr(80,4)}, v216, {WS}, {sT[0]} offen sc1', 'st')
        a.wait(lg=None)
        for i in range(4): I(f'buffer_store_dwordx4 {vr(48+4*i,4)}, v32, {WS}, {sDm} offen offset:{i*1024} sc1', 'st')
        self.unpack(144, RES, 10)
        self.prod_stats(144, 164)
        self.store_stats(164, XA(0), 1, sc1=True, tag='st')
        I(f'buffer_store_dwordx4 {vr(132,4)}, {vL16}, {WS}, {sKVo} offen sc1', 'st')
        I(f's_lshl_b32 {sT[0]}, s2, 7'); I(f's_add_u32 {sT[0]}, {sT[0]}, {FL}')
        I(f's_cmp_eq_u32 {sW}, 1'); I(f's_cselect_b32 {sT[1]}, 0, {OOB}')
        I(f's_cmp_lt_u32 s2, 64'); I(f's_cselect_b32 {sT[1]}, {sT[1]}, {OOB}')
        I(f'v_or_b32 v26, {sT[1]}, {vFl}')
        I(f'buffer_store_dword v128, v26, {WS}, {sT[0]} offen sc1', 'st')
        for q in range(5):
            I(f's_add_u32 m0, {sLB}, {q*1024}')
            I(f'buffer_load_dwordx4 v{200+q}, {TS}, {sSrc} offen nt lds', 's2')
        self.tsrd(P_3, 1966080)
        for q in range(3):
            I(f's_add_u32 m0, {sLB}, {5120+q*1024}')
            I(f'buffer_load_dwordx4 v{205+q}, {TS}, {sSrc3} offen nt lds', 's2')
        self.tsrd(P_PHI, 25600)
        I('v_and_b32 v26, 3, v0'); I('v_lshlrev_b32 v26, 1, v26')
        I(f's_mul_i32 {sT[0]}, {sH}, 800')
        I('v_mul_u32_u24 v27, 160, v21'); I(f'v_add3_u32 v27, v27, v26, {sT[0]}')
        I(f'v_add_u32 v28, {sT[0]}, v26'); I('v_add_u32 v28, 640, v28'); I(f'v_mov_b32 v29, {OOB}')
        I('v_cmp_eq_u32 vcc, 0, v21'); I('v_cndmask_b32 v28, v29, v28, vcc')
        I(f's_lshl_b32 {sT[0]}, {sW}, 3')
        for fr, so in ((0, sT[0]), (1, '32')):
            for e in range(8):
                vo = 'v27' if e < 4 else 'v28'
                I(f'buffer_load_ushort v{(180 if e & 1 else 120)+4*fr+(e>>1)}, {vo}, {TS}, {so} offen offset:{(e&3)*40}')
        I('v_mov_b32 v26, 0')
        a.wait(vm='st')
        self.stamp('s1_drained')
        I(f's_mov_b32 {sSpin}, {sDead}')
        a.label('GB_P0')
        I('v_cmp_ne_u32 vcc, 0, v209'); I('s_cmp_eq_u64 vcc, -1'); I('s_cbranch_scc1 GB_P0D')
        a.raw(f'    global_load_dwordx2 v[208:209], v26, s[{P_DBG}:{P_DBG+1}] sc1')
        I('s_waitcnt vmcnt(0)')
        I(f's_sub_u32 {sSpin}, {sSpin}, 1'); I('s_cbranch_scc0 GB_P0')
        a.label('GB_P0D')
        I(f'v_readfirstlane_b32 {sN0}, v208'); I(f'v_readfirstlane_b32 {sN1}, v209')
        I('s_barrier')
        self.arrive(0, 208, sU)
        a.wait(vm=None)
        for i in range(5):
            b_, o = ('v210', 64*(i >> 1) + 8*(i & 1)) if i < 4 else ('v211', 0)
            I(f'ds_read_b64_tr_b16 {ar(4*i,2)}, {b_} offset:{o}')
            I(f'ds_read_b64_tr_b16 {ar(4*i+2,2)}, {b_} offset:{o+2560}')
        a.wait(lg=None)
        for i in range(3):
            b_, o = ('v213', 8*i) if i < 2 else ('v214', 0)
            I(f'ds_read_b64_tr_b16 {ar(20+4*i,2)}, {b_} offset:{5120+o}')
            I(f'ds_read_b64_tr_b16 {ar(22+4*i,2)}, {b_} offset:{5120+o+1536}')
        for r in range(32, 36): I(f'v_accvgpr_write_b32 a{r}, -1')
        I(f's_mov_b32 s4, {sDst}'); I(f's_mov_b32 s5, {sRS}')
        I('v_accvgpr_write_b32 a38, v212'); I('v_accvgpr_write_b32 a39, v215')
        I('v_bfe_u32 v26, v0, 2, 1'); I(f's_mov_b32 {sT[0]}, 0x80008000'); I(f'v_mul_lo_u32 v26, v26, {sT[0]}')
        for r in range(120, 128): I(f'v_lshl_or_b32 v{r}, v{r+60}, 16, v{r}')
        for r in range(120, 128): I(f'v_xor_b32 v{r}, v{r}, v26')
        for r in range(8): I(f'v_accvgpr_write_b32 a{240+r}, v{120+r}')
        I(f's_add_u32 s36, {sH}, {sXG}') if self.ROT == 1 else I(f's_mov_b32 s36, {sXG if self.ROT == 2 else 0}')
        I('s_mul_i32 s37, s36, 52429'); I('s_lshr_b32 s37, s37, 18'); I('s_mul_i32 s37, s37, 5'); I('s_sub_u32 s36, s36, s37')
        I('s_lshl_b32 s36, s36, 12')
        for q in range(1, 5):
            I(f's_add_u32 s{36+q}, s{35+q}, 4096'); I(f's_cmp_eq_u32 s{36+q}, 20480'); I(f's_cselect_b32 s{36+q}, 0, s{36+q}')
        self.stamp('s2_issued')

    def arrive(self, which, t, sx='0'):
        I = self.I
        I(f's_cmp_eq_u32 {sW}, 0'); I(f's_cselect_b32 {sT[0]}, 0, {OOB}')
        I(f's_add_u32 {sT[1]}, {sN1}, {sx}')
        I(f'v_mov_b32 v{t}, {sN0}'); I(f'v_mov_b32 v{t+1}, {sT[1]}')
        I(f'v_lshlrev_b32 {vT0}, 3, v0'); I(f'v_or_b32 {vT0}, {sT[0]}, {vT0}')
        I(f's_lshl_b32 {sT[1]}, s2, 7'); I(f's_add_u32 {sT[1]}, {sT[1]}, {CNT + which*32768}')
        I('s_mov_b64 exec, 0xffff')
        I(f'buffer_store_dwordx2 {vr(t,2)}, {vT0}, {WS}, {sT[1]} offen sc1')
        I('s_mov_b64 exec, -1')
    def allchk_issue(self, which, t):
        with self.a.capture() as c:
            I = self.I
            I(f'v_lshlrev_b32 v{t+2}, 7, v0')
            I(f's_lshl_b32 {sT[5]}, {sW}, 13'); I(f's_add_u32 {sT[5]}, {sT[5]}, {CNT + which*32768}')
            I(f'buffer_load_dwordx2 {vr(t,2)}, v{t+2}, {WS}, {sT[5]} offen sc1', 'pall')
        return [c.items]
    def allchk(self, t):
        a = self.a; I = self.I
        L = a.newlabel('ACP'); D = a.newlabel('ACD')
        a.wait(vm='pall')
        I(f's_mov_b32 {sSpin}, {sDead}')
        a.label(L)
        I(f'v_and_b32 v{t+1}, -16, v{t+1}'); I(f'v_cmp_eq_u64 vcc, s[0:1], {vr(t,2)}'); I('s_cmp_eq_u64 vcc, -1'); I(f's_cbranch_scc1 {D}')
        a.raw(f'    buffer_load_dwordx2 {vr(t,2)}, v{t+2}, {WS}, {sT[5]} offen sc1')
        I('s_waitcnt vmcnt(0)')
        I(f's_sub_u32 {sSpin}, {sSpin}, 1'); I(f's_cbranch_scc0 {L}')
        I(f's_mov_b32 {sDead}, 0')
        a.label(D)

    def s2_stores(self, v0_, v1_):
        out = []
        for i in range(4): out.append([Ins(f'buffer_store_dwordx4 {ar(4*i,4)}, {v0_}, {WS}, s4 offen offset:{i*1024} sc1', 's2s')])
        out.append([Ins('s_add_u32 s4, s4, 4096'), Ins(f'buffer_store_dwordx4 {ar(16,4)}, {v0_}, {WS}, s4 offen sc1', 's2s')])
        for i in range(3):
            out.append([Ins(f'buffer_store_dwordx4 {ar(20+4*i,4)}, {v1_}, {WS}, s5 offen sc1', 's2s'), Ins('s_add_u32 s5, s5, 20480')])
        out.append([Ins(f's_add_u32 s4, {sKVo}, {2*MB}'), Ins(f'buffer_store_dwordx4 {ar(32,4)}, {vL16}, {WS}, s4 offen sc1', 's2s'),
                    Ins(f'v_or_b32 {v0_}, {sEdge}, {vL16}'), Ins(f'v_or_b32 {v1_}, {sEdge}, {vS8}')])
        for l in range(2):
            out.append([Ins(f's_add_u32 s4, {sA20}, {HD(l)}'), Ins(f'buffer_store_dwordx4 {ar(32,4)}, {v0_}, {WS}, s4 offen sc1', 's2s'),
                        Ins(f'buffer_store_dwordx4 {ar(32,4)}, {v0_}, {WS}, s4 offen offset:1024 sc1', 's2s'),
                        Ins(f's_add_u32 s4, {sH20}, {HD(l)}'), Ins(f'buffer_store_dwordx2 {ar(32,2)}, {v1_}, {WS}, s4 offen sc1', 's2s')])
        return out

    def gwait(self):
        a = self.a; I = self.I
        sU = sT[8]
        I(f's_cmp_lg_u32 {sW}, 0'); I('s_cbranch_scc1 GB_WAIT')
        I(f's_lshr_b32 {sT[0]}, {sH}, 4')
        I(f'v_lshlrev_b32 v201, 1, v0'); I(f'v_add_u32 v201, {sT[0]}, v201')
        I('v_and_b32 v203, 15, v0'); I('v_lshlrev_b32 v203, 1, v203'); I(f'v_add_u32 v203, {sT[0]}, v203'); I('v_add_u32 v203, 128, v203')
        I('v_and_b32 v204, 31, v0'); I('v_lshlrev_b32 v204, 3, v204'); I(f'v_add_u32 v204, {sXG}, v204')
        I('v_cmp_gt_u32 vcc, 32, v0'); I('v_cndmask_b32 v203, v203, v204, vcc')
        I('v_lshlrev_b32 v201, 7, v201'); I('v_lshlrev_b32 v203, 7, v203')
        I(f's_mov_b32 {sT[1]}, {CNT}')
        I(f's_mov_b32 {sSpin}, {sDead}')
        a.label('GB_P1')
        a.raw(f'    buffer_load_dwordx2 v[206:207], v201, {WS}, {sT[1]} offen sc1')
        a.raw(f'    buffer_load_dwordx2 v[208:209], v203, {WS}, {sT[1]} offen sc1')
        I('s_waitcnt vmcnt(0)')
        I('v_and_b32 v207, -16, v207'); I('v_and_b32 v202, 15, v209'); I('v_and_b32 v209, -16, v209')
        I('v_cmp_eq_u64 vcc, s[0:1], v[206:207]'); I('v_cmp_eq_u64 s[6:7], s[0:1], v[208:209]')
        I('s_and_b64 vcc, vcc, s[6:7]'); I('s_cmp_eq_u64 vcc, -1'); I('s_cbranch_scc1 GB_P1D')
        I(f's_sub_u32 {sSpin}, {sSpin}, 1'); I('s_cbranch_scc0 GB_P1')
        a.label('GB_P1D')
        I(f'v_cmp_eq_u32 vcc, {sU}, v202')
        I(f's_cmp_eq_u32 vcc_lo, -1'); I(f's_cselect_b32 {sT[0]}, 1, 0')
        I(f'v_mov_b32 v200, {sT[0]}'); I(f'v_mov_b32 v201, {7*BANK}')
        I('ds_write_b32 v201, v200')
        a.label('GB_WAIT')
        a.wait(lg=None)
        I('s_barrier')
        I(f'v_mov_b32 v201, {7*BANK}')
        I(f'ds_read_b32 {vT0}, v201', 'mode')
        self.stamp('gbar_done')

    def softmax(self, P, t, KL):
        I = self.I
        I(f'v_max3_f32 v{t}, v{P}, v{P+1}, v{P+2}')
        I(f'v_max3_f32 v{t+1}, v{P+3}, v{P+4}, v{P+5}')
        for i in range(6, 18, 4):
            I(f'v_max3_f32 v{t}, v{t}, v{P+i}, v{P+i+1}')
            I(f'v_max3_f32 v{t+1}, v{t+1}, v{P+i+2}, v{P+i+3}')
        I(f'v_max3_f32 v{t}, v{t}, v{P+18}, v{P+19}')
        I(f'v_max_f32 v{t}, v{t}, v{t+1}')
        I(f'v_mul_f32 v{t}, {hex(f2u(-LOG2E))}, v{t}')
        for i in range(10): I(f'v_pk_fma_f32 {vr(P+2*i,2)}, {vr(P+2*i,2)}, {vr(KL,2)}, {vr(t,2)} op_sel_hi:[1,0,0]')
        for i in range(20): I(f'v_exp_f32 v{P+i}, v{P+i}')
        I(f'v_pk_add_f32 {vr(t,2)}, {vr(P,2)}, {vr(P+2,2)}')
        for i in range(2, 10): I(f'v_pk_add_f32 {vr(t,2)}, {vr(t,2)}, {vr(P+2*i,2)}')
        I(f'v_add_f32 v{t}, v{t}, v{t+1}')
        I(f'v_rcp_f32 v{t}, v{t}')
        for i in range(10): I(f'v_pk_mul_f32 {vr(P+2*i,2)}, {vr(P+2*i,2)}, {vr(t,2)} op_sel_hi:[1,0]')
        self.pack(P, P, 10)

    def phi(self, P, B0, B1, AF, bphi):
        for t in range(5):
            self.I(f'v_mfma_f32_16x16x32_bf16 {vr(P+4*t,4)}, {vr(AF+4*t,4)}, {vr(B0,4)}, 0')
        for t in range(5):
            self.I(f'v_mfma_f32_16x16x32_bf16 {vr(P+4*t,4)}, {vr(AF+20+4*t,4)}, {vr(B1,4)}, {vr(P+4*t,4)}')

    def qkv(self, l, wb, bphi, bscr, tail, fill1, fill2, fill4):
        a = self.a; I = self.I
        AF, ACC = 64, 192
        RA, DA = 6, 5
        LA = self.LA0 if l == 0 else self.LA1
        NR = 4*(LA+1); XR = 192 - 4*NR; AR = XR - 24
        assert AR >= 104
        ONES, CWF, CWA = 20, 24, 32
        NP = [36, 38, 40, 42]
        vX = [vL16, 'v44', 'v45', 'v46']; vCW = [47, 48, 49]
        vPK, vV1, vV3, vTA, vTB, vRS, vKD, vKL, vA0, vA2, vO4, vO1, vCr, vCw = range(50, 64)
        kvl = bphi*BANK + 13312; cwo = bphi*BANK + 12288
        def setup():
            t0, t1, t2, t3, vTok, vG = 64, 65, 66, 67, 68, 69
            for t in range(1, 4): I(f'v_add_u32 {vX[t]}, {t*21504}, {vL16}')
            I(f's_lshl_b32 {sT[3]}, {sW}, 10')
            if l == 0:
                for r in range(4): I(f'v_mov_b32 v{ONES+r}, 0x3f803f80')
                for k, base in enumerate((vL16, vL16b, vL16c)): I(f'v_add_u32 v{vCW[k]}, {sT[3]}, {base}')
            for r in range(8): I(f'v_accvgpr_read_b32 v{76+r}, a{240+r}')
            I(f'v_bfe_u32 v{t0}, v0, 3, 1'); I(f'v_add_u32 v{t0}, -1, v{t0}'); I(f'v_not_b32 v{t1}, v{t0}')
            for r in range(8): I(f'v_and_b32 v{84+r}, v{76+r}, v{t0}')
            for r in range(8): I(f'v_and_b32 v{92+r}, v{76+r}, v{t1}')
            I(f'v_add_u32 v{t0}, {bphi*BANK}, {vL16}'); I(f'v_add_u32 v{t1}, {sT[3]}, v{t0}')
            I(f'ds_write_b128 v{t1}, {vr(84,4)}'); I(f'ds_write_b128 v{t0}, {vr(88,4)} offset:4096')
            I(f'ds_write_b128 v{t1}, {vr(92,4)} offset:5120'); I(f'ds_write_b128 v{t0}, {vr(96,4)} offset:9216')
            for r in range(4): I(f'v_mov_b32 v{72+r}, 0')
            I(f'v_min_u32 v{t0}, {35*16}, {vL16}'); I(f'v_add_u32 v{t0}, {kvl+96*21}, v{t0}')
            I(f'ds_write_b128 v{t0}, {vr(72,4)}')
        def setupB():
            t0, t1, t2, t3, vTok, vG = 64, 65, 66, 67, 68, 69
            if l: self.decomp(20, 248, 16, t0)
            I(f's_mov_b32 {sWB}, {bscr[1]*BANK}'); I(f's_cmp_lt_u32 {sW}, 2'); I(f's_cselect_b32 {sWB}, {bscr[0]*BANK}, {sWB}')
            I(f's_and_b32 {sT[3]}, {sW}, 1'); I(f's_mul_i32 {sT[3]}, {sT[3]}, 10240'); I(f's_add_u32 {sWB}, {sWB}, {sT[3]}')
            I(f'v_and_b32 v{vTok}, 15, v0'); I(f'v_lshrrev_b32 v{vG}, 4, v0')
            I(f's_lshl_b32 {sT[3]}, {sW}, 6'); I(f's_add_u32 {sT[3]}, {sT[3]}, {cwo}')
            I(f'v_lshlrev_b32 v{t0}, 4, v{vG}'); I(f'v_add_u32 v{vCw}, {sT[3]}, v{t0}'); I(f'v_add_u32 v{vCr}, {cwo}, v{t0}')
            I(f'v_lshrrev_b32 v{t0}, 5, v0'); I(f'v_lshl_add_u32 v{t0}, v{t0}, 4, v{vTok}'); I(f'v_mul_u32_u24 v{vPK}, 80, v{t0}')
            I(f'v_and_b32 v{t0}, 1, v{vG}'); I(f'v_mul_u32_u24 v{t0}, 40, v{t0}'); I(f'v_add3_u32 v{vPK}, v{vPK}, v{t0}, {sWB}')
            I(f'v_mul_u32_u24 v{t0}, 72, v{vTok}'); I(f'v_add_u32 v{t0}, {sWB}, v{t0}'); I(f'v_add_u32 v{t0}, 5120, v{t0}')
            I(f'v_lshlrev_b32 v{t1}, 3, v{vG}'); I(f'v_add_u32 v{vV1}, -8, v{t1}'); I(f'v_add_u32 v{vV3}, 16, v{t1}')
            I(f'v_cmp_eq_u32 vcc, 0, v{vG}'); I(f'v_cndmask_b32 v{vV1}, v{vV1}, 48, vcc'); I(f'v_cndmask_b32 v{vV3}, v{vV3}, 56, vcc')
            I(f'v_add_u32 v{vV1}, v{vV1}, v{t0}'); I(f'v_add_u32 v{vV3}, v{vV3}, v{t0}')
            I(f'v_lshrrev_b32 v{t0}, 2, v{vTok}'); I(f'v_lshl_add_u32 v{t0}, v{vG}, 3, v{t0}')
            I(f'v_and_b32 v{t1}, 3, v0'); I(f'v_lshlrev_b32 v{t1}, 3, v{t1}'); I(f'v_add_u32 v{t1}, {sWB}, v{t1}')
            I(f'v_mad_u32_u24 v{vTA}, v{t0}, 20, v{t1}'); I(f'v_mad_u32_u24 v{vTA}, v{t0}, 60, v{vTA}')
            I(f'v_mad_u32_u24 v{vTB}, v{t0}, 12, v{t1}'); I(f'v_mad_u32_u24 v{vTB}, v{t0}, 60, v{vTB}'); I(f'v_add_u32 v{vTB}, 5120, v{vTB}')
            I(f'v_min_u32 v{t0}, 59, v0')
            I(f'v_mul_u32_u24 v{t1}, 3277, v{t0}'); I(f'v_lshrrev_b32 v{t1}, 16, v{t1}')
            I(f'v_mul_u32_u24 v{t2}, 20, v{t1}'); I(f'v_sub_u32 v{t0}, v{t0}, v{t2}')
            I(f'v_mul_u32_u24 v{t2}, 13108, v{t0}'); I(f'v_lshrrev_b32 v{t2}, 16, v{t2}')
            I(f'v_mul_u32_u24 v{t3}, 5, v{t2}'); I(f'v_sub_u32 v{t0}, v{t0}, v{t3}')
            I(f's_cmp_eq_u32 {sW}, 3'); I('s_cselect_b64 vcc, -1, 0')
            I(f'v_mov_b32 v{t3}, {sW}')
            I(f'v_cndmask_b32 v{t1}, v{t3}, v{t1}, vcc')
            I(f'v_cndmask_b32 v{t2}, v{vG}, v{t2}, vcc')
            I(f'v_cndmask_b32 v{t0}, v{vTok}, v{t0}, vcc')
            I(f'v_cndmask_b32 v{t3}, 0, 1, vcc')
            I(f'v_lshlrev_b32 v{vRS}, 10, v{t1}'); I(f'v_mad_u32_u24 v{vRS}, v{t3}, {self.sconst(3072)}, v{vRS}')
            I(f'v_lshl_add_u32 v{vRS}, v{t2}, 8, v{vRS}'); I(f'v_lshl_add_u32 v{vRS}, v{t0}, 4, v{vRS}')
            I(f'v_lshl_add_u32 v{t1}, v{t1}, 2, v{t2}')
            I(f'v_lshl_add_u32 v{t0}, v{t3}, 4, v{t0}')
            I(f'v_mul_u32_u24 v{vKD}, 96, v{t0}'); I(f'v_lshl_add_u32 v{vKD}, v{t1}, 3, v{vKD}')
            I(f'v_cmp_le_u32 vcc, 5, v{t1}'); I(f'v_cndmask_b32 v{t0}, 0, 8, vcc'); I(f'v_add_u32 v{vKD}, v{vKD}, v{t0}')
            I(f'v_add_u32 v{vKD}, {kvl}, v{vKD}')
            I(f'v_cmp_gt_u32 vcc, 10, v{t1}')
            I(f'v_mov_b32 v{t0}, {kvl + 96*30}'); I(f'v_cndmask_b32 v{vKD}, v{t0}, v{vKD}, vcc')
            I(f'v_mov_b32 v{t0}, {OOB}'); I(f'v_lshlrev_b32 v{vKL}, 3, v0'); I(f'v_cndmask_b32 v{vKL}, v{t0}, v{vKL}, vcc')
            I(f'v_bfe_u32 v{t0}, v0, 2, 1'); I(f'v_and_b32 v{t1}, 3, v0')
            I(f'v_lshl_add_u32 v{t2}, v{t0}, 3, v{t1}')
            I(f'v_lshl_add_u32 v{t3}, v{t0}, 1, v{t1}'); I(f'v_add_u32 v{t3}, 16, v{t3}')
            I(f'v_cmp_le_u32 vcc, 2, v{t1}'); I(f'v_cndmask_b32 v{t3}, v{t3}, 20, vcc')
            I(f'v_bfe_u32 v{t0}, v0, 3, 1'); I(f'v_lshrrev_b32 v{t1}, 5, v0')
            I(f'v_cmp_eq_u32 vcc, v{t0}, v{t1}')
            I(f'v_cndmask_b32 v{t2}, 21, v{t2}, vcc'); I(f'v_cndmask_b32 v{t3}, 21, v{t3}, vcc')
            I(f'v_and_b32 v{t0}, 1, v{vG}'); I(f'v_mul_u32_u24 v{t0}, 48, v{t0}'); I(f'v_add_u32 v{t0}, {kvl}, v{t0}')
            I(f's_movk_i32 {sT[3]}, 96')
            I(f'v_mad_u32_u24 v{vA0}, v{t2}, {sT[3]}, v{t0}'); I(f'v_mad_u32_u24 v{vA2}, v{t3}, {sT[3]}, v{t0}')
            I(f'v_mul_u32_u24 v{vO4}, 20480, v{t1}'); I(f'v_lshl_add_u32 v{vO4}, v{vTok}, 4, v{vO4}')
            I(f'v_and_b32 v{t0}, 1, v{vG}')
            I(f'v_lshl_add_u32 v{vO1}, v{t0}, 2, v{vO4}'); I(f'v_lshl_add_u32 v{vO4}, v{t0}, 8, v{vO4}')
        def aread(f):
            s_, i = f >> 2, f & 3
            b, o = self.lds(wb[s_ // 5]*BANK + ((s_ % 5)*4 + i)*1024)
            I(f'ds_read_b128 {vr(AR+4*(f % RA),4)}, {b} offset:{o}', ('a', f))
        def cwread(s_):
            off = wb[s_ // 5]*BANK + (s_ % 5)*4096
            I(f'ds_read_b128 {vr(CWF+4*(s_&1),4)}, v{vCW[off>>16]} offset:{off & 0xffff}', ('cw', s_))
        def xload(n):
            s_ = n >> 2
            if n % 16 == 0:
                I(f's_add_u32 {sT[2]}, {sQT21}, s{36 + (s_ >> 2)}'); I(f's_add_u32 {sT[2]}, {sT[2]}, {XA(l)}')
            I(f'buffer_load_dwordx4 {vr(XR + 4*(n % NR),4)}, {vX[n & 3]}, {WS}, {sT[2]} offen offset:{(s_ & 3)*1024} sc1', ('x', n))
        self._lf = None
        def wstep(q):
            if q >= 20: return
            I(f's_lshl_b32 {sDm}, s{36 + (q >> 2)}, 2'); I(f's_add_u32 {sDm}, {sDm}, {sT[6]}'); I(f's_add_u32 {sDm}, {sDm}, {WT_QKV + (q & 3)*4096}')
            I(f's_add_u32 m0, s3, {wb[q//5]*BANK + (q % 5)*4096}')
            I(f'buffer_load_dwordx4 {vL16}, {WS}, {sDm} offen lds', ('wq', q))
        if l == 0:
            setup(); setupB()
            self.gwait()
            self.emit(self.touchT(XA(0), 21504))
            I(f's_lshl_b32 s3, {sW}, 10')
            I(f's_mul_i32 {sT[6]}, {sH}, 81920'); I(f's_add_u32 {sT[6]}, {sT[6]}, s3')
            BS = self.BS; WO_ = BS + 2
            for q in range(3): wstep(q)
            nq = 3
            for q in range(LA):
                for t in range(4):
                    xload(4*q+t)
                    if nq < WO_ + q + 1 and t % 2 == 1: wstep(nq); nq += 1
            while nq < WO_ + LA: wstep(nq); nq += 1
            a.wait(lg='mode'); I(f'v_readfirstlane_b32 {sMODE}, {vT0}')
            a.wait(vm=('wq', 1)); I('s_barrier')
            self.ls('g0_bar')
            for f in range(DA): aread(f)
            cwread(0)
        else:
            setup()
            a.wait(lg=None); I('s_barrier')
            for f in range(DA): aread(f)
            I(f's_lshl_b32 {sT[3]}, {sXG}, 2'); I(f's_add_u32 {sT[3]}, {sT[3]}, {sW}'); I(f's_lshl_b32 {sT[3]}, {sT[3]}, 7'); I(f's_add_u32 {sT[3]}, {sT[3]}, {FL}')
            self.poll(vFl, sT[3], 8*(l-1)+5)
            self.stamp(f'qkv{l}_go')
            for n in range(4*LA): xload(n)
        ST = XR + 4*(80 % NR)
        tailf = tail()
        with a.capture() as G:
          for s_ in range(20):
            for i in range(4):
                f = 4*s_ + i
                for t in range(4):
                    if i == 0 or t == 0: a.wait(vm=('x', 4*s_+t) if i == 0 else False, lg=('a', f) if t == 0 else False)
                    d = vr(ACC + 16*t + 4*i, 4)
                    I(f'v_mfma_f32_16x16x32_bf16 {d}, {vr(AR+4*(f%RA),4)}, {vr(XR+4*((4*s_+t)%NR),4)}, {d if s_ else 0}')
                    if t == 0 and f + DA < 80:
                        if l == 0 and i == 0 and s_ + 2 < 20 and (s_ < 2 or (s_ - 2) % self.BS == 0):
                            a.wait(vm=('wq', min(19, s_+2 if s_ < 2 else s_+1+self.BS))); I('s_barrier')
                        aread(f + DA)
                    if t == 1:
                        n = 4*(s_+LA) + i
                        if n < 80: xload(n)
                        elif s_ == 20 - LA: self.load_frag(ST + 4*i, vX[i], sQT21, XA(l), 20, 'stat')
                        elif l == 0 and s_ == 18 and i == 0: self.emit(self.allchk_issue(0, XR + 4*(68 % NR)))
                    if l == 0 and t == 3 and i == 3: wstep(s_ + LA + self.BS + 2)
                    if l == 0 and t == 2 and i == 0 and s_ + 1 < 20: cwread(s_+1)
                    if t == 2 and 14 <= s_ and 4*(s_-14)+i < 10:
                        k = 4*(s_-14)+i
                        b, o = self.lds(bphi*BANK + k*1024)
                        I(f'ds_read_b128 {vr(AF+4*k,4)}, {b} offset:{o}', 'af')
            if s_ in (0, 4, 9, 14, 19): self.ls(f'g{l}_s{s_}')
            if l == 0:
                a.wait(lg=('cw', s_))
                I(f'v_mfma_f32_16x16x32_bf16 {vr(CWA,4)}, {vr(CWF+4*(s_&1),4)}, {vr(ONES,4)}, {vr(CWA,4) if s_ else 0}')
        nm = 340 if l == 0 else 320
        fill = (self.stchk(ST, 4, 2, NP[0], [(vX[t], sQT21, XA(l)+20480) for t in range(4)]) if l else [Wait(vm='stat')]) + rr(*[self.cap(self.cons_stats, ST+4*t, NP[t], NP[t]+1) for t in range(4)])
        gi = G.items
        if l:
            gi, lf = gapfill(gi, sccgroup(self.cap(setupB)), start=4)
            assert not lf
        o, left = gapfill(gi, fill, start=nm - self.STG)
        a.extend(o)
        self.stamp(f'qkv{l}_gemm')
        self.emit(tailf)
        if l: self.cpf()
        CW = 20
        if l == 0:
            I(f'ds_write_b128 v{vCw}, {vr(CWA,4)}')
            self.flat(left)
            I('v_accvgpr_read_b32 v48, a38'); I('v_accvgpr_read_b32 v49, a39')
            s2s = self.s2_stores('v48', 'v49')
            self.allchk(XR + 4*(68 % NR))
            a.wait(lg=None); I('s_barrier')
            self.emit(self.touch(WT_O, 50))
            self.emit(s2s[:3]); s2s = s2s[3:]
            for i in range(4): I(f'ds_read_b128 {vr(CW+4*i,4)}, v{vCr} offset:{i*64}', 'cwr')
            I(f'v_and_b32 v46, 15, v0'); I('v_lshrrev_b32 v47, 2, v46'); I('v_and_b32 v46, 3, v46')
            I(f'v_lshl_add_u32 v47, v47, 6, v{vCr}'); I('v_lshl_add_u32 v47, v46, 2, v47')
            I('ds_read_b32 v46, v47', 'cwr')
            self.emit(s2s[:2]); s2s = s2s[2:]
            a.wait(lg='cwr')
            I('v_accvgpr_write_b32 a248, v46')
        else:
            self.flat(left); s2s = []
        self.ls(f'e{l}_st')
        KL, tmp = 44, 46
        PP = (104, 124); PKD = 144; TA = 192; TB = 204; KVA = 232
        for t in range(4):
            for i in (0, 1, 3):
                for h in range(2):
                    r = ACC+16*t+4*i+2*h
                    I(f'v_pk_fma_f32 {vr(r,2)}, {vr(CW+4*i+2*h,2)}, {vr(NP[t],2)}, {vr(r,2)} op_sel_hi:[1,0,1]')
            for i in (0, 1, 3):
                for h in range(2):
                    r = ACC+16*t+4*i+2*h
                    I(f'v_pk_mul_f32 {vr(r,2)}, {vr(r,2)}, {vr(NP[t],2)} op_sel:[0,1] op_sel_hi:[1,1]')
        for t in range(4):
            for h in range(2):
                r = ACC+16*t+8+2*h
                I(f'v_pk_fma_f32 {vr(176+4*t+2*h,2)}, {vr(CW+8+2*h,2)}, {vr(NP[t],2)}, {vr(r,2)} op_sel_hi:[1,0,1]')
        self.ls(f'e{l}_fix')
        for t in range(2): self.pack(PKD+8*t, ACC+16*t, 4)
        I(f'v_lshrrev_b32 v24, 4, v0'); I('v_cmp_eq_u32 vcc, 3, v24'); I('v_mov_b32 v24, 0x3f80')
        I(f'v_mov_b32 v{KL}, {hex(f2u(LOG2E))}')
        a.wait(lg='af')
        f0 = []
        for t in (2, 3): f0 += self.cap(self.pack, PKD+8*t, ACC+16*t, 4)
        f1 = []
        for t in range(4):
            q = PKD + 8*t + 6
            f1 += self.cap(self.pack, q, ACC+16*t+12, 2)
            f1 += [Ins(f'v_cndmask_b32 v{q}, v{q}, v24, vcc'), Ins(f'v_cndmask_b32 v{q+1}, v{q+1}, 0, vcc')]
            f1 += [Ins(f'ds_write_b64 v{vV1}, {vr(PKD+8*t+2,2)} offset:{16*t*72}'), Ins(f'ds_write_b64 v{vV3}, {vr(q,2)} offset:{16*t*72}')]
        o, left = gapfill(self.cap(self.phi, PP[0], PKD, PKD+8, AF, bphi), f0 + f1)
        a.extend(o)
        o, left = gapfill(self.cap(self.phi, PP[1], PKD+16, PKD+24, AF, bphi), left)
        a.extend(o); a.extend(left)
        self.ls(f'e{l}_phi')
        def trr(p):
            for ft in range(3):
                I(f'ds_read_b64_tr_b16 {vr(TA+20*p+4*ft,2)}, v{vTA} offset:{32*p*80+32*ft}', ('tr', p))
                I(f'ds_read_b64_tr_b16 {vr(TA+20*p+4*ft+2,2)}, v{vTA} offset:{32*p*80+32*ft+320}', ('tr', p))
            for dt in range(2):
                I(f'ds_read_b64_tr_b16 {vr(TB+20*p+4*dt,2)}, v{vTB} offset:{32*p*72+32*dt}', ('tr', p))
                I(f'ds_read_b64_tr_b16 {vr(TB+20*p+4*dt+2,2)}, v{vTB} offset:{32*p*72+32*dt+288}', ('tr', p))
        def kvm(p):
            a.wait(lg=('tr', p))
            for dt in range(2):
                for ft in range(3):
                    d = vr(KVA + 4*(dt*3+ft), 4)
                    I(f'v_mfma_f32_16x16x32_bf16 {d}, {vr(TA+20*p+4*ft,4)}, {vr(TB+20*p+4*dt,4)}, {d if p else 0}')
        for p in range(2):
            self.weave(self.cap(self.softmax, PP[p], tmp, KL), s2s[:3], 30); s2s = s2s[3:]
            for i in range(5): I(f'ds_write_b64 v{vPK}, {vr(PP[p]+2*i,2)} offset:{32*p*80+8*i}')
            trr(p)
        assert not s2s
        self.ls(f'e{l}_sm')
        I(f'v_add_u32 v24, {sWB}, {vL16}')
        kvm(0); kvm(1)
        for k in range(4): I(f'v_add_u32 v{25+k}, {bscr[k >> 1]*BANK + (k & 1)*10240}, v{vRS}')
        I(f's_add_u32 {sT[3]}, {sKVo}, {l*2*MB}')
        for k in range(6): I(f'ds_write_b128 v24, {vr(KVA+4*k,4)} offset:{k*1024}')
        self.ls(f'e{l}_kv')
        a.wait(lg=None); I('s_barrier')
        self.ls(f'e{l}_bar2')
        for k in range(4): I(f'ds_read_b128 {vr(TA+4*k,4)}, v{25+k}')
        for t in range(4):
            for h in range(2):
                r = 176+4*t+2*h
                I(f'v_pk_mul_f32 {vr(r,2)}, {vr(r,2)}, {vr(NP[t],2)} op_sel:[0,1] op_sel_hi:[1,1]')
        for t in range(4): self.pack(PKD+8*t+4, 176+4*t, 2)
        a.wait(lg=None)
        for h in range(2):
            I(f'v_pk_add_f32 {vr(TA+2*h,2)}, {vr(TA+2*h,2)}, {vr(TA+4+2*h,2)}')
            I(f'v_pk_add_f32 {vr(TA+8+2*h,2)}, {vr(TA+8+2*h,2)}, {vr(TA+12+2*h,2)}')
        for h in range(2):
            I(f'v_pk_add_f32 {vr(TA+2*h,2)}, {vr(TA+2*h,2)}, {vr(TA+8+2*h,2)}')
        self.pack(TA, TA, 2)
        I(f'buffer_store_dwordx2 {vr(TA,2)}, v{vKL}, {WS}, {sT[3]} offen sc1', 'kvst')
        self.stamp(f'qkv{l}_kvpub')
        self.emit(fill1())
        f2 = fill2()
        NW = self.NW if l else self.NW0
        wv = f2[:NW]; f2 = f2[NW:]
        ph = self.cap(self.phi, PP[0], PKD+4, PKD+12, AF, bphi) + self.cap(self.phi, PP[1], PKD+20, PKD+28, AF, bphi)
        if l == 0:
            for k, base in enumerate((vL16, vL16b, vL16c)): I(f'v_add_u32 v{24+k}, {sLW}, {base}')
            st = []
            for k in range(20):
                off = wb[k // 5]*BANK + (k % 5)*1024
                st.append([Ins(f'ds_read_b128 {vr(176+4*k,4)}, v{24+(off>>16)} offset:{off & 0xffff}', 'stash')])
            self.weave(ph, st, 4)
            a.wait(lg=None)
        else:
            self.weave(ph, wv[:5], 16); wv = wv[5:]
        for p in range(2):
            sm = self.cap(self.softmax, PP[p], tmp, KL)
            h_ = (len(wv)+1)//2 if p == 0 else len(wv)
            self.weave(sm, wv[:h_], max(8, 90//max(1, h_))); wv = wv[h_:]
        self.stamp(f'qkv{l}_qsm')
        HP = 0
        self.emit(f2[:HP])
        G0 = 64
        L = a.newlabel('KVPOLL'); D = a.newlabel('KVDONE'); C = a.newlabel('KVCHK')
        I(f's_mov_b32 {sSpin}, {sDead}')
        for x in range(8):
            I(f's_add_u32 {sT[3]}, {sKVi}, {l*2*MB + x*8192}')
            I(f'buffer_load_dwordx2 {vr(G0+2*x,2)}, v{vKL}, {WS}, {sT[3]} offen sc1', 'kvl')
        self.emit(f2[HP:])
        if self.TW1 == 3: self.emit(self.touch(WT_1, 50))
        I('v_mov_b32 v26, 0x3f80'); I('v_mov_b32 v27, 0x3f800000')
        for r in range(4): I(f'v_mov_b32 v{80+r}, 0')
        a.wait(vm='kvl')
        a.label(C)
        I(f'v_max3_u32 v24, v{G0}, v{G0+1}, v{G0+2}')
        I(f'v_max3_u32 v25, v{G0+3}, v{G0+4}, v{G0+5}')
        for i in range(6, 14, 4):
            I(f'v_max3_u32 v24, v24, v{G0+i}, v{G0+i+1}'); I(f'v_max3_u32 v25, v25, v{G0+i+2}, v{G0+i+3}')
        I(f'v_max3_u32 v24, v24, v{G0+14}, v{G0+15}')
        I(f'v_max_u32 v24, v24, v25')
        I('v_cmp_eq_u32 vcc, -1, v24')
        I('s_cmp_lg_u64 vcc, 0'); I(f's_cbranch_scc1 {L}')
        a.label(D)
        with a.capture() as c:
            a.label(L)
            I(f's_sub_u32 {sSpin}, {sSpin}, 1'); I(f's_cbranch_scc0 {L}_go')
            I(f's_mov_b32 {sDead}, 0'); I(f's_branch {D}')
            a.label(f'{L}_go')
            for x in range(8):
                r = G0+2*x
                I(f'v_max_u32 v24, v{r}, v{r+1}')
                I(f's_add_u32 {sT[3]}, {sKVi}, {l*2*MB + x*8192}')
                I('v_cmp_eq_u32 vcc, -1, v24')
                I('s_mov_b64 exec, vcc')
                I(f's_cbranch_execz {L}_s{x}')
                a.raw(f'    buffer_load_dwordx2 {vr(r,2)}, v{vKL}, {WS}, {sT[3]} offen sc1')
                a.label(f'{L}_s{x}')
                I('s_mov_b64 exec, -1')
            I('s_waitcnt vmcnt(0)')
            I(f's_branch {C}')
        self.ool += c.items
        self.stamp(f'qkv{l}_kvgot')
        for x in range(8):
            for r in range(4): I(f'v_dot2c_f32_bf16 v{80+r}, v{G0+2*x+(r>>1)}, v{26+(r&1)}')
        I('s_nop 2')
        self.pack(G0, 80, 2)
        I(f'ds_write_b64 v{vKD}, {vr(G0,2)}')
        for p in range(2):
            I(f's_add_u32 {sT[4+2*p]}, {sO4}, {OB(l)+2*p*20480}')
            I(f's_add_u32 {sT[5+2*p]}, {sO1}, {OB(l)+2*p*20480}')
        a.wait(vm='s2s' if l == 0 else False, lg=None); I('s_barrier')
        if l == 0: self.arrive(1, 32)
        AO = 136
        for u in range(3):
            for t in range(3):
                b, o = (vA0, 384*t) if t < 2 else (vA2, 0)
                if u < 2: I(f'ds_read_b128 {vr(AO+12*t+4*u,4)}, v{b} offset:{o+16*u}', ('ao', u))
                else: I(f'ds_read_b64 {vr(AO+12*t+8,2)}, v{b} offset:{o+32}', ('ao', u))
        DO = (64, 80)
        def om(p, u):
            for t in range(3):
                if u < 2: I(f'v_mfma_f32_16x16x32_bf16 {vr(DO[p]+4*t,4)}, {vr(AO+12*t+4*u,4)}, {vr(PP[p]+4*u,4)}, {vr(DO[p]+4*t,4) if u else 0}')
                else: I(f'v_mfma_f32_16x16x16_bf16 {vr(DO[p]+4*t,4)}, {vr(AO+12*t+8,2)}, {vr(PP[p]+8,2)}, {vr(DO[p]+4*t,4)}')
        for u in range(3):
            a.wait(lg=('ao', u)); om(0, u)
        def fin(p, pk):
            I(f'v_add_f32 v{DO[p]+10}, {hex(f2u(1e-6))}, v{DO[p]+10}')
            I(f'v_rcp_f32 v{DO[p]+10}, v{DO[p]+10}')
            if pk:
                for i in range(5): I(f'v_pk_mul_f32 {vr(DO[p]+2*i,2)}, {vr(DO[p]+2*i,2)}, {vr(DO[p]+10,2)} op_sel_hi:[1,0]')
            else:
                for i in range(10): I(f'v_mul_f32 v{DO[p]+i}, v{DO[p]+i}, v{DO[p]+10}')
            self.pack(DO[p], DO[p], 5)
        with a.capture() as c:
            for u in range(3): om(1, u)
        o, left = gapfill(c.items, self.cap(fin, 0, False), start=2)
        a.extend(o); a.extend(left)
        def ost(p):
            a.slow_begin(sMODE)
            I(f'buffer_store_dwordx4 {vr(DO[p],4)}, v{vO4}, {WS}, {sT[4+2*p]} offen', 'st')
            I(f'buffer_store_dword v{DO[p]+4}, v{vO1}, {WS}, {sT[5+2*p]} offen', 'st')
            a.slow_end()
        ost(0); fin(1, True); ost(1)
        self.emit(fill4())
        a.wait(vm='st')
        self.setflag(sFLOo, l+1)
        self.stamp(f'qkv{l}_end')

    def sconst(self, val):
        self.I(f's_movk_i32 {sT[4]}, {val}'); return sT[4]

    def areadS(self, banks, m):
        s_, i = divmod(m, 5)
        b, o = self.lds(banks[s_ // 4]*BANK + ((s_ % 4)*5 + i)*1024)
        self.I(f'ds_read_b128 {vr(self.AR5+4*(m % self.RA5),4)}, {b} offset:{o}', ('a', m))
    def preloadS(self, banks):
        for m in range(self.DA5): self.areadS(banks, m)
    def gemmS(self, KS, banks, ACC, init, side, NR):
        a = self.a; I = self.I
        NM = 5*KS
        for m in range(NM):
            s_, i = divmod(m, 5)
            if i == 0 or m % self.WG == 0:
                a.wait(vm=('x', s_) if i == 0 else False, lg=('a', min(NM-1, m + self.WG - 1)) if m % self.WG == 0 else False)
            d = vr(ACC+4*i, 4)
            I(f'v_mfma_f32_16x16x32_bf16 {d}, {vr(self.AR5+4*(m % self.RA5),4)}, {vr(80+4*(s_%NR),4)}, {d if (s_ or init) else 0}')
            for it in side.get(m, []): a.extend(it() if callable(it) else it)
            if m + self.DA5 < NM: self.areadS(banks, m + self.DA5)
    def put(self, side, bundles, start, every):
        for k, b in enumerate(bundles): side.setdefault(start + int(k*every), []).append(b)
    def put3(self, side, bundles, start, every):
        for k, b in enumerate(bundles):
            m = 3*int(round((start + k*every)/3.0))
            pre, ld = b[:-1], b[-1:]
            assert len(pre) <= 2
            for q, x in enumerate(pre): side.setdefault(m - len(pre) + q, []).append([x])
            side.setdefault(m, []).append(ld)
    def bar(self, vm=False, lg=False):
        return [Wait(vm, lg), Ins('s_barrier')]

    def small(self, banks, xl, ACC, init, tail, fill=None, NUP=8, name=''):
        self._lf = None
        NR = self.NR5
        for s_ in range(NUP): xl(s_, 80+4*(s_ % NR))
        side = {}
        for s_ in range(NUP, 20):
            m = max(1 + int((s_-NUP)*self.XE), 5*(s_-NR) + 5 if s_ >= NR else 0)
            side.setdefault(m, []).append(lambda s_=s_: self.cap(xl, s_, 80+4*(s_ % NR)))
        side.setdefault(44, []).append(self.bar())
        t0 = max(46, int(1 + (20-NUP)*self.XE) + 1)
        tail = [self.cap(self.cpf)] + list(tail)
        self.put(side, tail, t0, min(4.0, (self.TE-t0)/len(tail)))
        for m in (0, 43, 45, 99): side.setdefault(m, []).append(lambda m=m: self.cap(self.ls, f'{name}_m{m}'))
        if name[:2] == 'w1': side.setdefault(0, []).append(lambda: self.cap(self.ls, f'ga{name[2]}_m0'))
        items = self.cap(self.gemmS, 20, banks, ACC, init, side, NR)
        left = []
        for st, its in (fill or []):
            items, lf = gapfill(items, its, start=st); left += lf
        self.a.extend(items); self.flat(left)
    XE = 4.0

    def layer(self, l, B):
        a = self.a; I = self.I
        last = (l == 1)
        ACC, XP, PK, TMP = 20, 40, 60, 72
        NMr, R1r, RRr = 76, 78, 74
        if l == 0: self.AR5, self.RA5, self.DA5, self.NR5, M = 128, 10, 8, 12, 168
        else:      self.AR5, self.RA5, self.DA5, self.NR5, M = 208, 12, 10, 20, 168
        wo = lambda ch, bk: self.dma_b(sW5, WT_O + ch*BANK, bk, 'wo')
        w1 = lambda ch, bk: self.dma_b(sW5, WT_1 + ch*BANK, bk, 'w1')
        w2 = lambda ch, bk: self.dma_b(sW5, WT_2 + ch*BANK, bk, 'w2')
        w4 = lambda ch, bk: self.dma_b(sW4, WT_4 + ch*BANK, bk, ('w4', ch))
        w4b = [B[4], B[7], B[0], B[3], B[1], B[2], B[5], B[6], B[4], B[7], B[0], B[3]]
        def w3l(k):
            kk = (k % 3)*20 + k // 3
            return [Ins(f's_add_u32 s3, {sW3}, {WT_3 + kk*1024}'), Ins(f'buffer_load_dwordx4 {ar(4*kk,4)}, {vL16}, {WS}, s3 offen', ('w3', k // 3))]
        def tq():
            r = self.touchT(OB(l), 20480)
            if l:
                r += self.touch(WT_O, 50)
                if self.TW1 == 2: r += self.touch(WT_1, 50)
                if self.TW2:
                    with a.capture() as c2:
                        I(f's_lshr_b32 s7, {sWI}, 4'); I('s_mul_i32 s7, s7, 102400'); I(f's_and_b32 s6, {sWI}, 7'); I('s_mul_i32 s6, s6, 2560'); I('s_add_u32 s7, s7, s6')
                        I(f's_bitcmp1_b32 {sWI}, 3'); I(f's_cselect_b32 s6, {4*BANK}, 0'); I('s_add_u32 s7, s7, s6')
                    r.append(c2.items + self.touch2('s7', WT_2, 20)[0])
            return r
        f1 = lambda: self.touch(WT_1, 50) if (l and self.TW1 == 1) else []
        f2 = lambda: wo(0, B[7]) + wo(1, B[0]) + wo(2, B[1]) + wo(3, B[2]) + wo(4, B[3])
        f4 = lambda: w1(0, B[5])
        self.qkv(l, B[0:4], B[4], B[5:7], tq, f1, f2, f4)
        if self.stop == f'qkv{l}': return True
        wob = [B[7], B[0], B[1], B[2], B[3]]
        I('s_barrier')
        self.preloadS(wob)
        self.emit(w1(1, B[6]) + (w1(2, B[4]) if self.G1 else []))
        self.unpack(ACC, RES, 10)
        I(f's_lshl_b32 {sT[3]}, {sC}, 7'); I(f's_add_u32 {sT[3]}, {sT[3]}, {FLO}')
        self.poll(vFl, sT[3], l+1)
        self.stamp(f'wo{l}_go')
        tl = ([] if self.G1 else w1(2, B[4])) + w1(3, B[7]) + w1(4, B[0])
        self.small(wob, lambda s_, r: self.load_frag(r, vL16, sT20, OB(l), s_, ('x', s_)), ACC, True, tl, name=f'wo{l}')
        self.stamp(f'wo{l}_gemm')
        self.ls(f'ga{l}_0')
        self.pack(PK, ACC, 10)
        self.store_tile(PK, XB(l), sA21, sH21)
        self.ls(f'ga{l}_st')
        self.prod_stats(ACC, TMP)
        self.store_stats(TMP, XB(l), 2 - l)
        self.ls(f'ga{l}_stats')
        if l == 0: self.emit(self.allchk_issue(1, M))
        for i in range(20): I(f'v_mov_b32 v{XP+i}, v{ACC+i}')
        a.wait(vm='st')
        self.ls(f'ga{l}_drain')
        self.setflag(sFLo, 8*l+1)
        CW = 176 if l else 128
        if l: self.decomp(CW, 249, 16, 70); self.decomp(CW+16, 250, 4, 70)
        I('s_barrier')
        self.ls(f'ga{l}_bar')
        if self.stop == f'wo{l}': return True
        w1b = [B[5], B[6], B[4], B[7], B[0]]
        def cw1():
            for k, base in enumerate((vL16, vL16b, vL16c)): I(f'v_add_u32 v{60+k}, {sLW}, {base}')
            for r in range(4): I(f'v_mov_b32 v{TMP+r}, 0x3f803f80')
            def rd(k):
                ch, i = divmod(k, 5); off = w1b[ch]*BANK + i*1024
                I(f'ds_read_b128 {vr(80+4*(k % 12),4)}, v{60+(off>>16)} offset:{off&0xffff}', ('cw', k))
            for k in range(10): rd(k)
            for k in range(25):
                a.wait(lg=('cw', k))
                d = vr(ACC+4*(k % 5), 4); I(f'v_mfma_f32_16x16x32_bf16 {d}, {vr(80+4*(k % 12),4)}, {vr(TMP,4)}, {d if k >= 5 else 0}')
                if k + 10 < 25: rd(k+10)
            cwo = B[3]*BANK
            I('v_lshrrev_b32 v70, 4, v0'); I('v_lshlrev_b32 v70, 4, v70'); I(f'v_add_u32 v70, {cwo}, v70')
            I(f's_mul_i32 {sT[3]}, {sW}, 320'); I(f'v_add_u32 v63, {sT[3]}, v70')
            I('v_bfe_u32 v71, v0, 2, 2'); I('v_and_b32 v64, 3, v0')
            I('v_lshl_add_u32 v70, v64, 2, v70'); I('v_lshl_add_u32 v71, v71, 6, v70')
            for i in range(5): I(f'ds_write_b128 v63, {vr(ACC+4*i,4)} offset:{i*64}', 'cww')
        if l == 0:
            cw1()
            self.preloadS(w1b)
            self.allchk(M)
        else:
            self.preloadS(w1b)
            self.emit(w2(0, B[1]) + (w2(1, B[2]) if self.G2 else []))
        I(f'v_and_b32 v{M}, 7, v0'); I(f'v_lshlrev_b32 v{M}, 2, v{M}')
        I(f's_lshl_b32 {sT[3]}, {sTT}, 5'); I(f's_add_u32 {sT[3]}, {sT[3]}, {FL}')
        if l == 0: a.wait(lg='cww')
        self.ls(f'ga{l}_pre')
        self.poll(f'v{M}', sT[3], 8*l+1)
        self.ls(f'ga{l}_poll')
        self.stamp(f'w1{l}_go')
        fills = []
        if l == 0:
            its = []
            for k in range(4):
                its.append(Ins(f'ds_read_b32 v{60+k}, v71 offset:{k*320}', 'cr'))
                its.append(Ins(f'ds_read_b32 v{64+k}, v70 offset:{k*320+256}', 'cr'))
            fills.append((46, its))
            fills.append((66, [Wait(lg='cr'), Ins('v_add_f32 v60, v60, v61'), Ins('v_add_f32 v62, v62, v63'), Ins('v_add_f32 v64, v64, v65'), Ins('v_add_f32 v66, v66, v67'),
                               Ins('v_add_f32 v60, v60, v62'), Ins('v_add_f32 v64, v64, v66'), Ins('v_accvgpr_write_b32 a249, v60'), Ins('v_accvgpr_write_b32 a250, v64')]))
        fills.append((68, self.stchk(M+4, 1, 2 - l, NMr, [(vL16, sT21, XB(l)+20480)]) + self.cap(self.cons_stats, M+4, NMr, RRr, double=True, r1=R1r) + [Ins(f'v_mov_b32 v{M}, v{NMr}')] + self.cap(self.gconst, M, RRr)))
        stl = [lambda: self.cap(self.load_frag, M+4, vL16, sT21, XB(l), 20, 'stat')]
        tl = stl + (w2(0, B[1]) if l == 0 else []) + w2(1, B[2]) + w2(2, B[5]) + (w2(3, B[6]) if l else [])
        self.small(w1b, lambda s_, r: self.load_frag(r, vL16, sT21, XB(l), s_, ('x', s_)), ACC, False, tl, fills, name=f'w1{l}')
        self.stamp(f'w1{l}_gemm')
        if l == 0:
            for q in range(20): I(f'v_mov_b32_dpp v{CW+q}, v{60 if q < 16 else 64} row_newbcast:{q & 15} row_mask:0xf bank_mask:0xf')
        self.weave(self.cap(self.lgA, ACC, CW, 10, 80, M), w2(3, B[6]) if l == 0 else [], 8); self.lgB(ACC, 10, 80, M, True)
        self.pack(PK, ACC, 10)
        I(f'v_or_b32 v70, {sEdge}, {vL16}'); I(f'v_or_b32 v71, {sEdge}, {vS8}')
        self.store_tile(PK, HB(l), sA20, sH20)
        self.store_tile(PK, HD(l), sA20, sH20, sc1=True, vA='v70', vH='v71', tag='sth')
        for i in range(10): I(f'v_pk_add_f32 {vr(ACC+2*i,2)}, {vr(XP+2*i,2)}, {vr(NMr,2)} op_sel_hi:[1,0]')
        for i in range(10): I(f'v_pk_mul_f32 {vr(ACC+2*i,2)}, {vr(ACC+2*i,2)}, {vr(R1r,2)} op_sel_hi:[1,0]')
        I(f's_lshl_b32 {sT[3]}, {sTT}, 4')
        I('v_and_b32 v84, 15, v0'); I(f'v_add_u32 v84, {sT[3]}, v84')
        I('v_lshrrev_b32 v85, 4, v0'); I('v_lshlrev_b32 v85, 8, v85')
        I(f'v_mov_b32 v88, {OOB}'); I(f'v_mov_b32 v89, {HD(l)-HB(l)}')
        for gi, dl in enumerate((-1, 1, -2, 2)):
            if gi == 2:
                a.wait(vm='st'); self.setflag(sFLo, 8*l+2)
            I(f'v_add_u32 v86, {dl}, v84')
            I('v_lshrrev_b32 v87, 4, v86'); I('v_and_b32 v87, 0xff, v87'); I('v_mul_u32_u24 v87, 20480, v87')
            I(f'v_and_b32 v{M+gi}, 15, v86'); I(f'v_lshl_add_u32 v{M+gi}, v{M+gi}, 4, v87'); I(f'v_add_u32 v{M+gi}, v{M+gi}, v85')
            I('v_lshrrev_b32 v87, 8, v86'); I(f'v_cmp_ne_u32 vcc, {sXG}, v87')
            I('v_cndmask_b32 v87, 0, v89, vcc'); I(f'v_add_u32 v{M+gi}, v{M+gi}, v87')
            I('v_cmp_gt_u32 vcc, 0x800, v86'); I(f'v_cndmask_b32 v{M+gi}, v88, v{M+gi}, vcc')
        I('s_barrier')
        if self.stop == f'w1{l}': return True
        w2b = [B[1], B[2], B[5], B[6], B[3]]
        self.preloadS(w2b)
        self.emit(w2(4, B[3]))
        I(f's_and_b32 {sT[8]}, {sTT}, 15')
        I(f's_cmp_eq_u32 {sT[8]}, 0'); I(f's_cselect_b32 {sT[4]}, 32, 0')
        I(f's_cmp_eq_u32 {sT[8]}, 15'); I(f's_cselect_b32 {sT[5]}, 32, 64')
        I('v_and_b32 v84, 7, v0'); I('v_lshlrev_b32 v84, 2, v84'); I('v_lshrrev_b32 v86, 3, v0')
        I('v_mov_b32 v85, 32'); I(f'v_mov_b32 v87, {sT[4]}'); I(f'v_mov_b32 v88, {sT[5]}')
        I('v_cmp_eq_u32 vcc, 1, v86'); I('v_cndmask_b32 v85, v85, v87, vcc')
        I('v_cmp_eq_u32 vcc, 2, v86'); I('v_cndmask_b32 v85, v85, v88, vcc')
        I('v_add_u32 v85, v85, v84')
        I(f's_lshl_b32 {sT[3]}, {sTT}, 5'); I(f's_add_u32 {sT[3]}, {sT[3]}, {FL-32}')
        I('v_min_u32 v84, 59, v0'); I('v_add_u32 v87, -20, v84')
        I('v_lshrrev_b32 v88, 1, v87'); I('v_add_u32 v88, 40, v88'); I('v_and_b32 v87, 1, v87')
        I(f's_xor_b32 {sT[4]}, {sBot}, 1')
        I('v_cmp_gt_u32 vcc, 20, v84'); I('v_cndmask_b32 v88, v88, v84, vcc'); I(f'v_mov_b32 v89, {sT[4]}'); I('v_cndmask_b32 v87, v87, v89, vcc')
        I('v_lshlrev_b32 v86, 8, v88'); I('v_lshl_add_u32 v86, v87, 4, v86'); I(f'v_or_b32 v86, {sEdge}, v86')
        I(f's_cmp_eq_u32 {sBot}, 1'); I(f's_mov_b32 {sT[4]}, {HD(l) - 20480 + 14*16}'); I(f's_cselect_b32 {sT[4]}, {HD(l) + 20480 + 5120}, {sT[4]}')
        I(f's_add_u32 {sT[4]}, {sT[4]}, {sT20}')
        L = a.newlabel('POLL'); D = a.newlabel('PDONE')
        I(f's_mov_b32 {sSpin}, {sDead}')
        a.label(L)
        I(f'buffer_load_dword {vT0}, v85, {WS}, {sT[3]} offen sc1')
        I(f'buffer_load_dwordx4 {vr(88,4)}, v86, {WS}, {sT[4]} offen sc1')
        a.wait(vm=None)
        I(f'v_max3_u32 v88, v88, v89, v90'); I('v_max_u32 v88, v88, v91')
        I(f'v_cmp_le_u32 vcc, {8*l+2}, {vT0}'); I('v_cmp_ne_u32 s[6:7], -1, v88')
        I('s_and_b64 vcc, vcc, s[6:7]')
        I('s_cmp_eq_u64 vcc, -1'); I(f's_cbranch_scc1 {D}')
        I(f's_sub_u32 {sSpin}, {sSpin}, 1'); I(f's_cbranch_scc0 {L}')
        I(f's_mov_b32 {sDead}, 0')
        a.label(D)
        self.stamp(f'w2{l}_go')
        I(f's_mov_b32 {sT[3]}, 0')
        tl = ([] if self.H2SC else self.touchT(H2(l), 49152)) if l else w4(0, w4b[0]) + w4(1, w4b[1])
        self.small(w2b, lambda s_, r: self.load_frag(r, f'v{M+s_//5}', sT[3], HB(l), s_, ('x', s_)), ACC, True, tl, name=f'w2{l}')
        self.stamp(f'w2{l}_gemm')
        self.pack(PK, ACC, 10)
        self.store_tile(PK, X1(l), sA21, sH21)
        self.prod_stats(ACC, TMP)
        self.store_stats(TMP, X1(l), 1 + l)
        NH = self.W3G if l == 0 else 0
        self.emit([w3l(k) for k in range(NH)])
        for i in range(10): I(f'v_pk_add_f32 {vr(XP+2*i,2)}, {vr(XP+2*i,2)}, {vr(ACC+2*i,2)}')
        xb = [B[1], B[2], B[5], B[6]]
        if l: CW3, ST3, A3, BF, GT = 80, 96, 128, 208, 176; NP3 = [112, 116, 120, 124]
        else: CW3, ST3, A3, BF, GT = 20, 60, 80, 128, 60; NP3 = [160, 164, 168, 172]
        a.wait(vm='st')
        self.setflag(sFLo, 8*l+3)
        if l: self.decomp(CW3, 251, 12, 92)
        I('s_barrier')
        if self.stop == f'w2{l}': return True
        I(f's_lshl_b32 {sT[3]}, {sC}, 7'); I(f's_add_u32 {sT[3]}, {sT[3]}, {FL}')
        def epiA(t): self.lgA(A3+12*t, CW3, 6, GT, NP3[t])
        def epiB(t, pk):
            self.lgB(A3+12*t, 6, GT, NP3[t], pk); self.pack(A3+12*t, A3+12*t, 6)
        def st3(t):
            acc = A3 + 12*t
            I(f's_add_u32 {sT[0]}, {sA48}, {H2(l)+t*49152}'); I(f's_add_u32 {sT[1]}, {sH48}, {H2(l)+t*49152}')
            pl = l and not self.H2SC
            sc = '' if pl else ' sc1'
            if pl: a.slow_begin(sMODE)
            I(f'buffer_store_dwordx4 {vr(acc,4)}, {vL16}, {WS}, {sT[0]} offen{sc}', 'st')
            I(f'buffer_store_dwordx2 {vr(acc+4,2)}, {vS8}, {WS}, {sT[1]} offen{sc}', 'st')
            if pl: a.slow_end()
        stf = self.stchk(ST3, 4, 1 + l, NP3[0], [(vL16, sC21, X1(l)+u*21504+20480) for u in range(4)]) + rr(*[self.cap(self.cons_stats, ST3+4*u, NP3[u], ST3+4*u+3) + self.cap(self.gconst, NP3[u], ST3+4*u+3) for u in range(4)])
        stl = lambda: [self.cap(self.load_frag, ST3+4*u, vL16, sC21, X1(l) + u*21504, 20, 'stat') for u in range(4)]
        if l == 0:
            for r in range(4): I(f'v_mov_b32 v{32+r}, 0x3f803f80')
            I(f's_mov_b32 {sT[6]}, {xb[0]*BANK}')
            for t in range(1, 4):
                I(f's_cmp_eq_u32 {sW}, {t}'); I(f's_cselect_b32 {sT[6]}, {xb[t]*BANK}, {sT[6]}')
            self.poll(vFl, sT[3], 8*l+3)
            self.stamp(f'w3{l}_go')
            self._lf = None
            x1 = lambda c: self.dma_b(sT21, X1(l) + c*5120, 0, ('x1', c), sc='sc1', slw=sT[6], ldsoff=c*5120)
            RB, DB = 8, 6
            def bread(n):
                s_, t = divmod(n, 4)
                b, o = self.lds(xb[t]*BANK + s_*1024)
                I(f'ds_read_b128 {vr(BF+4*(n % RB),4)}, {b} offset:{o}', ('b', n))
            WL = self.W3L
            self.emit(x1(0) + x1(1))
            self.emit([w3l(k) for k in range(NH, max(NH, 3*WL))])
            nw = max(NH, 3*WL)
            a.wait(vm=('x1', 0)); I('s_barrier')
            for n in range(DB): bread(n)
            xq = x1(2) + x1(3) + stl()
            late = w4(2, w4b[2]) + w4(3, w4b[3])
            with a.capture() as c:
                for s_ in range(20):
                    if s_ in (0, 5, 10, 15): self.ls(f'w30_s{s_}')
                    a.wait(vm=('w3', s_))
                    for t in range(5):
                        n = 4*s_ + t
                        for i in range(3):
                            if t < 4:
                                if i == 0: a.wait(lg=('b', n))
                                d = vr(A3+12*t+4*i, 4); bop = vr(BF+4*(n % RB), 4)
                            else:
                                d = vr(CW3+4*i, 4); bop = vr(32, 4)
                            I(f'v_mfma_f32_16x16x32_bf16 {d}, {ar(4*(i*20+s_),4)}, {bop}, {d if s_ else 0}')
                            if t < 4 and i == 0 and n + DB < 80:
                                if (n + DB) % 20 == 0:
                                    a.wait(vm=('x1', (n+DB)//20)); I('s_barrier')
                                bread(n + DB)
                            if i == 1:
                                if t < self.W3R and nw < 60: a.extend(w3l(nw)); nw += 1
                                elif xq and (t == 4 or nw >= 60): a.extend(xq.pop(0))
                                elif late and nw >= 60 and t % 2 == 0: a.extend(late.pop(0))
            assert nw == 60 and not xq, (nw, len(xq))
            o, left = gapfill(c.items, stf, start=240)
            a.extend(o); self.flat(left)
            self.ls('w30_k')
            I('s_barrier')
            wv = late + w4(4, xb[0]) + w4(5, xb[1]) + w4(6, xb[2]) + w4(7, xb[3])
            for t in range(4):
                k = (len(wv) - 5 + 2 - t)//(3 - t) if t < 3 else 0
                self.weave(self.cap(epiA, t) + self.cap(epiB, t, True), wv[:k], 16); wv = wv[k:]
                st3(t)
            self.emit(wv)
            I('v_and_b32 v33, 15, v0'); I(f'v_mov_b32 v32, v{CW3}')
            for i in range(1, 12):
                I(f'v_cmp_eq_u32 vcc, {i}, v33'); I(f'v_cndmask_b32 v32, v32, v{CW3+i}, vcc')
            I('v_accvgpr_write_b32 a251, v32')
        else:
            I(f's_add_u32 {sT[4]}, {sC21}, {sLW}')
            self.poll(vFl, sT[3], 8*l+3)
            self.stamp(f'w3{l}_go')
            self._lf = None
            x1 = lambda t: self.dma_b(sT[4], X1(l) + t*21504, xb[t], ('x1', t), sc='sc1')
            self.emit(x1(0) + stl())
            RB, DB = 8, 6
            def bread(n):
                t, s_ = divmod(n, 20)
                b, o = self.lds(xb[t]*BANK + s_*1024)
                I(f'ds_read_b128 {vr(BF+4*(n % RB),4)}, {b} offset:{o}', ('b', n))
            a.wait(vm=('x1', 0)); I('s_barrier')
            self.ls(f'w3{l}_x0')
            for n in range(DB): bread(n)
            vm_side = {}
            self.put3(vm_side, x1(1) + x1(2) + x1(3), 3, 3.9)
            self.put(vm_side, [self.cap(self.cpf)], 61, 1)
            if self.WB:
                wl = a.newlabel('WB')
                self.put(vm_side, [[Ins(f's_cmp_lg_u32 {sWI}, 0'), Ins(f's_cbranch_scc1 {wl}'), Raw('    buffer_wbl2 sc1'), Label(wl)]], self.WB, 1)
            if not self.NOW4: self.put3(vm_side, w4(0, w4b[0]) + w4(1, w4b[1]) + w4(2, w4b[2]) + w4(3, w4b[3]) + w4(4, xb[0]) + w4(5, xb[1]) + w4(6, xb[2]), 63, 4.9)
            for t in range(4):
                with a.capture() as c:
                    for s_ in range(20):
                        n = 20*t + s_
                        for i in range(3):
                            m = 3*n + i
                            if m == 0: a.wait(lg=('b', 0))
                            d = vr(A3+12*t+4*i, 4)
                            I(f'v_mfma_f32_16x16x32_bf16 {d}, {ar(4*(i*20+s_),4)}, {vr(BF+4*(n % RB),4)}, {d if s_ else 0}')
                            if i == 0 and n + DB < 80:
                                if n == 14: a.wait(vm=('x1', 1)); I('s_barrier')
                                if n == 34: a.wait(vm=('x1', 3)); I('s_barrier')
                                if n == 54 or n == 62: I('s_barrier')
                                bread(n + DB)
                            for it in vm_side.get(m, []): a.extend(it)
                            if i == 0 and n + 1 < 80: a.wait(lg=('b', n+1))
                if t == 0: o, left = gapfill(c.items, stf, start=6)
                else: o, left = gapfill(c.items, self.cap(epiB, t-1, False) + [self.cap(st3, t-1)])
                a.extend(o)
                if os.environ.get('V'): print('w3 tile', t, 'left', len(left))
                for x in left:
                    if isinstance(x, list): a.extend(x)
                    else: a.items.append(x)
                epiA(t)
                self.ls(f'w3{l}_t{t}')
            epiB(3, True); st3(3)
        self.stamp(f'w3{l}_gemm')
        a.wait(vm='st')
        self.setflag(sFLo, 8*l+4)
        I('s_barrier')
        if self.stop == f'w3{l}': return True
        self.preloadS(w4b)
        if l and self.C7: self.emit(w4(7, w4b[7]))
        I(f's_lshl_b32 {sT[3]}, {sC}, 7'); I(f's_add_u32 {sT[3]}, {sT[3]}, {FL}')
        self.poll(vFl, sT[3], 8*l+4)
        self.stamp(f'w4{l}_go')
        if self.LOOP4 and l:
            I('s_mov_b32 s41, 0'); a.label('LP4'); a.wait(vm=None, lg=None); I('s_barrier'); self.preloadS(w4b); a.wait(lg=None)
            a.raw('    s_memtime s[20:21]')
        self._lf = None
        NR = 32 if l else 12
        xl = lambda s_: self.load_frag(80+4*(s_ % NR), vL16, sT48, H2(l), s_, ('x', s_))
        NUP = self.W4N
        for s_ in range(NUP): xl(s_)
        side = {}
        self.put(side, [(lambda s_=s_: self.cap(xl, s_)) for s_ in range(NUP, 48)], 1, 5)
        if l and not self.C7: self.put(side, w4(7, w4b[7]), 3, 8)
        side.setdefault(40, []).append(self.bar());  self.put(side, w4(8, w4b[8]) + w4(9, w4b[9]), 43, self.W4P)
        side.setdefault(90, []).append(self.bar(vm=('w4', 7)));  self.put(side, w4(10, w4b[10]) + w4(11, w4b[11]), max(93, int(43+10*self.W4P)), self.W4P)
        side.setdefault(195, []).append(self.cap(self.cpf))
        side.setdefault(149, []).append(self.bar(vm=[('w4', 8), ('w4', 9)]))
        side.setdefault(189, []).append(self.bar(vm=[('w4', 10), ('w4', 11)]))
        nB = [B[1], B[2], B[5], B[6], B[4], B[7], B[0], B[3]]
        def unst(k):
            off = nB[k // 5]*BANK + (k % 5)*1024
            return [Ins(f'ds_write_b128 v{M+(off>>16)}, {vr(176+4*k,4)} offset:{off & 0xffff}', 'unst')]
        if not last:
            for k, base in enumerate((vL16, vL16b, vL16c)): I(f'v_add_u32 v{M+k}, {sLW}, {base}')
            self.put(side, [unst(k) for k in range(self.NU)], 230 - 1, 1)
            self.put(side, self.touchT(XA(l+1), 21504), 192, 1)
        self.gemmS(48, w4b, XP, True, side, NR)
        if self.LOOP4 and l:
            a.raw('    s_memtime s[22:23]'); I('s_waitcnt lgkmcnt(0)')
            I('s_cmp_eq_u32 s41, 1'); I('s_cbranch_scc1 LP4D')
            I('s_mov_b32 s24, s20'); I('s_mov_b32 s26, s22'); I('s_mov_b32 s41, 1'); I('s_branch LP4')
            a.label('LP4D')
            self.lflush(['  it2start', '  it2', '  it1start', '  it1'])
        self.stamp(f'w4{l}_gemm')
        if not last:
            self.pack(RES, XP, 10)
            self.store_tile(RES, XA(l+1), sA21, sH21)
            self.prod_stats(XP, TMP)
            self.store_stats(TMP, XA(l+1), 2)
            self.emit([unst(k) for k in range(self.NU, self.NU+6)])
            a.wait(vm='st')
            self.setflag(sFLo, 8*l+5)
            self.emit([unst(k) for k in range(self.NU+6, 20)])
        else:
            self.pack(PK, XP, 10)
            I('v_and_b32 v20, 15, v0'); I('v_lshrrev_b32 v21, 4, v0')
            I('v_mul_u32_u24 v26, 1280, v20')
            I('v_lshl_add_u32 v27, v21, 4, v26'); I('v_lshl_add_u32 v28, v21, 3, v26')
            I(f'buffer_store_dwordx4 {vr(PK,4)}, v27, {OUT}, {sOutA} offen')
            I(f'buffer_store_dwordx4 {vr(PK+4,4)}, v27, {OUT}, {sOutA} offen offset:64')
            I(f'buffer_store_dwordx2 {vr(PK+8,2)}, v28, {OUT}, {sOutH} offen')
        self.stamp(f'w4{l}_end')
        self.nB = nB
        return self.stop == f'w4{l}'
    BS = int(os.environ.get('BS', 3)); STG = int(os.environ.get('STG', 8)); NOW4 = int(os.environ.get('NOW4', 0)); W3P = float(os.environ.get('W3P', 5))
    TLB = int(os.environ.get('TLB', 0))
    W3R = int(os.environ.get('W3R', 3))
    NW = int(os.environ.get('NW', 20)); NW0 = int(os.environ.get('NW0', 16)); C7 = int(os.environ.get('C7', 0))
    TE = int(os.environ.get('TE', 94)); TW1 = int(os.environ.get('TW1', 0)); TW2 = int(os.environ.get('TW2', 1))
    LOOP4 = int(os.environ.get('LOOP4', 0))
    LA0 = 3; LA1 = 3; ROT = int(os.environ.get('ROT', 1))
    H2SC = int(os.environ.get('H2SC', 0)); WB = int(os.environ.get('WB', 0))
    G1 = int(os.environ.get('G1', 0)); G2 = int(os.environ.get('G2', 0)); W3L = int(os.environ.get('W3L', 5)); NU = int(os.environ.get('NU', 6))
    T4 = int(os.environ.get('T4', 0)); HP = int(os.environ.get('HP', 10)); S2M = int(os.environ.get('S2M', 0)); WG = int(os.environ.get('WG', 2))
    W4X = float(os.environ.get('W4X', 5)); W4P = float(os.environ.get('W4P', 5)); W4N = int(os.environ.get('W4N', 10))
    NTQ = int(os.environ.get('NTQ', 0))
    W3H = int(os.environ.get('W3H', 10)); W3G = int(os.environ.get('W3G', 6))
    R3 = float(os.environ.get('R3', 1.4))
    CPF = int(os.environ.get('CPF', 1))
    LS = 0

    def build(self):
        a = self.a
        self.prologue()
        if self.stop != 'prep':
            B = list(range(8))
            if not self.layer(0, B):
                self.layer(1, self.nB)
        a.wait(vm=None, lg=None)
        a.label('KEND')
        a.I('s_endpgm')
        a.extend(self.ool)
        main, stubs, n = a.finalize()
        hdr = open('cdna_kernels/' + NAME[:-7] + '.s.ref').read().split('; Override launch')[0]
        out = hdr + f"""; Persistent fused kernel (generated by own script): 256 workgroups, one per CU.
; @launch grid=(256,1,1) block=(256,1,1) lds=163840
.amdgcn_target "amdgcn-amd-amdhsa--gfx950"
.text
.globl {NAME}
.p2align 8
.type {NAME},@function
{NAME}:
KSTART:
{main}
{stubs}
CODE_END:
.section .rodata,"a"
.p2align 6
.amdhsa_kernel {NAME}
  .amdhsa_next_free_vgpr 512
  .amdhsa_next_free_sgpr 102
  .amdhsa_accum_offset 256
  .amdhsa_group_segment_fixed_size 0
  .amdhsa_kernarg_size 96
  .amdhsa_user_sgpr_count 2
  .amdhsa_user_sgpr_kernarg_segment_ptr 1
  .amdhsa_system_sgpr_workgroup_id_x 1
.end_amdhsa_kernel
"""
        return out, n

if __name__ == '__main__':
    import argparse, json
    ap = argparse.ArgumentParser()
    ap.add_argument('-o', default='k.s'); ap.add_argument('--stop'); ap.add_argument('--stamps', action='store_true')
    args = ap.parse_args()
    g = Gen(args.stop, args.stamps)
    s, n = g.build()
    open(args.o, 'w').write(s)
    json.dump(g.stampnames, open(args.o + '.stamps.json', 'w'))
    print('instructions', n, 'bytes', len(s))
```

```python
import sys, struct, math
from asmlib import *

NAME = "interleave_layers__linear_kernel_hedgehog__mixer_s_mlp__prompt_kernel"
MB = 1 << 20
WT_QKV, WT_O, WT_1, WT_2, WT_3, WT_4 = 0, 3*MB, 4*MB, 5*MB, 6*MB, 8*MB
APHI = 10*MB
SYNC = 13*MB
CNT, FL, FLO, FLH = SYNC+0x10000, SYNC+0x1000, SYNC+0x2000, SYNC+0x4000
KVP = 14*MB
def LB(l): return 18*MB + l*24*MB
import os
SEP = bool(os.environ.get('SEP'))
def XA(l): return LB(l) if SEP else LB(0)
def OB(l): return LB(l)+3*MB if SEP else LB(0)+3*MB
def XB(l): return LB(l)+6*MB if SEP else LB(0)
def HB(l): return LB(l)+9*MB if SEP else LB(0)+3*MB
def HD(l): return LB(l)+12*MB if SEP else LB(0)+12*MB+l*3*MB
def X1(l): return LB(l)+15*MB if SEP else LB(0)
def H2(l): return LB(l)+18*MB if SEP else LB(0)+18*MB
STAMP = 80*MB
BANK = 20480
OOB = 0x80000000
def f2u(x): return struct.unpack('<I', struct.pack('<f', x))[0]
LOG2E = 1.4426950408889634
GC0 = -2.0*math.sqrt(2.0/math.pi)*LOG2E
GC1 = GC0*0.044715

WS = 's[8:11]'; TS = 's[12:15]'; OUT = 's[16:19]'
P_X, P_QKV, P_PHI, P_O, P_1, P_2, P_3, P_4, P_OUT, P_DBG, P_WS = 20, 22, 24, 26, 30, 32, 34, 36, 38, 40, 42
_sn = [44]
def S(n=1, align=1):
    while _sn[0] % align: _sn[0] += 1
    r = _sn[0]; _sn[0] += n; return r
sXG, sH, sCL, sJ, sC, sW, sMODE, sTT = [f's{S()}' for _ in range(8)]
sA21, sH21, sS21, sT21, sA20, sH20, sT20, sT48 = [f's{S()}' for _ in range(8)]
sW5, sW4, sWQ, sLW, sOutA, sOutH, sEdge, sDead = [f's{S()}' for _ in range(8)]
sQT21, sO4, sO1, sKVo, sKVi, sA48, sH48, sC21, sFLo, sFLOo, sWI, sWB, sBot, sW3 = [f's{S()}' for _ in range(14)]
sT = [f's{S()}' for _ in range(10)]
sSpin = f's{S()}'
sDm = f's{S()}'
sN0 = 's0'; sN1 = 's1'
_p = S(2, 2); sStamp = f's[{_p}:{_p+1}]'; sStampLo = f's{_p}'
sStampOff = f's{S()}'
assert _sn[0] <= 100, _sn

vL16, vL16b, vL16c, vS8, vST, vFl = 'v1', 'v2', 'v3', 'v4', 'v5', 'v6'
vT0, vT1 = 'v7', 'v18'
RES = 8
def v(i): return f'v{i}'
def vr(i, n): return f'v[{i}:{i+n-1}]'
def ar(i, n): return f'a[{i}:{i+n-1}]'

class Gen:
    def __init__(self, stop=None, stamps=False):
        self.a = Asm(); self.stop = stop; self.stamps = stamps; self.nstamp = 0; self.stampnames = []; self.ool = []; self._ls = []; self.LSR = os.environ.get('LSR')
    def I(self, t, tag=None): self.a.I(t, tag)
    def lds(self, off):
        base = [vL16, vL16b, vL16c][off >> 16]; return base, off & 0xffff
    DBGN = ['s1_loaded', 's1_drained', 'gbar_done', 'qkv0_gemm', 'qkv0_end', 'w10_go', 'w30_go', 'w40_go', 'qkv1_go', 'qkv1_gemm', 'qkv1_end', 'w31_go', 'w41_go', 'w41_end']
    def dbgstamp(self, name):
        if name not in self.DBGN: return
        k = self.DBGN.index(name); I = self.I
        L = self.a.newlabel('DBG')
        I(f's_lshl_b32 {sT[9]}, s2, 2'); I(f's_add_u32 {sT[9]}, {sT[9]}, {sW}'); I(f's_cmp_lg_u32 {sT[9]}, {int(os.environ["DBG"])}'); I(f's_cbranch_scc1 {L}')
        self.a.raw('    s_memrealtime s[94:95]'); I('s_waitcnt lgkmcnt(0)')
        I('s_sub_u32 s94, s94, s98'); I('v_mov_b32 v19, s94'); I('v_accvgpr_write_b32 a254, v19'); I(f'v_mov_b32 v19, {8+4*k}')
        self.a.raw('    global_store_dword v19, a254, s[42:43]')
        self.a.label(L)
    def stamp(self, name):
        if os.environ.get('DBG'): self.dbgstamp(name)
        sp = os.environ.get('SPIN', '').split(',')
        if name in sp:
            r = 98 if name == sp[0] else 100
            self.a.wait(lg=None); self.a.raw(f'    s_memrealtime s[{r}:{r+1}]'); self.I('s_waitcnt lgkmcnt(0)')
        if not self.stamps: return
        if name in os.environ.get('NOST', '').split(','): return
        self.lsf()
        I = self.I
        I(f's_memrealtime {sStamp}')
        I(f's_memtime s[100:101]')
        self.a.wait(lg=None)
        I(f'v_mov_b32 v19, {sStampLo}')
        I(f's_add_u32 {sT[9]}, {sStampOff}, {self.nstamp*4}')
        I(f'buffer_store_dword v19, off, {WS}, {sT[9]}', tag='stamp')
        I(f'v_mov_b32 v19, s100')
        I(f'buffer_store_dword v19, off, {WS}, {sT[9]} offset:256', tag='stamp')
        self.nstamp += 1; self.stampnames.append(name)

    def ls(self, name):
        if self.stamps and self.LSR and name.startswith(self.LSR):
            k = len(self._ls); assert k < 8
            self._ls.append(name); self.a.items.append(Raw(f'    s_memtime s[{20+2*k}:{21+2*k}]'))
    def lsf(self):
        if self._ls:
            n = self._ls; self._ls = []; self.lflush(['  ' + x for x in n])
    def lstamp(self, k):
        return [Raw(f'    s_memtime s[{20+2*k}:{21+2*k}]')] if self.stamps else []
    def lflush(self, names):
        if not self.stamps: return
        self.a.wait(lg=None)
        for k, n in enumerate(names):
            self.I(f'v_mov_b32 v19, s{20+2*k}')
            self.I(f's_add_u32 {sT[9]}, {sStampOff}, {self.nstamp*4}')
            self.I(f'buffer_store_dword v19, off, {WS}, {sT[9]} offset:256', tag='stamp')
            self.I(f'v_mov_b32 v19, 0')
            self.I(f'buffer_store_dword v19, off, {WS}, {sT[9]}', tag='stamp')
            self.nstamp += 1; self.stampnames.append(n)
    def dma_b(self, sbase, const, bank, tag, nper=5, sc='', slw=None, ldsoff=None):
        out = []
        slw = slw or sLW
        lo = bank*BANK if ldsoff is None else ldsoff
        for i in range(nper):
            with self.a.capture() as c:
                if i == 0:
                    self.I(f's_add_u32 m0, {slw}, {lo}')
                    self.I(f's_add_u32 {sDm}, {sbase}, {const}')
                if i == 4:
                    self.I(f's_add_u32 m0, m0, 4096')
                    self.I(f's_add_u32 {sDm}, {sDm}, 4096')
                self.I(f'buffer_load_dwordx4 {vL16}, {WS}, {sDm} offen offset:{(i&3)*1024} {sc} lds', tag)
            out.append(c.items)
        return out
    def emit(self, bundles):
        for b in bundles: self.a.extend(b)
    def dma_bank(self, *args, **kw): self.emit(self.dma_b(*args, **kw))
    def cap(self, fn, *args, **kw):
        with self.a.capture() as c: fn(*args, **kw)
        return c.items
    def weave(self, items, bundles, every, first=0):
        bi = 0; acc = every - first
        for k, it in enumerate(items):
            self.a.items.append(it)
            if isinstance(it, Ins):
                assert ('exec', 0) not in it.dst and not it.op.startswith(('s_cbranch', 's_branch')), it.text
                acc += 4 if it.kind == 'mfma' else (2 if it.kind == 'trans' else 1)
                nx = items[k+1] if k+1 < len(items) else None
                scc_live = isinstance(nx, Ins) and nx.op.startswith(('s_cselect', 's_cbranch', 's_addc', 's_subb'))
                if acc >= every and bi < len(bundles) and not scc_live:
                    self.a.extend(bundles[bi]); bi += 1; acc = 0
        self.emit(bundles[bi:])

    def touch(self, base, n, grp=0, tag='touch'):
        with self.a.capture() as c:
            I = self.I
            I(f's_mul_i32 s6, {sWI}, {n*128}'); I(f's_add_u32 s6, s6, {base}')
            if grp: I(f's_mul_i32 s7, {sXG}, {grp}'); I('s_add_u32 s6, s6, s7')
            I(f'v_min_u32 v19, {n-1}, v0'); I('v_lshlrev_b32 v19, 7, v19')
            I(f'buffer_load_dword a252, v19, {WS}, s6 offen sc1', tag)
        return [c.items]
    def touch2(self, sbase, const, n):
        with self.a.capture() as c:
            self.I(f's_add_u32 s6, {sbase}, {const}')
            self.I(f'v_min_u32 v19, {n-1}, v0'); self.I('v_lshlrev_b32 v19, 7, v19')
            self.I(f'buffer_load_dword a252, v19, {WS}, s6 offen sc1', 'touch')
        return [c.items]
    def touchT(self, base, tstride): return self.touch(base, tstride//1024, 16*tstride)
    def decomp(self, dst, areg, n, tmp):
        self.I(f'v_accvgpr_read_b32 v{tmp}, a{areg}')
        for i in range(n): self.I(f'v_mov_b32_dpp v{dst+i}, v{tmp} row_newbcast:{i} row_mask:0xf bank_mask:0xf')

    def cpf(self):
        I = self.I
        pl = self.a.newlabel('PCL')
        I('s_getpc_b64 s[4:5]')
        self.a.label(pl)
        I(f's_lshl_b32 s6, {sH}, 2'); I(f's_add_u32 s6, s6, {sW}'); I('s_and_b32 s6, s6, 31'); I('s_lshl_b32 s6, s6, 10')
        I(f'v_add_u32 v19, s6, {vL16}')
        I(f'v_min_u32 v19, CODE_END-{pl}-16, v19')
        I('global_load_dword a253, v19, s[4:5]', 'cpf')

    def poll(self, voff, soff, val, behind=None):
        a = self.a; I = self.I
        L = a.newlabel('POLL'); D = a.newlabel('PDONE')
        if behind is not None:
            I(f'buffer_load_dword {vT0}, {voff}, {WS}, {soff} offen sc1', 'pl')
            self.emit(behind)
            a.wait(vm='pl')
            I(f'v_cmp_le_u32 vcc, {val}, {vT0}')
            I('s_cmp_lg_u64 vcc, -1'); I(f's_cbranch_scc1 {L}')
            a.label(D)
            with a.capture() as c:
                a.label(L)
                I(f's_mov_b32 {sSpin}, {sDead}')
                a.label(L + '_l')
                a.raw(f'    buffer_load_dword {vT0}, {voff}, {WS}, {soff} offen sc1')
                I('s_waitcnt vmcnt(0)')
                I(f'v_cmp_le_u32 vcc, {val}, {vT0}')
                I('s_cmp_eq_u64 vcc, -1'); I(f's_cbranch_scc1 {D}')
                I(f's_sub_u32 {sSpin}, {sSpin}, 1'); I(f's_cbranch_scc0 {L}_l')
                I(f's_mov_b32 {sDead}, 0'); I(f's_branch {D}')
            self.ool += c.items
            return
        I(f's_mov_b32 {sSpin}, {sDead}')
        a.label(L)
        I(f'buffer_load_dword {vT0}, {voff}, {WS}, {soff} offen sc1')
        a.wait(vm=None)
        I(f'v_cmp_le_u32 vcc, {val}, {vT0}')
        I(f's_cmp_eq_u64 vcc, -1')
        I(f's_cbranch_scc1 {D}')
        I(f's_sub_u32 {sSpin}, {sSpin}, 1')
        I(f's_cbranch_scc0 {L}')
        I(f's_mov_b32 {sDead}, 0')
        a.label(D)

    def setflag(self, soff, val, sc1=False, vmask=None):
        I = self.I
        I(f'v_mov_b32 {vT0}, {val}')
        I(f'v_mov_b32 {vT1}, {vmask if vmask else 0}')
        I(f's_mov_b64 exec, 1')
        if sc1:
            I(f'buffer_store_dword {vT0}, {vT1}, {WS}, {soff} offen sc1', 'flag')
        else:
            self.a.slow_begin(sMODE)
            I(f'buffer_store_dword {vT0}, {vT1}, {WS}, {soff} offen', 'flag')
            self.a.slow_end()
        I(f's_mov_b64 exec, -1')

    def pack(self, dst, src, n):
        for i in range(n): self.I(f'v_cvt_pk_bf16_f32 v{dst+i}, v{src+2*i}, v{src+2*i+1}')
    def unpack(self, dst, src, n):
        for i in range(n):
            self.I(f'v_lshlrev_b32 v{dst+2*i}, 16, v{src+i}')
            self.I(f'v_and_b32 v{dst+2*i+1}, 0xffff0000, v{src+i}')

    def prod_stats(self, acc, t):
        I = self.I
        I(f'v_pk_add_f32 {vr(t,2)}, {vr(acc,2)}, {vr(acc+2,2)}')
        I(f'v_pk_mul_f32 {vr(t+2,2)}, {vr(acc,2)}, {vr(acc,2)}')
        I(f'v_pk_fma_f32 {vr(t+2,2)}, {vr(acc+2,2)}, {vr(acc+2,2)}, {vr(t+2,2)}')
        for i in range(2, 10):
            I(f'v_pk_add_f32 {vr(t,2)}, {vr(t,2)}, {vr(acc+2*i,2)}')
            I(f'v_pk_fma_f32 {vr(t+2,2)}, {vr(acc+2*i,2)}, {vr(acc+2*i,2)}, {vr(t+2,2)}')
        I(f'v_add_f32 v{t}, v{t}, v{t+1}')
        I(f'v_add_f32 v{t+2}, v{t+2}, v{t+3}')
        I(f'v_permlane32_swap_b32 v{t}, v{t+2}')
        I(f'v_add_f32 v{t}, v{t}, v{t+2}')
        I(f'v_mov_b32 v{t+1}, v{t}')
        I(f'v_permlane16_swap_b32 v{t}, v{t+1}')
        I(f'v_add_f32 v{t}, v{t}, v{t+1}')

    def stchk(self, F, n, par, t, srcs):
        a = self.a
        def ors():
            regs = list(range(F, F+4*n))
            self.I(f'v_or3_b32 v{t}, v{regs[0]}, v{regs[1]}, v{regs[2]}')
            k = 3
            while k + 1 < len(regs):
                self.I(f'v_or3_b32 v{t}, v{t}, v{regs[k]}, v{regs[k+1]}'); k += 2
            self.I(f'v_or_b32 v{t}, v{t}, v{regs[k]}')
            self.I(f'v_and_b32 v{t}, {3 - par}, v{t}')
            self.I(f'v_cmp_ne_u32 vcc, 0, v{t}')
        R = a.newlabel('STR'); Bk = a.newlabel('STB')
        items = [Wait(vm='stat')] + self.cap(ors) + [[Ins('s_cmp_lg_u64 vcc, 0'), Ins(f's_cbranch_scc1 {R}'), Label(Bk)]]
        with a.capture() as c:
            a.label(R)
            self.I(f's_mov_b32 {sSpin}, {sDead}')
            a.label(R + '_l')
            self.I('s_nop 7'); self.I('s_nop 7')
            for k, (vo, sb, co) in enumerate(srcs):
                self.I(f's_add_u32 s7, {sb}, {co}')
                a.raw(f'    buffer_load_dwordx4 {vr(F+4*k,4)}, {vo}, {WS}, s7 offen sc1')
            self.I('s_waitcnt vmcnt(0)')
            ors()
            self.I('s_cmp_eq_u64 vcc, 0'); self.I(f's_cbranch_scc1 {Bk}')
            self.I(f's_sub_u32 {sSpin}, {sSpin}, 1'); self.I(f's_cbranch_scc0 {R}_l')
            self.I(f's_mov_b32 {sDead}, 0'); self.I(f's_branch {Bk}')
        self.ool += c.items
        return items
    def flat(self, items):
        for x in items:
            if isinstance(x, list): self.a.extend(x)
            else: self.a.items.append(x)

    def cons_stats(self, F, nm, r, double=False, r1=None):
        I = self.I
        I(f'v_add_f32 v{F}, v{F}, v{F+2}'); I(f'v_add_f32 v{F+1}, v{F+1}, v{F+3}')
        I(f'v_permlane32_swap_b32 v{F}, v{F+1}')
        I(f'v_add_f32 v{F}, v{F}, v{F+1}')
        I(f'v_mov_b32 v{F+1}, v{F}')
        I(f'v_permlane16_swap_b32 v{F}, v{F+1}')
        I(f'v_add_f32 v{F}, v{F}, v{F+1}')
        I(f'v_mov_b32 v{F+1}, v{F}')
        I(f'v_permlane32_swap_b32 v{F}, v{F+1}')
        I(f'v_mul_f32 v{nm}, {hex(f2u(-1.0/640))}, v{F}')
        I(f'v_mul_f32 v{F+1}, {hex(f2u(1.0/640))}, v{F+1}')
        I(f'v_fma_f32 v{F+1}, -v{nm}, v{nm}, v{F+1}')
        I(f'v_max_f32 v{F+1}, 0, v{F+1}')
        I(f'v_add_f32 v{F+2}, {hex(f2u(1e-5))}, v{F+1}')
        if not double:
            I(f'v_rsq_f32 v{r}, v{F+2}')
        else:
            I(f'v_rsq_f32 v{r1}, v{F+2}')
            I(f'v_mul_f32 v{F+1}, v{F+1}, v{r1}')
            I(f'v_mul_f32 v{F+1}, v{F+1}, v{r1}')
            I(f'v_add_f32 v{F+1}, {hex(f2u(1e-5))}, v{F+1}')
            I(f'v_rsq_f32 v{F+1}, v{F+1}')
            I(f'v_mul_f32 v{r}, v{r1}, v{F+1}')

    def lnfixp(self, acc, cw, n2, p):
        for i in range(n2):
            self.I(f'v_pk_fma_f32 {vr(acc+2*i,2)}, {vr(cw+2*i,2)}, {vr(p,2)}, {vr(acc+2*i,2)} op_sel_hi:[1,0,1]')
        for i in range(n2):
            self.I(f'v_pk_mul_f32 {vr(acc+2*i,2)}, {vr(acc+2*i,2)}, {vr(p,2)} op_sel:[0,1] op_sel_hi:[1,1]')
    def lnfix(self, acc, cw, n2, nm, r):
        for i in range(n2):
            self.I(f'v_pk_fma_f32 {vr(acc+2*i,2)}, {vr(cw+2*i,2)}, {vr(nm,2)}, {vr(acc+2*i,2)} op_sel_hi:[1,0,1]')
        for i in range(n2):
            self.I(f'v_pk_mul_f32 {vr(acc+2*i,2)}, {vr(acc+2*i,2)}, {vr(r,2)} op_sel_hi:[1,0]')

    def gelu(self, x, n2, t, K):
        I = self.I
        for i in range(n2): I(f'v_pk_mul_f32 {vr(t+2*i,2)}, {vr(x+2*i,2)}, {vr(x+2*i,2)}')
        for i in range(n2): I(f'v_pk_fma_f32 {vr(t+2*i,2)}, {vr(t+2*i,2)}, {vr(K,2)}, {vr(K,2)} op_sel:[0,0,1] op_sel_hi:[1,0,1]')
        for i in range(n2): I(f'v_pk_mul_f32 {vr(t+2*i,2)}, {vr(t+2*i,2)}, {vr(x+2*i,2)}')
        for i in range(2*n2): I(f'v_exp_f32 v{t+i}, v{t+i}')
        for i in range(n2): I(f'v_pk_add_f32 {vr(t+2*i,2)}, {vr(t+2*i,2)}, {vr(K+2,2)} op_sel_hi:[1,0]')
        for i in range(2*n2): I(f'v_rcp_f32 v{t+i}, v{t+i}')
        for i in range(n2): I(f'v_pk_mul_f32 {vr(x+2*i,2)}, {vr(x+2*i,2)}, {vr(t+2*i,2)}')
    def gconst(self, G, r):
        I = self.I
        I(f'v_rcp_f32 v{G+1}, v{r}')
        I(f'v_mul_f32 v{G+3}, {hex(f2u(GC0))}, v{r}')
        I(f'v_mul_f32 v{G+2}, v{r}, v{r}')
        I(f'v_mul_f32 v{G+2}, v{G+2}, v{G+3}')
        I(f'v_mul_f32 v{G+2}, {hex(f2u(0.044715))}, v{G+2}')
    def lgA(self, x, cw, n2, t, G):
        I = self.I
        for i in range(n2): I(f'v_pk_fma_f32 {vr(x+2*i,2)}, {vr(cw+2*i,2)}, {vr(G,2)}, {vr(x+2*i,2)} op_sel_hi:[1,0,1]')
        for i in range(n2): I(f'v_pk_mul_f32 {vr(t+2*i,2)}, {vr(x+2*i,2)}, {vr(x+2*i,2)}')
        for i in range(n2): I(f'v_pk_fma_f32 {vr(t+2*i,2)}, {vr(t+2*i,2)}, {vr(G+2,2)}, {vr(G+2,2)} op_sel:[0,0,1] op_sel_hi:[1,0,1]')
        for i in range(n2): I(f'v_pk_mul_f32 {vr(t+2*i,2)}, {vr(t+2*i,2)}, {vr(x+2*i,2)}')
    def lgB(self, x, n2, t, G, pk):
        I = self.I
        for i in range(2*n2): I(f'v_exp_f32 v{t+i}, v{t+i}')
        if pk:
            for i in range(n2): I(f'v_pk_fma_f32 {vr(t+2*i,2)}, {vr(t+2*i,2)}, {vr(G,2)}, {vr(G,2)} op_sel:[0,1,1] op_sel_hi:[1,1,1]')
        else:
            for i in range(2*n2): I(f'v_fma_f32 v{t+i}, v{t+i}, v{G+1}, v{G+1}')
        for i in range(2*n2): I(f'v_rcp_f32 v{t+i}, v{t+i}')
        if pk:
            for i in range(n2): I(f'v_pk_mul_f32 {vr(x+2*i,2)}, {vr(x+2*i,2)}, {vr(t+2*i,2)}')
        else:
            for i in range(2*n2): I(f'v_mul_f32 v{x+i}, v{x+i}, v{t+i}')
    def geluA(self, x, n2, t, K):
        I = self.I
        for i in range(n2): I(f'v_pk_mul_f32 {vr(t+2*i,2)}, {vr(x+2*i,2)}, {vr(x+2*i,2)}')
        for i in range(n2): I(f'v_pk_fma_f32 {vr(t+2*i,2)}, {vr(t+2*i,2)}, {vr(K,2)}, {vr(K,2)} op_sel:[0,0,1] op_sel_hi:[1,0,1]')
        for i in range(n2): I(f'v_pk_mul_f32 {vr(t+2*i,2)}, {vr(t+2*i,2)}, {vr(x+2*i,2)}')
    def geluB(self, x, n2, t):
        I = self.I
        for i in range(2*n2): I(f'v_exp_f32 v{t+i}, v{t+i}')
        for i in range(2*n2): I(f'v_add_f32 v{t+i}, 1.0, v{t+i}')
        for i in range(2*n2): I(f'v_rcp_f32 v{t+i}, v{t+i}')
        for i in range(2*n2): I(f'v_mul_f32 v{x+i}, v{x+i}, v{t+i}')
    def gelu_consts(self, K):
        self.I(f'v_mov_b32 v{K}, {hex(f2u(GC1))}')
        self.I(f'v_mov_b32 v{K+1}, {hex(f2u(GC0))}')
        self.I(f'v_mov_b32 v{K+2}, 1.0')

    def store_tile(self, P, buf, sA, sHh, sc1=False, vA=vL16, vH=vS8, tag='st'):
        I = self.I
        sc = ' sc1' if sc1 else ''
        I(f's_add_u32 {sT[0]}, {sA}, {buf}')
        I(f's_add_u32 {sT[1]}, {sHh}, {buf}')
        if not sc1: self.a.slow_begin(sMODE)
        I(f'buffer_store_dwordx4 {vr(P,4)}, {vA}, {WS}, {sT[0]} offen{sc}', tag)
        I(f'buffer_store_dwordx4 {vr(P+4,4)}, {vA}, {WS}, {sT[0]} offen offset:1024{sc}', tag)
        I(f'buffer_store_dwordx2 {vr(P+8,2)}, {vH}, {WS}, {sT[1]} offen{sc}', tag)
        if not sc1: self.a.slow_end()
    def store_stats(self, t, buf, par, sc1=False, tag='stt'):
        I = self.I
        I(f'v_and_or_b32 v{t}, v{t}, -4, {par}')
        I(f's_add_u32 {sT[0]}, {sS21}, {buf}')
        if not sc1: self.a.slow_begin(sMODE)
        I(f'buffer_store_dword v{t}, {vST}, {WS}, {sT[0]} offen' + (' sc1' if sc1 else ''), tag)
        if not sc1: self.a.slow_end()

    def load_frag(self, dst, voff, sbase, const, idx, tag, areg=False, sc=' sc1', state={}):
        key = (sbase, const, idx >> 2)
        if self._lf != key:
            self.I(f's_add_u32 {sT[2]}, {sbase}, {const + (idx >> 2)*4096}')
            self._lf = key
        d = ar(dst, 4) if areg else vr(dst, 4)
        self.I(f'buffer_load_dwordx4 {d}, {voff}, {WS}, {sT[2]} offen offset:{(idx & 3)*1024}{sc}', tag)
    _lf = None

    def tsrd(self, p, nbytes):
        self.I(f's_mov_b32 s12, s{p}'); self.I(f's_and_b32 s13, s{p+1}, 0xffff'); self.I(f's_mov_b32 s14, {nbytes}')

    def rowcol(self, q, magic, lpr, rs):
        I = self.I
        I(f'v_add_u32 v26, {q}, v0')
        I(f'v_mul_u32_u24 v27, {magic}, v26'); I('v_lshrrev_b32 v27, 16, v27')
        I(f'v_mul_u32_u24 v28, {lpr}, v27'); I('v_sub_u32 v28, v26, v28')
        I(f'v_mul_u32_u24 v29, {rs}, v27'); I('v_lshl_add_u32 v29, v28, 4, v29')

    def prologue(self):
        a = self.a; I = self.I
        sRS, sEx, sSrc, sDst, sTile, sU, sLB = sT[3], sT[4], sT[5], sT[6], sT[7], sT[8], sWB
        sInvA, sInvB, sSrc3 = 's6', 's7', 's3'
        I('s_cmp_ge_u32 s2, 256')
        I('s_cbranch_scc1 KEND')
        I('s_load_dwordx16 s[20:35], s[0:1], 0')
        I('s_load_dwordx8 s[36:43], s[0:1], 64')
        if self.stamps or os.environ.get('DBG') or os.environ.get('SPIN'): I('s_memrealtime s[98:99]')
        I('s_getpc_b64 s[4:5]')
        a.label('PCL0')
        I(f's_lshr_b32 {sH}, s2, 3')
        I(f's_lshl_b32 {sT[0]}, {sH}, 12')
        I(f'v_lshl_add_u32 v26, v0, 4, {sT[0]}')
        I('v_min_u32 v26, CODE_END-PCL0-16, v26')
        I('global_load_dword a253, v26, s[4:5]')
        I('v_lshrrev_b32 v7, 6, v0')
        I('v_mov_b32 v25, v0')
        I(f'v_readfirstlane_b32 {sW}, v7')
        I('v_and_b32 v0, 63, v0')
        I(f's_and_b32 {sXG}, s2, 7')
        I(f's_lshr_b32 {sCL}, {sH}, 3'); I(f's_and_b32 {sJ}, {sH}, 7')
        I(f's_lshl_b32 {sC}, {sXG}, 2'); I(f's_add_u32 {sC}, {sC}, {sCL}')
        I(f's_lshl_b32 {sTT}, {sC}, 2'); I(f's_add_u32 {sTT}, {sTT}, {sW}')
        I(f's_mul_i32 {sT[0]}, {sJ}, 5'); I(f's_add_u32 {sT[0]}, {sT[0]}, 1'); I(f's_lshr_b32 {sT[0]}, {sT[0]}, 1')
        I(f's_lshl_b32 {sA21}, {sT[0]}, 10')
        I(f's_mul_i32 {sH21}, {sJ}, 2560')
        I(f's_bitcmp0_b32 {sJ}, 0'); I(f's_cselect_b32 {sT[3]}, 2048, 0'); I(f's_add_u32 {sH21}, {sH21}, {sT[3]}')
        I(f's_mul_i32 {sT20}, {sTT}, 20480')
        I(f's_lshr_b32 {sOutA}, {sA21}, 4'); I(f's_lshr_b32 {sOutH}, {sH21}, 4')
        I(f's_add_u32 {sOutA}, {sOutA}, {sT20}'); I(f's_add_u32 {sOutH}, {sOutH}, {sT20}')
        I('v_and_b32 v20, 15, v0'); I('v_lshrrev_b32 v21, 4, v0')
        I('v_mul_u32_u24 v26, 1280, v20')
        I('v_lshl_add_u32 v36, v21, 4, v26'); I('v_lshl_add_u32 v37, v21, 3, v26')
        I(f's_lshr_b32 {sT[1]}, s2, 1'); I(f's_and_b32 {sT[0]}, s2, 1')
        I(f's_mul_i32 {sSrc}, {sT[1]}, {8*3840}'); I(f's_mul_i32 {sT[2]}, {sT[0]}, 640'); I(f's_add_u32 {sSrc}, {sSrc}, {sT[2]}')
        I(f's_cmp_lt_u32 s2, 160'); I(f's_cselect_b32 {sInvA}, 0, {OOB}'); I(f's_cselect_b32 {sSrc}, {sSrc}, 0')
        for k in range(4):
            I(f'v_add_u32 v26, {256*k}, v25')
            I('v_mul_u32_u24 v27, 13108, v26'); I('v_lshrrev_b32 v27, 19, v27')
            I('v_mul_u32_u24 v28, 40, v27'); I('v_sub_u32 v28, v26, v28')
            I('v_and_b32 v29, 7, v27'); I('v_mul_u32_u24 v29, 3840, v29'); I('v_lshl_add_u32 v29, v28, 4, v29')
            I('v_lshrrev_b32 v27, 3, v27'); I('v_mul_u32_u24 v28, 1280, v27'); I(f'v_add3_u32 v{40+k}, v29, v28, {sInvA}')
        I('v_cmp_gt_u32 vcc, 3, v27'); I(f'v_mov_b32 v28, {OOB}'); I('v_cndmask_b32 v43, v28, v43, vcc')
        I(f's_lshl_b32 {sLB}, {sW}, 10')
        I('s_mov_b32 s15, 0x20000'); I('s_mov_b32 s11, 0x20000'); I('s_mov_b32 s19, 0x20000')
        I('s_mov_b32 s10, 0x10000000'); I('s_mov_b32 s18, 2621440')
        I(f's_lshl_b32 {sU}, s2, 2'); I(f's_add_u32 {sU}, {sU}, {sW}')
        I('s_memrealtime s[94:95]')
        a.wait(lg=None)
        I(f's_mov_b32 s8, s{P_WS}'); I(f's_and_b32 s9, s{P_WS+1}, 0xffff')
        I(f's_cmp_lg_u32 {sU}, 3'); I('s_cbranch_scc1 NOTAG')
        I('s_lshl_b32 s95, s95, 4'); I('s_or_b32 s95, s95, 0x80000000')
        I('v_mov_b32 v26, s94'); I('v_mov_b32 v27, s95'); I('v_mov_b32 v28, 0')
        I('s_mov_b64 exec, 1')
        a.raw(f'    global_store_dwordx2 v28, v[26:27], s[{P_DBG}:{P_DBG+1}] sc1')
        I('s_mov_b64 exec, -1')
        a.label('NOTAG')
        if os.environ.get('DBG'): I(f's_mov_b32 s42, s{P_DBG}'); I(f's_mov_b32 s43, s{P_DBG+1}')
        self.tsrd(P_QKV, 2457600)
        for k in range(4):
            I(f's_add_u32 m0, {sLB}, {k*4096}')
            I(f'buffer_load_dwordx4 v{40+k}, {TS}, {sSrc} offen nt lds', 's1')
        self.tsrd(P_X, 2621440)
        I(f'buffer_load_dwordx4 {vr(RES,4)}, v36, {TS}, {sOutA} offen nt', 's1')
        I(f'buffer_load_dwordx4 {vr(RES+4,4)}, v36, {TS}, {sOutA} offen offset:64 nt', 's1')
        I(f'buffer_load_dwordx2 {vr(RES+8,2)}, v37, {TS}, {sOutH} offen nt', 's1')
        I(f's_mov_b32 s16, s{P_OUT}'); I(f's_and_b32 s17, s{P_OUT+1}, 0xffff')
        if self.TLB:
            I('v_min_u32 v26, 42, v0'); I('v_lshlrev_b32 v26, 20, v26'); I('v_add_u32 v26, 0xfff80, v26')
            I(f's_cmp_eq_u32 {sW}, 2'); I(f's_cselect_b32 {sT[2]}, 0, {OOB}'); I(f'v_or_b32 v26, {sT[2]}, v26')
            I(f'buffer_load_dword a252, v26, {WS}, 0 offen nt', 'tlb')
            I('v_min_u32 v26, 2, v0'); I('v_lshlrev_b32 v26, 20, v26'); I(f'v_or_b32 v26, {sT[2]}, v26')
            I(f'buffer_load_dword a252, v26, {OUT}, 0 offen nt', 'tlb')
        I(f's_mul_i32 {sDm}, {sT[0]}, {16*81920}'); I(f's_mul_i32 {sT[2]}, {sW}, {4*81920}'); I(f's_add_u32 {sDm}, {sDm}, {sT[2]}')
        I(f's_lshr_b32 {sT[2]}, {sT[1]}, 2'); I(f's_lshl_b32 {sT[2]}, {sT[2]}, 12'); I(f's_add_u32 {sDm}, {sDm}, {sT[2]}')
        I(f's_and_b32 {sT[2]}, {sT[1]}, 3'); I(f's_lshl_b32 {sT[2]}, {sT[2]}, 8'); I(f's_add_u32 {sDm}, {sDm}, {sT[2]}')
        I(f's_mov_b32 s4, {sInvA}')
        if self.stamps: I(f's_lshl_b32 {sStampOff}, {sU}, 9'); I(f's_add_u32 {sStampOff}, {sStampOff}, {STAMP}')
        I(f's_add_u32 {sU}, {sU}, 384'); I(f's_and_b32 {sU}, {sU}, 1023')
        I(f's_mov_b32 s12, s{P_O}'); I(f's_mov_b32 s13, s{P_O+1}'); I(f's_mov_b32 s14, 819200')
        I(f's_mov_b32 {sDst}, {WT_O}'); I(f's_mov_b32 {sTile}, 102400'); I(f's_mov_b32 {sT[0]}, {sU}')
        for thr, p, wt in ((160, P_1, WT_1), (320, P_2, WT_2), (480, P_4, WT_4)):
            I(f's_sub_u32 {sT[1]}, {sU}, {thr}')
            I(f's_cmp_ge_u32 {sU}, {thr}')
            I(f's_cselect_b32 s12, s{p}, s12'); I(f's_cselect_b32 s13, s{p+1}, s13')
            I(f's_cselect_b32 {sDst}, {wt}, {sDst}'); I(f's_cselect_b32 {sT[0]}, {sT[1]}, {sT[0]}')
        I(f's_cselect_b32 {sTile}, 245760, {sTile}'); I(f's_cselect_b32 s14, 1966080, s14')
        I(f's_and_b32 s13, s13, 0xffff')
        I(f's_cmp_lt_u32 {sU}, 864'); I(f's_cselect_b32 {sInvA}, s4, {OOB}'); I(f's_cselect_b32 {sT[0]}, {sT[0]}, 0')
        I(f's_xor_b32 s5, s4, {OOB}')
        I(f's_lshr_b32 {sT[1]}, {sT[0]}, 1'); I(f's_and_b32 {sT[0]}, {sT[0]}, 1')
        I(f's_lshl_b32 {sSrc}, {sT[1]}, 3'); I(f's_mov_b32 {sEx}, 0')
        I(f's_cmp_ge_u32 {sU}, 160'); I('s_cbranch_scc1 PREP_RB')
        I(f's_lshr_b32 {sT[2]}, {sT[1]}, 1'); I(f's_mul_i32 {sT[2]}, {sT[2]}, 20')
        I(f's_and_b32 {sSrc}, {sT[1]}, 1'); I(f's_lshl_b32 {sSrc}, {sSrc}, 3'); I(f's_add_u32 {sSrc}, {sSrc}, {sT[2]}')
        I(f's_cmp_lt_u32 {sT[1]}, 64'); I('s_cbranch_scc1 PREP_RB')
        I(f's_sub_u32 {sT[2]}, {sT[1]}, 64'); I(f's_mul_i32 {sSrc}, {sT[2]}, 40'); I(f's_add_u32 {sSrc}, {sSrc}, 16')
        I(f's_mov_b32 {sEx}, {16*1280}')
        a.label('PREP_RB')
        I(f's_mul_i32 {sSrc}, {sSrc}, 1280'); I(f's_mul_i32 {sT[2]}, {sT[0]}, 640'); I(f's_add_u32 {sSrc}, {sSrc}, {sT[2]}')
        I(f's_lshl_b32 {sLB}, {sW}, 13'); I(f's_add_u32 {sLB}, {sLB}, 32768')
        for q in range(5):
            self.rowcol(64*q, 1639, 40, 1280)
            I('v_lshrrev_b32 v27, 2, v27'); I(f'v_mad_u32_u24 v29, v27, {sEx}, v29'); I(f'v_or_b32 v{200+q}, {sInvA}, v29')
            I('v_or_b32 v29, s5, v29')
            I(f's_add_u32 m0, {sLB}, {q*1024}')
            I(f'buffer_load_dwordx4 v29, {TS}, {sSrc} offen nt lds', 's1')
        I(f's_mul_i32 {sT[2]}, {sT[0]}, {sTile}'); I(f's_lshl_b32 {sT[2]}, {sT[2]}, 2'); I(f's_add_u32 {sDst}, {sDst}, {sT[2]}')
        I(f's_lshr_b32 {sT[2]}, {sT[1]}, 2'); I(f's_mul_i32 {sT[2]}, {sT[2]}, 5120'); I(f's_add_u32 {sDst}, {sDst}, {sT[2]}')
        I(f's_and_b32 {sT[2]}, {sT[1]}, 3'); I(f's_lshl_b32 {sT[2]}, {sT[2]}, 8'); I(f's_add_u32 {sDst}, {sDst}, {sT[2]}')
        I(f's_add_u32 {sT[0]}, {sU}, 160'); I(f's_and_b32 {sT[0]}, {sT[0]}, 1023')
        I(f's_cmp_lt_u32 {sT[0]}, 640'); I(f's_cselect_b32 {sInvB}, 0, {OOB}'); I(f's_cselect_b32 {sT[0]}, {sT[0]}, 0')
        I(f's_lshr_b32 {sT[1]}, {sT[0]}, 3'); I(f's_and_b32 {sT[0]}, {sT[0]}, 7')
        I(f's_mul_i32 {sSrc3}, {sT[1]}, {8*3072}'); I(f's_mul_i32 {sT[2]}, {sT[0]}, 384'); I(f's_add_u32 {sSrc3}, {sSrc3}, {sT[2]}')
        I(f's_mul_i32 {sRS}, {sT[0]}, 245760'); I(f's_lshl_b32 {sT[2]}, {sT[1]}, 8'); I(f's_add_u32 {sRS}, {sRS}, {sT[2]}'); I(f's_add_u32 {sRS}, {sRS}, {WT_3}')
        I(f's_mov_b32 {sDead}, 400000'); I(f's_mov_b32 {sMODE}, 0')
        I(f's_mul_i32 {sT21}, {sTT}, 21504'); I(f's_mul_i32 {sT48}, {sTT}, 49152')
        I(f's_add_u32 {sA20}, {sT20}, {sA21}'); I(f's_add_u32 {sH20}, {sT20}, {sH21}')
        I(f's_add_u32 {sA21}, {sT21}, {sA21}'); I(f's_add_u32 {sH21}, {sT21}, {sH21}')
        I(f's_lshr_b32 {sT[0]}, {sJ}, 1'); I(f's_lshl_b32 {sT[0]}, {sT[0]}, 8')
        I(f's_and_b32 {sT[1]}, {sJ}, 1'); I(f's_lshl_b32 {sT[1]}, {sT[1]}, 3')
        I(f's_add_u32 {sS21}, {sT21}, {sT[0]}'); I(f's_add_u32 {sS21}, {sS21}, {sT[1]}'); I(f's_add_u32 {sS21}, {sS21}, 20480')
        I(f's_mul_i32 {sLW}, {sW}, 5120')
        I(f's_mul_i32 {sW5}, {sJ}, 102400'); I(f's_add_u32 {sW5}, {sW5}, {sLW}')
        I(f's_mul_i32 {sW4}, {sJ}, 245760'); I(f's_add_u32 {sW4}, {sW4}, {sLW}')
        I(f's_mul_i32 {sWQ}, {sH}, 81920');  I(f's_add_u32 {sWQ}, {sWQ}, {sLW}')
        I(f's_lshl_b32 {sWI}, {sH}, 2'); I(f's_add_u32 {sWI}, {sWI}, {sW}')
        I(f's_lshl_b32 {sT[0]}, {sXG}, 2'); I(f's_add_u32 {sT[0]}, {sT[0]}, {sW}')
        I(f's_mul_i32 {sQT21}, {sT[0]}, {4*21504}')
        I(f's_mul_i32 {sT[1]}, {sT[0]}, {4*20480}')
        I(f's_lshl_b32 {sT[2]}, {sH}, 9'); I(f's_add_u32 {sO4}, {sT[1]}, {sT[2]}')
        I(f's_lshr_b32 {sT[2]}, {sH}, 1'); I(f's_lshl_b32 {sT[2]}, {sT[2]}, 8'); I(f's_add_u32 {sO1}, {sT[1]}, {sT[2]}')
        I(f's_and_b32 {sT[2]}, {sH}, 1'); I(f's_lshl_b32 {sT[2]}, {sT[2]}, 3'); I(f's_add_u32 {sO1}, {sO1}, {sT[2]}'); I(f's_add_u32 {sO1}, {sO1}, 16384')
        I(f's_lshl_b32 {sT[2]}, {sT[0]}, 7'); I(f's_lshl_b32 {sFLOo}, {sH}, 2')
        I(f's_add_u32 {sFLOo}, {sT[2]}, {sFLOo}'); I(f's_add_u32 {sFLOo}, {sFLOo}, {FLO}')
        I(f's_lshl_b32 {sKVi}, {sH}, 16'); I(f's_lshl_b32 {sT[2]}, {sW}, 10'); I(f's_add_u32 {sKVi}, {sKVi}, {sT[2]}')
        I(f's_add_u32 {sKVi}, {sKVi}, {KVP}')
        I(f's_lshl_b32 {sT[2]}, {sXG}, 13'); I(f's_add_u32 {sKVo}, {sKVi}, {sT[2]}')
        I(f's_lshl_b32 {sT[0]}, {sJ}, 2'); I(f's_add_u32 {sT[0]}, {sT[0]}, {sW}')
        I(f's_mul_i32 {sW3}, {sT[0]}, 61440')
        I(f's_mul_i32 {sT[1]}, {sT[0]}, 3'); I(f's_add_u32 {sT[1]}, {sT[1]}, 1'); I(f's_lshr_b32 {sT[1]}, {sT[1]}, 1'); I(f's_lshl_b32 {sA48}, {sT[1]}, 10')
        I(f's_mul_i32 {sH48}, {sT[0]}, 1536')
        I(f's_bitcmp0_b32 {sT[0]}, 0'); I(f's_cselect_b32 {sT[2]}, 1024, 0'); I(f's_add_u32 {sH48}, {sH48}, {sT[2]}')
        I(f's_mul_i32 {sT[2]}, {sC}, {4*49152}')
        I(f's_add_u32 {sA48}, {sT[2]}, {sA48}'); I(f's_add_u32 {sH48}, {sT[2]}, {sH48}')
        I(f's_mul_i32 {sC21}, {sC}, {4*21504}')
        I(f's_lshl_b32 {sFLo}, {sTT}, 5'); I(f's_lshl_b32 {sT[2]}, {sJ}, 2'); I(f's_add_u32 {sFLo}, {sFLo}, {sT[2]}'); I(f's_add_u32 {sFLo}, {sFLo}, {FL}')
        I(f's_and_b32 {sT[0]}, {sTT}, 15')
        I(f's_mov_b32 {sEdge}, {OOB}')
        I(f's_cmp_eq_u32 {sT[0]}, 0');  I(f's_cselect_b32 {sEdge}, 0, {sEdge}')
        I(f's_cmp_eq_u32 {sT[0]}, 15'); I(f's_cselect_b32 {sEdge}, 0, {sEdge}'); I(f's_cselect_b32 {sBot}, 1, 0')
        I(f's_cmp_eq_u32 {sTT}, 0');   I(f's_cselect_b32 {sEdge}, {OOB}, {sEdge}')
        I(f's_cmp_eq_u32 {sTT}, 127'); I(f's_cselect_b32 {sEdge}, {OOB}, {sEdge}')
        I(f'v_lshlrev_b32 {vL16}, 4, v0')
        I(f'v_add_u32 {vL16b}, 0x10000, {vL16}'); I(f'v_add_u32 {vL16c}, 0x20000, {vL16}')
        I('v_lshrrev_b32 v22, 5, v0'); I('v_and_b32 v23, 1, v21'); I('v_lshlrev_b32 v24, 4, v20')
        I(f'v_lshl_add_u32 {vS8}, v22, 8, v24'); I(f'v_lshl_add_u32 {vS8}, v23, 3, {vS8}')
        I(f'v_lshl_add_u32 {vST}, v22, 2, v24')
        I(f'v_and_b32 {vFl}, 31, v0'); I(f'v_lshlrev_b32 {vFl}, 2, {vFl}')
        if self.stamps:
            I('v_mov_b32 v19, s98'); I(f'buffer_store_dword v19, off, {WS}, {sStampOff}'); I(f'buffer_store_dword v19, off, {WS}, {sStampOff} offset:256')
            self.nstamp += 1; self.stampnames.append('entry')
        self.stamp('issued')
        I('v_lshrrev_b32 v26, 2, v20'); I('v_and_b32 v27, 3, v20')
        I(f's_mul_i32 {sT[2]}, {sW}, 160')
        I('v_mul_u32_u24 v29, 640, v26'); I(f'v_add_u32 v29, {sT[2]}, v29'); I('v_mul_u32_u24 v28, 40, v21'); I('v_add_u32 v29, v29, v28')
        I('v_lshl_add_u32 v30, v27, 3, v29')
        I('v_lshlrev_b32 v28, 3, v27'); I(f'v_add_u32 v31, {10240-8}, v28'); I(f'v_mov_b32 v33, {5120+32}')
        I('v_cmp_eq_u32 vcc, 0, v27'); I('v_cndmask_b32 v31, v31, v33, vcc'); I('v_add_u32 v31, v31, v29')
        I('v_min_u32 v28, 2, v27'); I('v_lshlrev_b32 v28, 3, v28'); I(f'v_add_u32 v33, {10240+16}, v28'); I('v_mov_b32 v34, 32')
        I('v_cndmask_b32 v33, v33, v34, vcc'); I('v_add_u32 v33, v33, v29')
        I(f's_mov_b32 {sT[2]}, 81920'); I(f'v_mul_lo_u32 v32, v21, {sT[2]}'); I(f'v_add3_u32 v32, v32, v24, s4')
        for q in range(3):
            self.rowcol(64*q, 2731, 24, 3072)
            I(f'v_or_b32 v{205+q}, {sInvB}, v29')
        I('v_lshrrev_b32 v26, 2, v20'); I('v_and_b32 v27, 3, v20')
        I('v_mul_u32_u24 v28, 5, v21'); I('v_add_u32 v28, 1, v28'); I('v_lshrrev_b32 v28, 1, v28')
        I('v_mul_u32_u24 v29, 640, v26'); I(f'v_add_u32 v29, {sLB}, v29')
        I('v_lshl_add_u32 v210, v28, 6, v29'); I('v_lshl_add_u32 v210, v27, 4, v210')
        I('v_mul_u32_u24 v211, 160, v21'); I('v_xor_b32 v28, 1, v23'); I('v_lshl_add_u32 v211, v28, 7, v211')
        I('v_add_u32 v211, v211, v29'); I('v_lshl_add_u32 v211, v27, 3, v211')
        I(f'v_mul_lo_u32 v212, v21, {sTile}'); I(f'v_add3_u32 v216, v212, v24, s5'); I(f'v_add3_u32 v212, v212, v24, {sInvA}')
        I('v_mul_u32_u24 v29, 384, v26'); I(f'v_add_u32 v29, {sLB}, v29'); I('v_mul_u32_u24 v28, 96, v21'); I('v_add_u32 v29, v29, v28')
        I('v_lshl_add_u32 v213, v23, 5, v29'); I('v_lshl_add_u32 v213, v27, 4, v213')
        I('v_xor_b32 v28, 1, v23'); I('v_lshl_add_u32 v214, v28, 6, v29'); I('v_lshl_add_u32 v214, v27, 3, v214')
        I('v_mul_u32_u24 v215, 61440, v21'); I(f'v_add3_u32 v215, v215, v24, {sInvB}')
        I(f's_getreg_b32 {sU}, hwreg(HW_REG_XCC_ID)'); I(f's_and_b32 {sU}, {sU}, 15')
        for r in range(132, 142): I(f'v_mov_b32 v{r}, -1')
        I('v_mov_b32 v128, 0')
        a.wait(vm='s1')
        self.stamp('s1_loaded')
        I('v_mov_b32 v26, 0')
        I(f'global_load_dwordx2 v[208:209], v26, s[{P_DBG}:{P_DBG+1}] sc1', 'st')
        self.store_tile(RES, XA(0), sA21, sH21, sc1=True)
        for i in range(5):
            b_, o = ('v210', 64*(i >> 1) + 8*(i & 1)) if i < 4 else ('v211', 0)
            I(f'ds_read_b64_tr_b16 {vr(64+4*i,2)}, {b_} offset:{o}')
            I(f'ds_read_b64_tr_b16 {vr(66+4*i,2)}, {b_} offset:{o+2560}')
        I('s_barrier')
        a.wait(lg=None)
        for i, (b_, o) in enumerate((('v30', 5120), ('v31', 0), ('v30', 0), ('v33', 0))):
            I(f'ds_read_b64_tr_b16 {vr(48+4*i,2)}, {b_} offset:{o}')
            I(f'ds_read_b64_tr_b16 {vr(50+4*i,2)}, {b_} offset:{o+2560}')
        for i in range(4): I(f'buffer_store_dwordx4 {vr(64+4*i,4)}, v216, {WS}, {sDst} offen offset:{i*1024} sc1', 'st')
        I(f's_add_u32 {sT[0]}, {sDst}, 4096')
        I(f'buffer_store_dwordx4 {vr(80,4)}, v216, {WS}, {sT[0]} offen sc1', 'st')
        a.wait(lg=None)
        for i in range(4): I(f'buffer_store_dwordx4 {vr(48+4*i,4)}, v32, {WS}, {sDm} offen offset:{i*1024} sc1', 'st')
        self.unpack(144, RES, 10)
        self.prod_stats(144, 164)
        self.store_stats(164, XA(0), 1, sc1=True, tag='st')
        I(f'buffer_store_dwordx4 {vr(132,4)}, {vL16}, {WS}, {sKVo} offen sc1', 'st')
        I(f's_lshl_b32 {sT[0]}, s2, 7'); I(f's_add_u32 {sT[0]}, {sT[0]}, {FL}')
        I(f's_cmp_eq_u32 {sW}, 1'); I(f's_cselect_b32 {sT[1]}, 0, {OOB}')
        I(f's_cmp_lt_u32 s2, 64'); I(f's_cselect_b32 {sT[1]}, {sT[1]}, {OOB}')
        I(f'v_or_b32 v26, {sT[1]}, {vFl}')
        I(f'buffer_store_dword v128, v26, {WS}, {sT[0]} offen sc1', 'st')
        for q in range(5):
            I(f's_add_u32 m0, {sLB}, {q*1024}')
            I(f'buffer_load_dwordx4 v{200+q}, {TS}, {sSrc} offen nt lds', 's2')
        self.tsrd(P_3, 1966080)
        for q in range(3):
            I(f's_add_u32 m0, {sLB}, {5120+q*1024}')
            I(f'buffer_load_dwordx4 v{205+q}, {TS}, {sSrc3} offen nt lds', 's2')
        self.tsrd(P_PHI, 25600)
        I('v_and_b32 v26, 3, v0'); I('v_lshlrev_b32 v26, 1, v26')
        I(f's_mul_i32 {sT[0]}, {sH}, 800')
        I('v_mul_u32_u24 v27, 160, v21'); I(f'v_add3_u32 v27, v27, v26, {sT[0]}')
        I(f'v_add_u32 v28, {sT[0]}, v26'); I('v_add_u32 v28, 640, v28'); I(f'v_mov_b32 v29, {OOB}')
        I('v_cmp_eq_u32 vcc, 0, v21'); I('v_cndmask_b32 v28, v29, v28, vcc')
        I(f's_lshl_b32 {sT[0]}, {sW}, 3')
        for fr, so in ((0, sT[0]), (1, '32')):
            for e in range(8):
                vo = 'v27' if e < 4 else 'v28'
                I(f'buffer_load_ushort v{(180 if e & 1 else 120)+4*fr+(e>>1)}, {vo}, {TS}, {so} offen offset:{(e&3)*40}')
        I('v_mov_b32 v26, 0')
        a.wait(vm='st')
        self.stamp('s1_drained')
        I(f's_mov_b32 {sSpin}, {sDead}')
        a.label('GB_P0')
        I('v_cmp_ne_u32 vcc, 0, v209'); I('s_cmp_eq_u64 vcc, -1'); I('s_cbranch_scc1 GB_P0D')
        a.raw(f'    global_load_dwordx2 v[208:209], v26, s[{P_DBG}:{P_DBG+1}] sc1')
        I('s_waitcnt vmcnt(0)')
        I(f's_sub_u32 {sSpin}, {sSpin}, 1'); I('s_cbranch_scc0 GB_P0')
        a.label('GB_P0D')
        I(f'v_readfirstlane_b32 {sN0}, v208'); I(f'v_readfirstlane_b32 {sN1}, v209')
        I('s_barrier')
        self.arrive(0, 208, sU)
        a.wait(vm=None)
        for i in range(5):
            b_, o = ('v210', 64*(i >> 1) + 8*(i & 1)) if i < 4 else ('v211', 0)
            I(f'ds_read_b64_tr_b16 {ar(4*i,2)}, {b_} offset:{o}')
            I(f'ds_read_b64_tr_b16 {ar(4*i+2,2)}, {b_} offset:{o+2560}')
        a.wait(lg=None)
        for i in range(3):
            b_, o = ('v213', 8*i) if i < 2 else ('v214', 0)
            I(f'ds_read_b64_tr_b16 {ar(20+4*i,2)}, {b_} offset:{5120+o}')
            I(f'ds_read_b64_tr_b16 {ar(22+4*i,2)}, {b_} offset:{5120+o+1536}')
        for r in range(32, 36): I(f'v_accvgpr_write_b32 a{r}, -1')
        I(f's_mov_b32 s4, {sDst}'); I(f's_mov_b32 s5, {sRS}')
        I('v_accvgpr_write_b32 a38, v212'); I('v_accvgpr_write_b32 a39, v215')
        I('v_bfe_u32 v26, v0, 2, 1'); I(f's_mov_b32 {sT[0]}, 0x80008000'); I(f'v_mul_lo_u32 v26, v26, {sT[0]}')
        for r in range(120, 128): I(f'v_lshl_or_b32 v{r}, v{r+60}, 16, v{r}')
        for r in range(120, 128): I(f'v_xor_b32 v{r}, v{r}, v26')
        for r in range(8): I(f'v_accvgpr_write_b32 a{240+r}, v{120+r}')
        I(f's_add_u32 s36, {sH}, {sXG}') if self.ROT == 1 else I(f's_mov_b32 s36, {sXG if self.ROT == 2 else 0}')
        I('s_mul_i32 s37, s36, 52429'); I('s_lshr_b32 s37, s37, 18'); I('s_mul_i32 s37, s37, 5'); I('s_sub_u32 s36, s36, s37')
        I('s_lshl_b32 s36, s36, 12')
        for q in range(1, 5):
            I(f's_add_u32 s{36+q}, s{35+q}, 4096'); I(f's_cmp_eq_u32 s{36+q}, 20480'); I(f's_cselect_b32 s{36+q}, 0, s{36+q}')
        self.stamp('s2_issued')

    def arrive(self, which, t, sx='0'):
        I = self.I
        I(f's_cmp_eq_u32 {sW}, 0'); I(f's_cselect_b32 {sT[0]}, 0, {OOB}')
        I(f's_add_u32 {sT[1]}, {sN1}, {sx}')
        I(f'v_mov_b32 v{t}, {sN0}'); I(f'v_mov_b32 v{t+1}, {sT[1]}')
        I(f'v_lshlrev_b32 {vT0}, 3, v0'); I(f'v_or_b32 {vT0}, {sT[0]}, {vT0}')
        I(f's_lshl_b32 {sT[1]}, s2, 7'); I(f's_add_u32 {sT[1]}, {sT[1]}, {CNT + which*32768}')
        I('s_mov_b64 exec, 0xffff')
        I(f'buffer_store_dwordx2 {vr(t,2)}, {vT0}, {WS}, {sT[1]} offen sc1')
        I('s_mov_b64 exec, -1')
    def allchk_issue(self, which, t):
        with self.a.capture() as c:
            I = self.I
            I(f'v_lshlrev_b32 v{t+2}, 7, v0')
            I(f's_lshl_b32 {sT[5]}, {sW}, 13'); I(f's_add_u32 {sT[5]}, {sT[5]}, {CNT + which*32768}')
            I(f'buffer_load_dwordx2 {vr(t,2)}, v{t+2}, {WS}, {sT[5]} offen sc1', 'pall')
        return [c.items]
    def allchk(self, t):
        a = self.a; I = self.I
        L = a.newlabel('ACP'); D = a.newlabel('ACD')
        a.wait(vm='pall')
        I(f's_mov_b32 {sSpin}, {sDead}')
        a.label(L)
        I(f'v_and_b32 v{t+1}, -16, v{t+1}'); I(f'v_cmp_eq_u64 vcc, s[0:1], {vr(t,2)}'); I('s_cmp_eq_u64 vcc, -1'); I(f's_cbranch_scc1 {D}')
        a.raw(f'    buffer_load_dwordx2 {vr(t,2)}, v{t+2}, {WS}, {sT[5]} offen sc1')
        I('s_waitcnt vmcnt(0)')
        I(f's_sub_u32 {sSpin}, {sSpin}, 1'); I(f's_cbranch_scc0 {L}')
        I(f's_mov_b32 {sDead}, 0')
        a.label(D)

    def s2_stores(self, v0_, v1_):
        out = []
        for i in range(4): out.append([Ins(f'buffer_store_dwordx4 {ar(4*i,4)}, {v0_}, {WS}, s4 offen offset:{i*1024} sc1', 's2s')])
        out.append([Ins('s_add_u32 s4, s4, 4096'), Ins(f'buffer_store_dwordx4 {ar(16,4)}, {v0_}, {WS}, s4 offen sc1', 's2s')])
        for i in range(3):
            out.append([Ins(f'buffer_store_dwordx4 {ar(20+4*i,4)}, {v1_}, {WS}, s5 offen sc1', 's2s'), Ins('s_add_u32 s5, s5, 20480')])
        out.append([Ins(f's_add_u32 s4, {sKVo}, {2*MB}'), Ins(f'buffer_store_dwordx4 {ar(32,4)}, {vL16}, {WS}, s4 offen sc1', 's2s'),
                    Ins(f'v_or_b32 {v0_}, {sEdge}, {vL16}'), Ins(f'v_or_b32 {v1_}, {sEdge}, {vS8}')])
        for l in range(2):
            out.append([Ins(f's_add_u32 s4, {sA20}, {HD(l)}'), Ins(f'buffer_store_dwordx4 {ar(32,4)}, {v0_}, {WS}, s4 offen sc1', 's2s'),
                        Ins(f'buffer_store_dwordx4 {ar(32,4)}, {v0_}, {WS}, s4 offen offset:1024 sc1', 's2s'),
                        Ins(f's_add_u32 s4, {sH20}, {HD(l)}'), Ins(f'buffer_store_dwordx2 {ar(32,2)}, {v1_}, {WS}, s4 offen sc1', 's2s')])
        return out

    def gwait(self):
        a = self.a; I = self.I
        sU = sT[8]
        I(f's_cmp_lg_u32 {sW}, 0'); I('s_cbranch_scc1 GB_WAIT')
        I(f's_lshr_b32 {sT[0]}, {sH}, 4')
        I(f'v_lshlrev_b32 v201, 1, v0'); I(f'v_add_u32 v201, {sT[0]}, v201')
        I('v_and_b32 v203, 15, v0'); I('v_lshlrev_b32 v203, 1, v203'); I(f'v_add_u32 v203, {sT[0]}, v203'); I('v_add_u32 v203, 128, v203')
        I('v_and_b32 v204, 31, v0'); I('v_lshlrev_b32 v204, 3, v204'); I(f'v_add_u32 v204, {sXG}, v204')
        I('v_cmp_gt_u32 vcc, 32, v0'); I('v_cndmask_b32 v203, v203, v204, vcc')
        I('v_lshlrev_b32 v201, 7, v201'); I('v_lshlrev_b32 v203, 7, v203')
        I(f's_mov_b32 {sT[1]}, {CNT}')
        I(f's_mov_b32 {sSpin}, {sDead}')
        a.label('GB_P1')
        a.raw(f'    buffer_load_dwordx2 v[206:207], v201, {WS}, {sT[1]} offen sc1')
        a.raw(f'    buffer_load_dwordx2 v[208:209], v203, {WS}, {sT[1]} offen sc1')
        I('s_waitcnt vmcnt(0)')
        I('v_and_b32 v207, -16, v207'); I('v_and_b32 v202, 15, v209'); I('v_and_b32 v209, -16, v209')
        I('v_cmp_eq_u64 vcc, s[0:1], v[206:207]'); I('v_cmp_eq_u64 s[6:7], s[0:1], v[208:209]')
        I('s_and_b64 vcc, vcc, s[6:7]'); I('s_cmp_eq_u64 vcc, -1'); I('s_cbranch_scc1 GB_P1D')
        I(f's_sub_u32 {sSpin}, {sSpin}, 1'); I('s_cbranch_scc0 GB_P1')
        a.label('GB_P1D')
        I(f'v_cmp_eq_u32 vcc, {sU}, v202')
        I(f's_cmp_eq_u32 vcc_lo, -1'); I(f's_cselect_b32 {sT[0]}, 1, 0')
        I(f'v_mov_b32 v200, {sT[0]}'); I(f'v_mov_b32 v201, {7*BANK}')
        I('ds_write_b32 v201, v200')
        a.label('GB_WAIT')
        a.wait(lg=None)
        I('s_barrier')
        I(f'v_mov_b32 v201, {7*BANK}')
        I(f'ds_read_b32 {vT0}, v201', 'mode')
        self.stamp('gbar_done')

    def softmax(self, P, t, KL, wr=None):
        I = self.I
        I(f'v_max3_f32 v{t}, v{P}, v{P+1}, v{P+2}')
        I(f'v_max3_f32 v{t+1}, v{P+3}, v{P+4}, v{P+5}')
        for i in range(6, 18, 4):
            I(f'v_max3_f32 v{t}, v{t}, v{P+i}, v{P+i+1}')
            I(f'v_max3_f32 v{t+1}, v{t+1}, v{P+i+2}, v{P+i+3}')
        I(f'v_max3_f32 v{t}, v{t}, v{P+18}, v{P+19}')
        I(f'v_max_f32 v{t}, v{t}, v{t+1}')
        I(f'v_mul_f32 v{t}, {hex(f2u(-LOG2E))}, v{t}')
        for i in range(10): I(f'v_pk_fma_f32 {vr(P+2*i,2)}, {vr(P+2*i,2)}, {vr(KL,2)}, {vr(t,2)} op_sel_hi:[1,0,0]')
        for i in range(20): I(f'v_exp_f32 v{P+i}, v{P+i}')
        I(f'v_pk_add_f32 {vr(t,2)}, {vr(P,2)}, {vr(P+2,2)}')
        for i in range(2, 10): I(f'v_pk_add_f32 {vr(t,2)}, {vr(t,2)}, {vr(P+2*i,2)}')
        I(f'v_add_f32 v{t}, v{t}, v{t+1}')
        I(f'v_rcp_f32 v{t}, v{t}')
        if wr is None:
            for i in range(10): I(f'v_pk_mul_f32 {vr(P+2*i,2)}, {vr(P+2*i,2)}, {vr(t,2)} op_sel_hi:[1,0]')
            self.pack(P, P, 10)
        else:
            for i in range(5):
                for q in (2*i, 2*i+1): I(f'v_pk_mul_f32 {vr(P+2*q,2)}, {vr(P+2*q,2)}, {vr(t,2)} op_sel_hi:[1,0]')
                for q in (2*i, 2*i+1): I(f'v_cvt_pk_bf16_f32 v{P+q}, v{P+2*q}, v{P+2*q+1}')
                wr(i)

    def phi(self, P, B0, B1, AF, bphi):
        for t in range(5):
            self.I(f'v_mfma_f32_16x16x32_bf16 {vr(P+4*t,4)}, {vr(AF+4*t,4)}, {vr(B0,4)}, 0')
        for t in range(5):
            self.I(f'v_mfma_f32_16x16x32_bf16 {vr(P+4*t,4)}, {vr(AF+20+4*t,4)}, {vr(B1,4)}, {vr(P+4*t,4)}')

    def qkv(self, l, wb, bphi, bscr, tail, fill1, fill2, fill4):
        a = self.a; I = self.I
        AF, ACC = 64, 192
        RA, DA = 6, 5
        LA = self.LA0 if l == 0 else self.LA1
        NR = 4*(LA+1); XR = 192 - 4*NR; AR = XR - 24
        assert AR >= 104
        ONES, CWF, CWA = 20, 24, 32
        NP = [36, 38, 40, 42]
        vX = [vL16, 'v44', 'v45', 'v46']; vCW = [47, 48, 49]
        vPK, vV1, vV3, vTA, vTB, vRS, vKD, vKL, vA0, vA2, vO4, vO1, vCr, vCw = range(50, 64)
        kvl = bphi*BANK + 13312; cwo = bphi*BANK + 12288
        def setup():
            t0, t1, t2, t3, vTok, vG = 64, 65, 66, 67, 68, 69
            for t in range(1, 4): I(f'v_add_u32 {vX[t]}, {t*21504}, {vL16}')
            I(f's_lshl_b32 {sT[3]}, {sW}, 10')
            if l == 0:
                for r in range(4): I(f'v_mov_b32 v{ONES+r}, 0x3f803f80')
                for k, base in enumerate((vL16, vL16b, vL16c)): I(f'v_add_u32 v{vCW[k]}, {sT[3]}, {base}')
            for r in range(8): I(f'v_accvgpr_read_b32 v{76+r}, a{240+r}')
            I(f'v_bfe_u32 v{t0}, v0, 3, 1'); I(f'v_add_u32 v{t0}, -1, v{t0}'); I(f'v_not_b32 v{t1}, v{t0}')
            for r in range(8): I(f'v_and_b32 v{84+r}, v{76+r}, v{t0}')
            for r in range(8): I(f'v_and_b32 v{92+r}, v{76+r}, v{t1}')
            I(f'v_add_u32 v{t0}, {bphi*BANK}, {vL16}'); I(f'v_add_u32 v{t1}, {sT[3]}, v{t0}')
            I(f'ds_write_b128 v{t1}, {vr(84,4)}'); I(f'ds_write_b128 v{t0}, {vr(88,4)} offset:4096')
            I(f'ds_write_b128 v{t1}, {vr(92,4)} offset:5120'); I(f'ds_write_b128 v{t0}, {vr(96,4)} offset:9216')
            for r in range(4): I(f'v_mov_b32 v{72+r}, 0')
            I(f'v_min_u32 v{t0}, {35*16}, {vL16}'); I(f'v_add_u32 v{t0}, {kvl+96*21}, v{t0}')
            I(f'ds_write_b128 v{t0}, {vr(72,4)}')
        def setupB():
            t0, t1, t2, t3, vTok, vG = 64, 65, 66, 67, 68, 69
            if l: self.decomp(20, 248, 16, t0)
            I(f's_mov_b32 {sWB}, {bscr[1]*BANK}'); I(f's_cmp_lt_u32 {sW}, 2'); I(f's_cselect_b32 {sWB}, {bscr[0]*BANK}, {sWB}')
            I(f's_and_b32 {sT[3]}, {sW}, 1'); I(f's_mul_i32 {sT[3]}, {sT[3]}, 10240'); I(f's_add_u32 {sWB}, {sWB}, {sT[3]}')
            I(f'v_and_b32 v{vTok}, 15, v0'); I(f'v_lshrrev_b32 v{vG}, 4, v0')
            I(f's_lshl_b32 {sT[3]}, {sW}, 6'); I(f's_add_u32 {sT[3]}, {sT[3]}, {cwo}')
            I(f'v_lshlrev_b32 v{t0}, 4, v{vG}'); I(f'v_add_u32 v{vCw}, {sT[3]}, v{t0}'); I(f'v_add_u32 v{vCr}, {cwo}, v{t0}')
            I(f'v_lshrrev_b32 v{t0}, 5, v0'); I(f'v_lshl_add_u32 v{t0}, v{t0}, 4, v{vTok}'); I(f'v_mul_u32_u24 v{vPK}, 80, v{t0}')
            I(f'v_and_b32 v{t0}, 1, v{vG}'); I(f'v_mul_u32_u24 v{t0}, 40, v{t0}'); I(f'v_add3_u32 v{vPK}, v{vPK}, v{t0}, {sWB}')
            I(f'v_mul_u32_u24 v{t0}, 72, v{vTok}'); I(f'v_add_u32 v{t0}, {sWB}, v{t0}'); I(f'v_add_u32 v{t0}, 5120, v{t0}')
            I(f'v_lshlrev_b32 v{t1}, 3, v{vG}'); I(f'v_add_u32 v{vV1}, -8, v{t1}'); I(f'v_add_u32 v{vV3}, 16, v{t1}')
            I(f'v_cmp_eq_u32 vcc, 0, v{vG}'); I(f'v_cndmask_b32 v{vV1}, v{vV1}, 48, vcc'); I(f'v_cndmask_b32 v{vV3}, v{vV3}, 56, vcc')
            I(f'v_add_u32 v{vV1}, v{vV1}, v{t0}'); I(f'v_add_u32 v{vV3}, v{vV3}, v{t0}')
            I(f'v_lshrrev_b32 v{t0}, 2, v{vTok}'); I(f'v_lshl_add_u32 v{t0}, v{vG}, 3, v{t0}')
            I(f'v_and_b32 v{t1}, 3, v0'); I(f'v_lshlrev_b32 v{t1}, 3, v{t1}'); I(f'v_add_u32 v{t1}, {sWB}, v{t1}')
            I(f'v_mad_u32_u24 v{vTA}, v{t0}, 20, v{t1}'); I(f'v_mad_u32_u24 v{vTA}, v{t0}, 60, v{vTA}')
            I(f'v_mad_u32_u24 v{vTB}, v{t0}, 12, v{t1}'); I(f'v_mad_u32_u24 v{vTB}, v{t0}, 60, v{vTB}'); I(f'v_add_u32 v{vTB}, 5120, v{vTB}')
            I(f'v_min_u32 v{t0}, 59, v0')
            I(f'v_mul_u32_u24 v{t1}, 3277, v{t0}'); I(f'v_lshrrev_b32 v{t1}, 16, v{t1}')
            I(f'v_mul_u32_u24 v{t2}, 20, v{t1}'); I(f'v_sub_u32 v{t0}, v{t0}, v{t2}')
            I(f'v_mul_u32_u24 v{t2}, 13108, v{t0}'); I(f'v_lshrrev_b32 v{t2}, 16, v{t2}')
            I(f'v_mul_u32_u24 v{t3}, 5, v{t2}'); I(f'v_sub_u32 v{t0}, v{t0}, v{t3}')
            I(f's_cmp_eq_u32 {sW}, 3'); I('s_cselect_b64 vcc, -1, 0')
            I(f'v_mov_b32 v{t3}, {sW}')
            I(f'v_cndmask_b32 v{t1}, v{t3}, v{t1}, vcc')
            I(f'v_cndmask_b32 v{t2}, v{vG}, v{t2}, vcc')
            I(f'v_cndmask_b32 v{t0}, v{vTok}, v{t0}, vcc')
            I(f'v_cndmask_b32 v{t3}, 0, 1, vcc')
            I(f'v_lshlrev_b32 v{vRS}, 10, v{t1}'); I(f'v_mad_u32_u24 v{vRS}, v{t3}, {self.sconst(3072)}, v{vRS}')
            I(f'v_lshl_add_u32 v{vRS}, v{t2}, 8, v{vRS}'); I(f'v_lshl_add_u32 v{vRS}, v{t0}, 4, v{vRS}')
            I(f'v_lshl_add_u32 v{t1}, v{t1}, 2, v{t2}')
            I(f'v_lshl_add_u32 v{t0}, v{t3}, 4, v{t0}')
            I(f'v_mul_u32_u24 v{vKD}, 96, v{t0}'); I(f'v_lshl_add_u32 v{vKD}, v{t1}, 3, v{vKD}')
            I(f'v_cmp_le_u32 vcc, 5, v{t1}'); I(f'v_cndmask_b32 v{t0}, 0, 8, vcc'); I(f'v_add_u32 v{vKD}, v{vKD}, v{t0}')
            I(f'v_add_u32 v{vKD}, {kvl}, v{vKD}')
            I(f'v_cmp_gt_u32 vcc, 10, v{t1}')
            I(f'v_mov_b32 v{t0}, {kvl + 96*30}'); I(f'v_cndmask_b32 v{vKD}, v{t0}, v{vKD}, vcc')
            I(f'v_mov_b32 v{t0}, {OOB}'); I(f'v_lshlrev_b32 v{vKL}, 3, v0'); I(f'v_cndmask_b32 v{vKL}, v{t0}, v{vKL}, vcc')
            I(f'v_bfe_u32 v{t0}, v0, 2, 1'); I(f'v_and_b32 v{t1}, 3, v0')
            I(f'v_lshl_add_u32 v{t2}, v{t0}, 3, v{t1}')
            I(f'v_lshl_add_u32 v{t3}, v{t0}, 1, v{t1}'); I(f'v_add_u32 v{t3}, 16, v{t3}')
            I(f'v_cmp_le_u32 vcc, 2, v{t1}'); I(f'v_cndmask_b32 v{t3}, v{t3}, 20, vcc')
            I(f'v_bfe_u32 v{t0}, v0, 3, 1'); I(f'v_lshrrev_b32 v{t1}, 5, v0')
            I(f'v_cmp_eq_u32 vcc, v{t0}, v{t1}')
            I(f'v_cndmask_b32 v{t2}, 21, v{t2}, vcc'); I(f'v_cndmask_b32 v{t3}, 21, v{t3}, vcc')
            I(f'v_and_b32 v{t0}, 1, v{vG}'); I(f'v_mul_u32_u24 v{t0}, 48, v{t0}'); I(f'v_add_u32 v{t0}, {kvl}, v{t0}')
            I(f's_movk_i32 {sT[3]}, 96')
            I(f'v_mad_u32_u24 v{vA0}, v{t2}, {sT[3]}, v{t0}'); I(f'v_mad_u32_u24 v{vA2}, v{t3}, {sT[3]}, v{t0}')
            I(f'v_mul_u32_u24 v{vO4}, 20480, v{t1}'); I(f'v_lshl_add_u32 v{vO4}, v{vTok}, 4, v{vO4}')
            I(f'v_and_b32 v{t0}, 1, v{vG}')
            I(f'v_lshl_add_u32 v{vO1}, v{t0}, 2, v{vO4}'); I(f'v_lshl_add_u32 v{vO4}, v{t0}, 8, v{vO4}')
        def aread(f):
            s_, i = f >> 2, f & 3
            b, o = self.lds(wb[s_ // 5]*BANK + ((s_ % 5)*4 + i)*1024)
            I(f'ds_read_b128 {vr(AR+4*(f % RA),4)}, {b} offset:{o}', ('a', f))
        def cwread(s_):
            off = wb[s_ // 5]*BANK + (s_ % 5)*4096
            I(f'ds_read_b128 {vr(CWF+4*(s_&1),4)}, v{vCW[off>>16]} offset:{off & 0xffff}', ('cw', s_))
        def xload(n):
            s_ = n >> 2
            if n % 16 == 0:
                I(f's_add_u32 {sT[2]}, {sQT21}, s{36 + (s_ >> 2)}'); I(f's_add_u32 {sT[2]}, {sT[2]}, {XA(l)}')
            I(f'buffer_load_dwordx4 {vr(XR + 4*(n % NR),4)}, {vX[n & 3]}, {WS}, {sT[2]} offen offset:{(s_ & 3)*1024} sc1', ('x', n))
        self._lf = None
        def wstep(q):
            if q >= 20: return
            I(f's_lshl_b32 {sDm}, s{36 + (q >> 2)}, 2'); I(f's_add_u32 {sDm}, {sDm}, {sT[6]}'); I(f's_add_u32 {sDm}, {sDm}, {WT_QKV + (q & 3)*4096}')
            I(f's_add_u32 m0, s3, {wb[q//5]*BANK + (q % 5)*4096}')
            I(f'buffer_load_dwordx4 {vL16}, {WS}, {sDm} offen {"nt" if self.NTW & 4 else ""} lds', ('wq', q))
        if l == 0:
            setup(); setupB()
            self.gwait()
            self.emit(self.touchT(XA(0), 21504))
            I(f's_lshl_b32 s3, {sW}, 10')
            I(f's_mul_i32 {sT[6]}, {sH}, 81920'); I(f's_add_u32 {sT[6]}, {sT[6]}, s3')
            BS = self.BS; WO_ = BS + 2
            for q in range(3): wstep(q)
            nq = 3
            for q in range(LA):
                for t in range(4):
                    xload(4*q+t)
                    if nq < WO_ + q + 1 and t % 2 == 1: wstep(nq); nq += 1
            while nq < WO_ + LA: wstep(nq); nq += 1
            a.wait(lg='mode'); I(f'v_readfirstlane_b32 {sMODE}, {vT0}')
            a.wait(vm=('wq', 1)); I('s_barrier')
            self.ls('g0_bar')
            for f in range(DA): aread(f)
            cwread(0)
        else:
            setup()
            a.wait(lg=None); I('s_barrier')
            for f in range(DA): aread(f)
            I(f's_lshl_b32 {sT[3]}, {sXG}, 2'); I(f's_add_u32 {sT[3]}, {sT[3]}, {sW}'); I(f's_lshl_b32 {sT[3]}, {sT[3]}, 7'); I(f's_add_u32 {sT[3]}, {sT[3]}, {FL}')
            self.poll(vFl, sT[3], 8*(l-1)+5)
            self.stamp(f'qkv{l}_go')
            for n in range(4*LA): xload(n)
        ST = XR + 4*(80 % NR)
        tailf = tail()
        with a.capture() as G:
          for s_ in range(20):
            for i in range(4):
                f = 4*s_ + i
                for t in range(4):
                    if i == 0 or t == 0: a.wait(vm=('x', 4*s_+t) if i == 0 else False, lg=('a', f) if t == 0 else False)
                    d = vr(ACC + 16*t + 4*i, 4)
                    I(f'v_mfma_f32_16x16x32_bf16 {d}, {vr(AR+4*(f%RA),4)}, {vr(XR+4*((4*s_+t)%NR),4)}, {d if s_ else 0}')
                    if t == 0 and f + DA < 80:
                        if l == 0 and i == 0 and s_ + 2 < 20 and (s_ < 2 or (s_ - 2) % self.BS == 0):
                            a.wait(vm=('wq', min(19, s_+2 if s_ < 2 else s_+1+self.BS))); I('s_barrier')
                        aread(f + DA)
                    if t == 1:
                        n = 4*(s_+LA) + i
                        if n < 80: xload(n)
                        elif s_ == 20 - LA: self.load_frag(ST + 4*i, vX[i], sQT21, XA(l), 20, 'stat')
                        elif l == 0 and s_ == 18 and i == 0: self.emit(self.allchk_issue(0, XR + 4*(68 % NR)))
                    if l == 0 and t == 3 and i == 3: wstep(s_ + LA + self.BS + 2)
                    if l == 0 and t == 2 and i == 0 and s_ + 1 < 20: cwread(s_+1)
                    if t == 2 and 14 <= s_ and 4*(s_-14)+i < 10:
                        k = 4*(s_-14)+i
                        b, o = self.lds(bphi*BANK + k*1024)
                        I(f'ds_read_b128 {vr(AF+4*k,4)}, {b} offset:{o}', 'af')
            if s_ in (0, 4, 9, 14, 19): self.ls(f'g{l}_s{s_}')
            if l == 0:
                a.wait(lg=('cw', s_))
                I(f'v_mfma_f32_16x16x32_bf16 {vr(CWA,4)}, {vr(CWF+4*(s_&1),4)}, {vr(ONES,4)}, {vr(CWA,4) if s_ else 0}')
        nm = 340 if l == 0 else 320
        fill = (self.stchk(ST, 4, 2, NP[0], [(vX[t], sQT21, XA(l)+20480) for t in range(4)]) if l else [Wait(vm='stat')]) + rr(*[self.cap(self.cons_stats, ST+4*t, NP[t], NP[t]+1) for t in range(4)])
        gi = G.items
        if l:
            gi, lf = gapfill(gi, sccgroup(self.cap(setupB)), start=4)
            assert not lf
        o, left = gapfill(gi, fill, start=nm - self.STG)
        a.extend(o)
        self.stamp(f'qkv{l}_gemm')
        self.emit(tailf)
        if l: self.cpf()
        CW = 20
        if l == 0:
            I(f'ds_write_b128 v{vCw}, {vr(CWA,4)}')
            self.flat(left)
            I('v_accvgpr_read_b32 v48, a38'); I('v_accvgpr_read_b32 v49, a39')
            s2s = self.s2_stores('v48', 'v49')
            self.allchk(XR + 4*(68 % NR))
            a.wait(lg=None); I('s_barrier')
            self.emit(self.touch(WT_O, 50))
            self.emit(s2s[:3]); s2s = s2s[3:]
            for i in range(4): I(f'ds_read_b128 {vr(CW+4*i,4)}, v{vCr} offset:{i*64}', 'cwr')
            I(f'v_and_b32 v46, 15, v0'); I('v_lshrrev_b32 v47, 2, v46'); I('v_and_b32 v46, 3, v46')
            I(f'v_lshl_add_u32 v47, v47, 6, v{vCr}'); I('v_lshl_add_u32 v47, v46, 2, v47')
            I('ds_read_b32 v46, v47', 'cwr')
            self.emit(s2s[:2]); s2s = s2s[2:]
            a.wait(lg='cwr')
            I('v_accvgpr_write_b32 a248, v46')
        else:
            self.flat(left); s2s = []
        self.ls(f'e{l}_st')
        KL, tmp = 44, 46
        PP = (104, 124); PKD = 144; TA = 192; TB = 204; KVA = 232
        for t in range(4):
            for i in (0, 1, 3):
                for h in range(2):
                    r = ACC+16*t+4*i+2*h
                    I(f'v_pk_fma_f32 {vr(r,2)}, {vr(CW+4*i+2*h,2)}, {vr(NP[t],2)}, {vr(r,2)} op_sel_hi:[1,0,1]')
            for i in (0, 1, 3):
                for h in range(2):
                    r = ACC+16*t+4*i+2*h
                    I(f'v_pk_mul_f32 {vr(r,2)}, {vr(r,2)}, {vr(NP[t],2)} op_sel:[0,1] op_sel_hi:[1,1]')
        for t in range(4):
            for h in range(2):
                r = ACC+16*t+8+2*h
                I(f'v_pk_fma_f32 {vr(176+4*t+2*h,2)}, {vr(CW+8+2*h,2)}, {vr(NP[t],2)}, {vr(r,2)} op_sel_hi:[1,0,1]')
        self.ls(f'e{l}_fix')
        for t in range(2): self.pack(PKD+8*t, ACC+16*t, 4)
        I(f'v_lshrrev_b32 v24, 4, v0'); I('v_cmp_eq_u32 vcc, 3, v24'); I('v_mov_b32 v24, 0x3f80')
        I(f'v_mov_b32 v{KL}, {hex(f2u(LOG2E))}')
        a.wait(lg='af')
        f0 = []
        for t in (2, 3): f0 += self.cap(self.pack, PKD+8*t, ACC+16*t, 4)
        f1 = []
        for t in range(4):
            q = PKD + 8*t + 6
            f1 += self.cap(self.pack, q, ACC+16*t+12, 2)
            f1 += [Ins(f'v_cndmask_b32 v{q}, v{q}, v24, vcc'), Ins(f'v_cndmask_b32 v{q+1}, v{q+1}, 0, vcc')]
            f1 += [Ins(f'ds_write_b64 v{vV1}, {vr(PKD+8*t+2,2)} offset:{16*t*72}'), Ins(f'ds_write_b64 v{vV3}, {vr(q,2)} offset:{16*t*72}')]
        o, left = gapfill(self.cap(self.phi, PP[0], PKD, PKD+8, AF, bphi), f0 + f1)
        a.extend(o)
        o, left = gapfill(self.cap(self.phi, PP[1], PKD+16, PKD+24, AF, bphi), left)
        a.extend(o); a.extend(left)
        self.ls(f'e{l}_phi')
        def trA(p):
            return [[Ins(f'ds_read_b64_tr_b16 {vr(TA+20*p+4*ft+2*h,2)}, v{vTA} offset:{32*p*80+32*ft+320*h}', ('tr', p))] for ft in range(3) for h in range(2)]
        def trB(p):
            return [[Ins(f'ds_read_b64_tr_b16 {vr(TB+20*p+4*dt+2*h,2)}, v{vTB} offset:{32*p*72+32*dt+288*h}', ('tr', p))] for dt in range(2) for h in range(2)]
        def kvm(p):
            a.wait(lg=('tr', p))
            for dt in range(2):
                for ft in range(3):
                    d = vr(KVA + 4*(dt*3+ft), 4)
                    I(f'v_mfma_f32_16x16x32_bf16 {d}, {vr(TA+20*p+4*ft,4)}, {vr(TB+20*p+4*dt,4)}, {d if p else 0}')
        for p in range(2):
            wr = lambda i, p=p: I(f'ds_write_b64 v{vPK}, {vr(PP[p]+2*i,2)} offset:{32*p*80+8*i}')
            sm = self.cap(self.softmax, PP[p], tmp, KL, wr)
            extra = (trB(0) + trB(1) if p == 0 else trA(0))
            st_ = s2s[:3]; s2s = s2s[3:]
            mix = []
            for k, x in enumerate(extra):
                mix.append(x)
                if k % 2 == 1 and st_: mix.append(st_.pop(0))
            self.weave(sm, mix + st_, 7, first=3)
        self.emit(trA(1))
        assert not s2s
        self.ls(f'e{l}_sm')
        I(f'v_add_u32 v24, {sWB}, {vL16}')
        kvm(0); kvm(1)
        for k in range(4): I(f'v_add_u32 v{25+k}, {bscr[k >> 1]*BANK + (k & 1)*10240}, v{vRS}')
        I(f's_add_u32 {sT[3]}, {sKVo}, {l*2*MB}')
        for k in range(6): I(f'ds_write_b128 v24, {vr(KVA+4*k,4)} offset:{k*1024}')
        self.ls(f'e{l}_kv')
        a.wait(lg=None); I('s_barrier')
        self.ls(f'e{l}_bar2')
        for k in range(4): I(f'ds_read_b128 {vr(TA+4*k,4)}, v{25+k}')
        for t in range(4):
            for h in range(2):
                r = 176+4*t+2*h
                I(f'v_pk_mul_f32 {vr(r,2)}, {vr(r,2)}, {vr(NP[t],2)} op_sel:[0,1] op_sel_hi:[1,1]')
        for t in range(4): self.pack(PKD+8*t+4, 176+4*t, 2)
        a.wait(lg=None)
        for h in range(2):
            I(f'v_pk_add_f32 {vr(TA+2*h,2)}, {vr(TA+2*h,2)}, {vr(TA+4+2*h,2)}')
            I(f'v_pk_add_f32 {vr(TA+8+2*h,2)}, {vr(TA+8+2*h,2)}, {vr(TA+12+2*h,2)}')
        for h in range(2):
            I(f'v_pk_add_f32 {vr(TA+2*h,2)}, {vr(TA+2*h,2)}, {vr(TA+8+2*h,2)}')
        self.pack(TA, TA, 2)
        I(f'buffer_store_dwordx2 {vr(TA,2)}, v{vKL}, {WS}, {sT[3]} offen sc1', 'kvst')
        self.stamp(f'qkv{l}_kvpub')
        self.emit(fill1())
        f2 = fill2()
        NW = self.NW if l else self.NW0
        wv = f2[:NW]; f2 = f2[NW:]
        ph = self.cap(self.phi, PP[0], PKD+4, PKD+12, AF, bphi) + self.cap(self.phi, PP[1], PKD+20, PKD+28, AF, bphi)
        if l == 0:
            for k, base in enumerate((vL16, vL16b, vL16c)): I(f'v_add_u32 v{24+k}, {sLW}, {base}')
            st = []
            for k in range(20):
                off = wb[k // 5]*BANK + (k % 5)*1024
                st.append([Ins(f'ds_read_b128 {vr(176+4*k,4)}, v{24+(off>>16)} offset:{off & 0xffff}', 'stash')])
            self.weave(ph, st, 4)
            a.wait(lg=None)
        else:
            self.weave(ph, wv[:5], 16); wv = wv[5:]
        for p in range(2):
            sm = self.cap(self.softmax, PP[p], tmp, KL)
            h_ = (len(wv)+1)//2 if p == 0 else len(wv)
            self.weave(sm, wv[:h_], max(8, 90//max(1, h_))); wv = wv[h_:]
        self.stamp(f'qkv{l}_qsm')
        HP = 0
        self.emit(f2[:HP])
        G0 = 64
        L = a.newlabel('KVPOLL'); D = a.newlabel('KVDONE'); C = a.newlabel('KVCHK')
        I(f's_mov_b32 {sSpin}, {sDead}')
        for x in range(8):
            I(f's_add_u32 {sT[3]}, {sKVi}, {l*2*MB + x*8192}')
            I(f'buffer_load_dwordx2 {vr(G0+2*x,2)}, v{vKL}, {WS}, {sT[3]} offen sc1', 'kvl')
        self.emit(f2[HP:])
        if self.TW1 == 3: self.emit(self.touch(WT_1, 50))
        I('v_mov_b32 v26, 0x3f80'); I('v_mov_b32 v27, 0x3f800000')
        for r in range(4): I(f'v_mov_b32 v{80+r}, 0')
        a.wait(vm='kvl')
        a.label(C)
        I(f'v_max3_u32 v24, v{G0}, v{G0+1}, v{G0+2}')
        I(f'v_max3_u32 v25, v{G0+3}, v{G0+4}, v{G0+5}')
        for i in range(6, 14, 4):
            I(f'v_max3_u32 v24, v24, v{G0+i}, v{G0+i+1}'); I(f'v_max3_u32 v25, v25, v{G0+i+2}, v{G0+i+3}')
        I(f'v_max3_u32 v24, v24, v{G0+14}, v{G0+15}')
        I(f'v_max_u32 v24, v24, v25')
        I('v_cmp_eq_u32 vcc, -1, v24')
        I('s_cmp_lg_u64 vcc, 0'); I(f's_cbranch_scc1 {L}')
        a.label(D)
        with a.capture() as c:
            a.label(L)
            I(f's_sub_u32 {sSpin}, {sSpin}, 1'); I(f's_cbranch_scc0 {L}_go')
            I(f's_mov_b32 {sDead}, 0'); I(f's_branch {D}')
            a.label(f'{L}_go')
            for x in range(8):
                r = G0+2*x
                I(f'v_max_u32 v24, v{r}, v{r+1}')
                I(f's_add_u32 {sT[3]}, {sKVi}, {l*2*MB + x*8192}')
                I('v_cmp_eq_u32 vcc, -1, v24')
                I('s_mov_b64 exec, vcc')
                I(f's_cbranch_execz {L}_s{x}')
                a.raw(f'    buffer_load_dwordx2 {vr(r,2)}, v{vKL}, {WS}, {sT[3]} offen sc1')
                a.label(f'{L}_s{x}')
                I('s_mov_b64 exec, -1')
            I('s_waitcnt vmcnt(0)')
            I(f's_branch {C}')
        self.ool += c.items
        self.stamp(f'qkv{l}_kvgot')
        for x in range(8):
            for r in range(4): I(f'v_dot2c_f32_bf16 v{80+r}, v{G0+2*x+(r>>1)}, v{26+(r&1)}')
        I('s_nop 2')
        self.pack(G0, 80, 2)
        I(f'ds_write_b64 v{vKD}, {vr(G0,2)}')
        for p in range(2):
            I(f's_add_u32 {sT[4+2*p]}, {sO4}, {OB(l)+2*p*20480}')
            I(f's_add_u32 {sT[5+2*p]}, {sO1}, {OB(l)+2*p*20480}')
        a.wait(vm='s2s' if l == 0 else False, lg=None); I('s_barrier')
        if l == 0: self.arrive(1, 32)
        AO = 136
        for u in range(3):
            for t in range(3):
                b, o = (vA0, 384*t) if t < 2 else (vA2, 0)
                if u < 2: I(f'ds_read_b128 {vr(AO+12*t+4*u,4)}, v{b} offset:{o+16*u}', ('ao', u))
                else: I(f'ds_read_b64 {vr(AO+12*t+8,2)}, v{b} offset:{o+32}', ('ao', u))
        DO = (64, 80)
        def om(p, u):
            for t in range(3):
                if u < 2: I(f'v_mfma_f32_16x16x32_bf16 {vr(DO[p]+4*t,4)}, {vr(AO+12*t+4*u,4)}, {vr(PP[p]+4*u,4)}, {vr(DO[p]+4*t,4) if u else 0}')
                else: I(f'v_mfma_f32_16x16x16_bf16 {vr(DO[p]+4*t,4)}, {vr(AO+12*t+8,2)}, {vr(PP[p]+8,2)}, {vr(DO[p]+4*t,4)}')
        for u in range(3):
            a.wait(lg=('ao', u)); om(0, u)
        def fin(p, pk):
            I(f'v_add_f32 v{DO[p]+10}, {hex(f2u(1e-6))}, v{DO[p]+10}')
            I(f'v_rcp_f32 v{DO[p]+10}, v{DO[p]+10}')
            if pk:
                for i in range(5): I(f'v_pk_mul_f32 {vr(DO[p]+2*i,2)}, {vr(DO[p]+2*i,2)}, {vr(DO[p]+10,2)} op_sel_hi:[1,0]')
            else:
                for i in range(10): I(f'v_mul_f32 v{DO[p]+i}, v{DO[p]+i}, v{DO[p]+10}')
            self.pack(DO[p], DO[p], 5)
        with a.capture() as c:
            for u in range(3): om(1, u)
        o, left = gapfill(c.items, self.cap(fin, 0, False), start=2)
        a.extend(o); a.extend(left)
        def ost(p):
            a.slow_begin(sMODE)
            I(f'buffer_store_dwordx4 {vr(DO[p],4)}, v{vO4}, {WS}, {sT[4+2*p]} offen', 'st')
            I(f'buffer_store_dword v{DO[p]+4}, v{vO1}, {WS}, {sT[5+2*p]} offen', 'st')
            a.slow_end()
        ost(0); fin(1, True); ost(1)
        self.emit(fill4())
        a.wait(vm='st')
        self.setflag(sFLOo, l+1)
        self.stamp(f'qkv{l}_end')

    def sconst(self, val):
        self.I(f's_movk_i32 {sT[4]}, {val}'); return sT[4]

    def areadS(self, banks, m):
        s_, i = divmod(m, 5)
        b, o = self.lds(banks[s_ // 4]*BANK + ((s_ % 4)*5 + i)*1024)
        self.I(f'ds_read_b128 {vr(self.AR5+4*(m % self.RA5),4)}, {b} offset:{o}', ('a', m))
    def preloadS(self, banks):
        for m in range(self.DA5): self.areadS(banks, m)
    def gemmS(self, KS, banks, ACC, init, side, NR):
        a = self.a; I = self.I
        NM = 5*KS
        for m in range(NM):
            s_, i = divmod(m, 5)
            if i == 0 or m % self.WG == 0:
                a.wait(vm=('x', s_) if i == 0 else False, lg=('a', min(NM-1, m + self.WG - 1)) if m % self.WG == 0 else False)
            d = vr(ACC+4*i, 4)
            I(f'v_mfma_f32_16x16x32_bf16 {d}, {vr(self.AR5+4*(m % self.RA5),4)}, {vr(80+4*(s_%NR),4)}, {d if (s_ or init) else 0}')
            its = [it() if callable(it) else it for it in side.get(m, [])]
            bars = [x for x in its if any(isinstance(y, Ins) and y.op == 's_barrier' for y in x)]
            for x in bars: a.extend(x)
            if m + self.DA5 < NM: self.areadS(banks, m + self.DA5)
            for x in its:
                if x not in bars: a.extend(x)
    def put(self, side, bundles, start, every):
        for k, b in enumerate(bundles): side.setdefault(start + int(k*every), []).append(b)
    def put3(self, side, bundles, start, every):
        for k, b in enumerate(bundles):
            m = 3*int(round((start + k*every)/3.0))
            pre, ld = b[:-1], b[-1:]
            assert len(pre) <= 2
            for q, x in enumerate(pre): side.setdefault(m - len(pre) + q, []).append([x])
            side.setdefault(m, []).append(ld)
    def bar(self, vm=False, lg=False):
        return [Wait(vm, lg), Ins('s_barrier')]

    def small(self, banks, xl, ACC, init, tail, fill=None, NUP=None, name='', mid=44):
        self._lf = None
        NR = self.NR5; NUP = self.NUP
        for s_ in range(NUP): xl(s_, 80+4*(s_ % NR))
        side = {}
        for s_ in range(NUP, 20):
            m = max(int((s_-NUP)*self.XE), 5*(s_-NR) + 5 if s_ >= NR else 0)
            m += m & 1
            side.setdefault(m, []).append(lambda s_=s_: self.cap(xl, s_, 80+4*(s_ % NR)))
        if mid: side.setdefault(mid, []).append(self.bar())
        t0 = max(46, int(1 + (20-NUP)*self.XE) + 1)
        tail = [self.cap(self.cpf)] + list(tail)
        self.put(side, tail, t0, min(4.0, (self.TE-t0)/len(tail)))
        for m in (0, 43, 45, 99): side.setdefault(m, []).append(lambda m=m: self.cap(self.ls, f'{name}_m{m}'))
        if name[:2] == 'w1': side.setdefault(0, []).append(lambda: self.cap(self.ls, f'ga{name[2]}_m0'))
        items = self.cap(self.gemmS, 20, banks, ACC, init, side, NR)
        left = []
        for st, its in (fill or []):
            items, lf = gapfill(items, its, start=st); left += lf
        self.a.extend(items); self.flat(left)
    XE = float(os.environ.get('XE', 4.0)); NUP = int(os.environ.get('NUP', 8)); PB = int(os.environ.get('PB', 1))

    def layer(self, l, B):
        a = self.a; I = self.I
        last = (l == 1)
        ACC, XP, PK, TMP = 20, 40, 60, 72
        NMr, R1r, RRr = 76, 78, 74
        if l == 0: self.AR5, self.RA5, self.DA5, self.NR5, M = 128, 10, 8, 12, 168
        else:      self.AR5, self.RA5, self.DA5, self.NR5, M = 208, 12, 10, 20, 168
        n5 = 'nt' if self.NTW & 1 else ''; n4 = 'nt' if self.NTW & 2 else ''
        wo = lambda ch, bk: self.dma_b(sW5, WT_O + ch*BANK, bk, 'wo', sc=n5)
        w1 = lambda ch, bk: self.dma_b(sW5, WT_1 + ch*BANK, bk, 'w1', sc=n5)
        w2 = lambda ch, bk: self.dma_b(sW5, WT_2 + ch*BANK, bk, 'w2', sc=n5)
        CH = (lambda c: 11 - c) if (l and self.REV) else (lambda c: c)
        w4 = lambda ch, bk: self.dma_b(sW4, WT_4 + CH(ch)*BANK, bk, ('w4', ch), sc=n4)
        w4b = [B[4], B[7], B[0], B[3], B[1], B[2], B[5], B[6], B[4], B[7], B[0], B[3]]
        def w3l(k):
            kk = (k % 3)*20 + k // 3
            return [Ins(f's_add_u32 s3, {sW3}, {WT_3 + kk*1024}'), Ins(f'buffer_load_dwordx4 {ar(4*kk,4)}, {vL16}, {WS}, s3 offen {n4}', ('w3', k // 3))]
        def tq():
            r = self.touchT(OB(l), 20480) if not (l and self.NOT) else []
            if l:
                r += self.touch(WT_O, 50)
                if self.TW1 == 2: r += self.touch(WT_1, 50)
                if self.TW2:
                    with a.capture() as c2:
                        I(f's_lshr_b32 s7, {sWI}, 4'); I('s_mul_i32 s7, s7, 102400'); I(f's_and_b32 s6, {sWI}, 7'); I('s_mul_i32 s6, s6, 2560'); I('s_add_u32 s7, s7, s6')
                        I(f's_bitcmp1_b32 {sWI}, 3'); I(f's_cselect_b32 s6, {4*BANK}, 0'); I('s_add_u32 s7, s7, s6')
                    r.append(c2.items + self.touch2('s7', WT_2, 20)[0])
            return r
        f1 = lambda: self.touch(WT_1, 50) if (l and self.TW1 == 1) else []
        f2 = lambda: wo(0, B[7]) + wo(1, B[0]) + wo(2, B[1]) + wo(3, B[2]) + wo(4, B[3])
        f4 = lambda: w1(0, B[5])
        self.qkv(l, B[0:4], B[4], B[5:7], tq, f1, f2, f4)
        if self.stop == f'qkv{l}': return True
        wob = [B[7], B[0], B[1], B[2], B[3]]
        I('s_barrier')
        self.preloadS(wob)
        self.unpack(ACC, RES, 10)
        I(f's_lshl_b32 {sT[3]}, {sC}, 7'); I(f's_add_u32 {sT[3]}, {sT[3]}, {FLO}')
        if self.PB: self.poll(vFl, sT[3], l+1, behind=w1(1, B[6]))
        else:
            self.emit(w1(1, B[6])); self.poll(vFl, sT[3], l+1)
        self.stamp(f'wo{l}_go')
        tl = ([] if self.G1 else w1(2, B[4])) + w1(3, B[7]) + w1(4, B[0])
        self.small(wob, lambda s_, r: self.load_frag(r, vL16, sT20, OB(l), s_, ('x', s_)), ACC, True, tl, name=f'wo{l}')
        self.stamp(f'wo{l}_gemm')
        self.ls(f'ga{l}_0')
        self.pack(PK, ACC, 10)
        self.store_tile(PK, XB(l), sA21, sH21)
        self.ls(f'ga{l}_st')
        self.prod_stats(ACC, TMP)
        self.store_stats(TMP, XB(l), 2 - l)
        self.ls(f'ga{l}_stats')
        if l == 0: self.emit(self.allchk_issue(1, M))
        for i in range(20): I(f'v_mov_b32 v{XP+i}, v{ACC+i}')
        a.wait(vm='st')
        self.ls(f'ga{l}_drain')
        self.setflag(sFLo, 8*l+1)
        CW = 176 if l else 128
        if l: self.decomp(CW, 249, 16, 70); self.decomp(CW+16, 250, 4, 70)
        I('s_barrier')
        self.ls(f'ga{l}_bar')
        if self.stop == f'wo{l}': return True
        w1b = [B[5], B[6], B[4], B[7], B[0]]
        def cw1():
            for k, base in enumerate((vL16, vL16b, vL16c)): I(f'v_add_u32 v{60+k}, {sLW}, {base}')
            for r in range(4): I(f'v_mov_b32 v{TMP+r}, 0x3f803f80')
            def rd(k):
                ch, i = divmod(k, 5); off = w1b[ch]*BANK + i*1024
                I(f'ds_read_b128 {vr(80+4*(k % 12),4)}, v{60+(off>>16)} offset:{off&0xffff}', ('cw', k))
            for k in range(10): rd(k)
            for k in range(25):
                a.wait(lg=('cw', k))
                d = vr(ACC+4*(k % 5), 4); I(f'v_mfma_f32_16x16x32_bf16 {d}, {vr(80+4*(k % 12),4)}, {vr(TMP,4)}, {d if k >= 5 else 0}')
                if k + 10 < 25: rd(k+10)
            cwo = B[3]*BANK
            I('v_lshrrev_b32 v70, 4, v0'); I('v_lshlrev_b32 v70, 4, v70'); I(f'v_add_u32 v70, {cwo}, v70')
            I(f's_mul_i32 {sT[3]}, {sW}, 320'); I(f'v_add_u32 v63, {sT[3]}, v70')
            I('v_bfe_u32 v71, v0, 2, 2'); I('v_and_b32 v64, 3, v0')
            I('v_lshl_add_u32 v70, v64, 2, v70'); I('v_lshl_add_u32 v71, v71, 6, v70')
            for i in range(5): I(f'ds_write_b128 v63, {vr(ACC+4*i,4)} offset:{i*64}', 'cww')
        if l == 0:
            cw1()
            self.preloadS(w1b)
            self.allchk(M)
        else:
            self.preloadS(w1b)
            if not self.PB: self.emit(w2(0, B[1]))
        I(f'v_and_b32 v{M}, 7, v0'); I(f'v_lshlrev_b32 v{M}, 2, v{M}')
        I(f's_lshl_b32 {sT[3]}, {sTT}, 5'); I(f's_add_u32 {sT[3]}, {sT[3]}, {FL}')
        if l == 0: a.wait(lg='cww')
        self.ls(f'ga{l}_pre')
        self.poll(f'v{M}', sT[3], 8*l+1, behind=(w2(0, B[1]) if l else []) if self.PB else None)
        self.ls(f'ga{l}_poll')
        self.stamp(f'w1{l}_go')
        fills = []
        if l == 0:
            its = []
            for k in range(4):
                its.append(Ins(f'ds_read_b32 v{60+k}, v71 offset:{k*320}', 'cr'))
                its.append(Ins(f'ds_read_b32 v{64+k}, v70 offset:{k*320+256}', 'cr'))
            fills.append((46, its))
            fills.append((66, [Wait(lg='cr'), Ins('v_add_f32 v60, v60, v61'), Ins('v_add_f32 v62, v62, v63'), Ins('v_add_f32 v64, v64, v65'), Ins('v_add_f32 v66, v66, v67'),
                               Ins('v_add_f32 v60, v60, v62'), Ins('v_add_f32 v64, v64, v66'), Ins('v_accvgpr_write_b32 a249, v60'), Ins('v_accvgpr_write_b32 a250, v64')]))
        fills.append((68, self.stchk(M+4, 1, 2 - l, NMr, [(vL16, sT21, XB(l)+20480)]) + self.cap(self.cons_stats, M+4, NMr, RRr, double=True, r1=R1r) + [Ins(f'v_mov_b32 v{M}, v{NMr}')] + self.cap(self.gconst, M, RRr)))
        stl = [lambda: self.cap(self.load_frag, M+4, vL16, sT21, XB(l), 20, 'stat')]
        tl = stl + (w2(0, B[1]) if l == 0 else []) + w2(1, B[2]) + w2(2, B[5]) + (w2(3, B[6]) if l else [])
        self.small(w1b, lambda s_, r: self.load_frag(r, vL16, sT21, XB(l), s_, ('x', s_)), ACC, False, tl, fills, name=f'w1{l}')
        self.stamp(f'w1{l}_gemm')
        if l == 0:
            for q in range(20): I(f'v_mov_b32_dpp v{CW+q}, v{60 if q < 16 else 64} row_newbcast:{q & 15} row_mask:0xf bank_mask:0xf')
        self.weave(self.cap(self.lgA, ACC, CW, 10, 80, M), w2(3, B[6]) if l == 0 else w2(4, B[3]), 8); self.lgB(ACC, 10, 80, M, True)
        self.pack(PK, ACC, 10)
        I(f'v_or_b32 v70, {sEdge}, {vL16}'); I(f'v_or_b32 v71, {sEdge}, {vS8}')
        self.store_tile(PK, HB(l), sA20, sH20)
        self.store_tile(PK, HD(l), sA20, sH20, sc1=True, vA='v70', vH='v71', tag='sth')
        for i in range(10): I(f'v_pk_add_f32 {vr(ACC+2*i,2)}, {vr(XP+2*i,2)}, {vr(NMr,2)} op_sel_hi:[1,0]')
        for i in range(10): I(f'v_pk_mul_f32 {vr(ACC+2*i,2)}, {vr(ACC+2*i,2)}, {vr(R1r,2)} op_sel_hi:[1,0]')
        I(f's_lshl_b32 {sT[3]}, {sTT}, 4')
        I('v_and_b32 v84, 15, v0'); I(f'v_add_u32 v84, {sT[3]}, v84')
        I('v_lshrrev_b32 v85, 4, v0'); I('v_lshlrev_b32 v85, 8, v85')
        I(f'v_mov_b32 v88, {OOB}'); I(f'v_mov_b32 v89, {HD(l)-HB(l)}')
        for gi, dl in enumerate((-1, 1, -2, 2)):
            if gi == 2:
                a.wait(vm='st'); self.setflag(sFLo, 8*l+2)
            I(f'v_add_u32 v86, {dl}, v84')
            I('v_lshrrev_b32 v87, 4, v86'); I('v_and_b32 v87, 0xff, v87'); I('v_mul_u32_u24 v87, 20480, v87')
            I(f'v_and_b32 v{M+gi}, 15, v86'); I(f'v_lshl_add_u32 v{M+gi}, v{M+gi}, 4, v87'); I(f'v_add_u32 v{M+gi}, v{M+gi}, v85')
            I('v_lshrrev_b32 v87, 8, v86'); I(f'v_cmp_ne_u32 vcc, {sXG}, v87')
            I('v_cndmask_b32 v87, 0, v89, vcc'); I(f'v_add_u32 v{M+gi}, v{M+gi}, v87')
            I('v_cmp_gt_u32 vcc, 0x800, v86'); I(f'v_cndmask_b32 v{M+gi}, v88, v{M+gi}, vcc')
        I('s_barrier')
        if self.stop == f'w1{l}': return True
        w2b = [B[1], B[2], B[5], B[6], B[3]]
        self.preloadS(w2b)
        if l == 0: self.emit(w2(4, B[3]))
        I(f's_and_b32 {sT[8]}, {sTT}, 15')
        I(f's_cmp_eq_u32 {sT[8]}, 0'); I(f's_cselect_b32 {sT[4]}, 32, 0')
        I(f's_cmp_eq_u32 {sT[8]}, 15'); I(f's_cselect_b32 {sT[5]}, 32, 64')
        I('v_and_b32 v84, 7, v0'); I('v_lshlrev_b32 v84, 2, v84'); I('v_lshrrev_b32 v86, 3, v0')
        I('v_mov_b32 v85, 32'); I(f'v_mov_b32 v87, {sT[4]}'); I(f'v_mov_b32 v88, {sT[5]}')
        I('v_cmp_eq_u32 vcc, 1, v86'); I('v_cndmask_b32 v85, v85, v87, vcc')
        I('v_cmp_eq_u32 vcc, 2, v86'); I('v_cndmask_b32 v85, v85, v88, vcc')
        I('v_add_u32 v85, v85, v84')
        I(f's_lshl_b32 {sT[3]}, {sTT}, 5'); I(f's_add_u32 {sT[3]}, {sT[3]}, {FL-32}')
        I('v_min_u32 v84, 59, v0'); I('v_add_u32 v87, -20, v84')
        I('v_lshrrev_b32 v88, 1, v87'); I('v_add_u32 v88, 40, v88'); I('v_and_b32 v87, 1, v87')
        I(f's_xor_b32 {sT[4]}, {sBot}, 1')
        I('v_cmp_gt_u32 vcc, 20, v84'); I('v_cndmask_b32 v88, v88, v84, vcc'); I(f'v_mov_b32 v89, {sT[4]}'); I('v_cndmask_b32 v87, v87, v89, vcc')
        I('v_lshlrev_b32 v86, 8, v88'); I('v_lshl_add_u32 v86, v87, 4, v86'); I(f'v_or_b32 v86, {sEdge}, v86')
        I(f's_cmp_eq_u32 {sBot}, 1'); I(f's_mov_b32 {sT[4]}, {HD(l) - 20480 + 14*16}'); I(f's_cselect_b32 {sT[4]}, {HD(l) + 20480 + 5120}, {sT[4]}')
        I(f's_add_u32 {sT[4]}, {sT[4]}, {sT20}')
        L = a.newlabel('POLL'); D = a.newlabel('PDONE')
        I(f's_mov_b32 {sSpin}, {sDead}')
        a.label(L)
        I(f'buffer_load_dword {vT0}, v85, {WS}, {sT[3]} offen sc1')
        I(f'buffer_load_dwordx4 {vr(88,4)}, v86, {WS}, {sT[4]} offen sc1')
        a.wait(vm=None)
        I(f'v_max3_u32 v88, v88, v89, v90'); I('v_max_u32 v88, v88, v91')
        I(f'v_cmp_le_u32 vcc, {8*l+2}, {vT0}'); I('v_cmp_ne_u32 s[6:7], -1, v88')
        I('s_and_b64 vcc, vcc, s[6:7]')
        I('s_cmp_eq_u64 vcc, -1'); I(f's_cbranch_scc1 {D}')
        I(f's_sub_u32 {sSpin}, {sSpin}, 1'); I(f's_cbranch_scc0 {L}')
        I(f's_mov_b32 {sDead}, 0')
        a.label(D)
        self.stamp(f'w2{l}_go')
        I(f's_mov_b32 {sT[3]}, 0')
        tl = (w4(0, w4b[0]) + w4(1, w4b[1]) if self.E4 else []) if l else w4(0, w4b[0]) + w4(1, w4b[1])
        self.small(w2b, lambda s_, r: self.load_frag(r, f'v{M+s_//5}', sT[3], HB(l), s_, ('x', s_)), ACC, True, tl, name=f'w2{l}', mid=0 if l else 68)
        self.stamp(f'w2{l}_gemm')
        self.pack(PK, ACC, 10)
        self.store_tile(PK, X1(l), sA21, sH21)
        self.prod_stats(ACC, TMP)
        self.store_stats(TMP, X1(l), 1 + l)
        NH = self.W3G if l == 0 else 0
        self.emit([w3l(k) for k in range(NH)])
        for i in range(10): I(f'v_pk_add_f32 {vr(XP+2*i,2)}, {vr(XP+2*i,2)}, {vr(ACC+2*i,2)}')
        xb = [B[1], B[2], B[5], B[6]]
        if l: CW3, ST3, A3, BF, GT = 80, 96, 128, 208, 176; NP3 = [112, 116, 120, 124]
        else: CW3, ST3, A3, BF, GT = 20, 60, 80, 128, 60; NP3 = [160, 164, 168, 172]
        a.wait(vm='st')
        self.setflag(sFLo, 8*l+3)
        if l: self.decomp(CW3, 251, 12, 92)
        I('s_barrier')
        if self.stop == f'w2{l}': return True
        I(f's_lshl_b32 {sT[3]}, {sC}, 7'); I(f's_add_u32 {sT[3]}, {sT[3]}, {FL}')
        def epiA(t): self.lgA(A3+12*t, CW3, 6, GT, NP3[t])
        def epiB(t, pk):
            self.lgB(A3+12*t, 6, GT, NP3[t], pk); self.pack(A3+12*t, A3+12*t, 6)
        def st3(t):
            acc = A3 + 12*t
            I(f's_add_u32 {sT[0]}, {sA48}, {H2(l)+t*49152}'); I(f's_add_u32 {sT[1]}, {sH48}, {H2(l)+t*49152}')
            pl = l and not self.H2SC
            sc = '' if pl else ' sc1'
            if pl: a.slow_begin(sMODE)
            I(f'buffer_store_dwordx4 {vr(acc,4)}, {vL16}, {WS}, {sT[0]} offen{sc}', 'st')
            I(f'buffer_store_dwordx2 {vr(acc+4,2)}, {vS8}, {WS}, {sT[1]} offen{sc}', 'st')
            if pl: a.slow_end()
        stf = self.stchk(ST3, 4, 1 + l, NP3[0], [(vL16, sC21, X1(l)+u*21504+20480) for u in range(4)]) + rr(*[self.cap(self.cons_stats, ST3+4*u, NP3[u], ST3+4*u+3) + self.cap(self.gconst, NP3[u], ST3+4*u+3) for u in range(4)])
        stl = lambda: [self.cap(self.load_frag, ST3+4*u, vL16, sC21, X1(l) + u*21504, 20, 'stat') for u in range(4)]
        if l == 0:
            for r in range(4): I(f'v_mov_b32 v{32+r}, 0x3f803f80')
            I(f's_mov_b32 {sT[6]}, {xb[0]*BANK}')
            for t in range(1, 4):
                I(f's_cmp_eq_u32 {sW}, {t}'); I(f's_cselect_b32 {sT[6]}, {xb[t]*BANK}, {sT[6]}')
            self.poll(vFl, sT[3], 8*l+3)
            self.stamp(f'w3{l}_go')
            self._lf = None
            x1 = lambda c: self.dma_b(sT21, X1(l) + c*5120, 0, ('x1', c), sc='sc1', slw=sT[6], ldsoff=c*5120)
            RB, DB = 8, 6
            def bread(n):
                s_, t = divmod(n, 4)
                b, o = self.lds(xb[t]*BANK + s_*1024)
                I(f'ds_read_b128 {vr(BF+4*(n % RB),4)}, {b} offset:{o}', ('b', n))
            WL = self.W3L
            self.emit(x1(0) + x1(1))
            self.emit([w3l(k) for k in range(NH, max(NH, 3*WL))])
            nw = max(NH, 3*WL)
            a.wait(vm=('x1', 0)); I('s_barrier')
            for n in range(DB): bread(n)
            xq = x1(2) + x1(3) + stl()
            late = w4(2, w4b[2]) + w4(3, w4b[3])
            with a.capture() as c:
                for s_ in range(20):
                    if s_ in (0, 5, 10, 15): self.ls(f'w30_s{s_}')
                    a.wait(vm=('w3', s_))
                    for t in range(5):
                        n = 4*s_ + t
                        for i in range(3):
                            if t < 4:
                                if i == 0: a.wait(lg=('b', n))
                                d = vr(A3+12*t+4*i, 4); bop = vr(BF+4*(n % RB), 4)
                            else:
                                d = vr(CW3+4*i, 4); bop = vr(32, 4)
                            I(f'v_mfma_f32_16x16x32_bf16 {d}, {ar(4*(i*20+s_),4)}, {bop}, {d if s_ else 0}')
                            if t < 4 and i == 0 and n + DB < 80:
                                if (n + DB) % 20 == 0:
                                    a.wait(vm=('x1', (n+DB)//20)); I('s_barrier')
                                bread(n + DB)
                            if i == 1:
                                if t < self.W3R and nw < 60: a.extend(w3l(nw)); nw += 1
                                elif xq and (t == 4 or nw >= 60): a.extend(xq.pop(0))
                                elif late and nw >= 60 and t % 2 == 0: a.extend(late.pop(0))
            assert nw == 60 and not xq, (nw, len(xq))
            o, left = gapfill(c.items, stf, start=240)
            a.extend(o); self.flat(left)
            self.ls('w30_k')
            I('s_barrier')
            wv = late + w4(4, xb[0]) + w4(5, xb[1]) + w4(6, xb[2]) + w4(7, xb[3])
            for t in range(4):
                k = (len(wv) - 5 + 2 - t)//(3 - t) if t < 3 else 0
                self.weave(self.cap(epiA, t) + self.cap(epiB, t, True), wv[:k], 16); wv = wv[k:]
                st3(t)
            self.emit(wv)
            I('v_and_b32 v33, 15, v0'); I(f'v_mov_b32 v32, v{CW3}')
            for i in range(1, 12):
                I(f'v_cmp_eq_u32 vcc, {i}, v33'); I(f'v_cndmask_b32 v32, v32, v{CW3+i}, vcc')
            I('v_accvgpr_write_b32 a251, v32')
        else:
            I(f's_add_u32 {sT[4]}, {sC21}, {sLW}')
            self.poll(vFl, sT[3], 8*l+3)
            self.stamp(f'w3{l}_go')
            self._lf = None
            x1 = lambda t: self.dma_b(sT[4], X1(l) + t*21504, xb[t], ('x1', t), sc='sc1')
            self.emit(x1(0) + stl())
            RB, DB = 8, 6
            def bread(n):
                t, s_ = divmod(n, 20)
                b, o = self.lds(xb[t]*BANK + s_*1024)
                I(f'ds_read_b128 {vr(BF+4*(n % RB),4)}, {b} offset:{o}', ('b', n))
            a.wait(vm=('x1', 0)); I('s_barrier')
            self.ls(f'w3{l}_x0')
            for n in range(DB): bread(n)
            vm_side = {}
            self.put3(vm_side, x1(1) + x1(2) + x1(3), 3, 3.9)
            self.put(vm_side, [self.cap(self.cpf)], 61, 1)
            if self.T4:
                I(f's_lshr_b32 {sT[7]}, {sWI}, 4'); I(f's_mul_i32 {sT[7]}, {sT[7]}, 245760'); I(f's_and_b32 s6, {sWI}, 15'); I('s_mul_i32 s6, s6, 6400')
                I(f's_add_u32 {sT[7]}, {sT[7]}, s6'); I(f's_add_u32 {sT[7]}, {sT[7]}, {WT_4 + 7*BANK}'); I(f's_add_u32 {sT[8]}, {sT[7]}, 4096')
                tb = [[Ins(f'buffer_load_dwordx4 a[252:255], {vL16}, {WS}, {sT[7 if k < 4 else 8]} offen offset:{(k&3)*1024}', 'touch')] for k in range(7)]
                for k, x in enumerate(tb): vm_side.setdefault(3*((self.T4 + k*self.T4E)//3) + 1, []).append(x)
            if self.WB:
                wl = a.newlabel('WB')
                self.put(vm_side, [[Ins(f's_cmp_lg_u32 {sWI}, 0'), Ins(f's_cbranch_scc1 {wl}'), Raw('    buffer_wbl2 sc1'), Label(wl)]], self.WB, 1)
            if not self.NOW4: self.put3(vm_side, ([] if self.E4 else w4(0, w4b[0]) + w4(1, w4b[1])) + w4(2, w4b[2]) + w4(3, w4b[3]) + w4(4, xb[0]) + w4(5, xb[1]) + w4(6, xb[2]), 63, 6.9 if self.E4 else 4.9)
            for t in range(4):
                with a.capture() as c:
                    for s_ in range(20):
                        n = 20*t + s_
                        for i in range(3):
                            m = 3*n + i
                            if m == 0: a.wait(lg=('b', 0))
                            d = vr(A3+12*t+4*i, 4)
                            I(f'v_mfma_f32_16x16x32_bf16 {d}, {ar(4*(i*20+s_),4)}, {vr(BF+4*(n % RB),4)}, {d if s_ else 0}')
                            if i == 0 and n + DB < 80:
                                if n == 14: a.wait(vm=('x1', 1)); I('s_barrier')
                                if n == 34: a.wait(vm=('x1', 3)); I('s_barrier')
                                if n == 54 or n == 62: I('s_barrier')
                                bread(n + DB)
                            for it in vm_side.get(m, []): a.extend(it)
                            if i == 0 and n + 1 < 80: a.wait(lg=('b', n+1))
                if t == 0: o, left = gapfill(c.items, stf, start=6)
                else: o, left = gapfill(c.items, self.cap(epiB, t-1, False) + [self.cap(st3, t-1)])
                a.extend(o)
                if os.environ.get('V'): print('w3 tile', t, 'left', len(left))
                for x in left:
                    if isinstance(x, list): a.extend(x)
                    else: a.items.append(x)
                epiA(t)
                self.ls(f'w3{l}_t{t}')
            epiB(3, True); st3(3)
        self.stamp(f'w3{l}_gemm')
        a.wait(vm='st')
        self.setflag(sFLo, 8*l+4)
        I('s_barrier')
        if self.stop == f'w3{l}': return True
        self.preloadS(w4b)
        if l and self.C7: self.emit(w4(7, w4b[7]))
        I(f's_lshl_b32 {sT[3]}, {sC}, 7'); I(f's_add_u32 {sT[3]}, {sT[3]}, {FL}')
        self.poll(vFl, sT[3], 8*l+4)
        self.stamp(f'w4{l}_go')
        if self.LOOP4 and l:
            I('s_mov_b32 s41, 0'); a.label('LP4'); a.wait(vm=None, lg=None); I('s_barrier'); self.preloadS(w4b); a.wait(lg=None)
            a.raw('    s_memtime s[20:21]')
        self._lf = None
        NR = 32 if l else 12
        xl = lambda s_: self.load_frag(80+4*(s_ % NR), vL16, sT48, H2(l), 4*CH(s_ // 4) + s_ % 4, ('x', s_))
        NUP = self.W4N
        for s_ in range(NUP): xl(s_)
        side = {}
        self.put(side, [(lambda s_=s_: self.cap(xl, s_)) for s_ in range(NUP, 48)], 1, 5)
        if l and not self.C7: self.put(side, w4(7, w4b[7]), 3, 8)
        side.setdefault(40, []).append(self.bar());  self.put(side, w4(8, w4b[8]) + w4(9, w4b[9]), 43, self.W4P)
        side.setdefault(90, []).append(self.bar(vm=('w4', 7)));  self.put(side, w4(10, w4b[10]) + w4(11, w4b[11]), max(93, int(43+10*self.W4P)), self.W4P)
        side.setdefault(195, []).append(self.cap(self.cpf))
        side.setdefault(149, []).append(self.bar(vm=[('w4', 8), ('w4', 9)]))
        side.setdefault(189, []).append(self.bar(vm=[('w4', 10), ('w4', 11)]))
        nB = [B[1], B[2], B[5], B[6], B[4], B[7], B[0], B[3]]
        def unst(k):
            off = nB[k // 5]*BANK + (k % 5)*1024
            return [Ins(f'ds_write_b128 v{M+(off>>16)}, {vr(176+4*k,4)} offset:{off & 0xffff}', 'unst')]
        if not last:
            for k, base in enumerate((vL16, vL16b, vL16c)): I(f'v_add_u32 v{M+k}, {sLW}, {base}')
            self.put(side, [unst(k) for k in range(self.NU)], 230 - 1, 1)
            if not self.NOT: self.put(side, self.touchT(XA(l+1), 21504), 192, 1)
        self.gemmS(48, w4b, XP, True, side, NR)
        if self.LOOP4 and l:
            a.raw('    s_memtime s[22:23]'); I('s_waitcnt lgkmcnt(0)')
            I('s_cmp_eq_u32 s41, 1'); I('s_cbranch_scc1 LP4D')
            I('s_mov_b32 s24, s20'); I('s_mov_b32 s26, s22'); I('s_mov_b32 s41, 1'); I('s_branch LP4')
            a.label('LP4D')
            self.lflush(['  it2start', '  it2', '  it1start', '  it1'])
        self.stamp(f'w4{l}_gemm')
        if not last:
            self.pack(RES, XP, 10)
            self.store_tile(RES, XA(l+1), sA21, sH21)
            self.prod_stats(XP, TMP)
            self.store_stats(TMP, XA(l+1), 2)
            self.emit([unst(k) for k in range(self.NU, self.NU+6)])
            a.wait(vm='st')
            self.setflag(sFLo, 8*l+5)
            self.emit([unst(k) for k in range(self.NU+6, 20)])
        else:
            self.pack(PK, XP, 10)
            I('v_and_b32 v20, 15, v0'); I('v_lshrrev_b32 v21, 4, v0')
            I('v_mul_u32_u24 v26, 1280, v20')
            I('v_lshl_add_u32 v27, v21, 4, v26'); I('v_lshl_add_u32 v28, v21, 3, v26')
            of = os.environ.get('OF', '')
            I(f'buffer_store_dwordx4 {vr(PK,4)}, v27, {OUT}, {sOutA} offen {of}')
            I(f'buffer_store_dwordx4 {vr(PK+4,4)}, v27, {OUT}, {sOutA} offen offset:64 {of}')
            I(f'buffer_store_dwordx2 {vr(PK+8,2)}, v28, {OUT}, {sOutH} offen {of}')
        self.stamp(f'w4{l}_end')
        self.nB = nB
        return self.stop == f'w4{l}'
    BS = int(os.environ.get('BS', 3)); STG = int(os.environ.get('STG', 8)); NOW4 = int(os.environ.get('NOW4', 0)); W3P = float(os.environ.get('W3P', 5))
    TLB = int(os.environ.get('TLB', 0))
    W3R = int(os.environ.get('W3R', 3))
    NW = int(os.environ.get('NW', 20)); NW0 = int(os.environ.get('NW0', 16)); C7 = int(os.environ.get('C7', 0))
    TE = int(os.environ.get('TE', 94)); TW1 = int(os.environ.get('TW1', 0)); TW2 = int(os.environ.get('TW2', 1))
    NTW = int(os.environ.get('NTW', 0)); NOT = int(os.environ.get('NOT', 1))
    T4E = int(os.environ.get('T4E', 24))
    REV = int(os.environ.get('REV', 0)); E4 = int(os.environ.get('E4', 0))
    LOOP4 = int(os.environ.get('LOOP4', 0))
    LA0 = 3; LA1 = 3; ROT = int(os.environ.get('ROT', 1))
    H2SC = int(os.environ.get('H2SC', 0)); WB = int(os.environ.get('WB', 0))
    G1 = int(os.environ.get('G1', 0)); G2 = int(os.environ.get('G2', 0)); W3L = int(os.environ.get('W3L', 5)); NU = int(os.environ.get('NU', 6))
    T4 = int(os.environ.get('T4', 0)); HP = int(os.environ.get('HP', 10)); S2M = int(os.environ.get('S2M', 0)); WG = int(os.environ.get('WG', 2))
    W4X = float(os.environ.get('W4X', 5)); W4P = float(os.environ.get('W4P', 5)); W4N = int(os.environ.get('W4N', 10))
    NTQ = int(os.environ.get('NTQ', 0))
    W3H = int(os.environ.get('W3H', 10)); W3G = int(os.environ.get('W3G', 6))
    R3 = float(os.environ.get('R3', 1.4))
    CPF = int(os.environ.get('CPF', 1))
    LS = 0

    def build(self):
        a = self.a
        self.prologue()
        if self.stop != 'prep':
            B = list(range(8))
            if not self.layer(0, B):
                self.layer(1, self.nB)
        a.wait(vm=None, lg=None)
        if os.environ.get('SPIN'):
            a.I('s_sub_u32 s98, s100, s98')
            a.raw('    s_memrealtime s[100:101]'); a.I('s_waitcnt lgkmcnt(0)')
            a.label('SPINL')
            a.raw('    s_memrealtime s[94:95]'); a.I('s_waitcnt lgkmcnt(0)')
            a.I('s_sub_u32 s94, s94, s100'); a.I('s_cmp_lt_u32 s94, s98'); a.I('s_cbranch_scc1 SPINL')
        a.label('KEND')
        a.I('s_endpgm')
        a.extend(self.ool)
        main, stubs, n = a.finalize()
        hdr = open('cdna_kernels/' + NAME[:-7] + '.s.ref').read().split('; Override launch')[0]
        out = hdr + f"""; Persistent fused kernel (generated by own script): 256 workgroups, one per CU.
; @launch grid=(256,1,1) block=(256,1,1) lds=163840
.amdgcn_target "amdgcn-amd-amdhsa--gfx950"
.text
.globl {NAME}
.p2align 8
.type {NAME},@function
{NAME}:
KSTART:
{main}
{stubs}
CODE_END:
.section .rodata,"a"
.p2align 6
.amdhsa_kernel {NAME}
  .amdhsa_next_free_vgpr 512
  .amdhsa_next_free_sgpr 102
  .amdhsa_accum_offset 256
  .amdhsa_group_segment_fixed_size 0
  .amdhsa_kernarg_size 96
  .amdhsa_user_sgpr_count 2
  .amdhsa_user_sgpr_kernarg_segment_ptr 1
  .amdhsa_system_sgpr_workgroup_id_x 1
.end_amdhsa_kernel
"""
        return out, n

if __name__ == '__main__':
    import argparse, json
    ap = argparse.ArgumentParser()
    ap.add_argument('-o', default='k.s'); ap.add_argument('--stop'); ap.add_argument('--stamps', action='store_true')
    args = ap.parse_args()
    g = Gen(args.stop, args.stamps)
    s, n = g.build()
    open(args.o, 'w').write(s)
    json.dump(g.stampnames, open(args.o + '.stamps.json', 'w'))
    print('instructions', n, 'bytes', len(s))
```

```python
import sys, struct, math
from asmlib import *

NAME = "interleave_layers__linear_kernel_hedgehog__mixer_s_mlp__prompt_kernel"
MB = 1 << 20
WT_QKV, WT_O, WT_1, WT_2, WT_3, WT_4 = 0, 3*MB, 4*MB, 5*MB, 6*MB, 8*MB
APHI = 10*MB
SYNC = 13*MB
CNT, FL, FLO, FLH = SYNC+0x10000, SYNC+0x1000, SYNC+0x2000, SYNC+0x4000
KVP = 14*MB
def LB(l): return 18*MB + l*24*MB
import os
SEP = bool(os.environ.get('SEP'))
def XA(l): return LB(l) if SEP else LB(0)
def OB(l): return LB(l)+3*MB if SEP else LB(0)+3*MB
def XB(l): return LB(l)+6*MB if SEP else LB(0)
def HB(l): return LB(l)+9*MB if SEP else LB(0)+3*MB
def HD(l): return LB(l)+12*MB if SEP else LB(0)+12*MB+l*3*MB
def X1(l): return LB(l)+15*MB if SEP else LB(0)
def H2(l): return LB(l)+18*MB if SEP else LB(0)+18*MB
STAMP = 80*MB
BANK = 20480
OOB = 0x80000000
def f2u(x): return struct.unpack('<I', struct.pack('<f', x))[0]
LOG2E = 1.4426950408889634
GC0 = -2.0*math.sqrt(2.0/math.pi)*LOG2E
GC1 = GC0*0.044715

WS = 's[8:11]'; TS = 's[12:15]'; OUT = 's[16:19]'
P_X, P_QKV, P_PHI, P_O, P_1, P_2, P_3, P_4, P_OUT, P_DBG, P_WS = 20, 22, 24, 26, 30, 32, 34, 36, 38, 40, 42
_sn = [44]
def S(n=1, align=1):
    while _sn[0] % align: _sn[0] += 1
    r = _sn[0]; _sn[0] += n; return r
sXG, sH, sCL, sJ, sC, sW, sMODE, sTT = [f's{S()}' for _ in range(8)]
sA21, sH21, sS21, sT21, sA20, sH20, sT20, sT48 = [f's{S()}' for _ in range(8)]
sW5, sW4, sWQ, sLW, sOutA, sOutH, sEdge, sDead = [f's{S()}' for _ in range(8)]
sQT21, sO4, sO1, sKVo, sKVi, sA48, sH48, sC21, sFLo, sFLOo, sWI, sWB, sBot, sW3 = [f's{S()}' for _ in range(14)]
sT = [f's{S()}' for _ in range(10)]
sSpin = f's{S()}'
sDm = f's{S()}'
sN0 = 's0'; sN1 = 's1'
_p = S(2, 2); sStamp = f's[{_p}:{_p+1}]'; sStampLo = f's{_p}'
sStampOff = f's{S()}'
assert _sn[0] <= 100, _sn

vL16, vL16b, vL16c, vS8, vST, vFl = 'v1', 'v2', 'v3', 'v4', 'v5', 'v6'
vT0, vT1 = 'v7', 'v18'
RES = 8
def v(i): return f'v{i}'
def vr(i, n): return f'v[{i}:{i+n-1}]'
def ar(i, n): return f'a[{i}:{i+n-1}]'

class Gen:
    def __init__(self, stop=None, stamps=False):
        self.a = Asm(); self.stop = stop; self.stamps = stamps; self.nstamp = 0; self.stampnames = []; self.ool = []; self._ls = []; self.LSR = os.environ.get('LSR')
    def I(self, t, tag=None): self.a.I(t, tag)
    def lds(self, off):
        base = [vL16, vL16b, vL16c][off >> 16]; return base, off & 0xffff
    DBGN = ['s1_loaded', 's1_drained', 'gbar_done', 'qkv0_gemm', 'qkv0_end', 'w10_go', 'w30_go', 'w40_go', 'qkv1_go', 'qkv1_gemm', 'qkv1_end', 'w31_go', 'w41_go', 'w41_end']
    def dbgstamp(self, name):
        if name not in self.DBGN: return
        k = self.DBGN.index(name); I = self.I
        L = self.a.newlabel('DBG')
        I(f's_lshl_b32 {sT[9]}, s2, 2'); I(f's_add_u32 {sT[9]}, {sT[9]}, {sW}'); I(f's_cmp_lg_u32 {sT[9]}, {int(os.environ["DBG"])}'); I(f's_cbranch_scc1 {L}')
        self.a.raw('    s_memrealtime s[94:95]'); I('s_waitcnt lgkmcnt(0)')
        I('s_sub_u32 s94, s94, s98'); I('v_mov_b32 v19, s94'); I('v_accvgpr_write_b32 a254, v19'); I(f'v_mov_b32 v19, {8+4*k}')
        self.a.raw('    global_store_dword v19, a254, s[42:43]')
        self.a.label(L)
    def stamp(self, name):
        if os.environ.get('DBG'): self.dbgstamp(name)
        sp = os.environ.get('SPIN', '').split(',')
        if name in sp:
            r = 98 if name == sp[0] else 100
            self.a.wait(lg=None); self.a.raw(f'    s_memrealtime s[{r}:{r+1}]'); self.I('s_waitcnt lgkmcnt(0)')
        if not self.stamps: return
        if name in os.environ.get('NOST', '').split(','): return
        self.lsf()
        I = self.I
        I(f's_memrealtime {sStamp}')
        I(f's_memtime s[100:101]')
        self.a.wait(lg=None)
        I(f'v_mov_b32 v19, {sStampLo}')
        I(f's_add_u32 {sT[9]}, {sStampOff}, {self.nstamp*4}')
        I(f'buffer_store_dword v19, off, {WS}, {sT[9]}', tag='stamp')
        I(f'v_mov_b32 v19, s100')
        I(f'buffer_store_dword v19, off, {WS}, {sT[9]} offset:256', tag='stamp')
        self.nstamp += 1; self.stampnames.append(name)

    def ls(self, name):
        if self.stamps and self.LSR and name.startswith(self.LSR):
            k = len(self._ls); assert k < 8
            self._ls.append(name); self.a.items.append(Raw(f'    s_memtime s[{20+2*k}:{21+2*k}]'))
    def lsf(self):
        if self._ls:
            n = self._ls; self._ls = []; self.lflush(['  ' + x for x in n])
    def lstamp(self, k):
        return [Raw(f'    s_memtime s[{20+2*k}:{21+2*k}]')] if self.stamps else []
    def lflush(self, names):
        if not self.stamps: return
        self.a.wait(lg=None)
        for k, n in enumerate(names):
            self.I(f'v_mov_b32 v19, s{20+2*k}')
            self.I(f's_add_u32 {sT[9]}, {sStampOff}, {self.nstamp*4}')
            self.I(f'buffer_store_dword v19, off, {WS}, {sT[9]} offset:256', tag='stamp')
            self.I(f'v_mov_b32 v19, 0')
            self.I(f'buffer_store_dword v19, off, {WS}, {sT[9]}', tag='stamp')
            self.nstamp += 1; self.stampnames.append(n)
    def dma_b(self, sbase, const, bank, tag, nper=5, sc='', slw=None, ldsoff=None):
        out = []
        slw = slw or sLW
        lo = bank*BANK if ldsoff is None else ldsoff
        for i in range(nper):
            with self.a.capture() as c:
                if i == 0:
                    self.I(f's_add_u32 m0, {slw}, {lo}')
                    self.I(f's_add_u32 {sDm}, {sbase}, {const}')
                if i == 4:
                    self.I(f's_add_u32 m0, m0, 4096')
                    self.I(f's_add_u32 {sDm}, {sDm}, 4096')
                self.I(f'buffer_load_dwordx4 {vL16}, {WS}, {sDm} offen offset:{(i&3)*1024} {sc} lds', tag)
            out.append(c.items)
        return out
    def emit(self, bundles):
        for b in bundles: self.a.extend(b)
    def dma_bank(self, *args, **kw): self.emit(self.dma_b(*args, **kw))
    def cap(self, fn, *args, **kw):
        with self.a.capture() as c: fn(*args, **kw)
        return c.items
    def weave(self, items, bundles, every, first=0):
        bi = 0; acc = every - first
        for k, it in enumerate(items):
            self.a.items.append(it)
            if isinstance(it, Ins):
                assert ('exec', 0) not in it.dst and not it.op.startswith(('s_cbranch', 's_branch')), it.text
                acc += 4 if it.kind == 'mfma' else (2 if it.kind == 'trans' else 1)
                nx = items[k+1] if k+1 < len(items) else None
                scc_live = isinstance(nx, Ins) and nx.op.startswith(('s_cselect', 's_cbranch', 's_addc', 's_subb'))
                if acc >= every and bi < len(bundles) and not scc_live:
                    self.a.extend(bundles[bi]); bi += 1; acc = 0
        self.emit(bundles[bi:])

    def touch(self, base, n, grp=0, tag='touch'):
        with self.a.capture() as c:
            I = self.I
            I(f's_mul_i32 s6, {sWI}, {n*128}'); I(f's_add_u32 s6, s6, {base}')
            if grp: I(f's_mul_i32 s7, {sXG}, {grp}'); I('s_add_u32 s6, s6, s7')
            I(f'v_min_u32 v19, {n-1}, v0'); I('v_lshlrev_b32 v19, 7, v19')
            I(f'buffer_load_dword a252, v19, {WS}, s6 offen sc1', tag)
        return [c.items]
    def touch2(self, sbase, const, n):
        with self.a.capture() as c:
            self.I(f's_add_u32 s6, {sbase}, {const}')
            self.I(f'v_min_u32 v19, {n-1}, v0'); self.I('v_lshlrev_b32 v19, 7, v19')
            self.I(f'buffer_load_dword a252, v19, {WS}, s6 offen sc1', 'touch')
        return [c.items]
    def touchT(self, base, tstride): return self.touch(base, tstride//1024, 16*tstride)
    def decomp(self, dst, areg, n, tmp):
        self.I(f'v_accvgpr_read_b32 v{tmp}, a{areg}')
        for i in range(n): self.I(f'v_mov_b32_dpp v{dst+i}, v{tmp} row_newbcast:{i} row_mask:0xf bank_mask:0xf')

    def cpf(self):
        I = self.I
        pl = self.a.newlabel('PCL')
        I('s_getpc_b64 s[4:5]')
        self.a.label(pl)
        I(f's_lshl_b32 s6, {sH}, 2'); I(f's_add_u32 s6, s6, {sW}'); I('s_and_b32 s6, s6, 31'); I('s_lshl_b32 s6, s6, 10')
        I(f'v_add_u32 v19, s6, {vL16}')
        I(f'v_min_u32 v19, CODE_END-{pl}-16, v19')
        I('global_load_dword a253, v19, s[4:5]', 'cpf')

    def poll(self, voff, soff, val, behind=None):
        a = self.a; I = self.I
        L = a.newlabel('POLL'); D = a.newlabel('PDONE')
        if behind is not None:
            I(f'buffer_load_dword {vT0}, {voff}, {WS}, {soff} offen sc1', 'pl')
            self.emit(behind)
            a.wait(vm='pl')
            I(f'v_cmp_le_u32 vcc, {val}, {vT0}')
            I('s_cmp_lg_u64 vcc, -1'); I(f's_cbranch_scc1 {L}')
            a.label(D)
            with a.capture() as c:
                a.label(L)
                I(f's_mov_b32 {sSpin}, {sDead}')
                a.label(L + '_l')
                a.raw(f'    buffer_load_dword {vT0}, {voff}, {WS}, {soff} offen sc1')
                I('s_waitcnt vmcnt(0)')
                I(f'v_cmp_le_u32 vcc, {val}, {vT0}')
                I('s_cmp_eq_u64 vcc, -1'); I(f's_cbranch_scc1 {D}')
                I(f's_sub_u32 {sSpin}, {sSpin}, 1'); I(f's_cbranch_scc0 {L}_l')
                I(f's_mov_b32 {sDead}, 0'); I(f's_branch {D}')
            self.ool += c.items
            return
        I(f's_mov_b32 {sSpin}, {sDead}')
        a.label(L)
        I(f'buffer_load_dword {vT0}, {voff}, {WS}, {soff} offen sc1')
        a.wait(vm=None)
        I(f'v_cmp_le_u32 vcc, {val}, {vT0}')
        I(f's_cmp_eq_u64 vcc, -1')
        I(f's_cbranch_scc1 {D}')
        I(f's_sub_u32 {sSpin}, {sSpin}, 1')
        I(f's_cbranch_scc0 {L}')
        I(f's_mov_b32 {sDead}, 0')
        a.label(D)

    def setflag(self, soff, val, sc1=False, vmask=None):
        I = self.I
        I(f'v_mov_b32 {vT0}, {val}')
        I(f'v_mov_b32 {vT1}, {vmask if vmask else 0}')
        I(f's_mov_b64 exec, 1')
        if sc1:
            I(f'buffer_store_dword {vT0}, {vT1}, {WS}, {soff} offen sc1', 'flag')
        else:
            self.a.slow_begin(sMODE)
            I(f'buffer_store_dword {vT0}, {vT1}, {WS}, {soff} offen', 'flag')
            self.a.slow_end()
        I(f's_mov_b64 exec, -1')

    def pack(self, dst, src, n):
        for i in range(n): self.I(f'v_cvt_pk_bf16_f32 v{dst+i}, v{src+2*i}, v{src+2*i+1}')
    def unpack(self, dst, src, n):
        for i in range(n):
            self.I(f'v_lshlrev_b32 v{dst+2*i}, 16, v{src+i}')
            self.I(f'v_and_b32 v{dst+2*i+1}, 0xffff0000, v{src+i}')

    def prod_stats(self, acc, t):
        I = self.I
        I(f'v_pk_add_f32 {vr(t,2)}, {vr(acc,2)}, {vr(acc+2,2)}')
        I(f'v_pk_mul_f32 {vr(t+2,2)}, {vr(acc,2)}, {vr(acc,2)}')
        I(f'v_pk_fma_f32 {vr(t+2,2)}, {vr(acc+2,2)}, {vr(acc+2,2)}, {vr(t+2,2)}')
        for i in range(2, 10):
            I(f'v_pk_add_f32 {vr(t,2)}, {vr(t,2)}, {vr(acc+2*i,2)}')
            I(f'v_pk_fma_f32 {vr(t+2,2)}, {vr(acc+2*i,2)}, {vr(acc+2*i,2)}, {vr(t+2,2)}')
        I(f'v_add_f32 v{t}, v{t}, v{t+1}')
        I(f'v_add_f32 v{t+2}, v{t+2}, v{t+3}')
        I(f'v_permlane32_swap_b32 v{t}, v{t+2}')
        I(f'v_add_f32 v{t}, v{t}, v{t+2}')
        I(f'v_mov_b32 v{t+1}, v{t}')
        I(f'v_permlane16_swap_b32 v{t}, v{t+1}')
        I(f'v_add_f32 v{t}, v{t}, v{t+1}')

    def stchk(self, F, n, par, t, srcs):
        a = self.a
        def ors():
            regs = list(range(F, F+4*n))
            self.I(f'v_or3_b32 v{t}, v{regs[0]}, v{regs[1]}, v{regs[2]}')
            k = 3
            while k + 1 < len(regs):
                self.I(f'v_or3_b32 v{t}, v{t}, v{regs[k]}, v{regs[k+1]}'); k += 2
            self.I(f'v_or_b32 v{t}, v{t}, v{regs[k]}')
            self.I(f'v_and_b32 v{t}, {3 - par}, v{t}')
            self.I(f'v_cmp_ne_u32 vcc, 0, v{t}')
        R = a.newlabel('STR'); Bk = a.newlabel('STB')
        items = [Wait(vm='stat')] + self.cap(ors) + [[Ins('s_cmp_lg_u64 vcc, 0'), Ins(f's_cbranch_scc1 {R}'), Label(Bk)]]
        with a.capture() as c:
            a.label(R)
            self.I(f's_mov_b32 {sSpin}, {sDead}')
            a.label(R + '_l')
            self.I('s_nop 7'); self.I('s_nop 7')
            for k, (vo, sb, co) in enumerate(srcs):
                self.I(f's_add_u32 s7, {sb}, {co}')
                a.raw(f'    buffer_load_dwordx4 {vr(F+4*k,4)}, {vo}, {WS}, s7 offen sc1')
            self.I('s_waitcnt vmcnt(0)')
            ors()
            self.I('s_cmp_eq_u64 vcc, 0'); self.I(f's_cbranch_scc1 {Bk}')
            self.I(f's_sub_u32 {sSpin}, {sSpin}, 1'); self.I(f's_cbranch_scc0 {R}_l')
            self.I(f's_mov_b32 {sDead}, 0'); self.I(f's_branch {Bk}')
        self.ool += c.items
        return items
    def flat(self, items):
        for x in items:
            if isinstance(x, list): self.a.extend(x)
            else: self.a.items.append(x)

    def cons_stats(self, F, nm, r, double=False, r1=None):
        I = self.I
        I(f'v_add_f32 v{F}, v{F}, v{F+2}'); I(f'v_add_f32 v{F+1}, v{F+1}, v{F+3}')
        I(f'v_permlane32_swap_b32 v{F}, v{F+1}')
        I(f'v_add_f32 v{F}, v{F}, v{F+1}')
        I(f'v_mov_b32 v{F+1}, v{F}')
        I(f'v_permlane16_swap_b32 v{F}, v{F+1}')
        I(f'v_add_f32 v{F}, v{F}, v{F+1}')
        I(f'v_mov_b32 v{F+1}, v{F}')
        I(f'v_permlane32_swap_b32 v{F}, v{F+1}')
        I(f'v_mul_f32 v{nm}, {hex(f2u(-1.0/640))}, v{F}')
        I(f'v_mul_f32 v{F+1}, {hex(f2u(1.0/640))}, v{F+1}')
        I(f'v_fma_f32 v{F+1}, -v{nm}, v{nm}, v{F+1}')
        I(f'v_max_f32 v{F+1}, 0, v{F+1}')
        I(f'v_add_f32 v{F+2}, {hex(f2u(1e-5))}, v{F+1}')
        if not double:
            I(f'v_rsq_f32 v{r}, v{F+2}')
        else:
            I(f'v_rsq_f32 v{r1}, v{F+2}')
            I(f'v_mul_f32 v{F+1}, v{F+1}, v{r1}')
            I(f'v_mul_f32 v{F+1}, v{F+1}, v{r1}')
            I(f'v_add_f32 v{F+1}, {hex(f2u(1e-5))}, v{F+1}')
            I(f'v_rsq_f32 v{F+1}, v{F+1}')
            I(f'v_mul_f32 v{r}, v{r1}, v{F+1}')

    def lnfixp(self, acc, cw, n2, p):
        for i in range(n2):
            self.I(f'v_pk_fma_f32 {vr(acc+2*i,2)}, {vr(cw+2*i,2)}, {vr(p,2)}, {vr(acc+2*i,2)} op_sel_hi:[1,0,1]')
        for i in range(n2):
            self.I(f'v_pk_mul_f32 {vr(acc+2*i,2)}, {vr(acc+2*i,2)}, {vr(p,2)} op_sel:[0,1] op_sel_hi:[1,1]')
    def lnfix(self, acc, cw, n2, nm, r):
        for i in range(n2):
            self.I(f'v_pk_fma_f32 {vr(acc+2*i,2)}, {vr(cw+2*i,2)}, {vr(nm,2)}, {vr(acc+2*i,2)} op_sel_hi:[1,0,1]')
        for i in range(n2):
            self.I(f'v_pk_mul_f32 {vr(acc+2*i,2)}, {vr(acc+2*i,2)}, {vr(r,2)} op_sel_hi:[1,0]')

    def gelu(self, x, n2, t, K):
        I = self.I
        for i in range(n2): I(f'v_pk_mul_f32 {vr(t+2*i,2)}, {vr(x+2*i,2)}, {vr(x+2*i,2)}')
        for i in range(n2): I(f'v_pk_fma_f32 {vr(t+2*i,2)}, {vr(t+2*i,2)}, {vr(K,2)}, {vr(K,2)} op_sel:[0,0,1] op_sel_hi:[1,0,1]')
        for i in range(n2): I(f'v_pk_mul_f32 {vr(t+2*i,2)}, {vr(t+2*i,2)}, {vr(x+2*i,2)}')
        for i in range(2*n2): I(f'v_exp_f32 v{t+i}, v{t+i}')
        for i in range(n2): I(f'v_pk_add_f32 {vr(t+2*i,2)}, {vr(t+2*i,2)}, {vr(K+2,2)} op_sel_hi:[1,0]')
        for i in range(2*n2): I(f'v_rcp_f32 v{t+i}, v{t+i}')
        for i in range(n2): I(f'v_pk_mul_f32 {vr(x+2*i,2)}, {vr(x+2*i,2)}, {vr(t+2*i,2)}')
    def gconst(self, G, r):
        I = self.I
        I(f'v_rcp_f32 v{G+1}, v{r}')
        I(f'v_mul_f32 v{G+3}, {hex(f2u(GC0))}, v{r}')
        I(f'v_mul_f32 v{G+2}, v{r}, v{r}')
        I(f'v_mul_f32 v{G+2}, v{G+2}, v{G+3}')
        I(f'v_mul_f32 v{G+2}, {hex(f2u(0.044715))}, v{G+2}')
    def lgA(self, x, cw, n2, t, G):
        I = self.I
        for i in range(n2): I(f'v_pk_fma_f32 {vr(x+2*i,2)}, {vr(cw+2*i,2)}, {vr(G,2)}, {vr(x+2*i,2)} op_sel_hi:[1,0,1]')
        for i in range(n2): I(f'v_pk_mul_f32 {vr(t+2*i,2)}, {vr(x+2*i,2)}, {vr(x+2*i,2)}')
        for i in range(n2): I(f'v_pk_fma_f32 {vr(t+2*i,2)}, {vr(t+2*i,2)}, {vr(G+2,2)}, {vr(G+2,2)} op_sel:[0,0,1] op_sel_hi:[1,0,1]')
        for i in range(n2): I(f'v_pk_mul_f32 {vr(t+2*i,2)}, {vr(t+2*i,2)}, {vr(x+2*i,2)}')
    def lgB(self, x, n2, t, G, pk):
        I = self.I
        for i in range(2*n2): I(f'v_exp_f32 v{t+i}, v{t+i}')
        if pk:
            for i in range(n2): I(f'v_pk_fma_f32 {vr(t+2*i,2)}, {vr(t+2*i,2)}, {vr(G,2)}, {vr(G,2)} op_sel:[0,1,1] op_sel_hi:[1,1,1]')
        else:
            for i in range(2*n2): I(f'v_fma_f32 v{t+i}, v{t+i}, v{G+1}, v{G+1}')
        for i in range(2*n2): I(f'v_rcp_f32 v{t+i}, v{t+i}')
        if pk:
            for i in range(n2): I(f'v_pk_mul_f32 {vr(x+2*i,2)}, {vr(x+2*i,2)}, {vr(t+2*i,2)}')
        else:
            for i in range(2*n2): I(f'v_mul_f32 v{x+i}, v{x+i}, v{t+i}')
    def geluA(self, x, n2, t, K):
        I = self.I
        for i in range(n2): I(f'v_pk_mul_f32 {vr(t+2*i,2)}, {vr(x+2*i,2)}, {vr(x+2*i,2)}')
        for i in range(n2): I(f'v_pk_fma_f32 {vr(t+2*i,2)}, {vr(t+2*i,2)}, {vr(K,2)}, {vr(K,2)} op_sel:[0,0,1] op_sel_hi:[1,0,1]')
        for i in range(n2): I(f'v_pk_mul_f32 {vr(t+2*i,2)}, {vr(t+2*i,2)}, {vr(x+2*i,2)}')
    def geluB(self, x, n2, t):
        I = self.I
        for i in range(2*n2): I(f'v_exp_f32 v{t+i}, v{t+i}')
        for i in range(2*n2): I(f'v_add_f32 v{t+i}, 1.0, v{t+i}')
        for i in range(2*n2): I(f'v_rcp_f32 v{t+i}, v{t+i}')
        for i in range(2*n2): I(f'v_mul_f32 v{x+i}, v{x+i}, v{t+i}')
    def gelu_consts(self, K):
        self.I(f'v_mov_b32 v{K}, {hex(f2u(GC1))}')
        self.I(f'v_mov_b32 v{K+1}, {hex(f2u(GC0))}')
        self.I(f'v_mov_b32 v{K+2}, 1.0')

    def store_tile(self, P, buf, sA, sHh, sc1=False, vA=vL16, vH=vS8, tag='st'):
        I = self.I
        sc = ' sc1' if sc1 else ''
        I(f's_add_u32 {sT[0]}, {sA}, {buf}')
        I(f's_add_u32 {sT[1]}, {sHh}, {buf}')
        if not sc1: self.a.slow_begin(sMODE)
        I(f'buffer_store_dwordx4 {vr(P,4)}, {vA}, {WS}, {sT[0]} offen{sc}', tag)
        I(f'buffer_store_dwordx4 {vr(P+4,4)}, {vA}, {WS}, {sT[0]} offen offset:1024{sc}', tag)
        I(f'buffer_store_dwordx2 {vr(P+8,2)}, {vH}, {WS}, {sT[1]} offen{sc}', tag)
        if not sc1: self.a.slow_end()
    def store_stats(self, t, buf, par, sc1=False, tag='stt'):
        I = self.I
        I(f'v_and_or_b32 v{t}, v{t}, -4, {par}')
        I(f's_add_u32 {sT[0]}, {sS21}, {buf}')
        if not sc1: self.a.slow_begin(sMODE)
        I(f'buffer_store_dword v{t}, {vST}, {WS}, {sT[0]} offen' + (' sc1' if sc1 else ''), tag)
        if not sc1: self.a.slow_end()

    def load_frag(self, dst, voff, sbase, const, idx, tag, areg=False, sc=' sc1', state={}):
        key = (sbase, const, idx >> 2)
        if self._lf != key:
            self.I(f's_add_u32 {sT[2]}, {sbase}, {const + (idx >> 2)*4096}')
            self._lf = key
        d = ar(dst, 4) if areg else vr(dst, 4)
        self.I(f'buffer_load_dwordx4 {d}, {voff}, {WS}, {sT[2]} offen offset:{(idx & 3)*1024}{sc}', tag)
    _lf = None

    def tsrd(self, p, nbytes):
        self.I(f's_mov_b32 s12, s{p}'); self.I(f's_and_b32 s13, s{p+1}, 0xffff'); self.I(f's_mov_b32 s14, {nbytes}')

    def rowcol(self, q, magic, lpr, rs):
        I = self.I
        I(f'v_add_u32 v26, {q}, v0')
        I(f'v_mul_u32_u24 v27, {magic}, v26'); I('v_lshrrev_b32 v27, 16, v27')
        I(f'v_mul_u32_u24 v28, {lpr}, v27'); I('v_sub_u32 v28, v26, v28')
        I(f'v_mul_u32_u24 v29, {rs}, v27'); I('v_lshl_add_u32 v29, v28, 4, v29')

    def prologue(self):
        a = self.a; I = self.I
        sRS, sEx, sSrc, sDst, sTile, sU, sLB = sT[3], sT[4], sT[5], sT[6], sT[7], sT[8], sWB
        sInvA, sInvB, sSrc3 = 's6', 's7', 's3'
        I('s_cmp_ge_u32 s2, 256')
        I('s_cbranch_scc1 KEND')
        I('s_load_dwordx16 s[20:35], s[0:1], 0')
        I('s_load_dwordx8 s[36:43], s[0:1], 64')
        if self.stamps or os.environ.get('DBG') or os.environ.get('SPIN'): I('s_memrealtime s[98:99]')
        I('s_getpc_b64 s[4:5]')
        a.label('PCL0')
        I(f's_lshr_b32 {sH}, s2, 3')
        I(f's_lshl_b32 {sT[0]}, {sH}, 12')
        I(f'v_lshl_add_u32 v26, v0, 4, {sT[0]}')
        I('v_min_u32 v26, CODE_END-PCL0-16, v26')
        I('global_load_dword a253, v26, s[4:5]')
        I('v_lshrrev_b32 v7, 6, v0')
        I('v_mov_b32 v25, v0')
        I(f'v_readfirstlane_b32 {sW}, v7')
        I('v_and_b32 v0, 63, v0')
        I(f's_and_b32 {sXG}, s2, 7')
        I(f's_lshr_b32 {sCL}, {sH}, 3'); I(f's_and_b32 {sJ}, {sH}, 7')
        I(f's_lshl_b32 {sC}, {sXG}, 2'); I(f's_add_u32 {sC}, {sC}, {sCL}')
        I(f's_lshl_b32 {sTT}, {sC}, 2'); I(f's_add_u32 {sTT}, {sTT}, {sW}')
        I(f's_mul_i32 {sT[0]}, {sJ}, 5'); I(f's_add_u32 {sT[0]}, {sT[0]}, 1'); I(f's_lshr_b32 {sT[0]}, {sT[0]}, 1')
        I(f's_lshl_b32 {sA21}, {sT[0]}, 10')
        I(f's_mul_i32 {sH21}, {sJ}, 2560')
        I(f's_bitcmp0_b32 {sJ}, 0'); I(f's_cselect_b32 {sT[3]}, 2048, 0'); I(f's_add_u32 {sH21}, {sH21}, {sT[3]}')
        I(f's_mul_i32 {sT20}, {sTT}, 20480')
        I(f's_lshr_b32 {sOutA}, {sA21}, 4'); I(f's_lshr_b32 {sOutH}, {sH21}, 4')
        I(f's_add_u32 {sOutA}, {sOutA}, {sT20}'); I(f's_add_u32 {sOutH}, {sOutH}, {sT20}')
        I('v_and_b32 v20, 15, v0'); I('v_lshrrev_b32 v21, 4, v0')
        I('v_mul_u32_u24 v26, 1280, v20')
        I('v_lshl_add_u32 v36, v21, 4, v26'); I('v_lshl_add_u32 v37, v21, 3, v26')
        I(f's_lshr_b32 {sT[1]}, s2, 1'); I(f's_and_b32 {sT[0]}, s2, 1')
        I(f's_mul_i32 {sSrc}, {sT[1]}, {8*3840}'); I(f's_mul_i32 {sT[2]}, {sT[0]}, 640'); I(f's_add_u32 {sSrc}, {sSrc}, {sT[2]}')
        I(f's_cmp_lt_u32 s2, 160'); I(f's_cselect_b32 {sInvA}, 0, {OOB}'); I(f's_cselect_b32 {sSrc}, {sSrc}, 0')
        for k in range(4):
            I(f'v_add_u32 v26, {256*k}, v25')
            I('v_mul_u32_u24 v27, 13108, v26'); I('v_lshrrev_b32 v27, 19, v27')
            I('v_mul_u32_u24 v28, 40, v27'); I('v_sub_u32 v28, v26, v28')
            I('v_and_b32 v29, 7, v27'); I('v_mul_u32_u24 v29, 3840, v29'); I('v_lshl_add_u32 v29, v28, 4, v29')
            I('v_lshrrev_b32 v27, 3, v27'); I('v_mul_u32_u24 v28, 1280, v27'); I(f'v_add3_u32 v{40+k}, v29, v28, {sInvA}')
        I('v_cmp_gt_u32 vcc, 3, v27'); I(f'v_mov_b32 v28, {OOB}'); I('v_cndmask_b32 v43, v28, v43, vcc')
        I(f's_lshl_b32 {sLB}, {sW}, 10')
        I('s_mov_b32 s15, 0x20000'); I('s_mov_b32 s11, 0x20000'); I('s_mov_b32 s19, 0x20000')
        I('s_mov_b32 s10, 0x10000000'); I('s_mov_b32 s18, 2621440')
        I(f's_lshl_b32 {sU}, s2, 2'); I(f's_add_u32 {sU}, {sU}, {sW}')
        I('s_memrealtime s[94:95]')
        a.wait(lg=None)
        I(f's_mov_b32 s8, s{P_WS}'); I(f's_and_b32 s9, s{P_WS+1}, 0xffff')
        I(f's_cmp_lg_u32 {sU}, 3'); I('s_cbranch_scc1 NOTAG')
        I('s_lshl_b32 s95, s95, 4'); I('s_or_b32 s95, s95, 0x80000000')
        I('v_mov_b32 v26, s94'); I('v_mov_b32 v27, s95'); I('v_mov_b32 v28, 0')
        I('s_mov_b64 exec, 1')
        a.raw(f'    global_store_dwordx2 v28, v[26:27], s[{P_DBG}:{P_DBG+1}] sc1')
        I('s_mov_b64 exec, -1')
        a.label('NOTAG')
        if os.environ.get('DBG'): I(f's_mov_b32 s42, s{P_DBG}'); I(f's_mov_b32 s43, s{P_DBG+1}')
        self.tsrd(P_QKV, 2457600)
        for k in range(4):
            I(f's_add_u32 m0, {sLB}, {k*4096}')
            I(f'buffer_load_dwordx4 v{40+k}, {TS}, {sSrc} offen nt lds', 's1')
        self.tsrd(P_X, 2621440)
        I(f'buffer_load_dwordx4 {vr(RES,4)}, v36, {TS}, {sOutA} offen nt', 's1')
        I(f'buffer_load_dwordx4 {vr(RES+4,4)}, v36, {TS}, {sOutA} offen offset:64 nt', 's1')
        I(f'buffer_load_dwordx2 {vr(RES+8,2)}, v37, {TS}, {sOutH} offen nt', 's1')
        I(f's_mov_b32 s16, s{P_OUT}'); I(f's_and_b32 s17, s{P_OUT+1}, 0xffff')
        if self.TLB:
            I('v_min_u32 v26, 42, v0'); I('v_lshlrev_b32 v26, 20, v26'); I('v_add_u32 v26, 0xfff80, v26')
            I(f's_cmp_eq_u32 {sW}, 2'); I(f's_cselect_b32 {sT[2]}, 0, {OOB}'); I(f'v_or_b32 v26, {sT[2]}, v26')
            I(f'buffer_load_dword a252, v26, {WS}, 0 offen nt', 'tlb')
            I('v_min_u32 v26, 2, v0'); I('v_lshlrev_b32 v26, 20, v26'); I(f'v_or_b32 v26, {sT[2]}, v26')
            I(f'buffer_load_dword a252, v26, {OUT}, 0 offen nt', 'tlb')
        if self.FW:
            I('v_and_b32 v26, 1, v0'); I('v_lshlrev_b32 v26, 15, v26')
            I(f's_lshl_b32 {sT[2]}, s2, 7'); I(f's_add_u32 {sT[2]}, {sT[2]}, {CNT}')
            I(f'buffer_load_dword a252, v26, {WS}, {sT[2]} offen sc1', 'fw')
        I(f's_mul_i32 {sDm}, {sT[0]}, {16*81920}'); I(f's_mul_i32 {sT[2]}, {sW}, {4*81920}'); I(f's_add_u32 {sDm}, {sDm}, {sT[2]}')
        I(f's_lshr_b32 {sT[2]}, {sT[1]}, 2'); I(f's_lshl_b32 {sT[2]}, {sT[2]}, 12'); I(f's_add_u32 {sDm}, {sDm}, {sT[2]}')
        I(f's_and_b32 {sT[2]}, {sT[1]}, 3'); I(f's_lshl_b32 {sT[2]}, {sT[2]}, 8'); I(f's_add_u32 {sDm}, {sDm}, {sT[2]}')
        I(f's_mov_b32 s4, {sInvA}')
        if self.stamps: I(f's_lshl_b32 {sStampOff}, {sU}, 9'); I(f's_add_u32 {sStampOff}, {sStampOff}, {STAMP}')
        I(f's_add_u32 {sU}, {sU}, 384'); I(f's_and_b32 {sU}, {sU}, 1023')
        I(f's_mov_b32 s12, s{P_O}'); I(f's_mov_b32 s13, s{P_O+1}'); I(f's_mov_b32 s14, 819200')
        I(f's_mov_b32 {sDst}, {WT_O}'); I(f's_mov_b32 {sTile}, 102400'); I(f's_mov_b32 {sT[0]}, {sU}')
        for thr, p, wt in ((160, P_1, WT_1), (320, P_2, WT_2), (480, P_4, WT_4)):
            I(f's_sub_u32 {sT[1]}, {sU}, {thr}')
            I(f's_cmp_ge_u32 {sU}, {thr}')
            I(f's_cselect_b32 s12, s{p}, s12'); I(f's_cselect_b32 s13, s{p+1}, s13')
            I(f's_cselect_b32 {sDst}, {wt}, {sDst}'); I(f's_cselect_b32 {sT[0]}, {sT[1]}, {sT[0]}')
        I(f's_cselect_b32 {sTile}, 245760, {sTile}'); I(f's_cselect_b32 s14, 1966080, s14')
        I(f's_and_b32 s13, s13, 0xffff')
        I(f's_cmp_lt_u32 {sU}, 864'); I(f's_cselect_b32 {sInvA}, s4, {OOB}'); I(f's_cselect_b32 {sT[0]}, {sT[0]}, 0')
        I(f's_xor_b32 s5, s4, {OOB}')
        I(f's_lshr_b32 {sT[1]}, {sT[0]}, 1'); I(f's_and_b32 {sT[0]}, {sT[0]}, 1')
        I(f's_lshl_b32 {sSrc}, {sT[1]}, 3'); I(f's_mov_b32 {sEx}, 0')
        I(f's_cmp_ge_u32 {sU}, 160'); I('s_cbranch_scc1 PREP_RB')
        I(f's_lshr_b32 {sT[2]}, {sT[1]}, 1'); I(f's_mul_i32 {sT[2]}, {sT[2]}, 20')
        I(f's_and_b32 {sSrc}, {sT[1]}, 1'); I(f's_lshl_b32 {sSrc}, {sSrc}, 3'); I(f's_add_u32 {sSrc}, {sSrc}, {sT[2]}')
        I(f's_cmp_lt_u32 {sT[1]}, 64'); I('s_cbranch_scc1 PREP_RB')
        I(f's_sub_u32 {sT[2]}, {sT[1]}, 64'); I(f's_mul_i32 {sSrc}, {sT[2]}, 40'); I(f's_add_u32 {sSrc}, {sSrc}, 16')
        I(f's_mov_b32 {sEx}, {16*1280}')
        a.label('PREP_RB')
        I(f's_mul_i32 {sSrc}, {sSrc}, 1280'); I(f's_mul_i32 {sT[2]}, {sT[0]}, 640'); I(f's_add_u32 {sSrc}, {sSrc}, {sT[2]}')
        I(f's_lshl_b32 {sLB}, {sW}, 13'); I(f's_add_u32 {sLB}, {sLB}, 32768')
        for q in range(5):
            self.rowcol(64*q, 1639, 40, 1280)
            I('v_lshrrev_b32 v27, 2, v27'); I(f'v_mad_u32_u24 v29, v27, {sEx}, v29'); I(f'v_or_b32 v{200+q}, {sInvA}, v29')
            I('v_or_b32 v29, s5, v29')
            I(f's_add_u32 m0, {sLB}, {q*1024}')
            I(f'buffer_load_dwordx4 v29, {TS}, {sSrc} offen nt lds', 's1')
        I(f's_mul_i32 {sT[2]}, {sT[0]}, {sTile}'); I(f's_lshl_b32 {sT[2]}, {sT[2]}, 2'); I(f's_add_u32 {sDst}, {sDst}, {sT[2]}')
        I(f's_lshr_b32 {sT[2]}, {sT[1]}, 2'); I(f's_mul_i32 {sT[2]}, {sT[2]}, 5120'); I(f's_add_u32 {sDst}, {sDst}, {sT[2]}')
        I(f's_and_b32 {sT[2]}, {sT[1]}, 3'); I(f's_lshl_b32 {sT[2]}, {sT[2]}, 8'); I(f's_add_u32 {sDst}, {sDst}, {sT[2]}')
        I(f's_add_u32 {sT[0]}, {sU}, 160'); I(f's_and_b32 {sT[0]}, {sT[0]}, 1023')
        I(f's_cmp_lt_u32 {sT[0]}, 640'); I(f's_cselect_b32 {sInvB}, 0, {OOB}'); I(f's_cselect_b32 {sT[0]}, {sT[0]}, 0')
        I(f's_lshr_b32 {sT[1]}, {sT[0]}, 3'); I(f's_and_b32 {sT[0]}, {sT[0]}, 7')
        I(f's_mul_i32 {sSrc3}, {sT[1]}, {8*3072}'); I(f's_mul_i32 {sT[2]}, {sT[0]}, 384'); I(f's_add_u32 {sSrc3}, {sSrc3}, {sT[2]}')
        I(f's_mul_i32 {sRS}, {sT[0]}, 245760'); I(f's_lshl_b32 {sT[2]}, {sT[1]}, 8'); I(f's_add_u32 {sRS}, {sRS}, {sT[2]}'); I(f's_add_u32 {sRS}, {sRS}, {WT_3}')
        I(f's_mov_b32 {sDead}, 400000'); I(f's_mov_b32 {sMODE}, 0')
        I(f's_mul_i32 {sT21}, {sTT}, 21504'); I(f's_mul_i32 {sT48}, {sTT}, 49152')
        I(f's_add_u32 {sA20}, {sT20}, {sA21}'); I(f's_add_u32 {sH20}, {sT20}, {sH21}')
        I(f's_add_u32 {sA21}, {sT21}, {sA21}'); I(f's_add_u32 {sH21}, {sT21}, {sH21}')
        I(f's_lshr_b32 {sT[0]}, {sJ}, 1'); I(f's_lshl_b32 {sT[0]}, {sT[0]}, 8')
        I(f's_and_b32 {sT[1]}, {sJ}, 1'); I(f's_lshl_b32 {sT[1]}, {sT[1]}, 3')
        I(f's_add_u32 {sS21}, {sT21}, {sT[0]}'); I(f's_add_u32 {sS21}, {sS21}, {sT[1]}'); I(f's_add_u32 {sS21}, {sS21}, 20480')
        I(f's_mul_i32 {sLW}, {sW}, 5120')
        I(f's_mul_i32 {sW5}, {sJ}, 102400'); I(f's_add_u32 {sW5}, {sW5}, {sLW}')
        I(f's_mul_i32 {sW4}, {sJ}, 245760'); I(f's_add_u32 {sW4}, {sW4}, {sLW}')
        I(f's_mul_i32 {sWQ}, {sH}, 81920');  I(f's_add_u32 {sWQ}, {sWQ}, {sLW}')
        I(f's_lshl_b32 {sWI}, {sH}, 2'); I(f's_add_u32 {sWI}, {sWI}, {sW}')
        I(f's_lshl_b32 {sT[0]}, {sXG}, 2'); I(f's_add_u32 {sT[0]}, {sT[0]}, {sW}')
        I(f's_mul_i32 {sQT21}, {sT[0]}, {4*21504}')
        I(f's_mul_i32 {sT[1]}, {sT[0]}, {4*20480}')
        I(f's_lshl_b32 {sT[2]}, {sH}, 9'); I(f's_add_u32 {sO4}, {sT[1]}, {sT[2]}')
        I(f's_lshr_b32 {sT[2]}, {sH}, 1'); I(f's_lshl_b32 {sT[2]}, {sT[2]}, 8'); I(f's_add_u32 {sO1}, {sT[1]}, {sT[2]}')
        I(f's_and_b32 {sT[2]}, {sH}, 1'); I(f's_lshl_b32 {sT[2]}, {sT[2]}, 3'); I(f's_add_u32 {sO1}, {sO1}, {sT[2]}'); I(f's_add_u32 {sO1}, {sO1}, 16384')
        I(f's_lshl_b32 {sT[2]}, {sT[0]}, 7'); I(f's_lshl_b32 {sFLOo}, {sH}, 2')
        I(f's_add_u32 {sFLOo}, {sT[2]}, {sFLOo}'); I(f's_add_u32 {sFLOo}, {sFLOo}, {FLO}')
        I(f's_lshl_b32 {sKVi}, {sH}, 16'); I(f's_lshl_b32 {sT[2]}, {sW}, 10'); I(f's_add_u32 {sKVi}, {sKVi}, {sT[2]}')
        I(f's_add_u32 {sKVi}, {sKVi}, {KVP}')
        I(f's_lshl_b32 {sT[2]}, {sXG}, 13'); I(f's_add_u32 {sKVo}, {sKVi}, {sT[2]}')
        I(f's_lshl_b32 {sT[0]}, {sJ}, 2'); I(f's_add_u32 {sT[0]}, {sT[0]}, {sW}')
        I(f's_mul_i32 {sW3}, {sT[0]}, 61440')
        I(f's_mul_i32 {sT[1]}, {sT[0]}, 3'); I(f's_add_u32 {sT[1]}, {sT[1]}, 1'); I(f's_lshr_b32 {sT[1]}, {sT[1]}, 1'); I(f's_lshl_b32 {sA48}, {sT[1]}, 10')
        I(f's_mul_i32 {sH48}, {sT[0]}, 1536')
        I(f's_bitcmp0_b32 {sT[0]}, 0'); I(f's_cselect_b32 {sT[2]}, 1024, 0'); I(f's_add_u32 {sH48}, {sH48}, {sT[2]}')
        I(f's_mul_i32 {sT[2]}, {sC}, {4*49152}')
        I(f's_add_u32 {sA48}, {sT[2]}, {sA48}'); I(f's_add_u32 {sH48}, {sT[2]}, {sH48}')
        I(f's_mul_i32 {sC21}, {sC}, {4*21504}')
        I(f's_lshl_b32 {sFLo}, {sTT}, 5'); I(f's_lshl_b32 {sT[2]}, {sJ}, 2'); I(f's_add_u32 {sFLo}, {sFLo}, {sT[2]}'); I(f's_add_u32 {sFLo}, {sFLo}, {FL}')
        I(f's_and_b32 {sT[0]}, {sTT}, 15')
        I(f's_mov_b32 {sEdge}, {OOB}')
        I(f's_cmp_eq_u32 {sT[0]}, 0');  I(f's_cselect_b32 {sEdge}, 0, {sEdge}')
        I(f's_cmp_eq_u32 {sT[0]}, 15'); I(f's_cselect_b32 {sEdge}, 0, {sEdge}'); I(f's_cselect_b32 {sBot}, 1, 0')
        I(f's_cmp_eq_u32 {sTT}, 0');   I(f's_cselect_b32 {sEdge}, {OOB}, {sEdge}')
        I(f's_cmp_eq_u32 {sTT}, 127'); I(f's_cselect_b32 {sEdge}, {OOB}, {sEdge}')
        I(f'v_lshlrev_b32 {vL16}, 4, v0')
        I(f'v_add_u32 {vL16b}, 0x10000, {vL16}'); I(f'v_add_u32 {vL16c}, 0x20000, {vL16}')
        I('v_lshrrev_b32 v22, 5, v0'); I('v_and_b32 v23, 1, v21'); I('v_lshlrev_b32 v24, 4, v20')
        I(f'v_lshl_add_u32 {vS8}, v22, 8, v24'); I(f'v_lshl_add_u32 {vS8}, v23, 3, {vS8}')
        I(f'v_lshl_add_u32 {vST}, v22, 2, v24')
        I(f'v_and_b32 {vFl}, 31, v0'); I(f'v_lshlrev_b32 {vFl}, 2, {vFl}')
        if self.stamps:
            I('v_mov_b32 v19, s98'); I(f'buffer_store_dword v19, off, {WS}, {sStampOff}'); I(f'buffer_store_dword v19, off, {WS}, {sStampOff} offset:256')
            self.nstamp += 1; self.stampnames.append('entry')
        self.stamp('issued')
        I('v_lshrrev_b32 v26, 2, v20'); I('v_and_b32 v27, 3, v20')
        I(f's_mul_i32 {sT[2]}, {sW}, 160')
        I('v_mul_u32_u24 v29, 640, v26'); I(f'v_add_u32 v29, {sT[2]}, v29'); I('v_mul_u32_u24 v28, 40, v21'); I('v_add_u32 v29, v29, v28')
        I('v_lshl_add_u32 v30, v27, 3, v29')
        I('v_lshlrev_b32 v28, 3, v27'); I(f'v_add_u32 v31, {10240-8}, v28'); I(f'v_mov_b32 v33, {5120+32}')
        I('v_cmp_eq_u32 vcc, 0, v27'); I('v_cndmask_b32 v31, v31, v33, vcc'); I('v_add_u32 v31, v31, v29')
        I('v_min_u32 v28, 2, v27'); I('v_lshlrev_b32 v28, 3, v28'); I(f'v_add_u32 v33, {10240+16}, v28'); I('v_mov_b32 v34, 32')
        I('v_cndmask_b32 v33, v33, v34, vcc'); I('v_add_u32 v33, v33, v29')
        I(f's_mov_b32 {sT[2]}, 81920'); I(f'v_mul_lo_u32 v32, v21, {sT[2]}'); I(f'v_add3_u32 v32, v32, v24, s4')
        for q in range(3):
            self.rowcol(64*q, 2731, 24, 3072)
            I(f'v_or_b32 v{205+q}, {sInvB}, v29')
        I('v_lshrrev_b32 v26, 2, v20'); I('v_and_b32 v27, 3, v20')
        I('v_mul_u32_u24 v28, 5, v21'); I('v_add_u32 v28, 1, v28'); I('v_lshrrev_b32 v28, 1, v28')
        I('v_mul_u32_u24 v29, 640, v26'); I(f'v_add_u32 v29, {sLB}, v29')
        I('v_lshl_add_u32 v210, v28, 6, v29'); I('v_lshl_add_u32 v210, v27, 4, v210')
        I('v_mul_u32_u24 v211, 160, v21'); I('v_xor_b32 v28, 1, v23'); I('v_lshl_add_u32 v211, v28, 7, v211')
        I('v_add_u32 v211, v211, v29'); I('v_lshl_add_u32 v211, v27, 3, v211')
        I(f'v_mul_lo_u32 v212, v21, {sTile}'); I(f'v_add3_u32 v216, v212, v24, s5'); I(f'v_add3_u32 v212, v212, v24, {sInvA}')
        I('v_mul_u32_u24 v29, 384, v26'); I(f'v_add_u32 v29, {sLB}, v29'); I('v_mul_u32_u24 v28, 96, v21'); I('v_add_u32 v29, v29, v28')
        I('v_lshl_add_u32 v213, v23, 5, v29'); I('v_lshl_add_u32 v213, v27, 4, v213')
        I('v_xor_b32 v28, 1, v23'); I('v_lshl_add_u32 v214, v28, 6, v29'); I('v_lshl_add_u32 v214, v27, 3, v214')
        I('v_mul_u32_u24 v215, 61440, v21'); I(f'v_add3_u32 v215, v215, v24, {sInvB}')
        I(f's_getreg_b32 {sU}, hwreg(HW_REG_XCC_ID)'); I(f's_and_b32 {sU}, {sU}, 15')
        for r in range(132, 142): I(f'v_mov_b32 v{r}, -1')
        I('v_mov_b32 v128, 0')
        a.wait(vm='s1')
        self.stamp('s1_loaded')
        I('v_mov_b32 v26, 0')
        I(f'global_load_dwordx2 v[208:209], v26, s[{P_DBG}:{P_DBG+1}] sc1', 'st')
        self.store_tile(RES, XA(0), sA21, sH21, sc1=True)
        for i in range(5):
            b_, o = ('v210', 64*(i >> 1) + 8*(i & 1)) if i < 4 else ('v211', 0)
            I(f'ds_read_b64_tr_b16 {vr(64+4*i,2)}, {b_} offset:{o}')
            I(f'ds_read_b64_tr_b16 {vr(66+4*i,2)}, {b_} offset:{o+2560}')
        I('s_barrier')
        a.wait(lg=None)
        for i, (b_, o) in enumerate((('v30', 5120), ('v31', 0), ('v30', 0), ('v33', 0))):
            I(f'ds_read_b64_tr_b16 {vr(48+4*i,2)}, {b_} offset:{o}')
            I(f'ds_read_b64_tr_b16 {vr(50+4*i,2)}, {b_} offset:{o+2560}')
        for i in range(4): I(f'buffer_store_dwordx4 {vr(64+4*i,4)}, v216, {WS}, {sDst} offen offset:{i*1024} sc1', 'st')
        I(f's_add_u32 {sT[0]}, {sDst}, 4096')
        I(f'buffer_store_dwordx4 {vr(80,4)}, v216, {WS}, {sT[0]} offen sc1', 'st')
        a.wait(lg=None)
        for i in range(4): I(f'buffer_store_dwordx4 {vr(48+4*i,4)}, v32, {WS}, {sDm} offen offset:{i*1024} sc1', 'st')
        self.unpack(144, RES, 10)
        self.prod_stats(144, 164)
        self.store_stats(164, XA(0), 1, sc1=True, tag='st')
        I(f'buffer_store_dwordx4 {vr(132,4)}, {vL16}, {WS}, {sKVo} offen sc1', 'st')
        I(f's_lshl_b32 {sT[0]}, s2, 7'); I(f's_add_u32 {sT[0]}, {sT[0]}, {FL}')
        I(f's_cmp_eq_u32 {sW}, 1'); I(f's_cselect_b32 {sT[1]}, 0, {OOB}')
        I(f's_cmp_lt_u32 s2, 64'); I(f's_cselect_b32 {sT[1]}, {sT[1]}, {OOB}')
        I(f'v_or_b32 v26, {sT[1]}, {vFl}')
        I(f'buffer_store_dword v128, v26, {WS}, {sT[0]} offen sc1', 'st')
        for q in range(5):
            I(f's_add_u32 m0, {sLB}, {q*1024}')
            I(f'buffer_load_dwordx4 v{200+q}, {TS}, {sSrc} offen nt lds', 's2')
        self.tsrd(P_3, 1966080)
        for q in range(3):
            I(f's_add_u32 m0, {sLB}, {5120+q*1024}')
            I(f'buffer_load_dwordx4 v{205+q}, {TS}, {sSrc3} offen nt lds', 's2')
        self.tsrd(P_PHI, 25600)
        I('v_and_b32 v26, 3, v0'); I('v_lshlrev_b32 v26, 1, v26')
        I(f's_mul_i32 {sT[0]}, {sH}, 800')
        I('v_mul_u32_u24 v27, 160, v21'); I(f'v_add3_u32 v27, v27, v26, {sT[0]}')
        I(f'v_add_u32 v28, {sT[0]}, v26'); I('v_add_u32 v28, 640, v28'); I(f'v_mov_b32 v29, {OOB}')
        I('v_cmp_eq_u32 vcc, 0, v21'); I('v_cndmask_b32 v28, v29, v28, vcc')
        I(f's_lshl_b32 {sT[0]}, {sW}, 3')
        for fr, so in ((0, sT[0]), (1, '32')):
            for e in range(8):
                vo = 'v27' if e < 4 else 'v28'
                I(f'buffer_load_ushort v{(180 if e & 1 else 120)+4*fr+(e>>1)}, {vo}, {TS}, {so} offen offset:{(e&3)*40}')
        I('v_mov_b32 v26, 0')
        a.wait(vm='st')
        self.stamp('s1_drained')
        I(f's_mov_b32 {sSpin}, {sDead}')
        a.label('GB_P0')
        I('v_cmp_ne_u32 vcc, 0, v209'); I('s_cmp_eq_u64 vcc, -1'); I('s_cbranch_scc1 GB_P0D')
        a.raw(f'    global_load_dwordx2 v[208:209], v26, s[{P_DBG}:{P_DBG+1}] sc1')
        I('s_waitcnt vmcnt(0)')
        I(f's_sub_u32 {sSpin}, {sSpin}, 1'); I('s_cbranch_scc0 GB_P0')
        a.label('GB_P0D')
        I(f'v_readfirstlane_b32 {sN0}, v208'); I(f'v_readfirstlane_b32 {sN1}, v209')
        I('s_barrier')
        self.arrive(0, 208, sU)
        a.wait(vm=None)
        for i in range(5):
            b_, o = ('v210', 64*(i >> 1) + 8*(i & 1)) if i < 4 else ('v211', 0)
            I(f'ds_read_b64_tr_b16 {ar(4*i,2)}, {b_} offset:{o}')
            I(f'ds_read_b64_tr_b16 {ar(4*i+2,2)}, {b_} offset:{o+2560}')
        a.wait(lg=None)
        for i in range(3):
            b_, o = ('v213', 8*i) if i < 2 else ('v214', 0)
            I(f'ds_read_b64_tr_b16 {ar(20+4*i,2)}, {b_} offset:{5120+o}')
            I(f'ds_read_b64_tr_b16 {ar(22+4*i,2)}, {b_} offset:{5120+o+1536}')
        for r in range(32, 36): I(f'v_accvgpr_write_b32 a{r}, -1')
        I(f's_mov_b32 s4, {sDst}'); I(f's_mov_b32 s5, {sRS}')
        I('v_accvgpr_write_b32 a38, v212'); I('v_accvgpr_write_b32 a39, v215')
        I('v_bfe_u32 v26, v0, 2, 1'); I(f's_mov_b32 {sT[0]}, 0x80008000'); I(f'v_mul_lo_u32 v26, v26, {sT[0]}')
        for r in range(120, 128): I(f'v_lshl_or_b32 v{r}, v{r+60}, 16, v{r}')
        for r in range(120, 128): I(f'v_xor_b32 v{r}, v{r}, v26')
        for r in range(8): I(f'v_accvgpr_write_b32 a{240+r}, v{120+r}')
        I(f's_add_u32 s36, {sH}, {sXG}') if self.ROT == 1 else I(f's_mov_b32 s36, {sXG if self.ROT == 2 else 0}')
        I('s_mul_i32 s37, s36, 52429'); I('s_lshr_b32 s37, s37, 18'); I('s_mul_i32 s37, s37, 5'); I('s_sub_u32 s36, s36, s37')
        I('s_lshl_b32 s36, s36, 12')
        for q in range(1, 5):
            I(f's_add_u32 s{36+q}, s{35+q}, 4096'); I(f's_cmp_eq_u32 s{36+q}, 20480'); I(f's_cselect_b32 s{36+q}, 0, s{36+q}')
        self.stamp('s2_issued')

    def arrive(self, which, t, sx='0'):
        I = self.I
        I(f's_cmp_eq_u32 {sW}, 0'); I(f's_cselect_b32 {sT[0]}, 0, {OOB}')
        I(f's_add_u32 {sT[1]}, {sN1}, {sx}')
        I(f'v_mov_b32 v{t}, {sN0}'); I(f'v_mov_b32 v{t+1}, {sT[1]}')
        I(f'v_lshlrev_b32 {vT0}, 3, v0'); I(f'v_or_b32 {vT0}, {sT[0]}, {vT0}')
        I(f's_lshl_b32 {sT[1]}, s2, 7'); I(f's_add_u32 {sT[1]}, {sT[1]}, {CNT + which*32768}')
        I('s_mov_b64 exec, 0xffff')
        I(f'buffer_store_dwordx2 {vr(t,2)}, {vT0}, {WS}, {sT[1]} offen sc1')
        I('s_mov_b64 exec, -1')
    def allchk_issue(self, which, t):
        with self.a.capture() as c:
            I = self.I
            I(f'v_lshlrev_b32 v{t+2}, 7, v0')
            I(f's_lshl_b32 {sT[5]}, {sW}, 13'); I(f's_add_u32 {sT[5]}, {sT[5]}, {CNT + which*32768}')
            I(f'buffer_load_dwordx2 {vr(t,2)}, v{t+2}, {WS}, {sT[5]} offen sc1', 'pall')
        return [c.items]
    def allchk(self, t):
        a = self.a; I = self.I
        L = a.newlabel('ACP'); D = a.newlabel('ACD')
        a.wait(vm='pall')
        I(f's_mov_b32 {sSpin}, {sDead}')
        a.label(L)
        I(f'v_and_b32 v{t+1}, -16, v{t+1}'); I(f'v_cmp_eq_u64 vcc, s[0:1], {vr(t,2)}'); I('s_cmp_eq_u64 vcc, -1'); I(f's_cbranch_scc1 {D}')
        a.raw(f'    buffer_load_dwordx2 {vr(t,2)}, v{t+2}, {WS}, {sT[5]} offen sc1')
        I('s_waitcnt vmcnt(0)')
        I(f's_sub_u32 {sSpin}, {sSpin}, 1'); I(f's_cbranch_scc0 {L}')
        I(f's_mov_b32 {sDead}, 0')
        a.label(D)

    def s2_stores(self, v0_, v1_):
        out = []
        for i in range(4): out.append([Ins(f'buffer_store_dwordx4 {ar(4*i,4)}, {v0_}, {WS}, s4 offen offset:{i*1024} sc1', 's2s')])
        out.append([Ins('s_add_u32 s4, s4, 4096'), Ins(f'buffer_store_dwordx4 {ar(16,4)}, {v0_}, {WS}, s4 offen sc1', 's2s')])
        for i in range(3):
            out.append([Ins(f'buffer_store_dwordx4 {ar(20+4*i,4)}, {v1_}, {WS}, s5 offen sc1', 's2s'), Ins('s_add_u32 s5, s5, 20480')])
        out.append([Ins(f's_add_u32 s4, {sKVo}, {2*MB}'), Ins(f'buffer_store_dwordx4 {ar(32,4)}, {vL16}, {WS}, s4 offen sc1', 's2s'),
                    Ins(f'v_or_b32 {v0_}, {sEdge}, {vL16}'), Ins(f'v_or_b32 {v1_}, {sEdge}, {vS8}')])
        for l in range(2):
            out.append([Ins(f's_add_u32 s4, {sA20}, {HD(l)}'), Ins(f'buffer_store_dwordx4 {ar(32,4)}, {v0_}, {WS}, s4 offen sc1', 's2s'),
                        Ins(f'buffer_store_dwordx4 {ar(32,4)}, {v0_}, {WS}, s4 offen offset:1024 sc1', 's2s'),
                        Ins(f's_add_u32 s4, {sH20}, {HD(l)}'), Ins(f'buffer_store_dwordx2 {ar(32,2)}, {v1_}, {WS}, s4 offen sc1', 's2s')])
        return out

    def gwait(self):
        a = self.a; I = self.I
        sU = sT[8]
        I(f's_cmp_lg_u32 {sW}, 0'); I('s_cbranch_scc1 GB_WAIT')
        I(f's_lshr_b32 {sT[0]}, {sH}, 4')
        I(f'v_lshlrev_b32 v201, 1, v0'); I(f'v_add_u32 v201, {sT[0]}, v201')
        I('v_and_b32 v203, 15, v0'); I('v_lshlrev_b32 v203, 1, v203'); I(f'v_add_u32 v203, {sT[0]}, v203'); I('v_add_u32 v203, 128, v203')
        I('v_and_b32 v204, 31, v0'); I('v_lshlrev_b32 v204, 3, v204'); I(f'v_add_u32 v204, {sXG}, v204')
        I('v_cmp_gt_u32 vcc, 32, v0'); I('v_cndmask_b32 v203, v203, v204, vcc')
        I('v_lshlrev_b32 v201, 7, v201'); I('v_lshlrev_b32 v203, 7, v203')
        I(f's_mov_b32 {sT[1]}, {CNT}')
        I(f's_mov_b32 {sSpin}, {sDead}')
        a.label('GB_P1')
        if self.PSL: I(f's_sleep {self.PSL}')
        a.raw(f'    buffer_load_dwordx2 v[206:207], v201, {WS}, {sT[1]} offen sc1')
        a.raw(f'    buffer_load_dwordx2 v[208:209], v203, {WS}, {sT[1]} offen sc1')
        I('s_waitcnt vmcnt(0)')
        I('v_and_b32 v207, -16, v207'); I('v_and_b32 v202, 15, v209'); I('v_and_b32 v209, -16, v209')
        I('v_cmp_eq_u64 vcc, s[0:1], v[206:207]'); I('v_cmp_eq_u64 s[6:7], s[0:1], v[208:209]')
        I('s_and_b64 vcc, vcc, s[6:7]'); I('s_cmp_eq_u64 vcc, -1'); I('s_cbranch_scc1 GB_P1D')
        I(f's_sub_u32 {sSpin}, {sSpin}, 1'); I('s_cbranch_scc0 GB_P1')
        a.label('GB_P1D')
        I(f'v_cmp_eq_u32 vcc, {sU}, v202')
        I(f's_cmp_eq_u32 vcc_lo, -1'); I(f's_cselect_b32 {sT[0]}, 1, 0')
        I(f'v_mov_b32 v200, {sT[0]}'); I(f'v_mov_b32 v201, {7*BANK}')
        I('ds_write_b32 v201, v200')
        a.label('GB_WAIT')
        a.wait(lg=None)
        I('s_barrier')
        I(f'v_mov_b32 v201, {7*BANK}')
        I(f'ds_read_b32 {vT0}, v201', 'mode')
        self.stamp('gbar_done')

    def softmax(self, P, t, KL, wr=None):
        I = self.I
        I(f'v_max3_f32 v{t}, v{P}, v{P+1}, v{P+2}')
        I(f'v_max3_f32 v{t+1}, v{P+3}, v{P+4}, v{P+5}')
        for i in range(6, 18, 4):
            I(f'v_max3_f32 v{t}, v{t}, v{P+i}, v{P+i+1}')
            I(f'v_max3_f32 v{t+1}, v{t+1}, v{P+i+2}, v{P+i+3}')
        I(f'v_max3_f32 v{t}, v{t}, v{P+18}, v{P+19}')
        I(f'v_max_f32 v{t}, v{t}, v{t+1}')
        I(f'v_mul_f32 v{t}, {hex(f2u(-LOG2E))}, v{t}')
        for i in range(10): I(f'v_pk_fma_f32 {vr(P+2*i,2)}, {vr(P+2*i,2)}, {vr(KL,2)}, {vr(t,2)} op_sel_hi:[1,0,0]')
        for i in range(20): I(f'v_exp_f32 v{P+i}, v{P+i}')
        I(f'v_pk_add_f32 {vr(t,2)}, {vr(P,2)}, {vr(P+2,2)}')
        for i in range(2, 10): I(f'v_pk_add_f32 {vr(t,2)}, {vr(t,2)}, {vr(P+2*i,2)}')
        I(f'v_add_f32 v{t}, v{t}, v{t+1}')
        I(f'v_rcp_f32 v{t}, v{t}')
        if wr is None:
            for i in range(10): I(f'v_pk_mul_f32 {vr(P+2*i,2)}, {vr(P+2*i,2)}, {vr(t,2)} op_sel_hi:[1,0]')
            self.pack(P, P, 10)
        else:
            for i in range(5):
                for q in (2*i, 2*i+1): I(f'v_pk_mul_f32 {vr(P+2*q,2)}, {vr(P+2*q,2)}, {vr(t,2)} op_sel_hi:[1,0]')
                for q in (2*i, 2*i+1): I(f'v_cvt_pk_bf16_f32 v{P+q}, v{P+2*q}, v{P+2*q+1}')
                wr(i)

    def phi(self, P, B0, B1, AF, bphi):
        for t in range(5):
            self.I(f'v_mfma_f32_16x16x32_bf16 {vr(P+4*t,4)}, {vr(AF+4*t,4)}, {vr(B0,4)}, 0')
        for t in range(5):
            self.I(f'v_mfma_f32_16x16x32_bf16 {vr(P+4*t,4)}, {vr(AF+20+4*t,4)}, {vr(B1,4)}, {vr(P+4*t,4)}')

    def qkv(self, l, wb, bphi, bscr, tail, fill1, fill2, fill4):
        a = self.a; I = self.I
        AF, ACC = 64, 192
        RA, DA = 6, 5
        LA = self.LA0 if l == 0 else self.LA1
        NR = 4*(LA+1); XR = 192 - 4*NR; AR = XR - 24
        assert AR >= 104
        ONES, CWF, CWA = 20, 24, 32
        NP = [36, 38, 40, 42]
        vX = [vL16, 'v44', 'v45', 'v46']; vCW = [47, 48, 49]
        vPK, vV1, vV3, vTA, vTB, vRS, vKD, vKL, vA0, vA2, vO4, vO1, vCr, vCw = range(50, 64)
        kvl = bphi*BANK + 13312; cwo = bphi*BANK + 12288
        def setup():
            t0, t1, t2, t3, vTok, vG = 64, 65, 66, 67, 68, 69
            for t in range(1, 4): I(f'v_add_u32 {vX[t]}, {t*21504}, {vL16}')
            I(f's_lshl_b32 {sT[3]}, {sW}, 10')
            if l == 0:
                for r in range(4): I(f'v_mov_b32 v{ONES+r}, 0x3f803f80')
                for k, base in enumerate((vL16, vL16b, vL16c)): I(f'v_add_u32 v{vCW[k]}, {sT[3]}, {base}')
            for r in range(8): I(f'v_accvgpr_read_b32 v{76+r}, a{240+r}')
            I(f'v_bfe_u32 v{t0}, v0, 3, 1'); I(f'v_add_u32 v{t0}, -1, v{t0}'); I(f'v_not_b32 v{t1}, v{t0}')
            for r in range(8): I(f'v_and_b32 v{84+r}, v{76+r}, v{t0}')
            for r in range(8): I(f'v_and_b32 v{92+r}, v{76+r}, v{t1}')
            I(f'v_add_u32 v{t0}, {bphi*BANK}, {vL16}'); I(f'v_add_u32 v{t1}, {sT[3]}, v{t0}')
            I(f'ds_write_b128 v{t1}, {vr(84,4)}'); I(f'ds_write_b128 v{t0}, {vr(88,4)} offset:4096')
            I(f'ds_write_b128 v{t1}, {vr(92,4)} offset:5120'); I(f'ds_write_b128 v{t0}, {vr(96,4)} offset:9216')
            for r in range(4): I(f'v_mov_b32 v{72+r}, 0')
            I(f'v_min_u32 v{t0}, {35*16}, {vL16}'); I(f'v_add_u32 v{t0}, {kvl+96*21}, v{t0}')
            I(f'ds_write_b128 v{t0}, {vr(72,4)}')
        def setupB():
            t0, t1, t2, t3, vTok, vG = 64, 65, 66, 67, 68, 69
            if l: self.decomp(20, 248, 16, t0)
            I(f's_mov_b32 {sWB}, {bscr[1]*BANK}'); I(f's_cmp_lt_u32 {sW}, 2'); I(f's_cselect_b32 {sWB}, {bscr[0]*BANK}, {sWB}')
            I(f's_and_b32 {sT[3]}, {sW}, 1'); I(f's_mul_i32 {sT[3]}, {sT[3]}, 10240'); I(f's_add_u32 {sWB}, {sWB}, {sT[3]}')
            I(f'v_and_b32 v{vTok}, 15, v0'); I(f'v_lshrrev_b32 v{vG}, 4, v0')
            I(f's_lshl_b32 {sT[3]}, {sW}, 6'); I(f's_add_u32 {sT[3]}, {sT[3]}, {cwo}')
            I(f'v_lshlrev_b32 v{t0}, 4, v{vG}'); I(f'v_add_u32 v{vCw}, {sT[3]}, v{t0}'); I(f'v_add_u32 v{vCr}, {cwo}, v{t0}')
            I(f'v_lshrrev_b32 v{t0}, 5, v0'); I(f'v_lshl_add_u32 v{t0}, v{t0}, 4, v{vTok}'); I(f'v_mul_u32_u24 v{vPK}, 80, v{t0}')
            I(f'v_and_b32 v{t0}, 1, v{vG}'); I(f'v_mul_u32_u24 v{t0}, 40, v{t0}'); I(f'v_add3_u32 v{vPK}, v{vPK}, v{t0}, {sWB}')
            I(f'v_mul_u32_u24 v{t0}, 72, v{vTok}'); I(f'v_add_u32 v{t0}, {sWB}, v{t0}'); I(f'v_add_u32 v{t0}, 5120, v{t0}')
            I(f'v_lshlrev_b32 v{t1}, 3, v{vG}'); I(f'v_add_u32 v{vV1}, -8, v{t1}'); I(f'v_add_u32 v{vV3}, 16, v{t1}')
            I(f'v_cmp_eq_u32 vcc, 0, v{vG}'); I(f'v_cndmask_b32 v{vV1}, v{vV1}, 48, vcc'); I(f'v_cndmask_b32 v{vV3}, v{vV3}, 56, vcc')
            I(f'v_add_u32 v{vV1}, v{vV1}, v{t0}'); I(f'v_add_u32 v{vV3}, v{vV3}, v{t0}')
            I(f'v_lshrrev_b32 v{t0}, 2, v{vTok}'); I(f'v_lshl_add_u32 v{t0}, v{vG}, 3, v{t0}')
            I(f'v_and_b32 v{t1}, 3, v0'); I(f'v_lshlrev_b32 v{t1}, 3, v{t1}'); I(f'v_add_u32 v{t1}, {sWB}, v{t1}')
            I(f'v_mad_u32_u24 v{vTA}, v{t0}, 20, v{t1}'); I(f'v_mad_u32_u24 v{vTA}, v{t0}, 60, v{vTA}')
            I(f'v_mad_u32_u24 v{vTB}, v{t0}, 12, v{t1}'); I(f'v_mad_u32_u24 v{vTB}, v{t0}, 60, v{vTB}'); I(f'v_add_u32 v{vTB}, 5120, v{vTB}')
            I(f'v_min_u32 v{t0}, 59, v0')
            I(f'v_mul_u32_u24 v{t1}, 3277, v{t0}'); I(f'v_lshrrev_b32 v{t1}, 16, v{t1}')
            I(f'v_mul_u32_u24 v{t2}, 20, v{t1}'); I(f'v_sub_u32 v{t0}, v{t0}, v{t2}')
            I(f'v_mul_u32_u24 v{t2}, 13108, v{t0}'); I(f'v_lshrrev_b32 v{t2}, 16, v{t2}')
            I(f'v_mul_u32_u24 v{t3}, 5, v{t2}'); I(f'v_sub_u32 v{t0}, v{t0}, v{t3}')
            I(f's_cmp_eq_u32 {sW}, 3'); I('s_cselect_b64 vcc, -1, 0')
            I(f'v_mov_b32 v{t3}, {sW}')
            I(f'v_cndmask_b32 v{t1}, v{t3}, v{t1}, vcc')
            I(f'v_cndmask_b32 v{t2}, v{vG}, v{t2}, vcc')
            I(f'v_cndmask_b32 v{t0}, v{vTok}, v{t0}, vcc')
            I(f'v_cndmask_b32 v{t3}, 0, 1, vcc')
            I(f'v_lshlrev_b32 v{vRS}, 10, v{t1}'); I(f'v_mad_u32_u24 v{vRS}, v{t3}, {self.sconst(3072)}, v{vRS}')
            I(f'v_lshl_add_u32 v{vRS}, v{t2}, 8, v{vRS}'); I(f'v_lshl_add_u32 v{vRS}, v{t0}, 4, v{vRS}')
            I(f'v_lshl_add_u32 v{t1}, v{t1}, 2, v{t2}')
            I(f'v_lshl_add_u32 v{t0}, v{t3}, 4, v{t0}')
            I(f'v_mul_u32_u24 v{vKD}, 96, v{t0}'); I(f'v_lshl_add_u32 v{vKD}, v{t1}, 3, v{vKD}')
            I(f'v_cmp_le_u32 vcc, 5, v{t1}'); I(f'v_cndmask_b32 v{t0}, 0, 8, vcc'); I(f'v_add_u32 v{vKD}, v{vKD}, v{t0}')
            I(f'v_add_u32 v{vKD}, {kvl}, v{vKD}')
            I(f'v_cmp_gt_u32 vcc, 10, v{t1}')
            I(f'v_mov_b32 v{t0}, {kvl + 96*30}'); I(f'v_cndmask_b32 v{vKD}, v{t0}, v{vKD}, vcc')
            I(f'v_mov_b32 v{t0}, {OOB}'); I(f'v_lshlrev_b32 v{vKL}, 3, v0'); I(f'v_cndmask_b32 v{vKL}, v{t0}, v{vKL}, vcc')
            I(f'v_bfe_u32 v{t0}, v0, 2, 1'); I(f'v_and_b32 v{t1}, 3, v0')
            I(f'v_lshl_add_u32 v{t2}, v{t0}, 3, v{t1}')
            I(f'v_lshl_add_u32 v{t3}, v{t0}, 1, v{t1}'); I(f'v_add_u32 v{t3}, 16, v{t3}')
            I(f'v_cmp_le_u32 vcc, 2, v{t1}'); I(f'v_cndmask_b32 v{t3}, v{t3}, 20, vcc')
            I(f'v_bfe_u32 v{t0}, v0, 3, 1'); I(f'v_lshrrev_b32 v{t1}, 5, v0')
            I(f'v_cmp_eq_u32 vcc, v{t0}, v{t1}')
            I(f'v_cndmask_b32 v{t2}, 21, v{t2}, vcc'); I(f'v_cndmask_b32 v{t3}, 21, v{t3}, vcc')
            I(f'v_and_b32 v{t0}, 1, v{vG}'); I(f'v_mul_u32_u24 v{t0}, 48, v{t0}'); I(f'v_add_u32 v{t0}, {kvl}, v{t0}')
            I(f's_movk_i32 {sT[3]}, 96')
            I(f'v_mad_u32_u24 v{vA0}, v{t2}, {sT[3]}, v{t0}'); I(f'v_mad_u32_u24 v{vA2}, v{t3}, {sT[3]}, v{t0}')
            I(f'v_mul_u32_u24 v{vO4}, 20480, v{t1}'); I(f'v_lshl_add_u32 v{vO4}, v{vTok}, 4, v{vO4}')
            I(f'v_and_b32 v{t0}, 1, v{vG}')
            I(f'v_lshl_add_u32 v{vO1}, v{t0}, 2, v{vO4}'); I(f'v_lshl_add_u32 v{vO4}, v{t0}, 8, v{vO4}')
        def aread(f):
            s_, i = f >> 2, f & 3
            b, o = self.lds(wb[s_ // 5]*BANK + ((s_ % 5)*4 + i)*1024)
            I(f'ds_read_b128 {vr(AR+4*(f % RA),4)}, {b} offset:{o}', ('a', f))
        def cwread(s_):
            off = wb[s_ // 5]*BANK + (s_ % 5)*4096
            I(f'ds_read_b128 {vr(CWF+4*(s_&1),4)}, v{vCW[off>>16]} offset:{off & 0xffff}', ('cw', s_))
        def xload(n):
            s_ = n >> 2
            if n % 16 == 0:
                I(f's_add_u32 {sT[2]}, {sQT21}, s{36 + (s_ >> 2)}'); I(f's_add_u32 {sT[2]}, {sT[2]}, {XA(l)}')
            I(f'buffer_load_dwordx4 {vr(XR + 4*(n % NR),4)}, {vX[n & 3]}, {WS}, {sT[2]} offen offset:{(s_ & 3)*1024} sc1', ('x', n))
        self._lf = None
        def wstep(q):
            if q >= 20: return
            I(f's_lshl_b32 {sDm}, s{36 + (q >> 2)}, 2'); I(f's_add_u32 {sDm}, {sDm}, {sT[6]}'); I(f's_add_u32 {sDm}, {sDm}, {WT_QKV + (q & 3)*4096}')
            I(f's_add_u32 m0, s3, {wb[q//5]*BANK + (q % 5)*4096}')
            I(f'buffer_load_dwordx4 {vL16}, {WS}, {sDm} offen {"nt" if self.NTW & 4 else ""} lds', ('wq', q))
        if l == 0:
            setup(); setupB()
            self.gwait()
            self.emit(self.touchT(XA(0), 21504))
            I(f's_lshl_b32 s3, {sW}, 10')
            I(f's_mul_i32 {sT[6]}, {sH}, 81920'); I(f's_add_u32 {sT[6]}, {sT[6]}, s3')
            BS = self.BS; WO_ = BS + 2
            for q in range(3): wstep(q)
            nq = 3
            for q in range(LA):
                for t in range(4):
                    xload(4*q+t)
                    if nq < WO_ + q + 1 and t % 2 == 1: wstep(nq); nq += 1
            while nq < WO_ + LA: wstep(nq); nq += 1
            a.wait(lg='mode'); I(f'v_readfirstlane_b32 {sMODE}, {vT0}')
            a.wait(vm=('wq', 1)); I('s_barrier')
            self.ls('g0_bar')
            for f in range(DA): aread(f)
            cwread(0)
        else:
            setup()
            a.wait(lg=None); I('s_barrier')
            for f in range(DA): aread(f)
            I(f's_lshl_b32 {sT[3]}, {sXG}, 2'); I(f's_add_u32 {sT[3]}, {sT[3]}, {sW}'); I(f's_lshl_b32 {sT[3]}, {sT[3]}, 7'); I(f's_add_u32 {sT[3]}, {sT[3]}, {FL}')
            self.poll(vFl, sT[3], 8*(l-1)+5)
            self.stamp(f'qkv{l}_go')
            for n in range(4*LA): xload(n)
        ST = XR + 4*(80 % NR)
        tailf = tail()
        s2t = []
        if l == 0 and self.LSM == 1:
            s2t = self.s2_stores('v7', 'v18')
            s2t[0] = [Ins('v_accvgpr_read_b32 v7, a38'), Ins('v_accvgpr_read_b32 v18, a39')] + s2t[0]
        with a.capture() as G:
          for s_ in range(20):
            for i in range(4):
                f = 4*s_ + i
                for t in range(4):
                    if i == 0 or t == 0: a.wait(vm=('x', 4*s_+t) if i == 0 else False, lg=('a', f) if t == 0 else False)
                    d = vr(ACC + 16*t + 4*i, 4)
                    I(f'v_mfma_f32_16x16x32_bf16 {d}, {vr(AR+4*(f%RA),4)}, {vr(XR+4*((4*s_+t)%NR),4)}, {d if s_ else 0}')
                    if t == 0 and f + DA < 80:
                        if l == 0 and i == 0 and s_ + 2 < 20 and (s_ < 2 or (s_ - 2) % self.BS == 0):
                            a.wait(vm=('wq', min(19, s_+2 if s_ < 2 else s_+1+self.BS))); I('s_barrier')
                        aread(f + DA)
                    if t == 1:
                        n = 4*(s_+LA) + i
                        if n < 80: xload(n)
                        elif s_ == 20 - LA: self.load_frag(ST + 4*i, vX[i], sQT21, XA(l), 20, 'stat')
                        elif l == 0 and s_ == 18 and i == 0: self.emit(self.allchk_issue(0, XR + 4*(68 % NR)))
                    if l == 0 and t == 3 and i == 3: wstep(s_ + LA + self.BS + 2)
                    if s2t and t == 3 and s_ >= self.LSS and (s_ >= 18 or i % 2 == 0): a.extend(s2t.pop(0))
                    if l == 0 and t == 2 and i == 0 and s_ + 1 < 20: cwread(s_+1)
                    if t == 2 and 14 <= s_ and 4*(s_-14)+i < 10:
                        k = 4*(s_-14)+i
                        b, o = self.lds(bphi*BANK + k*1024)
                        I(f'ds_read_b128 {vr(AF+4*k,4)}, {b} offset:{o}', 'af')
            if s_ in (0, 4, 9, 14, 19): self.ls(f'g{l}_s{s_}')
            if l == 0:
                a.wait(lg=('cw', s_))
                I(f'v_mfma_f32_16x16x32_bf16 {vr(CWA,4)}, {vr(CWF+4*(s_&1),4)}, {vr(ONES,4)}, {vr(CWA,4) if s_ else 0}')
        nm = 340 if l == 0 else 320
        fill = (self.stchk(ST, 4, 2, NP[0], [(vX[t], sQT21, XA(l)+20480) for t in range(4)]) if l else [Wait(vm='stat')]) + rr(*[self.cap(self.cons_stats, ST+4*t, NP[t], NP[t]+1) for t in range(4)])
        gi = G.items
        if l:
            gi, lf = gapfill(gi, sccgroup(self.cap(setupB)), start=4)
            assert not lf
        o, left = gapfill(gi, fill, start=nm - self.STG)
        a.extend(o)
        self.stamp(f'qkv{l}_gemm')
        self.emit(tailf)
        if l: self.cpf()
        CW = 20
        if l == 0:
            I(f'ds_write_b128 v{vCw}, {vr(CWA,4)}')
            self.flat(left)
            I('v_accvgpr_read_b32 v48, a38'); I('v_accvgpr_read_b32 v49, a39')
            s2s = self.s2_stores('v48', 'v49') if self.LSM == 0 else []
            s2l = self.s2_stores('v48', 'v49') if self.LSM == 2 else []
            self.emit(s2t)
            self.allchk(XR + 4*(68 % NR))
            a.wait(lg=None); I('s_barrier')
            if self.TO0: self.emit(self.touch(WT_O, 50))
            self.emit(s2s[:3]); s2s = s2s[3:]
            for i in range(4): I(f'ds_read_b128 {vr(CW+4*i,4)}, v{vCr} offset:{i*64}', 'cwr')
            I(f'v_and_b32 v46, 15, v0'); I('v_lshrrev_b32 v47, 2, v46'); I('v_and_b32 v46, 3, v46')
            I(f'v_lshl_add_u32 v47, v47, 6, v{vCr}'); I('v_lshl_add_u32 v47, v46, 2, v47')
            I('ds_read_b32 v46, v47', 'cwr')
            self.emit(s2s[:2]); s2s = s2s[2:]
            a.wait(lg='cwr')
            I('v_accvgpr_write_b32 a248, v46')
        else:
            self.flat(left); s2s = []
        self.ls(f'e{l}_st')
        KL, tmp = 44, 46
        PP = (104, 124); PKD = 144; TA = 192; TB = 204; KVA = 232
        for t in range(4):
            for i in (0, 1, 3):
                for h in range(2):
                    r = ACC+16*t+4*i+2*h
                    I(f'v_pk_fma_f32 {vr(r,2)}, {vr(CW+4*i+2*h,2)}, {vr(NP[t],2)}, {vr(r,2)} op_sel_hi:[1,0,1]')
            for i in (0, 1, 3):
                for h in range(2):
                    r = ACC+16*t+4*i+2*h
                    I(f'v_pk_mul_f32 {vr(r,2)}, {vr(r,2)}, {vr(NP[t],2)} op_sel:[0,1] op_sel_hi:[1,1]')
        for t in range(4):
            for h in range(2):
                r = ACC+16*t+8+2*h
                I(f'v_pk_fma_f32 {vr(176+4*t+2*h,2)}, {vr(CW+8+2*h,2)}, {vr(NP[t],2)}, {vr(r,2)} op_sel_hi:[1,0,1]')
        self.ls(f'e{l}_fix')
        for t in range(2): self.pack(PKD+8*t, ACC+16*t, 4)
        I(f'v_lshrrev_b32 v24, 4, v0'); I('v_cmp_eq_u32 vcc, 3, v24'); I('v_mov_b32 v24, 0x3f80')
        I(f'v_mov_b32 v{KL}, {hex(f2u(LOG2E))}')
        a.wait(lg='af')
        f0 = []
        for t in (2, 3): f0 += self.cap(self.pack, PKD+8*t, ACC+16*t, 4)
        f1 = []
        for t in range(4):
            q = PKD + 8*t + 6
            f1 += self.cap(self.pack, q, ACC+16*t+12, 2)
            f1 += [Ins(f'v_cndmask_b32 v{q}, v{q}, v24, vcc'), Ins(f'v_cndmask_b32 v{q+1}, v{q+1}, 0, vcc')]
            f1 += [Ins(f'ds_write_b64 v{vV1}, {vr(PKD+8*t+2,2)} offset:{16*t*72}'), Ins(f'ds_write_b64 v{vV3}, {vr(q,2)} offset:{16*t*72}')]
        o, left = gapfill(self.cap(self.phi, PP[0], PKD, PKD+8, AF, bphi), f0 + f1)
        a.extend(o)
        o, left = gapfill(self.cap(self.phi, PP[1], PKD+16, PKD+24, AF, bphi), left)
        a.extend(o); a.extend(left)
        self.ls(f'e{l}_phi')
        def trA(p):
            return [[Ins(f'ds_read_b64_tr_b16 {vr(TA+20*p+4*ft+2*h,2)}, v{vTA} offset:{32*p*80+32*ft+320*h}', ('tr', p))] for ft in range(3) for h in range(2)]
        def trB(p):
            return [[Ins(f'ds_read_b64_tr_b16 {vr(TB+20*p+4*dt+2*h,2)}, v{vTB} offset:{32*p*72+32*dt+288*h}', ('tr', p))] for dt in range(2) for h in range(2)]
        def kvm(p):
            a.wait(lg=('tr', p))
            for dt in range(2):
                for ft in range(3):
                    d = vr(KVA + 4*(dt*3+ft), 4)
                    I(f'v_mfma_f32_16x16x32_bf16 {d}, {vr(TA+20*p+4*ft,4)}, {vr(TB+20*p+4*dt,4)}, {d if p else 0}')
        for p in range(2):
            wr = lambda i, p=p: I(f'ds_write_b64 v{vPK}, {vr(PP[p]+2*i,2)} offset:{32*p*80+8*i}')
            sm = self.cap(self.softmax, PP[p], tmp, KL, wr)
            extra = (trB(0) + trB(1) if p == 0 else trA(0))
            st_ = s2s[:3]; s2s = s2s[3:]
            mix = []
            for k, x in enumerate(extra):
                mix.append(x)
                if k % 2 == 1 and st_: mix.append(st_.pop(0))
            self.weave(sm, mix + st_, 7, first=3)
        self.emit(trA(1))
        assert not s2s
        self.ls(f'e{l}_sm')
        I(f'v_add_u32 v24, {sWB}, {vL16}')
        kvm(0); kvm(1)
        for k in range(4): I(f'v_add_u32 v{25+k}, {bscr[k >> 1]*BANK + (k & 1)*10240}, v{vRS}')
        I(f's_add_u32 {sT[3]}, {sKVo}, {l*2*MB}')
        for k in range(6): I(f'ds_write_b128 v24, {vr(KVA+4*k,4)} offset:{k*1024}')
        self.ls(f'e{l}_kv')
        a.wait(lg=None); I('s_barrier')
        self.ls(f'e{l}_bar2')
        for k in range(4): I(f'ds_read_b128 {vr(TA+4*k,4)}, v{25+k}')
        for t in range(4):
            for h in range(2):
                r = 176+4*t+2*h
                I(f'v_pk_mul_f32 {vr(r,2)}, {vr(r,2)}, {vr(NP[t],2)} op_sel:[0,1] op_sel_hi:[1,1]')
        for t in range(4): self.pack(PKD+8*t+4, 176+4*t, 2)
        a.wait(lg=None)
        for h in range(2):
            I(f'v_pk_add_f32 {vr(TA+2*h,2)}, {vr(TA+2*h,2)}, {vr(TA+4+2*h,2)}')
            I(f'v_pk_add_f32 {vr(TA+8+2*h,2)}, {vr(TA+8+2*h,2)}, {vr(TA+12+2*h,2)}')
        for h in range(2):
            I(f'v_pk_add_f32 {vr(TA+2*h,2)}, {vr(TA+2*h,2)}, {vr(TA+8+2*h,2)}')
        self.pack(TA, TA, 2)
        I(f'buffer_store_dwordx2 {vr(TA,2)}, v{vKL}, {WS}, {sT[3]} offen sc1', 'kvst')
        self.stamp(f'qkv{l}_kvpub')
        self.emit(fill1())
        f2 = fill2()
        NW = self.NW if l else self.NW0
        wv = f2[:NW]; f2 = f2[NW:]
        ph = self.cap(self.phi, PP[0], PKD+4, PKD+12, AF, bphi) + self.cap(self.phi, PP[1], PKD+20, PKD+28, AF, bphi)
        if l == 0:
            for k, base in enumerate((vL16, vL16b, vL16c)): I(f'v_add_u32 v{24+k}, {sLW}, {base}')
            st = []
            for k in range(20):
                off = wb[k // 5]*BANK + (k % 5)*1024
                st.append([Ins(f'ds_read_b128 {vr(176+4*k,4)}, v{24+(off>>16)} offset:{off & 0xffff}', 'stash')])
            self.weave(ph, st, 4)
            a.wait(lg=None)
        else:
            self.weave(ph, wv[:5], 16); wv = wv[5:]
        for p in range(2):
            sm = self.cap(self.softmax, PP[p], tmp, KL)
            h_ = (len(wv)+1)//2 if p == 0 else len(wv)
            self.weave(sm, wv[:h_], max(8, 90//max(1, h_))); wv = wv[h_:]
        self.stamp(f'qkv{l}_qsm')
        HP = 0
        self.emit(f2[:HP])
        G0 = 64
        L = a.newlabel('KVPOLL'); D = a.newlabel('KVDONE'); C = a.newlabel('KVCHK')
        I(f's_mov_b32 {sSpin}, {sDead}')
        for x in range(8):
            I(f's_add_u32 {sT[3]}, {sKVi}, {l*2*MB + x*8192}')
            I(f'buffer_load_dwordx2 {vr(G0+2*x,2)}, v{vKL}, {WS}, {sT[3]} offen sc1', 'kvl')
        self.emit(f2[HP:])
        if self.TW1 == 3: self.emit(self.touch(WT_1, 50))
        if l == 0: self.emit(s2l)
        I('v_mov_b32 v26, 0x3f80'); I('v_mov_b32 v27, 0x3f800000')
        for r in range(4): I(f'v_mov_b32 v{80+r}, 0')
        a.wait(vm='kvl')
        a.label(C)
        I(f'v_max3_u32 v24, v{G0}, v{G0+1}, v{G0+2}')
        I(f'v_max3_u32 v25, v{G0+3}, v{G0+4}, v{G0+5}')
        for i in range(6, 14, 4):
            I(f'v_max3_u32 v24, v24, v{G0+i}, v{G0+i+1}'); I(f'v_max3_u32 v25, v25, v{G0+i+2}, v{G0+i+3}')
        I(f'v_max3_u32 v24, v24, v{G0+14}, v{G0+15}')
        I(f'v_max_u32 v24, v24, v25')
        I('v_cmp_eq_u32 vcc, -1, v24')
        I('s_cmp_lg_u64 vcc, 0'); I(f's_cbranch_scc1 {L}')
        a.label(D)
        with a.capture() as c:
            a.label(L)
            I(f's_sub_u32 {sSpin}, {sSpin}, 1'); I(f's_cbranch_scc0 {L}_go')
            I(f's_mov_b32 {sDead}, 0'); I(f's_branch {D}')
            a.label(f'{L}_go')
            for x in range(8):
                r = G0+2*x
                I(f'v_max_u32 v24, v{r}, v{r+1}')
                I(f's_add_u32 {sT[3]}, {sKVi}, {l*2*MB + x*8192}')
                I('v_cmp_eq_u32 vcc, -1, v24')
                I('s_mov_b64 exec, vcc')
                I(f's_cbranch_execz {L}_s{x}')
                a.raw(f'    buffer_load_dwordx2 {vr(r,2)}, v{vKL}, {WS}, {sT[3]} offen sc1')
                a.label(f'{L}_s{x}')
                I('s_mov_b64 exec, -1')
            I('s_waitcnt vmcnt(0)')
            I(f's_branch {C}')
        self.ool += c.items
        self.stamp(f'qkv{l}_kvgot')
        for x in range(8):
            for r in range(4): I(f'v_dot2c_f32_bf16 v{80+r}, v{G0+2*x+(r>>1)}, v{26+(r&1)}')
        I('s_nop 2')
        self.pack(G0, 80, 2)
        I(f'ds_write_b64 v{vKD}, {vr(G0,2)}')
        for p in range(2):
            I(f's_add_u32 {sT[4+2*p]}, {sO4}, {OB(l)+2*p*20480}')
            I(f's_add_u32 {sT[5+2*p]}, {sO1}, {OB(l)+2*p*20480}')
        a.wait(vm='s2s' if (l == 0 and self.LSM != 2) else False, lg=None); I('s_barrier')
        if l == 0 and self.LSM != 2: self.arrive(1, 32)
        AO = 136
        for u in range(3):
            for t in range(3):
                b, o = (vA0, 384*t) if t < 2 else (vA2, 0)
                if u < 2: I(f'ds_read_b128 {vr(AO+12*t+4*u,4)}, v{b} offset:{o+16*u}', ('ao', u))
                else: I(f'ds_read_b64 {vr(AO+12*t+8,2)}, v{b} offset:{o+32}', ('ao', u))
        DO = (64, 80)
        def om(p, u):
            for t in range(3):
                if u < 2: I(f'v_mfma_f32_16x16x32_bf16 {vr(DO[p]+4*t,4)}, {vr(AO+12*t+4*u,4)}, {vr(PP[p]+4*u,4)}, {vr(DO[p]+4*t,4) if u else 0}')
                else: I(f'v_mfma_f32_16x16x16_bf16 {vr(DO[p]+4*t,4)}, {vr(AO+12*t+8,2)}, {vr(PP[p]+8,2)}, {vr(DO[p]+4*t,4)}')
        for u in range(3):
            a.wait(lg=('ao', u)); om(0, u)
        def fin(p, pk):
            I(f'v_add_f32 v{DO[p]+10}, {hex(f2u(1e-6))}, v{DO[p]+10}')
            I(f'v_rcp_f32 v{DO[p]+10}, v{DO[p]+10}')
            if pk:
                for i in range(5): I(f'v_pk_mul_f32 {vr(DO[p]+2*i,2)}, {vr(DO[p]+2*i,2)}, {vr(DO[p]+10,2)} op_sel_hi:[1,0]')
            else:
                for i in range(10): I(f'v_mul_f32 v{DO[p]+i}, v{DO[p]+i}, v{DO[p]+10}')
            self.pack(DO[p], DO[p], 5)
        with a.capture() as c:
            for u in range(3): om(1, u)
        o, left = gapfill(c.items, self.cap(fin, 0, False), start=2)
        a.extend(o); a.extend(left)
        def ost(p):
            a.slow_begin(sMODE)
            I(f'buffer_store_dwordx4 {vr(DO[p],4)}, v{vO4}, {WS}, {sT[4+2*p]} offen', 'st')
            I(f'buffer_store_dword v{DO[p]+4}, v{vO1}, {WS}, {sT[5+2*p]} offen', 'st')
            a.slow_end()
        ost(0); fin(1, True); ost(1)
        self.emit(fill4())
        a.wait(vm='st')
        self.setflag(sFLOo, l+1)
        self.stamp(f'qkv{l}_end')

    def sconst(self, val):
        self.I(f's_movk_i32 {sT[4]}, {val}'); return sT[4]

    def areadS(self, banks, m):
        s_, i = divmod(m, 5)
        b, o = self.lds(banks[s_ // 4]*BANK + ((s_ % 4)*5 + i)*1024)
        self.I(f'ds_read_b128 {vr(self.AR5+4*(m % self.RA5),4)}, {b} offset:{o}', ('a', m))
    def preloadS(self, banks):
        for m in range(self.DA5): self.areadS(banks, m)
    def gemmS(self, KS, banks, ACC, init, side, NR):
        a = self.a; I = self.I
        NM = 5*KS
        for m in range(NM):
            s_, i = divmod(m, 5)
            if i == 0 or m % self.WG == 0:
                a.wait(vm=('x', s_) if i == 0 else False, lg=('a', min(NM-1, m + self.WG - 1)) if m % self.WG == 0 else False)
            d = vr(ACC+4*i, 4)
            I(f'v_mfma_f32_16x16x32_bf16 {d}, {vr(self.AR5+4*(m % self.RA5),4)}, {vr(80+4*(s_%NR),4)}, {d if (s_ or init) else 0}')
            its = [it() if callable(it) else it for it in side.get(m, [])]
            bars = [x for x in its if any(isinstance(y, Ins) and y.op == 's_barrier' for y in x)]
            for x in bars: a.extend(x)
            if m + self.DA5 < NM: self.areadS(banks, m + self.DA5)
            for x in its:
                if x not in bars: a.extend(x)
    def put(self, side, bundles, start, every):
        for k, b in enumerate(bundles): side.setdefault(start + int(k*every), []).append(b)
    def put3(self, side, bundles, start, every):
        for k, b in enumerate(bundles):
            m = 3*int(round((start + k*every)/3.0))
            pre, ld = b[:-1], b[-1:]
            assert len(pre) <= 2
            for q, x in enumerate(pre): side.setdefault(m - len(pre) + q, []).append([x])
            side.setdefault(m, []).append(ld)
    def bar(self, vm=False, lg=False):
        return [Wait(vm, lg), Ins('s_barrier')]

    def small(self, banks, xl, ACC, init, tail, fill=None, NUP=None, name='', mid=44):
        self._lf = None
        NR = self.NR5; NUP = self.NUP
        for s_ in range(NUP): xl(s_, 80+4*(s_ % NR))
        side = {}
        for s_ in range(NUP, 20):
            m = max(int((s_-NUP)*self.XE), 5*(s_-NR) + 5 if s_ >= NR else 0)
            m += m & 1
            side.setdefault(m, []).append(lambda s_=s_: self.cap(xl, s_, 80+4*(s_ % NR)))
        if mid: side.setdefault(mid, []).append(self.bar())
        t0 = max(46, int(1 + (20-NUP)*self.XE) + 1)
        tail = [self.cap(self.cpf)] + list(tail)
        self.put(side, tail, t0, min(4.0, (self.TE-t0)/len(tail)))
        for m in (0, 43, 45, 99): side.setdefault(m, []).append(lambda m=m: self.cap(self.ls, f'{name}_m{m}'))
        if name[:2] == 'w1': side.setdefault(0, []).append(lambda: self.cap(self.ls, f'ga{name[2]}_m0'))
        items = self.cap(self.gemmS, 20, banks, ACC, init, side, NR)
        left = []
        for st, its in (fill or []):
            items, lf = gapfill(items, its, start=st); left += lf
        self.a.extend(items); self.flat(left)
    XE = float(os.environ.get('XE', 4.0)); NUP = int(os.environ.get('NUP', 8)); PB = int(os.environ.get('PB', 1))

    def layer(self, l, B):
        a = self.a; I = self.I
        last = (l == 1)
        ACC, XP, PK, TMP = 20, 40, 60, 72
        NMr, R1r, RRr = 76, 78, 74
        if l == 0: self.AR5, self.RA5, self.DA5, self.NR5, M = 128, 10, 8, 12, 168
        else:      self.AR5, self.RA5, self.DA5, self.NR5, M = 208, 12, 10, 20, 168
        n5 = 'nt' if self.NTW & 1 else ''; n4 = 'nt' if self.NTW & 2 else ''
        wo = lambda ch, bk: self.dma_b(sW5, WT_O + ch*BANK, bk, 'wo', sc=n5)
        w1 = lambda ch, bk: self.dma_b(sW5, WT_1 + ch*BANK, bk, 'w1', sc=n5)
        w2 = lambda ch, bk: self.dma_b(sW5, WT_2 + ch*BANK, bk, 'w2', sc=n5)
        CH = (lambda c: 11 - c) if (l and self.REV) else (lambda c: c)
        w4 = lambda ch, bk: self.dma_b(sW4, WT_4 + CH(ch)*BANK, bk, ('w4', ch), sc=n4)
        w4b = [B[4], B[7], B[0], B[3], B[1], B[2], B[5], B[6], B[4], B[7], B[0], B[3]]
        def w3l(k):
            kk = (k % 3)*20 + k // 3
            return [Ins(f's_add_u32 s3, {sW3}, {WT_3 + kk*1024}'), Ins(f'buffer_load_dwordx4 {ar(4*kk,4)}, {vL16}, {WS}, s3 offen {n4}', ('w3', k // 3))]
        def tq():
            r = self.touchT(OB(l), 20480) if not (l and self.NOT) else []
            if l:
                r += self.touch(WT_O, 50)
                if self.TW1 == 2: r += self.touch(WT_1, 50)
                if self.TW2:
                    with a.capture() as c2:
                        I(f's_lshr_b32 s7, {sWI}, 4'); I('s_mul_i32 s7, s7, 102400'); I(f's_and_b32 s6, {sWI}, 7'); I('s_mul_i32 s6, s6, 2560'); I('s_add_u32 s7, s7, s6')
                        I(f's_bitcmp1_b32 {sWI}, 3'); I(f's_cselect_b32 s6, {4*BANK}, 0'); I('s_add_u32 s7, s7, s6')
                    r.append(c2.items + self.touch2('s7', WT_2, 20)[0])
            return r
        f1 = lambda: self.touch(WT_1, 50) if (l and self.TW1 == 1) else []
        f2 = lambda: wo(0, B[7]) + wo(1, B[0]) + wo(2, B[1]) + wo(3, B[2]) + wo(4, B[3])
        f4 = lambda: w1(0, B[5])
        self.qkv(l, B[0:4], B[4], B[5:7], tq, f1, f2, f4)
        if self.stop == f'qkv{l}': return True
        wob = [B[7], B[0], B[1], B[2], B[3]]
        I('s_barrier')
        if l == 0 and self.LSM == 2: self.arrive(1, 32)
        self.preloadS(wob)
        self.unpack(ACC, RES, 10)
        I(f's_lshl_b32 {sT[3]}, {sC}, 7'); I(f's_add_u32 {sT[3]}, {sT[3]}, {FLO}')
        if self.PB: self.poll(vFl, sT[3], l+1, behind=w1(1, B[6]))
        else:
            self.emit(w1(1, B[6])); self.poll(vFl, sT[3], l+1)
        self.stamp(f'wo{l}_go')
        tl = ([] if self.G1 else w1(2, B[4])) + w1(3, B[7]) + w1(4, B[0])
        self.small(wob, lambda s_, r: self.load_frag(r, vL16, sT20, OB(l), s_, ('x', s_)), ACC, True, tl, name=f'wo{l}')
        self.stamp(f'wo{l}_gemm')
        self.ls(f'ga{l}_0')
        self.pack(PK, ACC, 10)
        self.store_tile(PK, XB(l), sA21, sH21)
        self.ls(f'ga{l}_st')
        self.prod_stats(ACC, TMP)
        self.store_stats(TMP, XB(l), 2 - l)
        self.ls(f'ga{l}_stats')
        if l == 0: self.emit(self.allchk_issue(1, M))
        for i in range(20): I(f'v_mov_b32 v{XP+i}, v{ACC+i}')
        a.wait(vm='st')
        self.ls(f'ga{l}_drain')
        self.setflag(sFLo, 8*l+1)
        CW = 176 if l else 128
        if l: self.decomp(CW, 249, 16, 70); self.decomp(CW+16, 250, 4, 70)
        I('s_barrier')
        self.ls(f'ga{l}_bar')
        if self.stop == f'wo{l}': return True
        w1b = [B[5], B[6], B[4], B[7], B[0]]
        def cw1():
            for k, base in enumerate((vL16, vL16b, vL16c)): I(f'v_add_u32 v{60+k}, {sLW}, {base}')
            for r in range(4): I(f'v_mov_b32 v{TMP+r}, 0x3f803f80')
            def rd(k):
                ch, i = divmod(k, 5); off = w1b[ch]*BANK + i*1024
                I(f'ds_read_b128 {vr(80+4*(k % 12),4)}, v{60+(off>>16)} offset:{off&0xffff}', ('cw', k))
            for k in range(10): rd(k)
            for k in range(25):
                a.wait(lg=('cw', k))
                d = vr(ACC+4*(k % 5), 4); I(f'v_mfma_f32_16x16x32_bf16 {d}, {vr(80+4*(k % 12),4)}, {vr(TMP,4)}, {d if k >= 5 else 0}')
                if k + 10 < 25: rd(k+10)
            cwo = B[3]*BANK
            I('v_lshrrev_b32 v70, 4, v0'); I('v_lshlrev_b32 v70, 4, v70'); I(f'v_add_u32 v70, {cwo}, v70')
            I(f's_mul_i32 {sT[3]}, {sW}, 320'); I(f'v_add_u32 v63, {sT[3]}, v70')
            I('v_bfe_u32 v71, v0, 2, 2'); I('v_and_b32 v64, 3, v0')
            I('v_lshl_add_u32 v70, v64, 2, v70'); I('v_lshl_add_u32 v71, v71, 6, v70')
            for i in range(5): I(f'ds_write_b128 v63, {vr(ACC+4*i,4)} offset:{i*64}', 'cww')
        if l == 0:
            cw1()
            self.preloadS(w1b)
            self.allchk(M)
        else:
            self.preloadS(w1b)
            if not self.PB: self.emit(w2(0, B[1]))
        I(f'v_and_b32 v{M}, 7, v0'); I(f'v_lshlrev_b32 v{M}, 2, v{M}')
        I(f's_lshl_b32 {sT[3]}, {sTT}, 5'); I(f's_add_u32 {sT[3]}, {sT[3]}, {FL}')
        if l == 0: a.wait(lg='cww')
        self.ls(f'ga{l}_pre')
        self.poll(f'v{M}', sT[3], 8*l+1, behind=(w2(0, B[1]) if l else []) if self.PB else None)
        self.ls(f'ga{l}_poll')
        self.stamp(f'w1{l}_go')
        fills = []
        if l == 0:
            its = []
            for k in range(4):
                its.append(Ins(f'ds_read_b32 v{60+k}, v71 offset:{k*320}', 'cr'))
                its.append(Ins(f'ds_read_b32 v{64+k}, v70 offset:{k*320+256}', 'cr'))
            fills.append((46, its))
            fills.append((66, [Wait(lg='cr'), Ins('v_add_f32 v60, v60, v61'), Ins('v_add_f32 v62, v62, v63'), Ins('v_add_f32 v64, v64, v65'), Ins('v_add_f32 v66, v66, v67'),
                               Ins('v_add_f32 v60, v60, v62'), Ins('v_add_f32 v64, v64, v66'), Ins('v_accvgpr_write_b32 a249, v60'), Ins('v_accvgpr_write_b32 a250, v64')]))
        fills.append((68, self.stchk(M+4, 1, 2 - l, NMr, [(vL16, sT21, XB(l)+20480)]) + self.cap(self.cons_stats, M+4, NMr, RRr, double=True, r1=R1r) + [Ins(f'v_mov_b32 v{M}, v{NMr}')] + self.cap(self.gconst, M, RRr)))
        stl = [lambda: self.cap(self.load_frag, M+4, vL16, sT21, XB(l), 20, 'stat')]
        tl = stl + (w2(0, B[1]) if l == 0 else []) + w2(1, B[2]) + w2(2, B[5]) + (w2(3, B[6]) if l else [])
        self.small(w1b, lambda s_, r: self.load_frag(r, vL16, sT21, XB(l), s_, ('x', s_)), ACC, False, tl, fills, name=f'w1{l}')
        self.stamp(f'w1{l}_gemm')
        if l == 0:
            for q in range(20): I(f'v_mov_b32_dpp v{CW+q}, v{60 if q < 16 else 64} row_newbcast:{q & 15} row_mask:0xf bank_mask:0xf')
        self.weave(self.cap(self.lgA, ACC, CW, 10, 80, M), w2(3, B[6]) if l == 0 else w2(4, B[3]), 8); self.lgB(ACC, 10, 80, M, True)
        self.pack(PK, ACC, 10)
        I(f'v_or_b32 v70, {sEdge}, {vL16}'); I(f'v_or_b32 v71, {sEdge}, {vS8}')
        self.store_tile(PK, HB(l), sA20, sH20)
        self.store_tile(PK, HD(l), sA20, sH20, sc1=True, vA='v70', vH='v71', tag='sth')
        for i in range(10): I(f'v_pk_add_f32 {vr(ACC+2*i,2)}, {vr(XP+2*i,2)}, {vr(NMr,2)} op_sel_hi:[1,0]')
        for i in range(10): I(f'v_pk_mul_f32 {vr(ACC+2*i,2)}, {vr(ACC+2*i,2)}, {vr(R1r,2)} op_sel_hi:[1,0]')
        I(f's_lshl_b32 {sT[3]}, {sTT}, 4')
        I('v_and_b32 v84, 15, v0'); I(f'v_add_u32 v84, {sT[3]}, v84')
        I('v_lshrrev_b32 v85, 4, v0'); I('v_lshlrev_b32 v85, 8, v85')
        I(f'v_mov_b32 v88, {OOB}'); I(f'v_mov_b32 v89, {HD(l)-HB(l)}')
        for gi, dl in enumerate((-1, 1, -2, 2)):
            if gi == 2:
                a.wait(vm='st'); self.setflag(sFLo, 8*l+2)
            I(f'v_add_u32 v86, {dl}, v84')
            I('v_lshrrev_b32 v87, 4, v86'); I('v_and_b32 v87, 0xff, v87'); I('v_mul_u32_u24 v87, 20480, v87')
            I(f'v_and_b32 v{M+gi}, 15, v86'); I(f'v_lshl_add_u32 v{M+gi}, v{M+gi}, 4, v87'); I(f'v_add_u32 v{M+gi}, v{M+gi}, v85')
            I('v_lshrrev_b32 v87, 8, v86'); I(f'v_cmp_ne_u32 vcc, {sXG}, v87')
            I('v_cndmask_b32 v87, 0, v89, vcc'); I(f'v_add_u32 v{M+gi}, v{M+gi}, v87')
            I('v_cmp_gt_u32 vcc, 0x800, v86'); I(f'v_cndmask_b32 v{M+gi}, v88, v{M+gi}, vcc')
        I('s_barrier')
        if self.stop == f'w1{l}': return True
        w2b = [B[1], B[2], B[5], B[6], B[3]]
        self.preloadS(w2b)
        if l == 0: self.emit(w2(4, B[3]))
        I(f's_and_b32 {sT[8]}, {sTT}, 15')
        I(f's_cmp_eq_u32 {sT[8]}, 0'); I(f's_cselect_b32 {sT[4]}, 32, 0')
        I(f's_cmp_eq_u32 {sT[8]}, 15'); I(f's_cselect_b32 {sT[5]}, 32, 64')
        I('v_and_b32 v84, 7, v0'); I('v_lshlrev_b32 v84, 2, v84'); I('v_lshrrev_b32 v86, 3, v0')
        I('v_mov_b32 v85, 32'); I(f'v_mov_b32 v87, {sT[4]}'); I(f'v_mov_b32 v88, {sT[5]}')
        I('v_cmp_eq_u32 vcc, 1, v86'); I('v_cndmask_b32 v85, v85, v87, vcc')
        I('v_cmp_eq_u32 vcc, 2, v86'); I('v_cndmask_b32 v85, v85, v88, vcc')
        I('v_add_u32 v85, v85, v84')
        I(f's_lshl_b32 {sT[3]}, {sTT}, 5'); I(f's_add_u32 {sT[3]}, {sT[3]}, {FL-32}')
        I('v_min_u32 v84, 59, v0'); I('v_add_u32 v87, -20, v84')
        I('v_lshrrev_b32 v88, 1, v87'); I('v_add_u32 v88, 40, v88'); I('v_and_b32 v87, 1, v87')
        I(f's_xor_b32 {sT[4]}, {sBot}, 1')
        I('v_cmp_gt_u32 vcc, 20, v84'); I('v_cndmask_b32 v88, v88, v84, vcc'); I(f'v_mov_b32 v89, {sT[4]}'); I('v_cndmask_b32 v87, v87, v89, vcc')
        I('v_lshlrev_b32 v86, 8, v88'); I('v_lshl_add_u32 v86, v87, 4, v86'); I(f'v_or_b32 v86, {sEdge}, v86')
        I(f's_cmp_eq_u32 {sBot}, 1'); I(f's_mov_b32 {sT[4]}, {HD(l) - 20480 + 14*16}'); I(f's_cselect_b32 {sT[4]}, {HD(l) + 20480 + 5120}, {sT[4]}')
        I(f's_add_u32 {sT[4]}, {sT[4]}, {sT20}')
        L = a.newlabel('POLL'); D = a.newlabel('PDONE')
        I(f's_mov_b32 {sSpin}, {sDead}')
        a.label(L)
        I(f'buffer_load_dword {vT0}, v85, {WS}, {sT[3]} offen sc1')
        I(f'buffer_load_dwordx4 {vr(88,4)}, v86, {WS}, {sT[4]} offen sc1')
        a.wait(vm=None)
        I(f'v_max3_u32 v88, v88, v89, v90'); I('v_max_u32 v88, v88, v91')
        I(f'v_cmp_le_u32 vcc, {8*l+2}, {vT0}'); I('v_cmp_ne_u32 s[6:7], -1, v88')
        I('s_and_b64 vcc, vcc, s[6:7]')
        I('s_cmp_eq_u64 vcc, -1'); I(f's_cbranch_scc1 {D}')
        I(f's_sub_u32 {sSpin}, {sSpin}, 1'); I(f's_cbranch_scc0 {L}')
        I(f's_mov_b32 {sDead}, 0')
        a.label(D)
        self.stamp(f'w2{l}_go')
        I(f's_mov_b32 {sT[3]}, 0')
        tl = (w4(0, w4b[0]) + w4(1, w4b[1]) if self.E4 else []) if l else w4(0, w4b[0]) + w4(1, w4b[1])
        self.small(w2b, lambda s_, r: self.load_frag(r, f'v{M+s_//5}', sT[3], HB(l), s_, ('x', s_)), ACC, True, tl, name=f'w2{l}', mid=0 if l else 68)
        self.stamp(f'w2{l}_gemm')
        self.pack(PK, ACC, 10)
        self.store_tile(PK, X1(l), sA21, sH21)
        self.prod_stats(ACC, TMP)
        self.store_stats(TMP, X1(l), 1 + l)
        NH = self.W3G if l == 0 else 0
        self.emit([w3l(k) for k in range(NH)])
        for i in range(10): I(f'v_pk_add_f32 {vr(XP+2*i,2)}, {vr(XP+2*i,2)}, {vr(ACC+2*i,2)}')
        xb = [B[1], B[2], B[5], B[6]]
        if l: CW3, ST3, A3, BF, GT = 80, 96, 128, 208, 176; NP3 = [112, 116, 120, 124]
        else: CW3, ST3, A3, BF, GT = 20, 60, 80, 128, 60; NP3 = [160, 164, 168, 172]
        a.wait(vm='st')
        self.setflag(sFLo, 8*l+3)
        if l: self.decomp(CW3, 251, 12, 92)
        I('s_barrier')
        if self.stop == f'w2{l}': return True
        I(f's_lshl_b32 {sT[3]}, {sC}, 7'); I(f's_add_u32 {sT[3]}, {sT[3]}, {FL}')
        def epiA(t): self.lgA(A3+12*t, CW3, 6, GT, NP3[t])
        def epiB(t, pk):
            self.lgB(A3+12*t, 6, GT, NP3[t], pk); self.pack(A3+12*t, A3+12*t, 6)
        def st3(t):
            acc = A3 + 12*t
            I(f's_add_u32 {sT[0]}, {sA48}, {H2(l)+t*49152}'); I(f's_add_u32 {sT[1]}, {sH48}, {H2(l)+t*49152}')
            pl = l and not self.H2SC
            sc = '' if pl else ' sc1'
            if pl: a.slow_begin(sMODE)
            I(f'buffer_store_dwordx4 {vr(acc,4)}, {vL16}, {WS}, {sT[0]} offen{sc}', 'st')
            I(f'buffer_store_dwordx2 {vr(acc+4,2)}, {vS8}, {WS}, {sT[1]} offen{sc}', 'st')
            if pl: a.slow_end()
        stf = self.stchk(ST3, 4, 1 + l, NP3[0], [(vL16, sC21, X1(l)+u*21504+20480) for u in range(4)]) + rr(*[self.cap(self.cons_stats, ST3+4*u, NP3[u], ST3+4*u+3) + self.cap(self.gconst, NP3[u], ST3+4*u+3) for u in range(4)])
        stl = lambda: [self.cap(self.load_frag, ST3+4*u, vL16, sC21, X1(l) + u*21504, 20, 'stat') for u in range(4)]
        if l == 0:
            for r in range(4): I(f'v_mov_b32 v{32+r}, 0x3f803f80')
            I(f's_mov_b32 {sT[6]}, {xb[0]*BANK}')
            for t in range(1, 4):
                I(f's_cmp_eq_u32 {sW}, {t}'); I(f's_cselect_b32 {sT[6]}, {xb[t]*BANK}, {sT[6]}')
            self.poll(vFl, sT[3], 8*l+3)
            self.stamp(f'w3{l}_go')
            self._lf = None
            x1 = lambda c: self.dma_b(sT21, X1(l) + c*5120, 0, ('x1', c), sc='sc1', slw=sT[6], ldsoff=c*5120)
            RB, DB = 8, 6
            def bread(n):
                s_, t = divmod(n, 4)
                b, o = self.lds(xb[t]*BANK + s_*1024)
                I(f'ds_read_b128 {vr(BF+4*(n % RB),4)}, {b} offset:{o}', ('b', n))
            WL = self.W3L
            self.emit(x1(0) + x1(1))
            self.emit([w3l(k) for k in range(NH, max(NH, 3*WL))])
            nw = max(NH, 3*WL)
            a.wait(vm=('x1', 0)); I('s_barrier')
            for n in range(DB): bread(n)
            xq = x1(2) + x1(3) + stl()
            late = w4(2, w4b[2]) + w4(3, w4b[3])
            with a.capture() as c:
                for s_ in range(20):
                    if s_ in (0, 5, 10, 15): self.ls(f'w30_s{s_}')
                    a.wait(vm=('w3', s_))
                    for t in range(5):
                        n = 4*s_ + t
                        for i in range(3):
                            if t < 4:
                                if i == 0: a.wait(lg=('b', n))
                                d = vr(A3+12*t+4*i, 4); bop = vr(BF+4*(n % RB), 4)
                            else:
                                d = vr(CW3+4*i, 4); bop = vr(32, 4)
                            I(f'v_mfma_f32_16x16x32_bf16 {d}, {ar(4*(i*20+s_),4)}, {bop}, {d if s_ else 0}')
                            if t < 4 and i == 0 and n + DB < 80:
                                if (n + DB) % 20 == 0:
                                    a.wait(vm=('x1', (n+DB)//20)); I('s_barrier')
                                bread(n + DB)
                            if i == 1:
                                if t < self.W3R and nw < 60: a.extend(w3l(nw)); nw += 1
                                elif xq and (t == 4 or nw >= 60): a.extend(xq.pop(0))
                                elif late and nw >= 60 and t % 2 == 0: a.extend(late.pop(0))
            assert nw == 60 and not xq, (nw, len(xq))
            o, left = gapfill(c.items, stf, start=240)
            a.extend(o); self.flat(left)
            self.ls('w30_k')
            I('s_barrier')
            wv = late + w4(4, xb[0]) + w4(5, xb[1]) + w4(6, xb[2]) + w4(7, xb[3])
            for t in range(4):
                k = (len(wv) - 5 + 2 - t)//(3 - t) if t < 3 else 0
                self.weave(self.cap(epiA, t) + self.cap(epiB, t, True), wv[:k], 16); wv = wv[k:]
                st3(t)
            self.emit(wv)
            I('v_and_b32 v33, 15, v0'); I(f'v_mov_b32 v32, v{CW3}')
            for i in range(1, 12):
                I(f'v_cmp_eq_u32 vcc, {i}, v33'); I(f'v_cndmask_b32 v32, v32, v{CW3+i}, vcc')
            I('v_accvgpr_write_b32 a251, v32')
        else:
            I(f's_add_u32 {sT[4]}, {sC21}, {sLW}')
            self.poll(vFl, sT[3], 8*l+3)
            self.stamp(f'w3{l}_go')
            self._lf = None
            x1 = lambda t: self.dma_b(sT[4], X1(l) + t*21504, xb[t], ('x1', t), sc='sc1')
            self.emit(x1(0) + stl())
            RB, DB = 8, 6
            def bread(n):
                t, s_ = divmod(n, 20)
                b, o = self.lds(xb[t]*BANK + s_*1024)
                I(f'ds_read_b128 {vr(BF+4*(n % RB),4)}, {b} offset:{o}', ('b', n))
            a.wait(vm=('x1', 0)); I('s_barrier')
            self.ls(f'w3{l}_x0')
            for n in range(DB): bread(n)
            vm_side = {}
            self.put3(vm_side, x1(1) + x1(2) + x1(3), 3, 3.9)
            self.put(vm_side, [self.cap(self.cpf)], 61, 1)
            if self.T4:
                I(f's_lshr_b32 {sT[7]}, {sWI}, 4'); I(f's_mul_i32 {sT[7]}, {sT[7]}, 245760'); I(f's_and_b32 s6, {sWI}, 15'); I('s_mul_i32 s6, s6, 6400')
                I(f's_add_u32 {sT[7]}, {sT[7]}, s6'); I(f's_add_u32 {sT[7]}, {sT[7]}, {WT_4 + 7*BANK}'); I(f's_add_u32 {sT[8]}, {sT[7]}, 4096')
                tb = [[Ins(f'buffer_load_dwordx4 a[252:255], {vL16}, {WS}, {sT[7 if k < 4 else 8]} offen offset:{(k&3)*1024}', 'touch')] for k in range(7)]
                for k, x in enumerate(tb): vm_side.setdefault(3*((self.T4 + k*self.T4E)//3) + 1, []).append(x)
            if self.WB:
                wl = a.newlabel('WB')
                self.put(vm_side, [[Ins(f's_cmp_lg_u32 {sWI}, 0'), Ins(f's_cbranch_scc1 {wl}'), Raw('    buffer_wbl2 sc1'), Label(wl)]], self.WB, 1)
            if not self.NOW4: self.put3(vm_side, ([] if self.E4 else w4(0, w4b[0]) + w4(1, w4b[1])) + w4(2, w4b[2]) + w4(3, w4b[3]) + w4(4, xb[0]) + w4(5, xb[1]) + w4(6, xb[2]), 63, 6.9 if self.E4 else 4.9)
            for t in range(4):
                with a.capture() as c:
                    for s_ in range(20):
                        n = 20*t + s_
                        for i in range(3):
                            m = 3*n + i
                            if m == 0: a.wait(lg=('b', 0))
                            d = vr(A3+12*t+4*i, 4)
                            I(f'v_mfma_f32_16x16x32_bf16 {d}, {ar(4*(i*20+s_),4)}, {vr(BF+4*(n % RB),4)}, {d if s_ else 0}')
                            if i == 0 and n + DB < 80:
                                if n == 14: a.wait(vm=('x1', 1)); I('s_barrier')
                                if n == 34: a.wait(vm=('x1', 3)); I('s_barrier')
                                if n == 54 or n == 62: I('s_barrier')
                                bread(n + DB)
                            for it in vm_side.get(m, []): a.extend(it)
                            if i == 0 and n + 1 < 80: a.wait(lg=('b', n+1))
                if t == 0: o, left = gapfill(c.items, stf, start=6)
                else: o, left = gapfill(c.items, self.cap(epiB, t-1, False) + [self.cap(st3, t-1)])
                a.extend(o)
                if os.environ.get('V'): print('w3 tile', t, 'left', len(left))
                for x in left:
                    if isinstance(x, list): a.extend(x)
                    else: a.items.append(x)
                epiA(t)
                self.ls(f'w3{l}_t{t}')
            epiB(3, True); st3(3)
        self.stamp(f'w3{l}_gemm')
        a.wait(vm='st')
        self.setflag(sFLo, 8*l+4)
        I('s_barrier')
        if self.stop == f'w3{l}': return True
        self.preloadS(w4b)
        if l and self.C7: self.emit(w4(7, w4b[7]))
        I(f's_lshl_b32 {sT[3]}, {sC}, 7'); I(f's_add_u32 {sT[3]}, {sT[3]}, {FL}')
        self.poll(vFl, sT[3], 8*l+4)
        self.stamp(f'w4{l}_go')
        if self.LOOP4 and l:
            I('s_mov_b32 s41, 0'); a.label('LP4'); a.wait(vm=None, lg=None); I('s_barrier'); self.preloadS(w4b); a.wait(lg=None)
            a.raw('    s_memtime s[20:21]')
        self._lf = None
        NR = 32 if l else 12
        xl = lambda s_: self.load_frag(80+4*(s_ % NR), vL16, sT48, H2(l), 4*CH(s_ // 4) + s_ % 4, ('x', s_))
        NUP = self.W4N1 if l else self.W4N
        for s_ in range(NUP): xl(s_)
        side = {}
        self.put(side, [(lambda s_=s_: self.cap(xl, s_)) for s_ in range(NUP, 48)], 1, self.W4X1 if l else 5)
        if l and not self.C7: self.put(side, w4(7, w4b[7]), 3, 8)
        side.setdefault(40, []).append(self.bar());  self.put(side, w4(8, w4b[8]) + w4(9, w4b[9]), 43, self.W4P)
        side.setdefault(90, []).append(self.bar(vm=('w4', 7)));  self.put(side, w4(10, w4b[10]) + w4(11, w4b[11]), max(93, int(43+10*self.W4P)), self.W4P)
        side.setdefault(195, []).append(self.cap(self.cpf))
        side.setdefault(149, []).append(self.bar(vm=[('w4', 8), ('w4', 9)]))
        side.setdefault(189, []).append(self.bar(vm=[('w4', 10), ('w4', 11)]))
        nB = [B[1], B[2], B[5], B[6], B[4], B[7], B[0], B[3]]
        def unst(k):
            off = nB[k // 5]*BANK + (k % 5)*1024
            return [Ins(f'ds_write_b128 v{M+(off>>16)}, {vr(176+4*k,4)} offset:{off & 0xffff}', 'unst')]
        if not last:
            for k, base in enumerate((vL16, vL16b, vL16c)): I(f'v_add_u32 v{M+k}, {sLW}, {base}')
            self.put(side, [unst(k) for k in range(self.NU)], 230 - 1, 1)
            if not self.NOT: self.put(side, self.touchT(XA(l+1), 21504), 192, 1)
        self.gemmS(48, w4b, XP, True, side, NR)
        if self.LOOP4 and l:
            a.raw('    s_memtime s[22:23]'); I('s_waitcnt lgkmcnt(0)')
            I('s_cmp_eq_u32 s41, 1'); I('s_cbranch_scc1 LP4D')
            I('s_mov_b32 s24, s20'); I('s_mov_b32 s26, s22'); I('s_mov_b32 s41, 1'); I('s_branch LP4')
            a.label('LP4D')
            self.lflush(['  it2start', '  it2', '  it1start', '  it1'])
        self.stamp(f'w4{l}_gemm')
        if not last:
            self.pack(RES, XP, 10)
            self.store_tile(RES, XA(l+1), sA21, sH21)
            self.prod_stats(XP, TMP)
            self.store_stats(TMP, XA(l+1), 2)
            self.emit([unst(k) for k in range(self.NU, self.NU+6)])
            a.wait(vm='st')
            self.setflag(sFLo, 8*l+5)
            self.emit([unst(k) for k in range(self.NU+6, 20)])
        else:
            self.pack(PK, XP, 10)
            I('v_and_b32 v20, 15, v0'); I('v_lshrrev_b32 v21, 4, v0')
            I('v_mul_u32_u24 v26, 1280, v20')
            I('v_lshl_add_u32 v27, v21, 4, v26'); I('v_lshl_add_u32 v28, v21, 3, v26')
            of = os.environ.get('OF', '')
            I(f'buffer_store_dwordx4 {vr(PK,4)}, v27, {OUT}, {sOutA} offen {of}')
            I(f'buffer_store_dwordx4 {vr(PK+4,4)}, v27, {OUT}, {sOutA} offen offset:64 {of}')
            I(f'buffer_store_dwordx2 {vr(PK+8,2)}, v28, {OUT}, {sOutH} offen {of}')
        self.stamp(f'w4{l}_end')
        self.nB = nB
        return self.stop == f'w4{l}'
    BS = int(os.environ.get('BS', 3)); STG = int(os.environ.get('STG', 8)); NOW4 = int(os.environ.get('NOW4', 0)); W3P = float(os.environ.get('W3P', 5))
    TLB = int(os.environ.get('TLB', 0))
    W3R = int(os.environ.get('W3R', 3))
    NW = int(os.environ.get('NW', 20)); NW0 = int(os.environ.get('NW0', 16)); C7 = int(os.environ.get('C7', 1)); W4N1 = int(os.environ.get('W4N1', 10)); W4X1 = float(os.environ.get('W4X1', 5))
    TE = int(os.environ.get('TE', 94)); TW1 = int(os.environ.get('TW1', 0)); TW2 = int(os.environ.get('TW2', 1))
    NTW = int(os.environ.get('NTW', 0)); NOT = int(os.environ.get('NOT', 1))
    T4E = int(os.environ.get('T4E', 24))
    REV = int(os.environ.get('REV', 0)); E4 = int(os.environ.get('E4', 0))
    LSM = int(os.environ.get('LSM', 2)); LSS = int(os.environ.get('LSS', 18)); TO0 = int(os.environ.get('TO0', 1))
    FW = int(os.environ.get('FW', 0)); PSL = int(os.environ.get('PSL', 0))
    LOOP4 = int(os.environ.get('LOOP4', 0))
    LA0 = 3; LA1 = 3; ROT = int(os.environ.get('ROT', 1))
    H2SC = int(os.environ.get('H2SC', 1)); WB = int(os.environ.get('WB', 0))
    G1 = int(os.environ.get('G1', 0)); G2 = int(os.environ.get('G2', 0)); W3L = int(os.environ.get('W3L', 5)); NU = int(os.environ.get('NU', 6))
    T4 = int(os.environ.get('T4', 0)); HP = int(os.environ.get('HP', 10)); S2M = int(os.environ.get('S2M', 0)); WG = int(os.environ.get('WG', 2))
    W4X = float(os.environ.get('W4X', 5)); W4P = float(os.environ.get('W4P', 5)); W4N = int(os.environ.get('W4N', 11))
    NTQ = int(os.environ.get('NTQ', 0))
    W3H = int(os.environ.get('W3H', 10)); W3G = int(os.environ.get('W3G', 6))
    R3 = float(os.environ.get('R3', 1.4))
    CPF = int(os.environ.get('CPF', 1))
    LS = 0

    def build(self):
        a = self.a
        self.prologue()
        if self.stop != 'prep':
            B = list(range(8))
            if not self.layer(0, B):
                self.layer(1, self.nB)
        a.wait(vm=None, lg=None)
        if os.environ.get('SPIN'):
            a.I('s_sub_u32 s98, s100, s98')
            a.raw('    s_memrealtime s[100:101]'); a.I('s_waitcnt lgkmcnt(0)')
            a.label('SPINL')
            a.raw('    s_memrealtime s[94:95]'); a.I('s_waitcnt lgkmcnt(0)')
            a.I('s_sub_u32 s94, s94, s100'); a.I('s_cmp_lt_u32 s94, s98'); a.I('s_cbranch_scc1 SPINL')
        a.label('KEND')
        a.I('s_endpgm')
        a.extend(self.ool)
        main, stubs, n = a.finalize()
        hdr = open('cdna_kernels/' + NAME[:-7] + '.s.ref').read().split('; Override launch')[0]
        out = hdr + f"""; Persistent fused kernel (generated by own script): 256 workgroups, one per CU.
; @launch grid=(256,1,1) block=(256,1,1) lds=163840
.amdgcn_target "amdgcn-amd-amdhsa--gfx950"
.text
.globl {NAME}
.p2align 8
.type {NAME},@function
{NAME}:
KSTART:
{main}
{stubs}
CODE_END:
.section .rodata,"a"
.p2align 6
.amdhsa_kernel {NAME}
  .amdhsa_next_free_vgpr 512
  .amdhsa_next_free_sgpr 102
  .amdhsa_accum_offset 256
  .amdhsa_group_segment_fixed_size 0
  .amdhsa_kernarg_size 96
  .amdhsa_user_sgpr_count 2
  .amdhsa_user_sgpr_kernarg_segment_ptr 1
  .amdhsa_system_sgpr_workgroup_id_x 1
.end_amdhsa_kernel
"""
        return out, n

if __name__ == '__main__':
    import argparse, json
    ap = argparse.ArgumentParser()
    ap.add_argument('-o', default='k.s'); ap.add_argument('--stop'); ap.add_argument('--stamps', action='store_true')
    args = ap.parse_args()
    g = Gen(args.stop, args.stamps)
    s, n = g.build()
    open(args.o, 'w').write(s)
    json.dump(g.stampnames, open(args.o + '.stamps.json', 'w'))
    print('instructions', n, 'bytes', len(s))
```

```python
import sys, struct, math
from asmlib import *

NAME = "interleave_layers__linear_kernel_hedgehog__mixer_s_mlp__prompt_kernel"
MB = 1 << 20
WT_QKV, WT_O, WT_1, WT_2, WT_3, WT_4 = 0, 3*MB, 4*MB, 5*MB, 6*MB, 8*MB
APHI = 10*MB
SYNC = 13*MB
CNT, FL, FLO, FLH = SYNC+0x10000, SYNC+0x1000, SYNC+0x2000, SYNC+0x4000
KVP = 14*MB
def LB(l): return 18*MB + l*24*MB
import os
SEP = bool(os.environ.get('SEP'))
def XA(l): return LB(l) if SEP else LB(0)
def OB(l): return LB(l)+3*MB if SEP else LB(0)+3*MB
def XB(l): return LB(l)+6*MB if SEP else LB(0)
def HB(l): return LB(l)+9*MB if SEP else LB(0)+3*MB
def HD(l): return LB(l)+12*MB if SEP else LB(0)+12*MB+l*3*MB
def X1(l): return LB(l)+15*MB if SEP else LB(0)
def H2(l): return LB(l)+18*MB if SEP else LB(0)+18*MB
STAMP = 80*MB
BANK = 20480
OOB = 0x80000000
def f2u(x): return struct.unpack('<I', struct.pack('<f', x))[0]
LOG2E = 1.4426950408889634
GC0 = -2.0*math.sqrt(2.0/math.pi)*LOG2E
GC1 = GC0*0.044715

WS = 's[8:11]'; TS = 's[12:15]'; OUT = 's[16:19]'
P_X, P_QKV, P_PHI, P_O, P_1, P_2, P_3, P_4, P_OUT, P_DBG, P_WS = 20, 22, 24, 26, 30, 32, 34, 36, 38, 40, 42
_sn = [44]
def S(n=1, align=1):
    while _sn[0] % align: _sn[0] += 1
    r = _sn[0]; _sn[0] += n; return r
sXG, sH, sCL, sJ, sC, sW, sMODE, sTT = [f's{S()}' for _ in range(8)]
sA21, sH21, sS21, sT21, sA20, sH20, sT20, sT48 = [f's{S()}' for _ in range(8)]
sW5, sW4, sWQ, sLW, sOutA, sOutH, sEdge, sDead = [f's{S()}' for _ in range(8)]
sQT21, sO4, sO1, sKVo, sKVi, sA48, sH48, sC21, sFLo, sFLOo, sWI, sWB, sBot, sW3 = [f's{S()}' for _ in range(14)]
sT = [f's{S()}' for _ in range(10)]
sSpin = f's{S()}'
sDm = f's{S()}'
sN0 = 's0'; sN1 = 's1'
_p = S(2, 2); sStamp = f's[{_p}:{_p+1}]'; sStampLo = f's{_p}'
sStampOff = f's{S()}'
assert _sn[0] <= 100, _sn

vL16, vL16b, vL16c, vS8, vST, vFl = 'v1', 'v2', 'v3', 'v4', 'v5', 'v6'
vT0, vT1 = 'v7', 'v18'
RES = 8
def v(i): return f'v{i}'
def vr(i, n): return f'v[{i}:{i+n-1}]'
def ar(i, n): return f'a[{i}:{i+n-1}]'

class Gen:
    def __init__(self, stop=None, stamps=False):
        self.a = Asm(); self.stop = stop; self.stamps = stamps; self.nstamp = 0; self.stampnames = []; self.ool = []; self._ls = []; self.LSR = os.environ.get('LSR')
    def I(self, t, tag=None): self.a.I(t, tag)
    def lds(self, off):
        base = [vL16, vL16b, vL16c][off >> 16]; return base, off & 0xffff
    DBGN = ['s1_loaded', 's1_drained', 'gbar_done', 'qkv0_gemm', 'qkv0_end', 'w10_go', 'w30_go', 'w40_go', 'qkv1_go', 'qkv1_gemm', 'qkv1_end', 'w31_go', 'w41_go', 'w41_end']
    def dbgstamp(self, name):
        if name not in self.DBGN: return
        k = self.DBGN.index(name); I = self.I
        L = self.a.newlabel('DBG')
        I(f's_lshl_b32 {sT[9]}, s2, 2'); I(f's_add_u32 {sT[9]}, {sT[9]}, {sW}'); I(f's_cmp_lg_u32 {sT[9]}, {int(os.environ["DBG"])}'); I(f's_cbranch_scc1 {L}')
        self.a.raw('    s_memrealtime s[94:95]'); I('s_waitcnt lgkmcnt(0)')
        I('s_sub_u32 s94, s94, s98'); I('v_mov_b32 v19, s94'); I('v_accvgpr_write_b32 a254, v19'); I(f'v_mov_b32 v19, {8+4*k}')
        self.a.raw('    global_store_dword v19, a254, s[42:43]')
        self.a.label(L)
    def stamp(self, name):
        if os.environ.get('DBG'): self.dbgstamp(name)
        sp = os.environ.get('SPIN', '').split(',')
        if name in sp:
            r = 98 if name == sp[0] else 100
            self.a.wait(lg=None); self.a.raw(f'    s_memrealtime s[{r}:{r+1}]'); self.I('s_waitcnt lgkmcnt(0)')
        if not self.stamps: return
        if name in os.environ.get('NOST', '').split(','): return
        self.lsf()
        I = self.I
        I(f's_memrealtime {sStamp}')
        I(f's_memtime s[100:101]')
        self.a.wait(lg=None)
        I(f'v_mov_b32 v19, {sStampLo}')
        I(f's_add_u32 {sT[9]}, {sStampOff}, {self.nstamp*4}')
        I(f'buffer_store_dword v19, off, {WS}, {sT[9]}', tag='stamp')
        I(f'v_mov_b32 v19, s100')
        I(f'buffer_store_dword v19, off, {WS}, {sT[9]} offset:256', tag='stamp')
        self.nstamp += 1; self.stampnames.append(name)

    def ls(self, name):
        if self.stamps and self.LSR and name.startswith(self.LSR):
            k = len(self._ls); assert k < 8
            self._ls.append(name); self.a.items.append(Raw(f'    s_memtime s[{20+2*k}:{21+2*k}]'))
    def lsf(self):
        if self._ls:
            n = self._ls; self._ls = []; self.lflush(['  ' + x for x in n])
    def lstamp(self, k):
        return [Raw(f'    s_memtime s[{20+2*k}:{21+2*k}]')] if self.stamps else []
    def lflush(self, names):
        if not self.stamps: return
        self.a.wait(lg=None)
        for k, n in enumerate(names):
            self.I(f'v_mov_b32 v19, s{20+2*k}')
            self.I(f's_add_u32 {sT[9]}, {sStampOff}, {self.nstamp*4}')
            self.I(f'buffer_store_dword v19, off, {WS}, {sT[9]} offset:256', tag='stamp')
            self.I(f'v_mov_b32 v19, 0')
            self.I(f'buffer_store_dword v19, off, {WS}, {sT[9]}', tag='stamp')
            self.nstamp += 1; self.stampnames.append(n)
    def dma_b(self, sbase, const, bank, tag, nper=5, sc='', slw=None, ldsoff=None):
        out = []
        slw = slw or sLW
        lo = bank*BANK if ldsoff is None else ldsoff
        for i in range(nper):
            with self.a.capture() as c:
                if i == 0:
                    self.I(f's_add_u32 m0, {slw}, {lo}')
                    self.I(f's_add_u32 {sDm}, {sbase}, {const}')
                if i == 4:
                    self.I(f's_add_u32 m0, m0, 4096')
                    self.I(f's_add_u32 {sDm}, {sDm}, 4096')
                self.I(f'buffer_load_dwordx4 {vL16}, {WS}, {sDm} offen offset:{(i&3)*1024} {sc} lds', tag)
            out.append(c.items)
        return out
    def emit(self, bundles):
        for b in bundles: self.a.extend(b)
    def dma_bank(self, *args, **kw): self.emit(self.dma_b(*args, **kw))
    def cap(self, fn, *args, **kw):
        with self.a.capture() as c: fn(*args, **kw)
        return c.items
    def weave(self, items, bundles, every, first=0):
        bi = 0; acc = every - first
        for k, it in enumerate(items):
            self.a.items.append(it)
            if isinstance(it, Ins):
                assert ('exec', 0) not in it.dst and not it.op.startswith(('s_cbranch', 's_branch')), it.text
                acc += 4 if it.kind == 'mfma' else (2 if it.kind == 'trans' else 1)
                nx = items[k+1] if k+1 < len(items) else None
                scc_live = isinstance(nx, Ins) and nx.op.startswith(('s_cselect', 's_cbranch', 's_addc', 's_subb'))
                if acc >= every and bi < len(bundles) and not scc_live:
                    self.a.extend(bundles[bi]); bi += 1; acc = 0
        self.emit(bundles[bi:])

    def touch(self, base, n, grp=0, tag='touch'):
        with self.a.capture() as c:
            I = self.I
            I(f's_mul_i32 s6, {sWI}, {n*128}'); I(f's_add_u32 s6, s6, {base}')
            if grp: I(f's_mul_i32 s7, {sXG}, {grp}'); I('s_add_u32 s6, s6, s7')
            I(f'v_min_u32 v19, {n-1}, v0'); I('v_lshlrev_b32 v19, 7, v19')
            I(f'buffer_load_dword a252, v19, {WS}, s6 offen sc1', tag)
        return [c.items]
    def touch2(self, sbase, const, n):
        with self.a.capture() as c:
            self.I(f's_add_u32 s6, {sbase}, {const}')
            self.I(f'v_min_u32 v19, {n-1}, v0'); self.I('v_lshlrev_b32 v19, 7, v19')
            self.I(f'buffer_load_dword a252, v19, {WS}, s6 offen sc1', 'touch')
        return [c.items]
    def touchT(self, base, tstride): return self.touch(base, tstride//1024, 16*tstride)
    def decomp(self, dst, areg, n, tmp):
        self.I(f'v_accvgpr_read_b32 v{tmp}, a{areg}')
        for i in range(n): self.I(f'v_mov_b32_dpp v{dst+i}, v{tmp} row_newbcast:{i} row_mask:0xf bank_mask:0xf')

    def cpf(self):
        I = self.I
        pl = self.a.newlabel('PCL')
        I('s_getpc_b64 s[4:5]')
        self.a.label(pl)
        I(f's_lshl_b32 s6, {sH}, 2'); I(f's_add_u32 s6, s6, {sW}'); I('s_and_b32 s6, s6, 31'); I('s_lshl_b32 s6, s6, 10')
        I(f'v_add_u32 v19, s6, {vL16}')
        I(f'v_min_u32 v19, CODE_END-{pl}-16, v19')
        I('global_load_dword a253, v19, s[4:5]', 'cpf')

    def poll(self, voff, soff, val, behind=None):
        a = self.a; I = self.I
        L = a.newlabel('POLL'); D = a.newlabel('PDONE')
        if behind is not None:
            I(f'buffer_load_dword {vT0}, {voff}, {WS}, {soff} offen sc1', 'pl')
            self.emit(behind)
            a.wait(vm='pl')
            I(f'v_cmp_le_u32 vcc, {val}, {vT0}')
            I('s_cmp_lg_u64 vcc, -1'); I(f's_cbranch_scc1 {L}')
            a.label(D)
            with a.capture() as c:
                a.label(L)
                I(f's_mov_b32 {sSpin}, {sDead}')
                a.label(L + '_l')
                a.raw(f'    buffer_load_dword {vT0}, {voff}, {WS}, {soff} offen sc1')
                I('s_waitcnt vmcnt(0)')
                I(f'v_cmp_le_u32 vcc, {val}, {vT0}')
                I('s_cmp_eq_u64 vcc, -1'); I(f's_cbranch_scc1 {D}')
                I(f's_sub_u32 {sSpin}, {sSpin}, 1'); I(f's_cbranch_scc0 {L}_l')
                I(f's_mov_b32 {sDead}, 0'); I(f's_branch {D}')
            self.ool += c.items
            return
        I(f's_mov_b32 {sSpin}, {sDead}')
        a.label(L)
        I(f'buffer_load_dword {vT0}, {voff}, {WS}, {soff} offen sc1')
        a.wait(vm=None)
        I(f'v_cmp_le_u32 vcc, {val}, {vT0}')
        I(f's_cmp_eq_u64 vcc, -1')
        I(f's_cbranch_scc1 {D}')
        I(f's_sub_u32 {sSpin}, {sSpin}, 1')
        I(f's_cbranch_scc0 {L}')
        I(f's_mov_b32 {sDead}, 0')
        a.label(D)

    def setflag(self, soff, val, sc1=False, vmask=None):
        I = self.I
        I(f'v_mov_b32 {vT0}, {val}')
        I(f'v_mov_b32 {vT1}, {vmask if vmask else 0}')
        I(f's_mov_b64 exec, 1')
        if sc1:
            I(f'buffer_store_dword {vT0}, {vT1}, {WS}, {soff} offen sc1', 'flag')
        else:
            self.a.slow_begin(sMODE)
            I(f'buffer_store_dword {vT0}, {vT1}, {WS}, {soff} offen', 'flag')
            self.a.slow_end()
        I(f's_mov_b64 exec, -1')

    def pack(self, dst, src, n):
        for i in range(n): self.I(f'v_cvt_pk_bf16_f32 v{dst+i}, v{src+2*i}, v{src+2*i+1}')
    def unpack(self, dst, src, n):
        for i in range(n):
            self.I(f'v_lshlrev_b32 v{dst+2*i}, 16, v{src+i}')
            self.I(f'v_and_b32 v{dst+2*i+1}, 0xffff0000, v{src+i}')

    def prod_stats(self, acc, t):
        I = self.I
        I(f'v_pk_add_f32 {vr(t,2)}, {vr(acc,2)}, {vr(acc+2,2)}')
        I(f'v_pk_mul_f32 {vr(t+2,2)}, {vr(acc,2)}, {vr(acc,2)}')
        I(f'v_pk_fma_f32 {vr(t+2,2)}, {vr(acc+2,2)}, {vr(acc+2,2)}, {vr(t+2,2)}')
        for i in range(2, 10):
            I(f'v_pk_add_f32 {vr(t,2)}, {vr(t,2)}, {vr(acc+2*i,2)}')
            I(f'v_pk_fma_f32 {vr(t+2,2)}, {vr(acc+2*i,2)}, {vr(acc+2*i,2)}, {vr(t+2,2)}')
        I(f'v_add_f32 v{t}, v{t}, v{t+1}')
        I(f'v_add_f32 v{t+2}, v{t+2}, v{t+3}')
        I(f'v_permlane32_swap_b32 v{t}, v{t+2}')
        I(f'v_add_f32 v{t}, v{t}, v{t+2}')
        I(f'v_mov_b32 v{t+1}, v{t}')
        I(f'v_permlane16_swap_b32 v{t}, v{t+1}')
        I(f'v_add_f32 v{t}, v{t}, v{t+1}')

    def stchk(self, F, n, par, t, srcs):
        a = self.a
        def ors():
            regs = list(range(F, F+4*n))
            self.I(f'v_or3_b32 v{t}, v{regs[0]}, v{regs[1]}, v{regs[2]}')
            k = 3
            while k + 1 < len(regs):
                self.I(f'v_or3_b32 v{t}, v{t}, v{regs[k]}, v{regs[k+1]}'); k += 2
            self.I(f'v_or_b32 v{t}, v{t}, v{regs[k]}')
            self.I(f'v_and_b32 v{t}, {3 - par}, v{t}')
            self.I(f'v_cmp_ne_u32 vcc, 0, v{t}')
        R = a.newlabel('STR'); Bk = a.newlabel('STB')
        items = [Wait(vm='stat')] + self.cap(ors) + [[Ins('s_cmp_lg_u64 vcc, 0'), Ins(f's_cbranch_scc1 {R}'), Label(Bk)]]
        with a.capture() as c:
            a.label(R)
            self.I(f's_mov_b32 {sSpin}, {sDead}')
            a.label(R + '_l')
            self.I('s_nop 7'); self.I('s_nop 7')
            for k, (vo, sb, co) in enumerate(srcs):
                self.I(f's_add_u32 s7, {sb}, {co}')
                a.raw(f'    buffer_load_dwordx4 {vr(F+4*k,4)}, {vo}, {WS}, s7 offen sc1')
            self.I('s_waitcnt vmcnt(0)')
            ors()
            self.I('s_cmp_eq_u64 vcc, 0'); self.I(f's_cbranch_scc1 {Bk}')
            self.I(f's_sub_u32 {sSpin}, {sSpin}, 1'); self.I(f's_cbranch_scc0 {R}_l')
            self.I(f's_mov_b32 {sDead}, 0'); self.I(f's_branch {Bk}')
        self.ool += c.items
        return items
    def flat(self, items):
        for x in items:
            if isinstance(x, list): self.a.extend(x)
            else: self.a.items.append(x)

    def cons_stats(self, F, nm, r, double=False, r1=None):
        I = self.I
        I(f'v_add_f32 v{F}, v{F}, v{F+2}'); I(f'v_add_f32 v{F+1}, v{F+1}, v{F+3}')
        I(f'v_permlane32_swap_b32 v{F}, v{F+1}')
        I(f'v_add_f32 v{F}, v{F}, v{F+1}')
        I(f'v_mov_b32 v{F+1}, v{F}')
        I(f'v_permlane16_swap_b32 v{F}, v{F+1}')
        I(f'v_add_f32 v{F}, v{F}, v{F+1}')
        I(f'v_mov_b32 v{F+1}, v{F}')
        I(f'v_permlane32_swap_b32 v{F}, v{F+1}')
        I(f'v_mul_f32 v{nm}, {hex(f2u(-1.0/640))}, v{F}')
        I(f'v_mul_f32 v{F+1}, {hex(f2u(1.0/640))}, v{F+1}')
        I(f'v_fma_f32 v{F+1}, -v{nm}, v{nm}, v{F+1}')
        I(f'v_max_f32 v{F+1}, 0, v{F+1}')
        I(f'v_add_f32 v{F+2}, {hex(f2u(1e-5))}, v{F+1}')
        if not double:
            I(f'v_rsq_f32 v{r}, v{F+2}')
        else:
            I(f'v_rsq_f32 v{r1}, v{F+2}')
            I(f'v_mul_f32 v{F+1}, v{F+1}, v{r1}')
            I(f'v_mul_f32 v{F+1}, v{F+1}, v{r1}')
            I(f'v_add_f32 v{F+1}, {hex(f2u(1e-5))}, v{F+1}')
            I(f'v_rsq_f32 v{F+1}, v{F+1}')
            I(f'v_mul_f32 v{r}, v{r1}, v{F+1}')

    def lnfixp(self, acc, cw, n2, p):
        for i in range(n2):
            self.I(f'v_pk_fma_f32 {vr(acc+2*i,2)}, {vr(cw+2*i,2)}, {vr(p,2)}, {vr(acc+2*i,2)} op_sel_hi:[1,0,1]')
        for i in range(n2):
            self.I(f'v_pk_mul_f32 {vr(acc+2*i,2)}, {vr(acc+2*i,2)}, {vr(p,2)} op_sel:[0,1] op_sel_hi:[1,1]')
    def lnfix(self, acc, cw, n2, nm, r):
        for i in range(n2):
            self.I(f'v_pk_fma_f32 {vr(acc+2*i,2)}, {vr(cw+2*i,2)}, {vr(nm,2)}, {vr(acc+2*i,2)} op_sel_hi:[1,0,1]')
        for i in range(n2):
            self.I(f'v_pk_mul_f32 {vr(acc+2*i,2)}, {vr(acc+2*i,2)}, {vr(r,2)} op_sel_hi:[1,0]')

    def gelu(self, x, n2, t, K):
        I = self.I
        for i in range(n2): I(f'v_pk_mul_f32 {vr(t+2*i,2)}, {vr(x+2*i,2)}, {vr(x+2*i,2)}')
        for i in range(n2): I(f'v_pk_fma_f32 {vr(t+2*i,2)}, {vr(t+2*i,2)}, {vr(K,2)}, {vr(K,2)} op_sel:[0,0,1] op_sel_hi:[1,0,1]')
        for i in range(n2): I(f'v_pk_mul_f32 {vr(t+2*i,2)}, {vr(t+2*i,2)}, {vr(x+2*i,2)}')
        for i in range(2*n2): I(f'v_exp_f32 v{t+i}, v{t+i}')
        for i in range(n2): I(f'v_pk_add_f32 {vr(t+2*i,2)}, {vr(t+2*i,2)}, {vr(K+2,2)} op_sel_hi:[1,0]')
        for i in range(2*n2): I(f'v_rcp_f32 v{t+i}, v{t+i}')
        for i in range(n2): I(f'v_pk_mul_f32 {vr(x+2*i,2)}, {vr(x+2*i,2)}, {vr(t+2*i,2)}')
    def gconst(self, G, r):
        I = self.I
        I(f'v_rcp_f32 v{G+1}, v{r}')
        I(f'v_mul_f32 v{G+3}, {hex(f2u(GC0))}, v{r}')
        I(f'v_mul_f32 v{G+2}, v{r}, v{r}')
        I(f'v_mul_f32 v{G+2}, v{G+2}, v{G+3}')
        I(f'v_mul_f32 v{G+2}, {hex(f2u(0.044715))}, v{G+2}')
    def lgA(self, x, cw, n2, t, G):
        I = self.I
        for i in range(n2): I(f'v_pk_fma_f32 {vr(x+2*i,2)}, {vr(cw+2*i,2)}, {vr(G,2)}, {vr(x+2*i,2)} op_sel_hi:[1,0,1]')
        for i in range(n2): I(f'v_pk_mul_f32 {vr(t+2*i,2)}, {vr(x+2*i,2)}, {vr(x+2*i,2)}')
        for i in range(n2): I(f'v_pk_fma_f32 {vr(t+2*i,2)}, {vr(t+2*i,2)}, {vr(G+2,2)}, {vr(G+2,2)} op_sel:[0,0,1] op_sel_hi:[1,0,1]')
        for i in range(n2): I(f'v_pk_mul_f32 {vr(t+2*i,2)}, {vr(t+2*i,2)}, {vr(x+2*i,2)}')
    def lgB(self, x, n2, t, G, pk):
        I = self.I
        for i in range(2*n2): I(f'v_exp_f32 v{t+i}, v{t+i}')
        if pk:
            for i in range(n2): I(f'v_pk_fma_f32 {vr(t+2*i,2)}, {vr(t+2*i,2)}, {vr(G,2)}, {vr(G,2)} op_sel:[0,1,1] op_sel_hi:[1,1,1]')
        else:
            for i in range(2*n2): I(f'v_fma_f32 v{t+i}, v{t+i}, v{G+1}, v{G+1}')
        for i in range(2*n2): I(f'v_rcp_f32 v{t+i}, v{t+i}')
        if pk:
            for i in range(n2): I(f'v_pk_mul_f32 {vr(x+2*i,2)}, {vr(x+2*i,2)}, {vr(t+2*i,2)}')
        else:
            for i in range(2*n2): I(f'v_mul_f32 v{x+i}, v{x+i}, v{t+i}')
    def geluA(self, x, n2, t, K):
        I = self.I
        for i in range(n2): I(f'v_pk_mul_f32 {vr(t+2*i,2)}, {vr(x+2*i,2)}, {vr(x+2*i,2)}')
        for i in range(n2): I(f'v_pk_fma_f32 {vr(t+2*i,2)}, {vr(t+2*i,2)}, {vr(K,2)}, {vr(K,2)} op_sel:[0,0,1] op_sel_hi:[1,0,1]')
        for i in range(n2): I(f'v_pk_mul_f32 {vr(t+2*i,2)}, {vr(t+2*i,2)}, {vr(x+2*i,2)}')
    def geluB(self, x, n2, t):
        I = self.I
        for i in range(2*n2): I(f'v_exp_f32 v{t+i}, v{t+i}')
        for i in range(2*n2): I(f'v_add_f32 v{t+i}, 1.0, v{t+i}')
        for i in range(2*n2): I(f'v_rcp_f32 v{t+i}, v{t+i}')
        for i in range(2*n2): I(f'v_mul_f32 v{x+i}, v{x+i}, v{t+i}')
    def gelu_consts(self, K):
        self.I(f'v_mov_b32 v{K}, {hex(f2u(GC1))}')
        self.I(f'v_mov_b32 v{K+1}, {hex(f2u(GC0))}')
        self.I(f'v_mov_b32 v{K+2}, 1.0')

    def store_tile(self, P, buf, sA, sHh, sc1=False, vA=vL16, vH=vS8, tag='st'):
        I = self.I
        sc = ' sc1' if sc1 else ''
        I(f's_add_u32 {sT[0]}, {sA}, {buf}')
        I(f's_add_u32 {sT[1]}, {sHh}, {buf}')
        if not sc1: self.a.slow_begin(sMODE)
        I(f'buffer_store_dwordx4 {vr(P,4)}, {vA}, {WS}, {sT[0]} offen{sc}', tag)
        I(f'buffer_store_dwordx4 {vr(P+4,4)}, {vA}, {WS}, {sT[0]} offen offset:1024{sc}', tag)
        I(f'buffer_store_dwordx2 {vr(P+8,2)}, {vH}, {WS}, {sT[1]} offen{sc}', tag)
        if not sc1: self.a.slow_end()
    def store_stats(self, t, buf, par, sc1=False, tag='stt'):
        I = self.I
        I(f'v_and_or_b32 v{t}, v{t}, -4, {par}')
        I(f's_add_u32 {sT[0]}, {sS21}, {buf}')
        if not sc1: self.a.slow_begin(sMODE)
        I(f'buffer_store_dword v{t}, {vST}, {WS}, {sT[0]} offen' + (' sc1' if sc1 else ''), tag)
        if not sc1: self.a.slow_end()

    def load_frag(self, dst, voff, sbase, const, idx, tag, areg=False, sc=' sc1', state={}):
        key = (sbase, const, idx >> 2)
        if self._lf != key:
            self.I(f's_add_u32 {sT[2]}, {sbase}, {const + (idx >> 2)*4096}')
            self._lf = key
        d = ar(dst, 4) if areg else vr(dst, 4)
        self.I(f'buffer_load_dwordx4 {d}, {voff}, {WS}, {sT[2]} offen offset:{(idx & 3)*1024}{sc}', tag)
    _lf = None

    def tsrd(self, p, nbytes):
        self.I(f's_mov_b32 s12, s{p}'); self.I(f's_and_b32 s13, s{p+1}, 0xffff'); self.I(f's_mov_b32 s14, {nbytes}')

    def rowcol(self, q, magic, lpr, rs):
        I = self.I
        I(f'v_add_u32 v26, {q}, v0')
        I(f'v_mul_u32_u24 v27, {magic}, v26'); I('v_lshrrev_b32 v27, 16, v27')
        I(f'v_mul_u32_u24 v28, {lpr}, v27'); I('v_sub_u32 v28, v26, v28')
        I(f'v_mul_u32_u24 v29, {rs}, v27'); I('v_lshl_add_u32 v29, v28, 4, v29')

    def prologue(self):
        a = self.a; I = self.I
        sRS, sEx, sSrc, sDst, sTile, sU, sLB = sT[3], sT[4], sT[5], sT[6], sT[7], sT[8], sWB
        sInvA, sInvB, sSrc3 = 's6', 's7', 's3'
        I('s_cmp_ge_u32 s2, 256')
        I('s_cbranch_scc1 KEND')
        I('s_load_dwordx16 s[20:35], s[0:1], 0')
        I('s_load_dwordx8 s[36:43], s[0:1], 64')
        if self.stamps or os.environ.get('DBG') or os.environ.get('SPIN'): I('s_memrealtime s[98:99]')
        I('s_getpc_b64 s[4:5]')
        a.label('PCL0')
        I(f's_lshr_b32 {sH}, s2, 3')
        I(f's_lshl_b32 {sT[0]}, {sH}, 12')
        I(f'v_lshl_add_u32 v26, v0, 4, {sT[0]}')
        I('v_min_u32 v26, CODE_END-PCL0-16, v26')
        I('global_load_dword a253, v26, s[4:5]')
        I('v_lshrrev_b32 v7, 6, v0')
        I('v_mov_b32 v25, v0')
        I(f'v_readfirstlane_b32 {sW}, v7')
        I('v_and_b32 v0, 63, v0')
        I(f's_and_b32 {sXG}, s2, 7')
        I(f's_lshr_b32 {sCL}, {sH}, 3'); I(f's_and_b32 {sJ}, {sH}, 7')
        I(f's_lshl_b32 {sC}, {sXG}, 2'); I(f's_add_u32 {sC}, {sC}, {sCL}')
        I(f's_lshl_b32 {sTT}, {sC}, 2'); I(f's_add_u32 {sTT}, {sTT}, {sW}')
        I(f's_mul_i32 {sT[0]}, {sJ}, 5'); I(f's_add_u32 {sT[0]}, {sT[0]}, 1'); I(f's_lshr_b32 {sT[0]}, {sT[0]}, 1')
        I(f's_lshl_b32 {sA21}, {sT[0]}, 10')
        I(f's_mul_i32 {sH21}, {sJ}, 2560')
        I(f's_bitcmp0_b32 {sJ}, 0'); I(f's_cselect_b32 {sT[3]}, 2048, 0'); I(f's_add_u32 {sH21}, {sH21}, {sT[3]}')
        I(f's_mul_i32 {sT20}, {sTT}, 20480')
        I(f's_lshr_b32 {sOutA}, {sA21}, 4'); I(f's_lshr_b32 {sOutH}, {sH21}, 4')
        I(f's_add_u32 {sOutA}, {sOutA}, {sT20}'); I(f's_add_u32 {sOutH}, {sOutH}, {sT20}')
        I('v_and_b32 v20, 15, v0'); I('v_lshrrev_b32 v21, 4, v0')
        I('v_mul_u32_u24 v26, 1280, v20')
        I('v_lshl_add_u32 v36, v21, 4, v26'); I('v_lshl_add_u32 v37, v21, 3, v26')
        I(f's_lshr_b32 {sT[1]}, s2, 1'); I(f's_and_b32 {sT[0]}, s2, 1')
        I(f's_mul_i32 {sSrc}, {sT[1]}, {8*3840}'); I(f's_mul_i32 {sT[2]}, {sT[0]}, 640'); I(f's_add_u32 {sSrc}, {sSrc}, {sT[2]}')
        I(f's_cmp_lt_u32 s2, 160'); I(f's_cselect_b32 {sInvA}, 0, {OOB}'); I(f's_cselect_b32 {sSrc}, {sSrc}, 0')
        for k in range(4):
            I(f'v_add_u32 v26, {256*k}, v25')
            I('v_mul_u32_u24 v27, 13108, v26'); I('v_lshrrev_b32 v27, 19, v27')
            I('v_mul_u32_u24 v28, 40, v27'); I('v_sub_u32 v28, v26, v28')
            I('v_and_b32 v29, 7, v27'); I('v_mul_u32_u24 v29, 3840, v29'); I('v_lshl_add_u32 v29, v28, 4, v29')
            I('v_lshrrev_b32 v27, 3, v27'); I('v_mul_u32_u24 v28, 1280, v27'); I(f'v_add3_u32 v{40+k}, v29, v28, {sInvA}')
        I('v_cmp_gt_u32 vcc, 3, v27'); I(f'v_mov_b32 v28, {OOB}'); I('v_cndmask_b32 v43, v28, v43, vcc')
        I(f's_lshl_b32 {sLB}, {sW}, 10')
        I('s_mov_b32 s15, 0x20000'); I('s_mov_b32 s11, 0x20000'); I('s_mov_b32 s19, 0x20000')
        I('s_mov_b32 s10, 0x10000000'); I('s_mov_b32 s18, 2621440')
        I(f's_lshl_b32 {sU}, s2, 2'); I(f's_add_u32 {sU}, {sU}, {sW}')
        I('s_memrealtime s[94:95]')
        a.wait(lg=None)
        I(f's_mov_b32 s8, s{P_WS}'); I(f's_and_b32 s9, s{P_WS+1}, 0xffff')
        I(f's_cmp_lg_u32 {sU}, 3'); I('s_cbranch_scc1 NOTAG')
        I('s_lshl_b32 s95, s95, 4'); I('s_or_b32 s95, s95, 0x80000000')
        I('v_mov_b32 v26, s94'); I('v_mov_b32 v27, s95'); I('v_mov_b32 v28, 0')
        I('s_mov_b64 exec, 1')
        a.raw(f'    global_store_dwordx2 v28, v[26:27], s[{P_DBG}:{P_DBG+1}] sc1')
        I('s_mov_b64 exec, -1')
        a.label('NOTAG')
        if os.environ.get('DBG'): I(f's_mov_b32 s42, s{P_DBG}'); I(f's_mov_b32 s43, s{P_DBG+1}')
        self.tsrd(P_QKV, 2457600)
        for k in range(4):
            I(f's_add_u32 m0, {sLB}, {k*4096}')
            I(f'buffer_load_dwordx4 v{40+k}, {TS}, {sSrc} offen nt lds', 's1')
        self.tsrd(P_X, 2621440)
        I(f'buffer_load_dwordx4 {vr(RES,4)}, v36, {TS}, {sOutA} offen nt', 's1')
        I(f'buffer_load_dwordx4 {vr(RES+4,4)}, v36, {TS}, {sOutA} offen offset:64 nt', 's1')
        I(f'buffer_load_dwordx2 {vr(RES+8,2)}, v37, {TS}, {sOutH} offen nt', 's1')
        I(f's_mov_b32 s16, s{P_OUT}'); I(f's_and_b32 s17, s{P_OUT+1}, 0xffff')
        if self.TLB:
            I('v_min_u32 v26, 42, v0'); I('v_lshlrev_b32 v26, 20, v26'); I('v_add_u32 v26, 0xfff80, v26')
            I(f's_cmp_eq_u32 {sW}, 2'); I(f's_cselect_b32 {sT[2]}, 0, {OOB}'); I(f'v_or_b32 v26, {sT[2]}, v26')
            I(f'buffer_load_dword a252, v26, {WS}, 0 offen nt', 'tlb')
            I('v_min_u32 v26, 2, v0'); I('v_lshlrev_b32 v26, 20, v26'); I(f'v_or_b32 v26, {sT[2]}, v26')
            I(f'buffer_load_dword a252, v26, {OUT}, 0 offen nt', 'tlb')
        I(f's_mul_i32 {sDm}, {sT[0]}, {16*81920}'); I(f's_mul_i32 {sT[2]}, {sW}, {4*81920}'); I(f's_add_u32 {sDm}, {sDm}, {sT[2]}')
        I(f's_lshr_b32 {sT[2]}, {sT[1]}, 2'); I(f's_lshl_b32 {sT[2]}, {sT[2]}, 12'); I(f's_add_u32 {sDm}, {sDm}, {sT[2]}')
        I(f's_and_b32 {sT[2]}, {sT[1]}, 3'); I(f's_lshl_b32 {sT[2]}, {sT[2]}, 8'); I(f's_add_u32 {sDm}, {sDm}, {sT[2]}')
        I(f's_mov_b32 s4, {sInvA}')
        if self.stamps: I(f's_lshl_b32 {sStampOff}, {sU}, 9'); I(f's_add_u32 {sStampOff}, {sStampOff}, {STAMP}')
        I(f's_add_u32 {sU}, {sU}, 384'); I(f's_and_b32 {sU}, {sU}, 1023')
        I(f's_mov_b32 s12, s{P_O}'); I(f's_mov_b32 s13, s{P_O+1}'); I(f's_mov_b32 s14, 819200')
        I(f's_mov_b32 {sDst}, {WT_O}'); I(f's_mov_b32 {sTile}, 102400'); I(f's_mov_b32 {sT[0]}, {sU}')
        for thr, p, wt in ((160, P_1, WT_1), (320, P_2, WT_2), (480, P_4, WT_4)):
            I(f's_sub_u32 {sT[1]}, {sU}, {thr}')
            I(f's_cmp_ge_u32 {sU}, {thr}')
            I(f's_cselect_b32 s12, s{p}, s12'); I(f's_cselect_b32 s13, s{p+1}, s13')
            I(f's_cselect_b32 {sDst}, {wt}, {sDst}'); I(f's_cselect_b32 {sT[0]}, {sT[1]}, {sT[0]}')
        I(f's_cselect_b32 {sTile}, 245760, {sTile}'); I(f's_cselect_b32 s14, 1966080, s14')
        I(f's_and_b32 s13, s13, 0xffff')
        I(f's_cmp_lt_u32 {sU}, 864'); I(f's_cselect_b32 {sInvA}, s4, {OOB}'); I(f's_cselect_b32 {sT[0]}, {sT[0]}, 0')
        I(f's_xor_b32 s5, s4, {OOB}')
        I(f's_lshr_b32 {sT[1]}, {sT[0]}, 1'); I(f's_and_b32 {sT[0]}, {sT[0]}, 1')
        I(f's_lshl_b32 {sSrc}, {sT[1]}, 3'); I(f's_mov_b32 {sEx}, 0')
        I(f's_cmp_ge_u32 {sU}, 160'); I('s_cbranch_scc1 PREP_RB')
        I(f's_lshr_b32 {sT[2]}, {sT[1]}, 1'); I(f's_mul_i32 {sT[2]}, {sT[2]}, 20')
        I(f's_and_b32 {sSrc}, {sT[1]}, 1'); I(f's_lshl_b32 {sSrc}, {sSrc}, 3'); I(f's_add_u32 {sSrc}, {sSrc}, {sT[2]}')
        I(f's_cmp_lt_u32 {sT[1]}, 64'); I('s_cbranch_scc1 PREP_RB')
        I(f's_sub_u32 {sT[2]}, {sT[1]}, 64'); I(f's_mul_i32 {sSrc}, {sT[2]}, 40'); I(f's_add_u32 {sSrc}, {sSrc}, 16')
        I(f's_mov_b32 {sEx}, {16*1280}')
        a.label('PREP_RB')
        I(f's_mul_i32 {sSrc}, {sSrc}, 1280'); I(f's_mul_i32 {sT[2]}, {sT[0]}, 640'); I(f's_add_u32 {sSrc}, {sSrc}, {sT[2]}')
        I(f's_lshl_b32 {sLB}, {sW}, 13'); I(f's_add_u32 {sLB}, {sLB}, 32768')
        for q in range(5):
            self.rowcol(64*q, 1639, 40, 1280)
            I('v_lshrrev_b32 v27, 2, v27'); I(f'v_mad_u32_u24 v29, v27, {sEx}, v29'); I(f'v_or_b32 v{200+q}, {sInvA}, v29')
            I('v_or_b32 v29, s5, v29')
            I(f's_add_u32 m0, {sLB}, {q*1024}')
            I(f'buffer_load_dwordx4 v29, {TS}, {sSrc} offen nt lds', 's1')
        I(f's_mul_i32 {sT[2]}, {sT[0]}, {sTile}'); I(f's_lshl_b32 {sT[2]}, {sT[2]}, 2'); I(f's_add_u32 {sDst}, {sDst}, {sT[2]}')
        I(f's_lshr_b32 {sT[2]}, {sT[1]}, 2'); I(f's_mul_i32 {sT[2]}, {sT[2]}, 5120'); I(f's_add_u32 {sDst}, {sDst}, {sT[2]}')
        I(f's_and_b32 {sT[2]}, {sT[1]}, 3'); I(f's_lshl_b32 {sT[2]}, {sT[2]}, 8'); I(f's_add_u32 {sDst}, {sDst}, {sT[2]}')
        I(f's_add_u32 {sT[0]}, {sU}, 160'); I(f's_and_b32 {sT[0]}, {sT[0]}, 1023')
        I(f's_cmp_lt_u32 {sT[0]}, 640'); I(f's_cselect_b32 {sInvB}, 0, {OOB}'); I(f's_cselect_b32 {sT[0]}, {sT[0]}, 0')
        I(f's_lshr_b32 {sT[1]}, {sT[0]}, 3'); I(f's_and_b32 {sT[0]}, {sT[0]}, 7')
        I(f's_mul_i32 {sSrc3}, {sT[1]}, {8*3072}'); I(f's_mul_i32 {sT[2]}, {sT[0]}, 384'); I(f's_add_u32 {sSrc3}, {sSrc3}, {sT[2]}')
        I(f's_mul_i32 {sRS}, {sT[0]}, 245760'); I(f's_lshl_b32 {sT[2]}, {sT[1]}, 8'); I(f's_add_u32 {sRS}, {sRS}, {sT[2]}'); I(f's_add_u32 {sRS}, {sRS}, {WT_3}')
        I(f's_mov_b32 {sDead}, 400000'); I(f's_mov_b32 {sMODE}, 0')
        I(f's_mul_i32 {sT21}, {sTT}, 21504'); I(f's_mul_i32 {sT48}, {sTT}, 49152')
        I(f's_add_u32 {sA20}, {sT20}, {sA21}'); I(f's_add_u32 {sH20}, {sT20}, {sH21}')
        I(f's_add_u32 {sA21}, {sT21}, {sA21}'); I(f's_add_u32 {sH21}, {sT21}, {sH21}')
        I(f's_lshr_b32 {sT[0]}, {sJ}, 1'); I(f's_lshl_b32 {sT[0]}, {sT[0]}, 8')
        I(f's_and_b32 {sT[1]}, {sJ}, 1'); I(f's_lshl_b32 {sT[1]}, {sT[1]}, 3')
        I(f's_add_u32 {sS21}, {sT21}, {sT[0]}'); I(f's_add_u32 {sS21}, {sS21}, {sT[1]}'); I(f's_add_u32 {sS21}, {sS21}, 20480')
        I(f's_mul_i32 {sLW}, {sW}, 5120')
        I(f's_mul_i32 {sW5}, {sJ}, 102400'); I(f's_add_u32 {sW5}, {sW5}, {sLW}')
        I(f's_mul_i32 {sW4}, {sJ}, 245760'); I(f's_add_u32 {sW4}, {sW4}, {sLW}')
        I(f's_mul_i32 {sWQ}, {sH}, 81920');  I(f's_add_u32 {sWQ}, {sWQ}, {sLW}')
        I(f's_lshl_b32 {sWI}, {sH}, 2'); I(f's_add_u32 {sWI}, {sWI}, {sW}')
        I(f's_lshl_b32 {sT[0]}, {sXG}, 2'); I(f's_add_u32 {sT[0]}, {sT[0]}, {sW}')
        I(f's_mul_i32 {sQT21}, {sT[0]}, {4*21504}')
        I(f's_mul_i32 {sT[1]}, {sT[0]}, {4*20480}')
        I(f's_lshl_b32 {sT[2]}, {sH}, 9'); I(f's_add_u32 {sO4}, {sT[1]}, {sT[2]}')
        I(f's_lshr_b32 {sT[2]}, {sH}, 1'); I(f's_lshl_b32 {sT[2]}, {sT[2]}, 8'); I(f's_add_u32 {sO1}, {sT[1]}, {sT[2]}')
        I(f's_and_b32 {sT[2]}, {sH}, 1'); I(f's_lshl_b32 {sT[2]}, {sT[2]}, 3'); I(f's_add_u32 {sO1}, {sO1}, {sT[2]}'); I(f's_add_u32 {sO1}, {sO1}, 16384')
        I(f's_lshl_b32 {sT[2]}, {sT[0]}, 7'); I(f's_lshl_b32 {sFLOo}, {sH}, 2')
        I(f's_add_u32 {sFLOo}, {sT[2]}, {sFLOo}'); I(f's_add_u32 {sFLOo}, {sFLOo}, {FLO}')
        I(f's_lshl_b32 {sKVi}, {sH}, 16'); I(f's_lshl_b32 {sT[2]}, {sW}, 10'); I(f's_add_u32 {sKVi}, {sKVi}, {sT[2]}')
        I(f's_add_u32 {sKVi}, {sKVi}, {KVP}')
        I(f's_lshl_b32 {sT[2]}, {sXG}, 13'); I(f's_add_u32 {sKVo}, {sKVi}, {sT[2]}')
        I(f's_lshl_b32 {sT[0]}, {sJ}, 2'); I(f's_add_u32 {sT[0]}, {sT[0]}, {sW}')
        I(f's_mul_i32 {sW3}, {sT[0]}, 61440')
        I(f's_mul_i32 {sT[1]}, {sT[0]}, 3'); I(f's_add_u32 {sT[1]}, {sT[1]}, 1'); I(f's_lshr_b32 {sT[1]}, {sT[1]}, 1'); I(f's_lshl_b32 {sA48}, {sT[1]}, 10')
        I(f's_mul_i32 {sH48}, {sT[0]}, 1536')
        I(f's_bitcmp0_b32 {sT[0]}, 0'); I(f's_cselect_b32 {sT[2]}, 1024, 0'); I(f's_add_u32 {sH48}, {sH48}, {sT[2]}')
        I(f's_mul_i32 {sT[2]}, {sC}, {4*49152}')
        I(f's_add_u32 {sA48}, {sT[2]}, {sA48}'); I(f's_add_u32 {sH48}, {sT[2]}, {sH48}')
        I(f's_mul_i32 {sC21}, {sC}, {4*21504}')
        I(f's_lshl_b32 {sFLo}, {sTT}, 5'); I(f's_lshl_b32 {sT[2]}, {sJ}, 2'); I(f's_add_u32 {sFLo}, {sFLo}, {sT[2]}'); I(f's_add_u32 {sFLo}, {sFLo}, {FL}')
        I(f's_and_b32 {sT[0]}, {sTT}, 15')
        I(f's_mov_b32 {sEdge}, {OOB}')
        I(f's_cmp_eq_u32 {sT[0]}, 0');  I(f's_cselect_b32 {sEdge}, 0, {sEdge}')
        I(f's_cmp_eq_u32 {sT[0]}, 15'); I(f's_cselect_b32 {sEdge}, 0, {sEdge}'); I(f's_cselect_b32 {sBot}, 1, 0')
        I(f's_cmp_eq_u32 {sTT}, 0');   I(f's_cselect_b32 {sEdge}, {OOB}, {sEdge}')
        I(f's_cmp_eq_u32 {sTT}, 127'); I(f's_cselect_b32 {sEdge}, {OOB}, {sEdge}')
        I(f'v_lshlrev_b32 {vL16}, 4, v0')
        I(f'v_add_u32 {vL16b}, 0x10000, {vL16}'); I(f'v_add_u32 {vL16c}, 0x20000, {vL16}')
        I('v_lshrrev_b32 v22, 5, v0'); I('v_and_b32 v23, 1, v21'); I('v_lshlrev_b32 v24, 4, v20')
        I(f'v_lshl_add_u32 {vS8}, v22, 8, v24'); I(f'v_lshl_add_u32 {vS8}, v23, 3, {vS8}')
        I(f'v_lshl_add_u32 {vST}, v22, 2, v24')
        I(f'v_and_b32 {vFl}, 31, v0'); I(f'v_lshlrev_b32 {vFl}, 2, {vFl}')
        if self.stamps:
            I('v_mov_b32 v19, s98'); I(f'buffer_store_dword v19, off, {WS}, {sStampOff}'); I(f'buffer_store_dword v19, off, {WS}, {sStampOff} offset:256')
            self.nstamp += 1; self.stampnames.append('entry')
        self.stamp('issued')
        I('v_lshrrev_b32 v26, 2, v20'); I('v_and_b32 v27, 3, v20')
        I(f's_mul_i32 {sT[2]}, {sW}, 160')
        I('v_mul_u32_u24 v29, 640, v26'); I(f'v_add_u32 v29, {sT[2]}, v29'); I('v_mul_u32_u24 v28, 40, v21'); I('v_add_u32 v29, v29, v28')
        I('v_lshl_add_u32 v30, v27, 3, v29')
        I('v_lshlrev_b32 v28, 3, v27'); I(f'v_add_u32 v31, {10240-8}, v28'); I(f'v_mov_b32 v33, {5120+32}')
        I('v_cmp_eq_u32 vcc, 0, v27'); I('v_cndmask_b32 v31, v31, v33, vcc'); I('v_add_u32 v31, v31, v29')
        I('v_min_u32 v28, 2, v27'); I('v_lshlrev_b32 v28, 3, v28'); I(f'v_add_u32 v33, {10240+16}, v28'); I('v_mov_b32 v34, 32')
        I('v_cndmask_b32 v33, v33, v34, vcc'); I('v_add_u32 v33, v33, v29')
        I(f's_mov_b32 {sT[2]}, 81920'); I(f'v_mul_lo_u32 v32, v21, {sT[2]}'); I(f'v_add3_u32 v32, v32, v24, s4')
        for q in range(3):
            self.rowcol(64*q, 2731, 24, 3072)
            I(f'v_or_b32 v{205+q}, {sInvB}, v29')
        I('v_lshrrev_b32 v26, 2, v20'); I('v_and_b32 v27, 3, v20')
        I('v_mul_u32_u24 v28, 5, v21'); I('v_add_u32 v28, 1, v28'); I('v_lshrrev_b32 v28, 1, v28')
        I('v_mul_u32_u24 v29, 640, v26'); I(f'v_add_u32 v29, {sLB}, v29')
        I('v_lshl_add_u32 v210, v28, 6, v29'); I('v_lshl_add_u32 v210, v27, 4, v210')
        I('v_mul_u32_u24 v211, 160, v21'); I('v_xor_b32 v28, 1, v23'); I('v_lshl_add_u32 v211, v28, 7, v211')
        I('v_add_u32 v211, v211, v29'); I('v_lshl_add_u32 v211, v27, 3, v211')
        I(f'v_mul_lo_u32 v212, v21, {sTile}'); I(f'v_add3_u32 v216, v212, v24, s5'); I(f'v_add3_u32 v212, v212, v24, {sInvA}')
        I('v_mul_u32_u24 v29, 384, v26'); I(f'v_add_u32 v29, {sLB}, v29'); I('v_mul_u32_u24 v28, 96, v21'); I('v_add_u32 v29, v29, v28')
        I('v_lshl_add_u32 v213, v23, 5, v29'); I('v_lshl_add_u32 v213, v27, 4, v213')
        I('v_xor_b32 v28, 1, v23'); I('v_lshl_add_u32 v214, v28, 6, v29'); I('v_lshl_add_u32 v214, v27, 3, v214')
        I('v_mul_u32_u24 v215, 61440, v21'); I(f'v_add3_u32 v215, v215, v24, {sInvB}')
        I(f's_getreg_b32 {sU}, hwreg(HW_REG_XCC_ID)'); I(f's_and_b32 {sU}, {sU}, 15')
        for r in range(132, 142): I(f'v_mov_b32 v{r}, -1')
        I('v_mov_b32 v128, 0')
        a.wait(vm='s1')
        self.stamp('s1_loaded')
        I('v_mov_b32 v26, 0')
        I(f'global_load_dwordx2 v[208:209], v26, s[{P_DBG}:{P_DBG+1}] sc1', 'st')
        self.store_tile(RES, XA(0), sA21, sH21, sc1=True)
        for i in range(5):
            b_, o = ('v210', 64*(i >> 1) + 8*(i & 1)) if i < 4 else ('v211', 0)
            I(f'ds_read_b64_tr_b16 {vr(64+4*i,2)}, {b_} offset:{o}')
            I(f'ds_read_b64_tr_b16 {vr(66+4*i,2)}, {b_} offset:{o+2560}')
        I('s_barrier')
        a.wait(lg=None)
        for i, (b_, o) in enumerate((('v30', 5120), ('v31', 0), ('v30', 0), ('v33', 0))):
            I(f'ds_read_b64_tr_b16 {vr(48+4*i,2)}, {b_} offset:{o}')
            I(f'ds_read_b64_tr_b16 {vr(50+4*i,2)}, {b_} offset:{o+2560}')
        for i in range(4): I(f'buffer_store_dwordx4 {vr(64+4*i,4)}, v216, {WS}, {sDst} offen offset:{i*1024} sc1', 'st')
        I(f's_add_u32 {sT[0]}, {sDst}, 4096')
        I(f'buffer_store_dwordx4 {vr(80,4)}, v216, {WS}, {sT[0]} offen sc1', 'st')
        a.wait(lg=None)
        for i in range(4): I(f'buffer_store_dwordx4 {vr(48+4*i,4)}, v32, {WS}, {sDm} offen offset:{i*1024} sc1', 'st')
        self.unpack(144, RES, 10)
        self.prod_stats(144, 164)
        self.store_stats(164, XA(0), 1, sc1=True, tag='st')
        I(f'buffer_store_dwordx4 {vr(132,4)}, {vL16}, {WS}, {sKVo} offen sc1', 'st')
        I(f's_lshl_b32 {sT[0]}, s2, 7'); I(f's_add_u32 {sT[0]}, {sT[0]}, {FL}')
        I(f's_cmp_eq_u32 {sW}, 1'); I(f's_cselect_b32 {sT[1]}, 0, {OOB}')
        I(f's_cmp_lt_u32 s2, 64'); I(f's_cselect_b32 {sT[1]}, {sT[1]}, {OOB}')
        I(f'v_or_b32 v26, {sT[1]}, {vFl}')
        I(f'buffer_store_dword v128, v26, {WS}, {sT[0]} offen sc1', 'st')
        for q in range(5):
            I(f's_add_u32 m0, {sLB}, {q*1024}')
            I(f'buffer_load_dwordx4 v{200+q}, {TS}, {sSrc} offen nt lds', 's2')
        self.tsrd(P_3, 1966080)
        for q in range(3):
            I(f's_add_u32 m0, {sLB}, {5120+q*1024}')
            I(f'buffer_load_dwordx4 v{205+q}, {TS}, {sSrc3} offen nt lds', 's2')
        self.tsrd(P_PHI, 25600)
        I('v_and_b32 v26, 3, v0'); I('v_lshlrev_b32 v26, 1, v26')
        I(f's_mul_i32 {sT[0]}, {sH}, 800')
        I('v_mul_u32_u24 v27, 160, v21'); I(f'v_add3_u32 v27, v27, v26, {sT[0]}')
        I(f'v_add_u32 v28, {sT[0]}, v26'); I('v_add_u32 v28, 640, v28'); I(f'v_mov_b32 v29, {OOB}')
        I('v_cmp_eq_u32 vcc, 0, v21'); I('v_cndmask_b32 v28, v29, v28, vcc')
        I(f's_lshl_b32 {sT[0]}, {sW}, 3')
        for fr, so in ((0, sT[0]), (1, '32')):
            for e in range(8):
                vo = 'v27' if e < 4 else 'v28'
                I(f'buffer_load_ushort v{(180 if e & 1 else 120)+4*fr+(e>>1)}, {vo}, {TS}, {so} offen offset:{(e&3)*40}')
        I('v_mov_b32 v26, 0')
        a.wait(vm='st')
        self.stamp('s1_drained')
        I(f's_mov_b32 {sSpin}, {sDead}')
        a.label('GB_P0')
        I('v_cmp_ne_u32 vcc, 0, v209'); I('s_cmp_eq_u64 vcc, -1'); I('s_cbranch_scc1 GB_P0D')
        a.raw(f'    global_load_dwordx2 v[208:209], v26, s[{P_DBG}:{P_DBG+1}] sc1')
        I('s_waitcnt vmcnt(0)')
        I(f's_sub_u32 {sSpin}, {sSpin}, 1'); I('s_cbranch_scc0 GB_P0')
        a.label('GB_P0D')
        I(f'v_readfirstlane_b32 {sN0}, v208'); I(f'v_readfirstlane_b32 {sN1}, v209')
        I('s_barrier')
        self.arrive(0, 208, sU)
        a.wait(vm=None)
        for i in range(5):
            b_, o = ('v210', 64*(i >> 1) + 8*(i & 1)) if i < 4 else ('v211', 0)
            I(f'ds_read_b64_tr_b16 {ar(4*i,2)}, {b_} offset:{o}')
            I(f'ds_read_b64_tr_b16 {ar(4*i+2,2)}, {b_} offset:{o+2560}')
        a.wait(lg=None)
        for i in range(3):
            b_, o = ('v213', 8*i) if i < 2 else ('v214', 0)
            I(f'ds_read_b64_tr_b16 {ar(20+4*i,2)}, {b_} offset:{5120+o}')
            I(f'ds_read_b64_tr_b16 {ar(22+4*i,2)}, {b_} offset:{5120+o+1536}')
        for r in range(32, 36): I(f'v_accvgpr_write_b32 a{r}, -1')
        I(f's_mov_b32 s4, {sDst}'); I(f's_mov_b32 s5, {sRS}')
        I('v_accvgpr_write_b32 a38, v212'); I('v_accvgpr_write_b32 a39, v215')
        I('v_bfe_u32 v26, v0, 2, 1'); I(f's_mov_b32 {sT[0]}, 0x80008000'); I(f'v_mul_lo_u32 v26, v26, {sT[0]}')
        for r in range(120, 128): I(f'v_lshl_or_b32 v{r}, v{r+60}, 16, v{r}')
        for r in range(120, 128): I(f'v_xor_b32 v{r}, v{r}, v26')
        for r in range(8): I(f'v_accvgpr_write_b32 a{240+r}, v{120+r}')
        I(f's_add_u32 s36, {sH}, {sXG}') if self.ROT == 1 else I(f's_mov_b32 s36, {sXG if self.ROT == 2 else 0}')
        I('s_mul_i32 s37, s36, 52429'); I('s_lshr_b32 s37, s37, 18'); I('s_mul_i32 s37, s37, 5'); I('s_sub_u32 s36, s36, s37')
        I('s_lshl_b32 s36, s36, 12')
        for q in range(1, 5):
            I(f's_add_u32 s{36+q}, s{35+q}, 4096'); I(f's_cmp_eq_u32 s{36+q}, 20480'); I(f's_cselect_b32 s{36+q}, 0, s{36+q}')
        self.stamp('s2_issued')

    def arrive(self, which, t, sx='0'):
        I = self.I
        I(f's_cmp_eq_u32 {sW}, 0'); I(f's_cselect_b32 {sT[0]}, 0, {OOB}')
        I(f's_add_u32 {sT[1]}, {sN1}, {sx}')
        I(f'v_mov_b32 v{t}, {sN0}'); I(f'v_mov_b32 v{t+1}, {sT[1]}')
        I(f'v_lshlrev_b32 {vT0}, 3, v0'); I(f'v_or_b32 {vT0}, {sT[0]}, {vT0}')
        I(f's_lshl_b32 {sT[1]}, s2, 7'); I(f's_add_u32 {sT[1]}, {sT[1]}, {CNT + which*32768}')
        I('s_mov_b64 exec, 0xffff')
        I(f'buffer_store_dwordx2 {vr(t,2)}, {vT0}, {WS}, {sT[1]} offen sc1')
        I('s_mov_b64 exec, -1')
    def allchk_issue(self, which, t):
        with self.a.capture() as c:
            I = self.I
            I(f'v_lshlrev_b32 v{t+2}, 7, v0')
            I(f's_lshl_b32 {sT[5]}, {sW}, 13'); I(f's_add_u32 {sT[5]}, {sT[5]}, {CNT + which*32768}')
            I(f'buffer_load_dwordx2 {vr(t,2)}, v{t+2}, {WS}, {sT[5]} offen sc1', 'pall')
        return [c.items]
    def allchk(self, t):
        a = self.a; I = self.I
        L = a.newlabel('ACP'); D = a.newlabel('ACD')
        a.wait(vm='pall')
        I(f's_mov_b32 {sSpin}, {sDead}')
        a.label(L)
        I(f'v_and_b32 v{t+1}, -16, v{t+1}'); I(f'v_cmp_eq_u64 vcc, s[0:1], {vr(t,2)}'); I('s_cmp_eq_u64 vcc, -1'); I(f's_cbranch_scc1 {D}')
        a.raw(f'    buffer_load_dwordx2 {vr(t,2)}, v{t+2}, {WS}, {sT[5]} offen sc1')
        I('s_waitcnt vmcnt(0)')
        I(f's_sub_u32 {sSpin}, {sSpin}, 1'); I(f's_cbranch_scc0 {L}')
        I(f's_mov_b32 {sDead}, 0')
        a.label(D)

    def s2_stores(self, v0_, v1_):
        out = []
        for i in range(4): out.append([Ins(f'buffer_store_dwordx4 {ar(4*i,4)}, {v0_}, {WS}, s4 offen offset:{i*1024} sc1', 's2s')])
        out.append([Ins('s_add_u32 s4, s4, 4096'), Ins(f'buffer_store_dwordx4 {ar(16,4)}, {v0_}, {WS}, s4 offen sc1', 's2s')])
        for i in range(3):
            out.append([Ins(f'buffer_store_dwordx4 {ar(20+4*i,4)}, {v1_}, {WS}, s5 offen sc1', 's2s'), Ins('s_add_u32 s5, s5, 20480')])
        out.append([Ins(f's_add_u32 s4, {sKVo}, {2*MB}'), Ins(f'buffer_store_dwordx4 {ar(32,4)}, {vL16}, {WS}, s4 offen sc1', 's2s'),
                    Ins(f'v_or_b32 {v0_}, {sEdge}, {vL16}'), Ins(f'v_or_b32 {v1_}, {sEdge}, {vS8}')])
        for l in range(2):
            out.append([Ins(f's_add_u32 s4, {sA20}, {HD(l)}'), Ins(f'buffer_store_dwordx4 {ar(32,4)}, {v0_}, {WS}, s4 offen sc1', 's2s'),
                        Ins(f'buffer_store_dwordx4 {ar(32,4)}, {v0_}, {WS}, s4 offen offset:1024 sc1', 's2s'),
                        Ins(f's_add_u32 s4, {sH20}, {HD(l)}'), Ins(f'buffer_store_dwordx2 {ar(32,2)}, {v1_}, {WS}, s4 offen sc1', 's2s')])
        return out

    def gwait(self):
        a = self.a; I = self.I
        sU = sT[8]
        I(f's_cmp_lg_u32 {sW}, 0'); I('s_cbranch_scc1 GB_WAIT')
        I(f's_lshr_b32 {sT[0]}, {sH}, 4')
        I(f'v_lshlrev_b32 v201, 1, v0'); I(f'v_add_u32 v201, {sT[0]}, v201')
        I('v_and_b32 v203, 15, v0'); I('v_lshlrev_b32 v203, 1, v203'); I(f'v_add_u32 v203, {sT[0]}, v203'); I('v_add_u32 v203, 128, v203')
        I('v_and_b32 v204, 31, v0'); I('v_lshlrev_b32 v204, 3, v204'); I(f'v_add_u32 v204, {sXG}, v204')
        I('v_cmp_gt_u32 vcc, 32, v0'); I('v_cndmask_b32 v203, v203, v204, vcc')
        I('v_lshlrev_b32 v201, 7, v201'); I('v_lshlrev_b32 v203, 7, v203')
        I(f's_mov_b32 {sT[1]}, {CNT}')
        I(f's_mov_b32 {sSpin}, {sDead}')
        a.label('GB_P1')
        a.raw(f'    buffer_load_dwordx2 v[206:207], v201, {WS}, {sT[1]} offen sc1')
        a.raw(f'    buffer_load_dwordx2 v[208:209], v203, {WS}, {sT[1]} offen sc1')
        I('s_waitcnt vmcnt(0)')
        I('v_and_b32 v207, -16, v207'); I('v_and_b32 v202, 15, v209'); I('v_and_b32 v209, -16, v209')
        I('v_cmp_eq_u64 vcc, s[0:1], v[206:207]'); I('v_cmp_eq_u64 s[6:7], s[0:1], v[208:209]')
        I('s_and_b64 vcc, vcc, s[6:7]'); I('s_cmp_eq_u64 vcc, -1'); I('s_cbranch_scc1 GB_P1D')
        I(f's_sub_u32 {sSpin}, {sSpin}, 1'); I('s_cbranch_scc0 GB_P1')
        a.label('GB_P1D')
        I(f'v_cmp_eq_u32 vcc, {sU}, v202')
        I(f's_cmp_eq_u32 vcc_lo, -1'); I(f's_cselect_b32 {sT[0]}, 1, 0')
        I(f'v_mov_b32 v200, {sT[0]}'); I(f'v_mov_b32 v201, {7*BANK}')
        I('ds_write_b32 v201, v200')
        a.label('GB_WAIT')
        a.wait(lg=None)
        I('s_barrier')
        I(f'v_mov_b32 v201, {7*BANK}')
        I(f'ds_read_b32 {vT0}, v201', 'mode')
        self.stamp('gbar_done')

    def softmax(self, P, t, KL, wr=None):
        I = self.I
        I(f'v_max3_f32 v{t}, v{P}, v{P+1}, v{P+2}')
        I(f'v_max3_f32 v{t+1}, v{P+3}, v{P+4}, v{P+5}')
        for i in range(6, 18, 4):
            I(f'v_max3_f32 v{t}, v{t}, v{P+i}, v{P+i+1}')
            I(f'v_max3_f32 v{t+1}, v{t+1}, v{P+i+2}, v{P+i+3}')
        I(f'v_max3_f32 v{t}, v{t}, v{P+18}, v{P+19}')
        I(f'v_max_f32 v{t}, v{t}, v{t+1}')
        I(f'v_mul_f32 v{t}, {hex(f2u(-LOG2E))}, v{t}')
        for i in range(10): I(f'v_pk_fma_f32 {vr(P+2*i,2)}, {vr(P+2*i,2)}, {vr(KL,2)}, {vr(t,2)} op_sel_hi:[1,0,0]')
        for i in range(20): I(f'v_exp_f32 v{P+i}, v{P+i}')
        I(f'v_pk_add_f32 {vr(t,2)}, {vr(P,2)}, {vr(P+2,2)}')
        for i in range(2, 10): I(f'v_pk_add_f32 {vr(t,2)}, {vr(t,2)}, {vr(P+2*i,2)}')
        I(f'v_add_f32 v{t}, v{t}, v{t+1}')
        I(f'v_rcp_f32 v{t}, v{t}')
        if wr is None:
            for i in range(10): I(f'v_pk_mul_f32 {vr(P+2*i,2)}, {vr(P+2*i,2)}, {vr(t,2)} op_sel_hi:[1,0]')
            self.pack(P, P, 10)
        else:
            for i in range(5):
                for q in (2*i, 2*i+1): I(f'v_pk_mul_f32 {vr(P+2*q,2)}, {vr(P+2*q,2)}, {vr(t,2)} op_sel_hi:[1,0]')
                for q in (2*i, 2*i+1): I(f'v_cvt_pk_bf16_f32 v{P+q}, v{P+2*q}, v{P+2*q+1}')
                wr(i)

    def phi(self, P, B0, B1, AF, bphi):
        for t in range(5):
            self.I(f'v_mfma_f32_16x16x32_bf16 {vr(P+4*t,4)}, {vr(AF+4*t,4)}, {vr(B0,4)}, 0')
        for t in range(5):
            self.I(f'v_mfma_f32_16x16x32_bf16 {vr(P+4*t,4)}, {vr(AF+20+4*t,4)}, {vr(B1,4)}, {vr(P+4*t,4)}')

    def qkv(self, l, wb, bphi, bscr, tail, fill1, fill2, fill4):
        a = self.a; I = self.I
        AF, ACC = 64, 192
        RA, DA = 6, 5
        LA = self.LA0 if l == 0 else self.LA1
        NR = 4*(LA+1); XR = 192 - 4*NR; AR = XR - 24
        assert AR >= 104
        ONES, CWF, CWA = 20, 24, 32
        NP = [36, 38, 40, 42]
        vX = [vL16, 'v44', 'v45', 'v46']; vCW = [47, 48, 49]
        vPK, vV1, vV3, vTA, vTB, vRS, vKD, vKL, vA0, vA2, vO4, vO1, vCr, vCw = range(50, 64)
        kvl = bphi*BANK + 13312; cwo = bphi*BANK + 12288
        def setup():
            t0, t1, t2, t3, vTok, vG = 64, 65, 66, 67, 68, 69
            for t in range(1, 4): I(f'v_add_u32 {vX[t]}, {t*21504}, {vL16}')
            I(f's_lshl_b32 {sT[3]}, {sW}, 10')
            if l == 0:
                for r in range(4): I(f'v_mov_b32 v{ONES+r}, 0x3f803f80')
                for k, base in enumerate((vL16, vL16b, vL16c)): I(f'v_add_u32 v{vCW[k]}, {sT[3]}, {base}')
            for r in range(8): I(f'v_accvgpr_read_b32 v{76+r}, a{240+r}')
            I(f'v_bfe_u32 v{t0}, v0, 3, 1'); I(f'v_add_u32 v{t0}, -1, v{t0}'); I(f'v_not_b32 v{t1}, v{t0}')
            for r in range(8): I(f'v_and_b32 v{84+r}, v{76+r}, v{t0}')
            for r in range(8): I(f'v_and_b32 v{92+r}, v{76+r}, v{t1}')
            I(f'v_add_u32 v{t0}, {bphi*BANK}, {vL16}'); I(f'v_add_u32 v{t1}, {sT[3]}, v{t0}')
            I(f'ds_write_b128 v{t1}, {vr(84,4)}'); I(f'ds_write_b128 v{t0}, {vr(88,4)} offset:4096')
            I(f'ds_write_b128 v{t1}, {vr(92,4)} offset:5120'); I(f'ds_write_b128 v{t0}, {vr(96,4)} offset:9216')
            for r in range(4): I(f'v_mov_b32 v{72+r}, 0')
            I(f'v_min_u32 v{t0}, {35*16}, {vL16}'); I(f'v_add_u32 v{t0}, {kvl+96*21}, v{t0}')
            I(f'ds_write_b128 v{t0}, {vr(72,4)}')
        def setupB():
            t0, t1, t2, t3, vTok, vG = 64, 65, 66, 67, 68, 69
            if l: self.decomp(20, 248, 16, t0)
            I(f's_mov_b32 {sWB}, {bscr[1]*BANK}'); I(f's_cmp_lt_u32 {sW}, 2'); I(f's_cselect_b32 {sWB}, {bscr[0]*BANK}, {sWB}')
            I(f's_and_b32 {sT[3]}, {sW}, 1'); I(f's_mul_i32 {sT[3]}, {sT[3]}, 10240'); I(f's_add_u32 {sWB}, {sWB}, {sT[3]}')
            I(f'v_and_b32 v{vTok}, 15, v0'); I(f'v_lshrrev_b32 v{vG}, 4, v0')
            I(f's_lshl_b32 {sT[3]}, {sW}, 6'); I(f's_add_u32 {sT[3]}, {sT[3]}, {cwo}')
            I(f'v_lshlrev_b32 v{t0}, 4, v{vG}'); I(f'v_add_u32 v{vCw}, {sT[3]}, v{t0}'); I(f'v_add_u32 v{vCr}, {cwo}, v{t0}')
            I(f'v_lshrrev_b32 v{t0}, 5, v0'); I(f'v_lshl_add_u32 v{t0}, v{t0}, 4, v{vTok}'); I(f'v_mul_u32_u24 v{vPK}, 80, v{t0}')
            I(f'v_and_b32 v{t0}, 1, v{vG}'); I(f'v_mul_u32_u24 v{t0}, 40, v{t0}'); I(f'v_add3_u32 v{vPK}, v{vPK}, v{t0}, {sWB}')
            I(f'v_mul_u32_u24 v{t0}, 72, v{vTok}'); I(f'v_add_u32 v{t0}, {sWB}, v{t0}'); I(f'v_add_u32 v{t0}, 5120, v{t0}')
            I(f'v_lshlrev_b32 v{t1}, 3, v{vG}'); I(f'v_add_u32 v{vV1}, -8, v{t1}'); I(f'v_add_u32 v{vV3}, 16, v{t1}')
            I(f'v_cmp_eq_u32 vcc, 0, v{vG}'); I(f'v_cndmask_b32 v{vV1}, v{vV1}, 48, vcc'); I(f'v_cndmask_b32 v{vV3}, v{vV3}, 56, vcc')
            I(f'v_add_u32 v{vV1}, v{vV1}, v{t0}'); I(f'v_add_u32 v{vV3}, v{vV3}, v{t0}')
            I(f'v_lshrrev_b32 v{t0}, 2, v{vTok}'); I(f'v_lshl_add_u32 v{t0}, v{vG}, 3, v{t0}')
            I(f'v_and_b32 v{t1}, 3, v0'); I(f'v_lshlrev_b32 v{t1}, 3, v{t1}'); I(f'v_add_u32 v{t1}, {sWB}, v{t1}')
            I(f'v_mad_u32_u24 v{vTA}, v{t0}, 20, v{t1}'); I(f'v_mad_u32_u24 v{vTA}, v{t0}, 60, v{vTA}')
            I(f'v_mad_u32_u24 v{vTB}, v{t0}, 12, v{t1}'); I(f'v_mad_u32_u24 v{vTB}, v{t0}, 60, v{vTB}'); I(f'v_add_u32 v{vTB}, 5120, v{vTB}')
            I(f'v_min_u32 v{t0}, 59, v0')
            I(f'v_mul_u32_u24 v{t1}, 3277, v{t0}'); I(f'v_lshrrev_b32 v{t1}, 16, v{t1}')
            I(f'v_mul_u32_u24 v{t2}, 20, v{t1}'); I(f'v_sub_u32 v{t0}, v{t0}, v{t2}')
            I(f'v_mul_u32_u24 v{t2}, 13108, v{t0}'); I(f'v_lshrrev_b32 v{t2}, 16, v{t2}')
            I(f'v_mul_u32_u24 v{t3}, 5, v{t2}'); I(f'v_sub_u32 v{t0}, v{t0}, v{t3}')
            I(f's_cmp_eq_u32 {sW}, 3'); I('s_cselect_b64 vcc, -1, 0')
            I(f'v_mov_b32 v{t3}, {sW}')
            I(f'v_cndmask_b32 v{t1}, v{t3}, v{t1}, vcc')
            I(f'v_cndmask_b32 v{t2}, v{vG}, v{t2}, vcc')
            I(f'v_cndmask_b32 v{t0}, v{vTok}, v{t0}, vcc')
            I(f'v_cndmask_b32 v{t3}, 0, 1, vcc')
            I(f'v_lshlrev_b32 v{vRS}, 10, v{t1}'); I(f'v_mad_u32_u24 v{vRS}, v{t3}, {self.sconst(3072)}, v{vRS}')
            I(f'v_lshl_add_u32 v{vRS}, v{t2}, 8, v{vRS}'); I(f'v_lshl_add_u32 v{vRS}, v{t0}, 4, v{vRS}')
            I(f'v_lshl_add_u32 v{t1}, v{t1}, 2, v{t2}')
            I(f'v_lshl_add_u32 v{t0}, v{t3}, 4, v{t0}')
            I(f'v_mul_u32_u24 v{vKD}, 96, v{t0}'); I(f'v_lshl_add_u32 v{vKD}, v{t1}, 3, v{vKD}')
            I(f'v_cmp_le_u32 vcc, 5, v{t1}'); I(f'v_cndmask_b32 v{t0}, 0, 8, vcc'); I(f'v_add_u32 v{vKD}, v{vKD}, v{t0}')
            I(f'v_add_u32 v{vKD}, {kvl}, v{vKD}')
            I(f'v_cmp_gt_u32 vcc, 10, v{t1}')
            I(f'v_mov_b32 v{t0}, {kvl + 96*30}'); I(f'v_cndmask_b32 v{vKD}, v{t0}, v{vKD}, vcc')
            I(f'v_mov_b32 v{t0}, {OOB}'); I(f'v_lshlrev_b32 v{vKL}, 3, v0'); I(f'v_cndmask_b32 v{vKL}, v{t0}, v{vKL}, vcc')
            I(f'v_bfe_u32 v{t0}, v0, 2, 1'); I(f'v_and_b32 v{t1}, 3, v0')
            I(f'v_lshl_add_u32 v{t2}, v{t0}, 3, v{t1}')
            I(f'v_lshl_add_u32 v{t3}, v{t0}, 1, v{t1}'); I(f'v_add_u32 v{t3}, 16, v{t3}')
            I(f'v_cmp_le_u32 vcc, 2, v{t1}'); I(f'v_cndmask_b32 v{t3}, v{t3}, 20, vcc')
            I(f'v_bfe_u32 v{t0}, v0, 3, 1'); I(f'v_lshrrev_b32 v{t1}, 5, v0')
            I(f'v_cmp_eq_u32 vcc, v{t0}, v{t1}')
            I(f'v_cndmask_b32 v{t2}, 21, v{t2}, vcc'); I(f'v_cndmask_b32 v{t3}, 21, v{t3}, vcc')
            I(f'v_and_b32 v{t0}, 1, v{vG}'); I(f'v_mul_u32_u24 v{t0}, 48, v{t0}'); I(f'v_add_u32 v{t0}, {kvl}, v{t0}')
            I(f's_movk_i32 {sT[3]}, 96')
            I(f'v_mad_u32_u24 v{vA0}, v{t2}, {sT[3]}, v{t0}'); I(f'v_mad_u32_u24 v{vA2}, v{t3}, {sT[3]}, v{t0}')
            I(f'v_mul_u32_u24 v{vO4}, 20480, v{t1}'); I(f'v_lshl_add_u32 v{vO4}, v{vTok}, 4, v{vO4}')
            I(f'v_and_b32 v{t0}, 1, v{vG}')
            I(f'v_lshl_add_u32 v{vO1}, v{t0}, 2, v{vO4}'); I(f'v_lshl_add_u32 v{vO4}, v{t0}, 8, v{vO4}')
        def aread(f):
            s_, i = f >> 2, f & 3
            b, o = self.lds(wb[s_ // 5]*BANK + ((s_ % 5)*4 + i)*1024)
            I(f'ds_read_b128 {vr(AR+4*(f % RA),4)}, {b} offset:{o}', ('a', f))
        def cwread(s_):
            off = wb[s_ // 5]*BANK + (s_ % 5)*4096
            I(f'ds_read_b128 {vr(CWF+4*(s_&1),4)}, v{vCW[off>>16]} offset:{off & 0xffff}', ('cw', s_))
        def xload(n):
            s_ = n >> 2
            if n % 16 == 0:
                I(f's_add_u32 {sT[2]}, {sQT21}, s{36 + (s_ >> 2)}'); I(f's_add_u32 {sT[2]}, {sT[2]}, {XA(l)}')
            I(f'buffer_load_dwordx4 {vr(XR + 4*(n % NR),4)}, {vX[n & 3]}, {WS}, {sT[2]} offen offset:{(s_ & 3)*1024} sc1', ('x', n))
        self._lf = None
        def wstep(q):
            if q >= 20: return
            I(f's_lshl_b32 {sDm}, s{36 + (q >> 2)}, 2'); I(f's_add_u32 {sDm}, {sDm}, {sT[6]}'); I(f's_add_u32 {sDm}, {sDm}, {WT_QKV + (q & 3)*4096}')
            I(f's_add_u32 m0, s3, {wb[q//5]*BANK + (q % 5)*4096}')
            I(f'buffer_load_dwordx4 {vL16}, {WS}, {sDm} offen {"nt" if self.NTW & 4 else ""} lds', ('wq', q))
        if l == 0:
            setup(); setupB()
            self.gwait()
            self.emit(self.touchT(XA(0), 21504))
            I(f's_lshl_b32 s3, {sW}, 10')
            I(f's_mul_i32 {sT[6]}, {sH}, 81920'); I(f's_add_u32 {sT[6]}, {sT[6]}, s3')
            BS = self.BS; WO_ = BS + 2
            for q in range(3): wstep(q)
            nq = 3
            for q in range(LA):
                for t in range(4):
                    xload(4*q+t)
                    if nq < WO_ + q + 1 and t % 2 == 1: wstep(nq); nq += 1
            while nq < WO_ + LA: wstep(nq); nq += 1
            a.wait(lg='mode'); I(f'v_readfirstlane_b32 {sMODE}, {vT0}')
            a.wait(vm=('wq', 1)); I('s_barrier')
            self.ls('g0_bar')
            for f in range(DA): aread(f)
            cwread(0)
        else:
            setup()
            a.wait(lg=None); I('s_barrier')
            for f in range(DA): aread(f)
            I(f's_lshl_b32 {sT[3]}, {sXG}, 2'); I(f's_add_u32 {sT[3]}, {sT[3]}, {sW}'); I(f's_lshl_b32 {sT[3]}, {sT[3]}, 7'); I(f's_add_u32 {sT[3]}, {sT[3]}, {FL}')
            self.poll(vFl, sT[3], 8*(l-1)+5)
            self.stamp(f'qkv{l}_go')
            for n in range(4*LA): xload(n)
        ST = XR + 4*(80 % NR)
        tailf = tail()
        s2t = []
        if l == 0 and self.LSM == 1:
            s2t = self.s2_stores('v7', 'v18')
            s2t[0] = [Ins('v_accvgpr_read_b32 v7, a38'), Ins('v_accvgpr_read_b32 v18, a39')] + s2t[0]
        with a.capture() as G:
          for s_ in range(20):
            for i in range(4):
                f = 4*s_ + i
                for t in range(4):
                    if i == 0 or t == 0: a.wait(vm=('x', 4*s_+t) if i == 0 else False, lg=('a', f) if t == 0 else False)
                    d = vr(ACC + 16*t + 4*i, 4)
                    I(f'v_mfma_f32_16x16x32_bf16 {d}, {vr(AR+4*(f%RA),4)}, {vr(XR+4*((4*s_+t)%NR),4)}, {d if s_ else 0}')
                    if t == 0 and f + DA < 80:
                        if l == 0 and i == 0 and s_ + 2 < 20 and (s_ < 2 or (s_ - 2) % self.BS == 0):
                            a.wait(vm=('wq', min(19, s_+2 if s_ < 2 else s_+1+self.BS))); I('s_barrier')
                        aread(f + DA)
                    if t == 1:
                        n = 4*(s_+LA) + i
                        if n < 80: xload(n)
                        elif s_ == 20 - LA: self.load_frag(ST + 4*i, vX[i], sQT21, XA(l), 20, 'stat')
                        elif l == 0 and s_ == 18 and i == 0: self.emit(self.allchk_issue(0, XR + 4*(68 % NR)))
                    if l == 0 and t == 3 and i == 3: wstep(s_ + LA + self.BS + 2)
                    if s2t and t == 3 and s_ >= self.LSS and (s_ >= 18 or i % 2 == 0): a.extend(s2t.pop(0))
                    if l == 0 and t == 2 and i == 0 and s_ + 1 < 20: cwread(s_+1)
                    if t == 2 and 14 <= s_ and 4*(s_-14)+i < 10:
                        k = 4*(s_-14)+i
                        b, o = self.lds(bphi*BANK + k*1024)
                        I(f'ds_read_b128 {vr(AF+4*k,4)}, {b} offset:{o}', 'af')
            if s_ in (0, 4, 9, 14, 19): self.ls(f'g{l}_s{s_}')
            if l == 0:
                a.wait(lg=('cw', s_))
                I(f'v_mfma_f32_16x16x32_bf16 {vr(CWA,4)}, {vr(CWF+4*(s_&1),4)}, {vr(ONES,4)}, {vr(CWA,4) if s_ else 0}')
        nm = 340 if l == 0 else 320
        fill = (self.stchk(ST, 4, 2, NP[0], [(vX[t], sQT21, XA(l)+20480) for t in range(4)]) if l else [Wait(vm='stat')]) + rr(*[self.cap(self.cons_stats, ST+4*t, NP[t], NP[t]+1) for t in range(4)])
        gi = G.items
        if l:
            gi, lf = gapfill(gi, sccgroup(self.cap(setupB)), start=4)
            assert not lf
        o, left = gapfill(gi, fill, start=nm - self.STG)
        a.extend(o)
        self.stamp(f'qkv{l}_gemm')
        self.emit(tailf)
        if l: self.cpf()
        CW = 20
        if l == 0:
            I(f'ds_write_b128 v{vCw}, {vr(CWA,4)}')
            self.flat(left)
            I('v_accvgpr_read_b32 v48, a38'); I('v_accvgpr_read_b32 v49, a39')
            s2s = self.s2_stores('v48', 'v49') if self.LSM == 0 else []
            s2l = self.s2_stores('v48', 'v49') if self.LSM == 2 else []
            self.emit(s2t)
            self.allchk(XR + 4*(68 % NR))
            a.wait(lg=None); I('s_barrier')
            if self.TO0: self.emit(self.touch(WT_O, 50))
            self.emit(s2s[:3]); s2s = s2s[3:]
            for i in range(4): I(f'ds_read_b128 {vr(CW+4*i,4)}, v{vCr} offset:{i*64}', 'cwr')
            I(f'v_and_b32 v46, 15, v0'); I('v_lshrrev_b32 v47, 2, v46'); I('v_and_b32 v46, 3, v46')
            I(f'v_lshl_add_u32 v47, v47, 6, v{vCr}'); I('v_lshl_add_u32 v47, v46, 2, v47')
            I('ds_read_b32 v46, v47', 'cwr')
            self.emit(s2s[:2]); s2s = s2s[2:]
            a.wait(lg='cwr')
            I('v_accvgpr_write_b32 a248, v46')
        else:
            self.flat(left); s2s = []
        self.ls(f'e{l}_st')
        KL, tmp = 44, 46
        PP = (104, 124); PKD = 144; TA = 192; TB = 204; KVA = 232
        for t in range(4):
            for i in (0, 1, 3):
                for h in range(2):
                    r = ACC+16*t+4*i+2*h
                    I(f'v_pk_fma_f32 {vr(r,2)}, {vr(CW+4*i+2*h,2)}, {vr(NP[t],2)}, {vr(r,2)} op_sel_hi:[1,0,1]')
            for i in (0, 1, 3):
                for h in range(2):
                    r = ACC+16*t+4*i+2*h
                    I(f'v_pk_mul_f32 {vr(r,2)}, {vr(r,2)}, {vr(NP[t],2)} op_sel:[0,1] op_sel_hi:[1,1]')
        for t in range(4):
            for h in range(2):
                r = ACC+16*t+8+2*h
                I(f'v_pk_fma_f32 {vr(176+4*t+2*h,2)}, {vr(CW+8+2*h,2)}, {vr(NP[t],2)}, {vr(r,2)} op_sel_hi:[1,0,1]')
        self.ls(f'e{l}_fix')
        for t in range(2): self.pack(PKD+8*t, ACC+16*t, 4)
        I(f'v_lshrrev_b32 v24, 4, v0'); I('v_cmp_eq_u32 vcc, 3, v24'); I('v_mov_b32 v24, 0x3f80')
        I(f'v_mov_b32 v{KL}, {hex(f2u(LOG2E))}')
        a.wait(lg='af')
        f0 = []
        for t in (2, 3): f0 += self.cap(self.pack, PKD+8*t, ACC+16*t, 4)
        f1 = []
        for t in range(4):
            q = PKD + 8*t + 6
            f1 += self.cap(self.pack, q, ACC+16*t+12, 2)
            f1 += [Ins(f'v_cndmask_b32 v{q}, v{q}, v24, vcc'), Ins(f'v_cndmask_b32 v{q+1}, v{q+1}, 0, vcc')]
            f1 += [Ins(f'ds_write_b64 v{vV1}, {vr(PKD+8*t+2,2)} offset:{16*t*72}'), Ins(f'ds_write_b64 v{vV3}, {vr(q,2)} offset:{16*t*72}')]
        o, left = gapfill(self.cap(self.phi, PP[0], PKD, PKD+8, AF, bphi), f0 + f1)
        a.extend(o)
        o, left = gapfill(self.cap(self.phi, PP[1], PKD+16, PKD+24, AF, bphi), left)
        a.extend(o); a.extend(left)
        self.ls(f'e{l}_phi')
        def trA(p):
            return [[Ins(f'ds_read_b64_tr_b16 {vr(TA+20*p+4*ft+2*h,2)}, v{vTA} offset:{32*p*80+32*ft+320*h}', ('tr', p))] for ft in range(3) for h in range(2)]
        def trB(p):
            return [[Ins(f'ds_read_b64_tr_b16 {vr(TB+20*p+4*dt+2*h,2)}, v{vTB} offset:{32*p*72+32*dt+288*h}', ('tr', p))] for dt in range(2) for h in range(2)]
        def kvm(p):
            a.wait(lg=('tr', p))
            for dt in range(2):
                for ft in range(3):
                    d = vr(KVA + 4*(dt*3+ft), 4)
                    I(f'v_mfma_f32_16x16x32_bf16 {d}, {vr(TA+20*p+4*ft,4)}, {vr(TB+20*p+4*dt,4)}, {d if p else 0}')
        for p in range(2):
            wr = lambda i, p=p: I(f'ds_write_b64 v{vPK}, {vr(PP[p]+2*i,2)} offset:{32*p*80+8*i}')
            sm = self.cap(self.softmax, PP[p], tmp, KL, wr)
            extra = (trB(0) + trB(1) if p == 0 else trA(0))
            st_ = s2s[:3]; s2s = s2s[3:]
            mix = []
            for k, x in enumerate(extra):
                mix.append(x)
                if k % 2 == 1 and st_: mix.append(st_.pop(0))
            self.weave(sm, mix + st_, 7, first=3)
        self.emit(trA(1))
        assert not s2s
        self.ls(f'e{l}_sm')
        I(f'v_add_u32 v24, {sWB}, {vL16}')
        kvm(0); kvm(1)
        for k in range(4): I(f'v_add_u32 v{25+k}, {bscr[k >> 1]*BANK + (k & 1)*10240}, v{vRS}')
        I(f's_add_u32 {sT[3]}, {sKVo}, {l*2*MB}')
        for k in range(6): I(f'ds_write_b128 v24, {vr(KVA+4*k,4)} offset:{k*1024}')
        self.ls(f'e{l}_kv')
        a.wait(lg=None); I('s_barrier')
        self.ls(f'e{l}_bar2')
        for k in range(4): I(f'ds_read_b128 {vr(TA+4*k,4)}, v{25+k}')
        for t in range(4):
            for h in range(2):
                r = 176+4*t+2*h
                I(f'v_pk_mul_f32 {vr(r,2)}, {vr(r,2)}, {vr(NP[t],2)} op_sel:[0,1] op_sel_hi:[1,1]')
        for t in range(4): self.pack(PKD+8*t+4, 176+4*t, 2)
        a.wait(lg=None)
        for h in range(2):
            I(f'v_pk_add_f32 {vr(TA+2*h,2)}, {vr(TA+2*h,2)}, {vr(TA+4+2*h,2)}')
            I(f'v_pk_add_f32 {vr(TA+8+2*h,2)}, {vr(TA+8+2*h,2)}, {vr(TA+12+2*h,2)}')
        for h in range(2):
            I(f'v_pk_add_f32 {vr(TA+2*h,2)}, {vr(TA+2*h,2)}, {vr(TA+8+2*h,2)}')
        self.pack(TA, TA, 2)
        I(f'buffer_store_dwordx2 {vr(TA,2)}, v{vKL}, {WS}, {sT[3]} offen sc1', 'kvst')
        self.stamp(f'qkv{l}_kvpub')
        self.emit(fill1())
        f2 = fill2()
        NW = self.NW if l else self.NW0
        wv = f2[:NW]; f2 = f2[NW:]
        ph = self.cap(self.phi, PP[0], PKD+4, PKD+12, AF, bphi) + self.cap(self.phi, PP[1], PKD+20, PKD+28, AF, bphi)
        if l == 0:
            for k, base in enumerate((vL16, vL16b, vL16c)): I(f'v_add_u32 v{24+k}, {sLW}, {base}')
            st = []
            for k in range(20):
                off = wb[k // 5]*BANK + (k % 5)*1024
                st.append([Ins(f'ds_read_b128 {vr(176+4*k,4)}, v{24+(off>>16)} offset:{off & 0xffff}', 'stash')])
            self.weave(ph, st, 4)
            a.wait(lg=None)
        else:
            self.weave(ph, wv[:5], 16); wv = wv[5:]
        for p in range(2):
            sm = self.cap(self.softmax, PP[p], tmp, KL)
            h_ = (len(wv)+1)//2 if p == 0 else len(wv)
            self.weave(sm, wv[:h_], max(8, 90//max(1, h_))); wv = wv[h_:]
        self.stamp(f'qkv{l}_qsm')
        HP = 0
        self.emit(f2[:HP])
        G0 = 64
        L = a.newlabel('KVPOLL'); D = a.newlabel('KVDONE'); C = a.newlabel('KVCHK')
        I(f's_mov_b32 {sSpin}, {sDead}')
        for x in range(8):
            I(f's_add_u32 {sT[3]}, {sKVi}, {l*2*MB + x*8192}')
            I(f'buffer_load_dwordx2 {vr(G0+2*x,2)}, v{vKL}, {WS}, {sT[3]} offen sc1', 'kvl')
        self.emit(f2[HP:])
        if self.TW1 == 3: self.emit(self.touch(WT_1, 50))
        if l == 0: self.emit(s2l)
        I('v_mov_b32 v26, 0x3f80'); I('v_mov_b32 v27, 0x3f800000')
        for r in range(4): I(f'v_mov_b32 v{80+r}, 0')
        a.wait(vm='kvl')
        a.label(C)
        I(f'v_max3_u32 v24, v{G0}, v{G0+1}, v{G0+2}')
        I(f'v_max3_u32 v25, v{G0+3}, v{G0+4}, v{G0+5}')
        for i in range(6, 14, 4):
            I(f'v_max3_u32 v24, v24, v{G0+i}, v{G0+i+1}'); I(f'v_max3_u32 v25, v25, v{G0+i+2}, v{G0+i+3}')
        I(f'v_max3_u32 v24, v24, v{G0+14}, v{G0+15}')
        I(f'v_max_u32 v24, v24, v25')
        I('v_cmp_eq_u32 vcc, -1, v24')
        I('s_cmp_lg_u64 vcc, 0'); I(f's_cbranch_scc1 {L}')
        a.label(D)
        with a.capture() as c:
            a.label(L)
            I(f's_sub_u32 {sSpin}, {sSpin}, 1'); I(f's_cbranch_scc0 {L}_go')
            I(f's_mov_b32 {sDead}, 0'); I(f's_branch {D}')
            a.label(f'{L}_go')
            for x in range(8):
                r = G0+2*x
                I(f'v_max_u32 v24, v{r}, v{r+1}')
                I(f's_add_u32 {sT[3]}, {sKVi}, {l*2*MB + x*8192}')
                I('v_cmp_eq_u32 vcc, -1, v24')
                I('s_mov_b64 exec, vcc')
                I(f's_cbranch_execz {L}_s{x}')
                a.raw(f'    buffer_load_dwordx2 {vr(r,2)}, v{vKL}, {WS}, {sT[3]} offen sc1')
                a.label(f'{L}_s{x}')
                I('s_mov_b64 exec, -1')
            I('s_waitcnt vmcnt(0)')
            I(f's_branch {C}')
        self.ool += c.items
        self.stamp(f'qkv{l}_kvgot')
        for x in range(8):
            for r in range(4): I(f'v_dot2c_f32_bf16 v{80+r}, v{G0+2*x+(r>>1)}, v{26+(r&1)}')
        I('s_nop 2')
        self.pack(G0, 80, 2)
        I(f'ds_write_b64 v{vKD}, {vr(G0,2)}')
        for p in range(2):
            I(f's_add_u32 {sT[4+2*p]}, {sO4}, {OB(l)+2*p*20480}')
            I(f's_add_u32 {sT[5+2*p]}, {sO1}, {OB(l)+2*p*20480}')
        a.wait(vm='s2s' if (l == 0 and self.LSM != 2) else False, lg=None); I('s_barrier')
        if l == 0 and self.LSM != 2: self.arrive(1, 32)
        AO = 136
        for u in range(3):
            for t in range(3):
                b, o = (vA0, 384*t) if t < 2 else (vA2, 0)
                if u < 2: I(f'ds_read_b128 {vr(AO+12*t+4*u,4)}, v{b} offset:{o+16*u}', ('ao', u))
                else: I(f'ds_read_b64 {vr(AO+12*t+8,2)}, v{b} offset:{o+32}', ('ao', u))
        DO = (64, 80)
        def om(p, u):
            for t in range(3):
                if u < 2: I(f'v_mfma_f32_16x16x32_bf16 {vr(DO[p]+4*t,4)}, {vr(AO+12*t+4*u,4)}, {vr(PP[p]+4*u,4)}, {vr(DO[p]+4*t,4) if u else 0}')
                else: I(f'v_mfma_f32_16x16x16_bf16 {vr(DO[p]+4*t,4)}, {vr(AO+12*t+8,2)}, {vr(PP[p]+8,2)}, {vr(DO[p]+4*t,4)}')
        for u in range(3):
            a.wait(lg=('ao', u)); om(0, u)
        def fin(p, pk):
            I(f'v_add_f32 v{DO[p]+10}, {hex(f2u(1e-6))}, v{DO[p]+10}')
            I(f'v_rcp_f32 v{DO[p]+10}, v{DO[p]+10}')
            if pk:
                for i in range(5): I(f'v_pk_mul_f32 {vr(DO[p]+2*i,2)}, {vr(DO[p]+2*i,2)}, {vr(DO[p]+10,2)} op_sel_hi:[1,0]')
            else:
                for i in range(10): I(f'v_mul_f32 v{DO[p]+i}, v{DO[p]+i}, v{DO[p]+10}')
            self.pack(DO[p], DO[p], 5)
        with a.capture() as c:
            for u in range(3): om(1, u)
        o, left = gapfill(c.items, self.cap(fin, 0, False), start=2)
        a.extend(o); a.extend(left)
        def ost(p):
            a.slow_begin(sMODE)
            I(f'buffer_store_dwordx4 {vr(DO[p],4)}, v{vO4}, {WS}, {sT[4+2*p]} offen', 'st')
            I(f'buffer_store_dword v{DO[p]+4}, v{vO1}, {WS}, {sT[5+2*p]} offen', 'st')
            a.slow_end()
        ost(0); fin(1, True); ost(1)
        self.emit(fill4())
        a.wait(vm='st')
        self.setflag(sFLOo, l+1)
        self.stamp(f'qkv{l}_end')

    def sconst(self, val):
        self.I(f's_movk_i32 {sT[4]}, {val}'); return sT[4]

    def areadS(self, banks, m):
        s_, i = divmod(m, 5)
        b, o = self.lds(banks[s_ // 4]*BANK + ((s_ % 4)*5 + i)*1024)
        self.I(f'ds_read_b128 {vr(self.AR5+4*(m % self.RA5),4)}, {b} offset:{o}', ('a', m))
    def preloadS(self, banks):
        for m in range(self.DA5): self.areadS(banks, m)
    def gemmS(self, KS, banks, ACC, init, side, NR):
        a = self.a; I = self.I
        NM = 5*KS
        for m in range(NM):
            s_, i = divmod(m, 5)
            if i == 0 or m % self.WG == 0:
                a.wait(vm=('x', s_) if i == 0 else False, lg=('a', min(NM-1, m + self.WG - 1)) if m % self.WG == 0 else False)
            d = vr(ACC+4*i, 4)
            I(f'v_mfma_f32_16x16x32_bf16 {d}, {vr(self.AR5+4*(m % self.RA5),4)}, {vr(80+4*(s_%NR),4)}, {d if (s_ or init) else 0}')
            its = [it() if callable(it) else it for it in side.get(m, [])]
            bars = [x for x in its if any(isinstance(y, Ins) and y.op == 's_barrier' for y in x)]
            for x in bars: a.extend(x)
            if m + self.DA5 < NM: self.areadS(banks, m + self.DA5)
            for x in its:
                if x not in bars: a.extend(x)
    def put(self, side, bundles, start, every):
        for k, b in enumerate(bundles): side.setdefault(start + int(k*every), []).append(b)
    def put3(self, side, bundles, start, every):
        for k, b in enumerate(bundles):
            m = 3*int(round((start + k*every)/3.0))
            pre, ld = b[:-1], b[-1:]
            assert len(pre) <= 2
            for q, x in enumerate(pre): side.setdefault(m - len(pre) + q, []).append([x])
            side.setdefault(m, []).append(ld)
    def bar(self, vm=False, lg=False):
        return [Wait(vm, lg), Ins('s_barrier')]

    def small(self, banks, xl, ACC, init, tail, fill=None, NUP=None, name='', mid=44):
        self._lf = None
        NR = self.NR5; NUP = self.NUP
        for s_ in range(NUP): xl(s_, 80+4*(s_ % NR))
        side = {}
        for s_ in range(NUP, 20):
            m = max(int((s_-NUP)*self.XE), 5*(s_-NR) + 5 if s_ >= NR else 0)
            m += m & 1
            side.setdefault(m, []).append(lambda s_=s_: self.cap(xl, s_, 80+4*(s_ % NR)))
        if mid: side.setdefault(mid, []).append(self.bar())
        t0 = max(46, int(1 + (20-NUP)*self.XE) + 1)
        tail = [self.cap(self.cpf)] + list(tail)
        self.put(side, tail, t0, min(4.0, (self.TE-t0)/len(tail)))
        for m in (0, 43, 45, 99): side.setdefault(m, []).append(lambda m=m: self.cap(self.ls, f'{name}_m{m}'))
        if name[:2] == 'w1': side.setdefault(0, []).append(lambda: self.cap(self.ls, f'ga{name[2]}_m0'))
        items = self.cap(self.gemmS, 20, banks, ACC, init, side, NR)
        left = []
        for st, its in (fill or []):
            items, lf = gapfill(items, its, start=st); left += lf
        self.a.extend(items); self.flat(left)
    XE = float(os.environ.get('XE', 4.0)); NUP = int(os.environ.get('NUP', 8)); PB = int(os.environ.get('PB', 1))

    def layer(self, l, B):
        a = self.a; I = self.I
        last = (l == 1)
        ACC, XP, PK, TMP = 20, 40, 60, 72
        NMr, R1r, RRr = 76, 78, 74
        if l == 0: self.AR5, self.RA5, self.DA5, self.NR5, M = 128, 10, 8, 12, 168
        else:      self.AR5, self.RA5, self.DA5, self.NR5, M = 208, 12, 10, 20, 168
        n5 = 'nt' if self.NTW & 1 else ''; n4 = 'nt' if self.NTW & 2 else ''
        wo = lambda ch, bk: self.dma_b(sW5, WT_O + ch*BANK, bk, 'wo', sc=n5)
        w1 = lambda ch, bk: self.dma_b(sW5, WT_1 + ch*BANK, bk, 'w1', sc=n5)
        w2 = lambda ch, bk: self.dma_b(sW5, WT_2 + ch*BANK, bk, 'w2', sc=n5)
        CH = (lambda c: 11 - c) if (l and self.REV) else (lambda c: c)
        w4 = lambda ch, bk: self.dma_b(sW4, WT_4 + CH(ch)*BANK, bk, ('w4', ch), sc=n4)
        w4b = [B[4], B[7], B[0], B[3], B[1], B[2], B[5], B[6], B[4], B[7], B[0], B[3]]
        def w3l(k):
            kk = (k % 3)*20 + k // 3
            return [Ins(f's_add_u32 s3, {sW3}, {WT_3 + kk*1024}'), Ins(f'buffer_load_dwordx4 {ar(4*kk,4)}, {vL16}, {WS}, s3 offen {n4}', ('w3', k // 3))]
        def tq():
            r = self.touchT(OB(l), 20480) if not (l and self.NOT) else []
            if l:
                r += self.touch(WT_O, 50)
                if self.TW1 == 2: r += self.touch(WT_1, 50)
                if self.TW2:
                    with a.capture() as c2:
                        I(f's_lshr_b32 s7, {sWI}, 4'); I('s_mul_i32 s7, s7, 102400'); I(f's_and_b32 s6, {sWI}, 7'); I('s_mul_i32 s6, s6, 2560'); I('s_add_u32 s7, s7, s6')
                        I(f's_bitcmp1_b32 {sWI}, 3'); I(f's_cselect_b32 s6, {4*BANK}, 0'); I('s_add_u32 s7, s7, s6')
                    r.append(c2.items + self.touch2('s7', WT_2, 20)[0])
            return r
        f1 = lambda: self.touch(WT_1, 50) if (l and self.TW1 == 1) else []
        f2 = lambda: wo(0, B[7]) + wo(1, B[0]) + wo(2, B[1]) + wo(3, B[2]) + wo(4, B[3])
        f4 = lambda: w1(0, B[5])
        self.qkv(l, B[0:4], B[4], B[5:7], tq, f1, f2, f4)
        if self.stop == f'qkv{l}': return True
        wob = [B[7], B[0], B[1], B[2], B[3]]
        I('s_barrier')
        if l == 0 and self.LSM == 2: self.arrive(1, 32)
        self.preloadS(wob)
        self.unpack(ACC, RES, 10)
        I(f's_lshl_b32 {sT[3]}, {sC}, 7'); I(f's_add_u32 {sT[3]}, {sT[3]}, {FLO}')
        if self.PB: self.poll(vFl, sT[3], l+1, behind=w1(1, B[6]))
        else:
            self.emit(w1(1, B[6])); self.poll(vFl, sT[3], l+1)
        self.stamp(f'wo{l}_go')
        tl = ([] if self.G1 else w1(2, B[4])) + w1(3, B[7]) + w1(4, B[0])
        self.small(wob, lambda s_, r: self.load_frag(r, vL16, sT20, OB(l), s_, ('x', s_)), ACC, True, tl, name=f'wo{l}')
        self.stamp(f'wo{l}_gemm')
        self.ls(f'ga{l}_0')
        self.pack(PK, ACC, 10)
        self.store_tile(PK, XB(l), sA21, sH21)
        self.ls(f'ga{l}_st')
        self.prod_stats(ACC, TMP)
        self.store_stats(TMP, XB(l), 2 - l)
        self.ls(f'ga{l}_stats')
        if l == 0: self.emit(self.allchk_issue(1, M))
        for i in range(20): I(f'v_mov_b32 v{XP+i}, v{ACC+i}')
        a.wait(vm='st')
        self.ls(f'ga{l}_drain')
        self.setflag(sFLo, 8*l+1)
        CW = 176 if l else 128
        if l: self.decomp(CW, 249, 16, 70); self.decomp(CW+16, 250, 4, 70)
        I('s_barrier')
        self.ls(f'ga{l}_bar')
        if self.stop == f'wo{l}': return True
        w1b = [B[5], B[6], B[4], B[7], B[0]]
        def cw1():
            for k, base in enumerate((vL16, vL16b, vL16c)): I(f'v_add_u32 v{60+k}, {sLW}, {base}')
            for r in range(4): I(f'v_mov_b32 v{TMP+r}, 0x3f803f80')
            def rd(k):
                ch, i = divmod(k, 5); off = w1b[ch]*BANK + i*1024
                I(f'ds_read_b128 {vr(80+4*(k % 12),4)}, v{60+(off>>16)} offset:{off&0xffff}', ('cw', k))
            for k in range(10): rd(k)
            for k in range(25):
                a.wait(lg=('cw', k))
                d = vr(ACC+4*(k % 5), 4); I(f'v_mfma_f32_16x16x32_bf16 {d}, {vr(80+4*(k % 12),4)}, {vr(TMP,4)}, {d if k >= 5 else 0}')
                if k + 10 < 25: rd(k+10)
            cwo = B[3]*BANK
            I('v_lshrrev_b32 v70, 4, v0'); I('v_lshlrev_b32 v70, 4, v70'); I(f'v_add_u32 v70, {cwo}, v70')
            I(f's_mul_i32 {sT[3]}, {sW}, 320'); I(f'v_add_u32 v63, {sT[3]}, v70')
            I('v_bfe_u32 v71, v0, 2, 2'); I('v_and_b32 v64, 3, v0')
            I('v_lshl_add_u32 v70, v64, 2, v70'); I('v_lshl_add_u32 v71, v71, 6, v70')
            for i in range(5): I(f'ds_write_b128 v63, {vr(ACC+4*i,4)} offset:{i*64}', 'cww')
        if l == 0:
            cw1()
            self.preloadS(w1b)
            self.allchk(M)
        else:
            self.preloadS(w1b)
            if not self.PB: self.emit(w2(0, B[1]))
        I(f'v_and_b32 v{M}, 7, v0'); I(f'v_lshlrev_b32 v{M}, 2, v{M}')
        I(f's_lshl_b32 {sT[3]}, {sTT}, 5'); I(f's_add_u32 {sT[3]}, {sT[3]}, {FL}')
        if l == 0: a.wait(lg='cww')
        self.ls(f'ga{l}_pre')
        self.poll(f'v{M}', sT[3], 8*l+1, behind=(w2(0, B[1]) if l else []) if self.PB else None)
        self.ls(f'ga{l}_poll')
        self.stamp(f'w1{l}_go')
        fills = []
        if l == 0:
            its = []
            for k in range(4):
                its.append(Ins(f'ds_read_b32 v{60+k}, v71 offset:{k*320}', 'cr'))
                its.append(Ins(f'ds_read_b32 v{64+k}, v70 offset:{k*320+256}', 'cr'))
            fills.append((46, its))
            fills.append((66, [Wait(lg='cr'), Ins('v_add_f32 v60, v60, v61'), Ins('v_add_f32 v62, v62, v63'), Ins('v_add_f32 v64, v64, v65'), Ins('v_add_f32 v66, v66, v67'),
                               Ins('v_add_f32 v60, v60, v62'), Ins('v_add_f32 v64, v64, v66'), Ins('v_accvgpr_write_b32 a249, v60'), Ins('v_accvgpr_write_b32 a250, v64')]))
        fills.append((68, self.stchk(M+4, 1, 2 - l, NMr, [(vL16, sT21, XB(l)+20480)]) + self.cap(self.cons_stats, M+4, NMr, RRr, double=True, r1=R1r) + [Ins(f'v_mov_b32 v{M}, v{NMr}')] + self.cap(self.gconst, M, RRr)))
        stl = [lambda: self.cap(self.load_frag, M+4, vL16, sT21, XB(l), 20, 'stat')]
        tl = stl + (w2(0, B[1]) if l == 0 else []) + w2(1, B[2]) + w2(2, B[5]) + (w2(3, B[6]) if l else [])
        self.small(w1b, lambda s_, r: self.load_frag(r, vL16, sT21, XB(l), s_, ('x', s_)), ACC, False, tl, fills, name=f'w1{l}')
        self.stamp(f'w1{l}_gemm')
        if l == 0:
            for q in range(20): I(f'v_mov_b32_dpp v{CW+q}, v{60 if q < 16 else 64} row_newbcast:{q & 15} row_mask:0xf bank_mask:0xf')
        self.weave(self.cap(self.lgA, ACC, CW, 10, 80, M), w2(3, B[6]) if l == 0 else w2(4, B[3]), 8); self.lgB(ACC, 10, 80, M, True)
        self.pack(PK, ACC, 10)
        I(f'v_or_b32 v70, {sEdge}, {vL16}'); I(f'v_or_b32 v71, {sEdge}, {vS8}')
        self.store_tile(PK, HB(l), sA20, sH20)
        self.store_tile(PK, HD(l), sA20, sH20, sc1=True, vA='v70', vH='v71', tag='sth')
        for i in range(10): I(f'v_pk_add_f32 {vr(ACC+2*i,2)}, {vr(XP+2*i,2)}, {vr(NMr,2)} op_sel_hi:[1,0]')
        for i in range(10): I(f'v_pk_mul_f32 {vr(ACC+2*i,2)}, {vr(ACC+2*i,2)}, {vr(R1r,2)} op_sel_hi:[1,0]')
        I(f's_lshl_b32 {sT[3]}, {sTT}, 4')
        I('v_and_b32 v84, 15, v0'); I(f'v_add_u32 v84, {sT[3]}, v84')
        I('v_lshrrev_b32 v85, 4, v0'); I('v_lshlrev_b32 v85, 8, v85')
        I(f'v_mov_b32 v88, {OOB}'); I(f'v_mov_b32 v89, {HD(l)-HB(l)}')
        for gi, dl in enumerate((-1, 1, -2, 2)):
            if gi == 2:
                a.wait(vm='st'); self.setflag(sFLo, 8*l+2)
            I(f'v_add_u32 v86, {dl}, v84')
            I('v_lshrrev_b32 v87, 4, v86'); I('v_and_b32 v87, 0xff, v87'); I('v_mul_u32_u24 v87, 20480, v87')
            I(f'v_and_b32 v{M+gi}, 15, v86'); I(f'v_lshl_add_u32 v{M+gi}, v{M+gi}, 4, v87'); I(f'v_add_u32 v{M+gi}, v{M+gi}, v85')
            I('v_lshrrev_b32 v87, 8, v86'); I(f'v_cmp_ne_u32 vcc, {sXG}, v87')
            I('v_cndmask_b32 v87, 0, v89, vcc'); I(f'v_add_u32 v{M+gi}, v{M+gi}, v87')
            I('v_cmp_gt_u32 vcc, 0x800, v86'); I(f'v_cndmask_b32 v{M+gi}, v88, v{M+gi}, vcc')
        I('s_barrier')
        if self.stop == f'w1{l}': return True
        w2b = [B[1], B[2], B[5], B[6], B[3]]
        self.preloadS(w2b)
        if l == 0: self.emit(w2(4, B[3]))
        I(f's_and_b32 {sT[8]}, {sTT}, 15')
        I(f's_cmp_eq_u32 {sT[8]}, 0'); I(f's_cselect_b32 {sT[4]}, 32, 0')
        I(f's_cmp_eq_u32 {sT[8]}, 15'); I(f's_cselect_b32 {sT[5]}, 32, 64')
        I('v_and_b32 v84, 7, v0'); I('v_lshlrev_b32 v84, 2, v84'); I('v_lshrrev_b32 v86, 3, v0')
        I('v_mov_b32 v85, 32'); I(f'v_mov_b32 v87, {sT[4]}'); I(f'v_mov_b32 v88, {sT[5]}')
        I('v_cmp_eq_u32 vcc, 1, v86'); I('v_cndmask_b32 v85, v85, v87, vcc')
        I('v_cmp_eq_u32 vcc, 2, v86'); I('v_cndmask_b32 v85, v85, v88, vcc')
        I('v_add_u32 v85, v85, v84')
        I(f's_lshl_b32 {sT[3]}, {sTT}, 5'); I(f's_add_u32 {sT[3]}, {sT[3]}, {FL-32}')
        I('v_min_u32 v84, 59, v0'); I('v_add_u32 v87, -20, v84')
        I('v_lshrrev_b32 v88, 1, v87'); I('v_add_u32 v88, 40, v88'); I('v_and_b32 v87, 1, v87')
        I(f's_xor_b32 {sT[4]}, {sBot}, 1')
        I('v_cmp_gt_u32 vcc, 20, v84'); I('v_cndmask_b32 v88, v88, v84, vcc'); I(f'v_mov_b32 v89, {sT[4]}'); I('v_cndmask_b32 v87, v87, v89, vcc')
        I('v_lshlrev_b32 v86, 8, v88'); I('v_lshl_add_u32 v86, v87, 4, v86'); I(f'v_or_b32 v86, {sEdge}, v86')
        I(f's_cmp_eq_u32 {sBot}, 1'); I(f's_mov_b32 {sT[4]}, {HD(l) - 20480 + 14*16}'); I(f's_cselect_b32 {sT[4]}, {HD(l) + 20480 + 5120}, {sT[4]}')
        I(f's_add_u32 {sT[4]}, {sT[4]}, {sT20}')
        L = a.newlabel('POLL'); D = a.newlabel('PDONE')
        I(f's_mov_b32 {sSpin}, {sDead}')
        a.label(L)
        I(f'buffer_load_dword {vT0}, v85, {WS}, {sT[3]} offen sc1')
        I(f'buffer_load_dwordx4 {vr(88,4)}, v86, {WS}, {sT[4]} offen sc1')
        a.wait(vm=None)
        I(f'v_max3_u32 v88, v88, v89, v90'); I('v_max_u32 v88, v88, v91')
        I(f'v_cmp_le_u32 vcc, {8*l+2}, {vT0}'); I('v_cmp_ne_u32 s[6:7], -1, v88')
        I('s_and_b64 vcc, vcc, s[6:7]')
        I('s_cmp_eq_u64 vcc, -1'); I(f's_cbranch_scc1 {D}')
        I(f's_sub_u32 {sSpin}, {sSpin}, 1'); I(f's_cbranch_scc0 {L}')
        I(f's_mov_b32 {sDead}, 0')
        a.label(D)
        self.stamp(f'w2{l}_go')
        I(f's_mov_b32 {sT[3]}, 0')
        tl = (w4(0, w4b[0]) + w4(1, w4b[1]) if self.E4 else []) if l else w4(0, w4b[0]) + w4(1, w4b[1])
        self.small(w2b, lambda s_, r: self.load_frag(r, f'v{M+s_//5}', sT[3], HB(l), s_, ('x', s_)), ACC, True, tl, name=f'w2{l}', mid=0 if l else 68)
        self.stamp(f'w2{l}_gemm')
        self.pack(PK, ACC, 10)
        self.store_tile(PK, X1(l), sA21, sH21)
        self.prod_stats(ACC, TMP)
        self.store_stats(TMP, X1(l), 1 + l)
        NH = self.W3G if l == 0 else 0
        self.emit([w3l(k) for k in range(NH)])
        for i in range(10): I(f'v_pk_add_f32 {vr(XP+2*i,2)}, {vr(XP+2*i,2)}, {vr(ACC+2*i,2)}')
        xb = [B[1], B[2], B[5], B[6]]
        if l: CW3, ST3, A3, BF, GT = 80, 96, 128, 208, 176; NP3 = [112, 116, 120, 124]
        else: CW3, ST3, A3, BF, GT = 20, 60, 80, 128, 60; NP3 = [160, 164, 168, 172]
        a.wait(vm='st')
        self.setflag(sFLo, 8*l+3)
        if l: self.decomp(CW3, 251, 12, 92)
        I('s_barrier')
        if self.stop == f'w2{l}': return True
        I(f's_lshl_b32 {sT[3]}, {sC}, 7'); I(f's_add_u32 {sT[3]}, {sT[3]}, {FL}')
        def epiA(t): self.lgA(A3+12*t, CW3, 6, GT, NP3[t])
        def epiB(t, pk):
            self.lgB(A3+12*t, 6, GT, NP3[t], pk); self.pack(A3+12*t, A3+12*t, 6)
        def st3(t):
            acc = A3 + 12*t
            I(f's_add_u32 {sT[0]}, {sA48}, {H2(l)+t*49152}'); I(f's_add_u32 {sT[1]}, {sH48}, {H2(l)+t*49152}')
            pl = l and not self.H2SC
            sc = '' if pl else ' sc1'
            if pl: a.slow_begin(sMODE)
            I(f'buffer_store_dwordx4 {vr(acc,4)}, {vL16}, {WS}, {sT[0]} offen{sc}', 'st')
            I(f'buffer_store_dwordx2 {vr(acc+4,2)}, {vS8}, {WS}, {sT[1]} offen{sc}', 'st')
            if pl: a.slow_end()
        stf = self.stchk(ST3, 4, 1 + l, NP3[0], [(vL16, sC21, X1(l)+u*21504+20480) for u in range(4)]) + rr(*[self.cap(self.cons_stats, ST3+4*u, NP3[u], ST3+4*u+3) + self.cap(self.gconst, NP3[u], ST3+4*u+3) for u in range(4)])
        stl = lambda: [self.cap(self.load_frag, ST3+4*u, vL16, sC21, X1(l) + u*21504, 20, 'stat') for u in range(4)]
        if l == 0:
            for r in range(4): I(f'v_mov_b32 v{32+r}, 0x3f803f80')
            I(f's_mov_b32 {sT[6]}, {xb[0]*BANK}')
            for t in range(1, 4):
                I(f's_cmp_eq_u32 {sW}, {t}'); I(f's_cselect_b32 {sT[6]}, {xb[t]*BANK}, {sT[6]}')
            self.poll(vFl, sT[3], 8*l+3)
            self.stamp(f'w3{l}_go')
            self._lf = None
            x1 = lambda c: self.dma_b(sT21, X1(l) + c*5120, 0, ('x1', c), sc='sc1', slw=sT[6], ldsoff=c*5120)
            RB, DB = 8, 6
            def bread(n):
                s_, t = divmod(n, 4)
                b, o = self.lds(xb[t]*BANK + s_*1024)
                I(f'ds_read_b128 {vr(BF+4*(n % RB),4)}, {b} offset:{o}', ('b', n))
            WL = self.W3L
            self.emit(x1(0) + x1(1))
            self.emit([w3l(k) for k in range(NH, max(NH, 3*WL))])
            nw = max(NH, 3*WL)
            a.wait(vm=('x1', 0)); I('s_barrier')
            for n in range(DB): bread(n)
            xq = x1(2) + x1(3) + stl()
            late = w4(2, w4b[2]) + w4(3, w4b[3])
            with a.capture() as c:
                for s_ in range(20):
                    if s_ in (0, 5, 10, 15): self.ls(f'w30_s{s_}')
                    a.wait(vm=('w3', s_))
                    for t in range(5):
                        n = 4*s_ + t
                        for i in range(3):
                            if t < 4:
                                if i == 0: a.wait(lg=('b', n))
                                d = vr(A3+12*t+4*i, 4); bop = vr(BF+4*(n % RB), 4)
                            else:
                                d = vr(CW3+4*i, 4); bop = vr(32, 4)
                            I(f'v_mfma_f32_16x16x32_bf16 {d}, {ar(4*(i*20+s_),4)}, {bop}, {d if s_ else 0}')
                            if t < 4 and i == 0 and n + DB < 80:
                                if (n + DB) % 20 == 0:
                                    a.wait(vm=('x1', (n+DB)//20)); I('s_barrier')
                                bread(n + DB)
                            if i == 1:
                                if t < self.W3R and nw < 60: a.extend(w3l(nw)); nw += 1
                                elif xq and (t == 4 or nw >= 60): a.extend(xq.pop(0))
                                elif late and nw >= 60 and t % 2 == 0: a.extend(late.pop(0))
            assert nw == 60 and not xq, (nw, len(xq))
            o, left = gapfill(c.items, stf, start=240)
            a.extend(o); self.flat(left)
            self.ls('w30_k')
            I('s_barrier')
            wv = late + w4(4, xb[0]) + w4(5, xb[1]) + w4(6, xb[2]) + w4(7, xb[3])
            for t in range(4):
                k = (len(wv) - 5 + 2 - t)//(3 - t) if t < 3 else 0
                self.weave(self.cap(epiA, t) + self.cap(epiB, t, True), wv[:k], 16); wv = wv[k:]
                st3(t)
            self.emit(wv)
            I('v_and_b32 v33, 15, v0'); I(f'v_mov_b32 v32, v{CW3}')
            for i in range(1, 12):
                I(f'v_cmp_eq_u32 vcc, {i}, v33'); I(f'v_cndmask_b32 v32, v32, v{CW3+i}, vcc')
            I('v_accvgpr_write_b32 a251, v32')
        else:
            I(f's_add_u32 {sT[4]}, {sC21}, {sLW}')
            self.poll(vFl, sT[3], 8*l+3)
            self.stamp(f'w3{l}_go')
            self._lf = None
            x1 = lambda t: self.dma_b(sT[4], X1(l) + t*21504, xb[t], ('x1', t), sc='sc1')
            self.emit(x1(0) + stl())
            RB, DB = 8, 6
            def bread(n):
                t, s_ = divmod(n, 20)
                b, o = self.lds(xb[t]*BANK + s_*1024)
                I(f'ds_read_b128 {vr(BF+4*(n % RB),4)}, {b} offset:{o}', ('b', n))
            a.wait(vm=('x1', 0)); I('s_barrier')
            self.ls(f'w3{l}_x0')
            for n in range(DB): bread(n)
            vm_side = {}
            self.put3(vm_side, x1(1) + x1(2) + x1(3), 3, 3.9)
            self.put(vm_side, [self.cap(self.cpf)], 61, 1)
            if self.T4:
                I(f's_lshr_b32 {sT[7]}, {sWI}, 4'); I(f's_mul_i32 {sT[7]}, {sT[7]}, 245760'); I(f's_and_b32 s6, {sWI}, 15'); I('s_mul_i32 s6, s6, 6400')
                I(f's_add_u32 {sT[7]}, {sT[7]}, s6'); I(f's_add_u32 {sT[7]}, {sT[7]}, {WT_4 + 7*BANK}'); I(f's_add_u32 {sT[8]}, {sT[7]}, 4096')
                tb = [[Ins(f'buffer_load_dwordx4 a[252:255], {vL16}, {WS}, {sT[7 if k < 4 else 8]} offen offset:{(k&3)*1024}', 'touch')] for k in range(7)]
                for k, x in enumerate(tb): vm_side.setdefault(3*((self.T4 + k*self.T4E)//3) + 1, []).append(x)
            if self.WB:
                wl = a.newlabel('WB')
                self.put(vm_side, [[Ins(f's_cmp_lg_u32 {sWI}, 0'), Ins(f's_cbranch_scc1 {wl}'), Raw('    buffer_wbl2 sc1'), Label(wl)]], self.WB, 1)
            if not self.NOW4: self.put3(vm_side, ([] if self.E4 else w4(0, w4b[0]) + w4(1, w4b[1])) + w4(2, w4b[2]) + w4(3, w4b[3]) + w4(4, xb[0]) + w4(5, xb[1]) + w4(6, xb[2]), 63, 6.9 if self.E4 else 4.9)
            for t in range(4):
                with a.capture() as c:
                    for s_ in range(20):
                        n = 20*t + s_
                        for i in range(3):
                            m = 3*n + i
                            if m == 0: a.wait(lg=('b', 0))
                            d = vr(A3+12*t+4*i, 4)
                            I(f'v_mfma_f32_16x16x32_bf16 {d}, {ar(4*(i*20+s_),4)}, {vr(BF+4*(n % RB),4)}, {d if s_ else 0}')
                            if i == 0 and n + DB < 80:
                                if n == 14: a.wait(vm=('x1', 1)); I('s_barrier')
                                if n == 34: a.wait(vm=('x1', 3)); I('s_barrier')
                                if n == 54 or n == 62: I('s_barrier')
                                bread(n + DB)
                            for it in vm_side.get(m, []): a.extend(it)
                            if i == 0 and n + 1 < 80: a.wait(lg=('b', n+1))
                if t == 0: o, left = gapfill(c.items, stf, start=6)
                else: o, left = gapfill(c.items, self.cap(epiB, t-1, False) + [self.cap(st3, t-1)])
                a.extend(o)
                if os.environ.get('V'): print('w3 tile', t, 'left', len(left))
                for x in left:
                    if isinstance(x, list): a.extend(x)
                    else: a.items.append(x)
                epiA(t)
                self.ls(f'w3{l}_t{t}')
            epiB(3, True); st3(3)
        self.stamp(f'w3{l}_gemm')
        a.wait(vm='st')
        self.setflag(sFLo, 8*l+4)
        I('s_barrier')
        if self.stop == f'w3{l}': return True
        self.preloadS(w4b)
        if l and self.C7: self.emit(w4(7, w4b[7]))
        I(f's_lshl_b32 {sT[3]}, {sC}, 7'); I(f's_add_u32 {sT[3]}, {sT[3]}, {FL}')
        self.poll(vFl, sT[3], 8*l+4)
        self.stamp(f'w4{l}_go')
        if self.LOOP4 and l:
            I('s_mov_b32 s41, 0'); a.label('LP4'); a.wait(vm=None, lg=None); I('s_barrier'); self.preloadS(w4b); a.wait(lg=None)
            a.raw('    s_memtime s[20:21]')
        self._lf = None
        NR = 32 if l else 12
        xl = lambda s_: self.load_frag(80+4*(s_ % NR), vL16, sT48, H2(l), 4*CH(s_ // 4) + s_ % 4, ('x', s_))
        NUP = self.W4N1 if l else self.W4N
        for s_ in range(NUP): xl(s_)
        side = {}
        self.put(side, [(lambda s_=s_: self.cap(xl, s_)) for s_ in range(NUP, 48)], 1, self.W4X1 if l else 5)
        if l and not self.C7: self.put(side, w4(7, w4b[7]), 3, 8)
        side.setdefault(40, []).append(self.bar());  self.put(side, w4(8, w4b[8]) + w4(9, w4b[9]), 43, self.W4P)
        side.setdefault(90, []).append(self.bar(vm=('w4', 7)));  self.put(side, w4(10, w4b[10]) + w4(11, w4b[11]), max(93, int(43+10*self.W4P)), self.W4P)
        side.setdefault(195, []).append(self.cap(self.cpf))
        side.setdefault(149, []).append(self.bar(vm=[('w4', 8), ('w4', 9)]))
        side.setdefault(189, []).append(self.bar(vm=[('w4', 10), ('w4', 11)]))
        nB = [B[1], B[2], B[5], B[6], B[4], B[7], B[0], B[3]]
        def unst(k):
            off = nB[k // 5]*BANK + (k % 5)*1024
            return [Ins(f'ds_write_b128 v{M+(off>>16)}, {vr(176+4*k,4)} offset:{off & 0xffff}', 'unst')]
        if not last:
            for k, base in enumerate((vL16, vL16b, vL16c)): I(f'v_add_u32 v{M+k}, {sLW}, {base}')
            self.put(side, [unst(k) for k in range(self.NU)], 230 - 1, 1)
            if not self.NOT: self.put(side, self.touchT(XA(l+1), 21504), 192, 1)
        self.gemmS(48, w4b, XP, True, side, NR)
        if self.LOOP4 and l:
            a.raw('    s_memtime s[22:23]'); I('s_waitcnt lgkmcnt(0)')
            I('s_cmp_eq_u32 s41, 1'); I('s_cbranch_scc1 LP4D')
            I('s_mov_b32 s24, s20'); I('s_mov_b32 s26, s22'); I('s_mov_b32 s41, 1'); I('s_branch LP4')
            a.label('LP4D')
            self.lflush(['  it2start', '  it2', '  it1start', '  it1'])
        self.stamp(f'w4{l}_gemm')
        if not last:
            self.pack(RES, XP, 10)
            self.store_tile(RES, XA(l+1), sA21, sH21)
            self.prod_stats(XP, TMP)
            self.store_stats(TMP, XA(l+1), 2)
            self.emit([unst(k) for k in range(self.NU, self.NU+6)])
            a.wait(vm='st')
            self.setflag(sFLo, 8*l+5)
            self.emit([unst(k) for k in range(self.NU+6, 20)])
        else:
            self.pack(PK, XP, 10)
            I('v_and_b32 v20, 15, v0'); I('v_lshrrev_b32 v21, 4, v0')
            I('v_mul_u32_u24 v26, 1280, v20')
            I('v_lshl_add_u32 v27, v21, 4, v26'); I('v_lshl_add_u32 v28, v21, 3, v26')
            of = os.environ.get('OF', '')
            I(f'buffer_store_dwordx4 {vr(PK,4)}, v27, {OUT}, {sOutA} offen {of}')
            I(f'buffer_store_dwordx4 {vr(PK+4,4)}, v27, {OUT}, {sOutA} offen offset:64 {of}')
            I(f'buffer_store_dwordx2 {vr(PK+8,2)}, v28, {OUT}, {sOutH} offen {of}')
        self.stamp(f'w4{l}_end')
        self.nB = nB
        return self.stop == f'w4{l}'
    BS = int(os.environ.get('BS', 3)); STG = int(os.environ.get('STG', 8)); NOW4 = int(os.environ.get('NOW4', 0)); W3P = float(os.environ.get('W3P', 5))
    TLB = int(os.environ.get('TLB', 0))
    W3R = int(os.environ.get('W3R', 3))
    NW = int(os.environ.get('NW', 20)); NW0 = int(os.environ.get('NW0', 16)); C7 = int(os.environ.get('C7', 1)); W4N1 = int(os.environ.get('W4N1', 10)); W4X1 = float(os.environ.get('W4X1', 5))
    TE = int(os.environ.get('TE', 94)); TW1 = int(os.environ.get('TW1', 0)); TW2 = int(os.environ.get('TW2', 1))
    NTW = int(os.environ.get('NTW', 0)); NOT = int(os.environ.get('NOT', 1))
    T4E = int(os.environ.get('T4E', 24))
    REV = int(os.environ.get('REV', 0)); E4 = int(os.environ.get('E4', 0))
    LSM = int(os.environ.get('LSM', 2)); LSS = int(os.environ.get('LSS', 18)); TO0 = int(os.environ.get('TO0', 1))
    LOOP4 = int(os.environ.get('LOOP4', 0))
    LA0 = 3; LA1 = 3; ROT = int(os.environ.get('ROT', 1))
    H2SC = int(os.environ.get('H2SC', 1)); WB = int(os.environ.get('WB', 0))
    G1 = int(os.environ.get('G1', 0)); G2 = int(os.environ.get('G2', 0)); W3L = int(os.environ.get('W3L', 5)); NU = int(os.environ.get('NU', 6))
    T4 = int(os.environ.get('T4', 0)); HP = int(os.environ.get('HP', 10)); S2M = int(os.environ.get('S2M', 0)); WG = int(os.environ.get('WG', 2))
    W4X = float(os.environ.get('W4X', 5)); W4P = float(os.environ.get('W4P', 5)); W4N = int(os.environ.get('W4N', 11))
    NTQ = int(os.environ.get('NTQ', 0))
    W3H = int(os.environ.get('W3H', 10)); W3G = int(os.environ.get('W3G', 6))
    R3 = float(os.environ.get('R3', 1.4))
    CPF = int(os.environ.get('CPF', 1))
    LS = 0

    def build(self):
        a = self.a
        self.prologue()
        if self.stop != 'prep':
            B = list(range(8))
            if not self.layer(0, B):
                self.layer(1, self.nB)
        a.wait(vm=None, lg=None)
        if os.environ.get('SPIN'):
            a.I('s_sub_u32 s98, s100, s98')
            a.raw('    s_memrealtime s[100:101]'); a.I('s_waitcnt lgkmcnt(0)')
            a.label('SPINL')
            a.raw('    s_memrealtime s[94:95]'); a.I('s_waitcnt lgkmcnt(0)')
            a.I('s_sub_u32 s94, s94, s100'); a.I('s_cmp_lt_u32 s94, s98'); a.I('s_cbranch_scc1 SPINL')
        a.label('KEND')
        a.I('s_endpgm')
        a.extend(self.ool)
        main, stubs, n = a.finalize()
        hdr = open('cdna_kernels/' + NAME[:-7] + '.s.ref').read().split('; Override launch')[0]
        out = hdr + f"""; Persistent fused kernel (generated by own script): 256 workgroups, one per CU.
; @launch grid=(256,1,1) block=(256,1,1) lds=163840
.amdgcn_target "amdgcn-amd-amdhsa--gfx950"
.text
.globl {NAME}
.p2align 8
.type {NAME},@function
{NAME}:
KSTART:
{main}
{stubs}
CODE_END:
.section .rodata,"a"
.p2align 6
.amdhsa_kernel {NAME}
  .amdhsa_next_free_vgpr 512
  .amdhsa_next_free_sgpr 102
  .amdhsa_accum_offset 256
  .amdhsa_group_segment_fixed_size 0
  .amdhsa_kernarg_size 96
  .amdhsa_user_sgpr_count 2
  .amdhsa_user_sgpr_kernarg_segment_ptr 1
  .amdhsa_system_sgpr_workgroup_id_x 1
.end_amdhsa_kernel
"""
        return out, n

if __name__ == '__main__':
    import argparse, json
    ap = argparse.ArgumentParser()
    ap.add_argument('-o', default='k.s'); ap.add_argument('--stop'); ap.add_argument('--stamps', action='store_true')
    args = ap.parse_args()
    g = Gen(args.stop, args.stamps)
    s, n = g.build()
    open(args.o, 'w').write(s)
    json.dump(g.stampnames, open(args.o + '.stamps.json', 'w'))
    print('instructions', n, 'bytes', len(s))
```
